```python
import torch

def _softmax(x, axis=-1):
    return torch.softmax(x, dim=axis)
def _gelu(x):
    return torch.nn.functional.gelu(x, approximate="tanh")
def _silu(x):
    return torch.nn.functional.silu(x)
def _sigmoid(x):
    return torch.sigmoid(x)
def _layernorm(x, axis=-1, eps=1e-5):
    m = x.mean(dim=axis, keepdim=True)
    v = x.var(dim=axis, keepdim=True, unbiased=False)
    return (x - m) / torch.sqrt(v + eps)
def _scatter_add(tgt, idx, src, axis=0):
    return tgt.clone().index_add_(axis, idx, src)
def _segment_sum(src, seg, n):
    out = torch.zeros((n,) + src.shape[1:], dtype=src.dtype)
    return out.index_add_(0, seg, src)
def _pad(x, pw):
    flat = tuple(v for pair in reversed(pw) for v in pair)
    return torch.nn.functional.pad(x, flat)

kernel_name = 'parallel_sum__linear_kernel_hedgehog__glu_gated_glu__prompt'

def setup_inputs():

    _w = (lambda a: (lambda t: t.to(torch.bfloat16) if t.is_floating_point() else t)(torch.as_tensor(a)))
    def _A_setup():
        B, S, D, H = 1, 2048, 640, 32
        Dh = D // H
        return {
            "x": _w((lambda *s: torch.randn(*s, dtype=torch.bfloat16) * 0.05)(B, S, D)),
            "wqkv": _w((lambda *s: torch.randn(*s, dtype=torch.bfloat16) * 0.4)(D, 3 * D)),
            "w_phi": _w((lambda *s: torch.randn(*s, dtype=torch.bfloat16) * 0.4)(H, Dh, Dh) * (Dh ** -0.5)),
            "wo": _w((lambda *s: torch.randn(*s, dtype=torch.bfloat16) * 0.1)(D, D)),
        }
    _A_in = _A_setup()

    def _B_setup():
        B, S, D, F = 1, 2048, 640, 1536
        return {
            "x": _w((lambda *s: torch.randn(*s, dtype=torch.bfloat16) * 0.05)(B, S, D)),
            "w_gate": _w((lambda *s: torch.randn(*s, dtype=torch.bfloat16) * 0.05)(D, F)),
            "w_up": _w((lambda *s: torch.randn(*s, dtype=torch.bfloat16) * 0.05)(D, F)),
            "w_down": _w((lambda *s: torch.randn(*s, dtype=torch.bfloat16) * 0.05)(F, D)),
        }
    _B_in = _B_setup()

    return {
        "A_x": _A_in["x"],
        "A_wqkv": _A_in["wqkv"],
        "A_w_phi": _A_in["w_phi"],
        "A_wo": _A_in["wo"],
        "B_x": _B_in["x"],
        "B_w_gate": _B_in["w_gate"],
        "B_w_up": _B_in["w_up"],
        "B_w_down": _B_in["w_down"],
    }

def reference(A_x, A_wqkv, A_w_phi, A_wo, B_x, B_w_gate, B_w_up, B_w_down):
    def _A_ref(x, wqkv, w_phi, wo):
        B, S, D = x.shape
        H = 32; Dh = D // H
        qkv = (lambda x, *d: x.permute(*d))((x @ wqkv).reshape(B, S, 3, H, Dh), 2, 0, 3, 1, 4)
        q, k, v = qkv[0], qkv[1], qkv[2]
        pq = torch.einsum("bhsd,hdf->bhsf", q, w_phi)
        pk = torch.einsum("bhsd,hdf->bhsf", k, w_phi)
        phi_q = torch.concatenate([_softmax(pq, axis=-1), _softmax(-pq, axis=-1)], axis=-1)
        phi_k = torch.concatenate([_softmax(pk, axis=-1), _softmax(-pk, axis=-1)], axis=-1)
        kv = torch.einsum("bhsf,bhsd->bhfd", phi_k, v)
        z  = torch.einsum("bhsf->bhf", phi_k)
        num = torch.einsum("bhqf,bhfd->bhqd", phi_q, kv)
        den = torch.einsum("bhqf,bhf->bhq", phi_q, z)[..., None] + 1e-6
        o = num / den
        return (lambda x, *d: x.permute(*d))(o, 0, 2, 1, 3).reshape(B, S, D) @ wo

    def _B_ref(x, w_gate, w_up, w_down):
        g = torch.einsum("bsd,df->bsf", x, w_gate)
        u = torch.einsum("bsd,df->bsf", x, w_up)
        h = _sigmoid(g) * u
        return torch.einsum("bsf,fd->bsd", h, w_down)

    x = A_x
    xn = _layernorm(x, axis=-1)
    return x + _A_ref(xn, A_wqkv, A_w_phi, A_wo) + _B_ref(xn, B_w_gate, B_w_up, B_w_down)
```

```python
import re

REG = re.compile(r'\b([vas])(\d+)\b|\b([vas])\[(\d+):(\d+)\]')

def regs_of(op):
    out = []
    for m in REG.finditer(op):
        if m.group(1):
            out.append((m.group(1), int(m.group(2))))
        else:
            for i in range(int(m.group(4)), int(m.group(5)) + 1):
                out.append((m.group(3), i))
    o = op.strip()
    if o in ("vcc", "vcc_lo", "vcc_hi"): out.append(("vcc", 0))
    if o in ("exec", "exec_lo", "exec_hi"): out.append(("exec", 0))
    if o == "m0": out.append(("m0", 0))
    return out

TRANS = ("v_exp_f32", "v_log_f32", "v_rcp_f32", "v_rsq_f32", "v_sqrt_f32", "v_sin_f32", "v_cos_f32")

class Ins:
    __slots__ = ("text", "op", "kind", "wr", "rd", "tok", "waits", "passes", "srcC", "srcAB", "wide", "dpp")
    def __init__(self, text, tok=None, waits=()):
        self.text = text; self.tok = tok; self.waits = list(waits)
        self.passes = 0; self.srcC = []; self.srcAB = []; self.wide = False; self.dpp = False
        t = text.split(";")[0].strip()
        if t.endswith(":") or t.startswith("."):
            self.op = t; self.kind = "label"; self.wr = []; self.rd = []; return
        sp = t.split(None, 1)
        op = sp[0]; self.op = op
        rest = sp[1] if len(sp) > 1 else ""
        ops = []; cur = ""; d = 0
        for ch in rest:
            if ch == "[": d += 1
            if ch == "]": d -= 1
            if ch == "," and d == 0: ops.append(cur.strip()); cur = ""
            else: cur += ch
        if cur.strip(): ops.append(cur.strip())
        mods = ""
        if ops:
            parts = ops[-1].split(None, 1)
            ops[-1] = parts[0]
            if len(parts) > 1: mods = parts[1]
        R = [regs_of(o) for o in ops]
        flat = lambda L: [r for x in L for r in x]
        self.wr = []; self.rd = []
        if op.startswith("v_mfma"):
            self.kind = "mfma"
            self.wr = R[0]; self.srcAB = R[1] + R[2]; self.srcC = R[3]; self.rd = self.srcAB + self.srcC
            self.passes = 8 if "32x32" in op else (4 if "16x16" in op else 2)
        elif op.startswith("ds_read") or op.startswith("ds_bpermute") or op.startswith("ds_swizzle"):
            self.kind = "ds_rd"; self.wr = R[0]; self.rd = flat(R[1:])
        elif op.startswith("ds_"):
            self.kind = "ds_wr"; self.rd = flat(R)
        elif op.startswith("buffer_load") or op.startswith("global_load"):
            if re.search(r'\blds\b', mods):
                self.kind = "vm_dma"; self.rd = flat(R) + [("m0", 0)]
            else:
                self.kind = "vm_ld"; self.wr = R[0]; self.rd = flat(R[1:])
        elif op.startswith("buffer_store") or op.startswith("buffer_atomic") or op.startswith("global_store") or op.startswith("global_atomic"):
            self.kind = "vm_st"; self.rd = flat(R)
            self.wide = ("x4" in op or "x3" in op)
            self.srcC = R[0] if op.startswith("buffer") else R[1]
        elif op.startswith("s_load") or op.startswith("s_memtime") or op.startswith("s_memrealtime") or op.startswith("s_buffer_load"):
            self.kind = "smem"; self.wr = R[0]; self.rd = flat(R[1:])
        elif op in ("s_waitcnt", "s_nop", "s_barrier", "s_endpgm", "s_sleep", "s_setprio") or op.startswith("s_cbranch") or op == "s_branch":
            self.kind = "ctl"
        elif op.startswith("s_cmp") or op.startswith("s_bitcmp"):
            self.kind = "salu"; self.rd = flat(R)
        elif op.startswith("s_"):
            self.kind = "salu"; self.wr = R[0]; self.rd = flat(R[1:])
            if "saveexec" in op: self.wr = self.wr + [("exec", 0)]
        elif op.startswith("v_"):
            self.kind = "trans" if op.replace("_e32", "").replace("_e64", "") in TRANS else "valu"
            if op.startswith("v_cmp"):
                self.wr = R[0]; self.rd = flat(R[1:])
            elif op.startswith("v_permlane") or op.startswith("v_swap"):
                self.wr = R[0] + R[1]; self.rd = R[0] + R[1]
            elif op.startswith("v_add_co") or op.startswith("v_addc_co") or op.startswith("v_sub_co"):
                self.wr = R[0] + R[1]; self.rd = flat(R[2:])
            else:
                self.wr = R[0]; self.rd = flat(R[1:])
                if op.startswith("v_fmac") or op.startswith("v_dot2c") or op.startswith("v_writelane"): self.rd = self.rd + R[0]
                if op.startswith("v_cndmask") and len(ops) == 3: self.rd = self.rd + [("vcc", 0)]
            if "row_" in mods or "quad_perm" in mods or "wave_" in mods or "_dpp" in op:
                self.dpp = True; self.rd = self.rd + R[0]
            if op.startswith("v_dot"): self.kind = "dot"
        else:
            raise ValueError("unknown instr: " + text)

class Stream(list):
    def I(self, text, tok=None, waits=()):
        self.append(Ins(text, tok, waits)); return self
    def __call__(self, *texts):
        for t in texts: self.I(t)
        return self
    def wait(self, *toks):
        x = Ins("s_nop 0"); x.kind = "pseudo_wait"; x.waits = list(toks); self.append(x); return self
    def drain(self, vm=True, lgkm=True):
        x = Ins("s_nop 0"); x.kind = "pseudo_drain"; x.waits = [vm, lgkm]; self.append(x); return self

VALUK = ("valu", "trans", "dot")

class State:
    def __init__(self):
        self.vm_issued = 0; self.vm_done = 0
        self.lg_issued = 0; self.lg_done = 0
        self.smem_pending = False
        self.pend = {}
        self.tok = {}
        self.hist = []
        self.pos = 0
    def copy(self):
        s = State(); s.__dict__.update(self.__dict__)
        s.pend = dict(self.pend); s.tok = dict(self.tok); s.hist = list(self.hist); return s

def need_states(p, c):
    n = 0
    pw = set(p.wr)
    if p.kind == "mfma":
        big = {2: 5, 4: 8, 8: 12}[p.passes]
        if c.kind == "mfma":
            if pw & set(c.srcAB): n = max(n, big)
            if pw & set(c.srcC):
                if list(c.srcC) == list(p.wr) and c.passes == p.passes: n = max(n, 2 if p.passes == 2 else 0)
                else: n = max(n, p.passes + 2)
            elif pw & set(c.wr): n = max(n, p.passes + 2)
        elif c.kind in VALUK or c.kind in ("ds_rd", "ds_wr", "vm_ld", "vm_st", "vm_dma"):
            if pw & (set(c.rd) | set(c.wr)): n = max(n, big)
            if c.kind in VALUK and set(p.srcC) & set(c.wr): n = max(n, p.passes - 1)
        return n
    if p.kind in VALUK:
        vw = {r for r in pw if r[0] in "va"}
        sw = {r for r in pw if r[0] in ("s", "vcc")}
        if c.kind == "mfma" and vw & set(c.rd): n = max(n, 3 if p.kind == "dot" else 2)
        if c.kind in VALUK:
            if sw & set(c.rd): n = max(n, 4 if c.op.startswith("v_readlane") or c.op.startswith("v_writelane") else 2)
            if vw & set(c.rd):
                if c.op.startswith("v_readfirstlane") or c.op.startswith("v_readlane"): n = max(n, 1)
                if c.dpp or c.op.startswith("v_permlane"): n = max(n, 2)
                if p.kind == "trans" and c.kind != "trans": n = max(n, 1)
            if p.kind == "dot" and vw & (set(c.rd) | set(c.wr)):
                if not (c.op == p.op and not (vw & (set(c.rd) - set(c.wr)))): n = max(n, 3)
            if ("exec", 0) in pw: n = max(n, 5)
        if p.kind == "dot" and c.kind in ("ds_wr", "vm_st") and vw & set(c.rd): n = max(n, 3)
        if p.kind == "trans" and c.kind in ("ds_wr", "vm_st", "ds_rd", "vm_ld") and vw & set(c.rd): n = max(n, 1)
        if c.kind in ("vm_ld", "vm_st", "vm_dma") and sw & set(c.rd): n = max(n, 5)
        if c.kind == "salu" and sw & set(c.rd): n = max(n, 1)
        return n
    if p.kind == "vm_st" and p.wide:
        if (c.kind in VALUK or c.kind in ("ds_rd", "vm_ld", "mfma")) and set(p.srcC) & set(c.wr): n = max(n, 2)
    if p.kind == "ds_wr":
        if c.kind in VALUK and set(p.rd) & set(c.wr): n = max(n, 1)
    if p.kind == "salu" and ("m0", 0) in pw and c.kind == "vm_dma": n = max(n, 1)
    return n

def finalize(stream, st, out):
    def emit_raw(ins, states=1):
        out.append("    " + ins.text if ins.kind != "label" else ins.text)
        if ins.kind == "label": return
        st.hist.append((ins, st.pos)); st.pos += states
        if len(st.hist) > 24: st.hist.pop(0)
    def do_wait(vm_seq, lg_seq, lg_all=False):
        parts = []
        if vm_seq is not None and vm_seq > st.vm_done:
            cnt = min(st.vm_issued - vm_seq, 63)
            parts.append(f"vmcnt({cnt})"); st.vm_done = st.vm_issued - cnt
        if lg_all or (lg_seq is not None and lg_seq > st.lg_done and st.smem_pending):
            if st.lg_done < st.lg_issued or st.smem_pending:
                parts.append("lgkmcnt(0)"); st.lg_done = st.lg_issued; st.smem_pending = False
                for r in [r for r, v in st.pend.items() if v[0] == "sm"]: del st.pend[r]
        elif lg_seq is not None and lg_seq > st.lg_done:
            cnt = min(st.lg_issued - lg_seq, 15)
            parts.append(f"lgkmcnt({cnt})"); st.lg_done = st.lg_issued - cnt
        if parts: emit_raw(Ins("s_waitcnt " + " ".join(parts)))
    for ins in stream:
        if ins.kind == "pseudo_drain":
            do_wait(st.vm_issued if ins.waits[0] else None, None, lg_all=ins.waits[1]); continue
        vm_seq = None; lg_seq = None; lg_all = False
        deps = [st.tok[t] for t in ins.waits]
        if ins.kind != "pseudo_wait":
            for r in set(ins.rd) | set(ins.wr):
                if r in st.pend: deps.append(st.pend[r])
        for (q, s) in deps:
            if q == "vm": vm_seq = s if vm_seq is None else max(vm_seq, s)
            elif q == "lg": lg_seq = s if lg_seq is None else max(lg_seq, s)
            else: lg_all = True
        do_wait(vm_seq, lg_seq, lg_all)
        if ins.kind == "pseudo_wait": continue
        if ins.kind == "label": emit_raw(ins); continue
        need = 0
        for (p, pos) in st.hist:
            n = need_states(p, ins)
            if n:
                have = st.pos - pos - 1
                need = max(need, n - have)
        while need > 0:
            k = min(need, 16)
            emit_raw(Ins(f"s_nop {k-1}"), states=k); need -= k
        states = 1
        if ins.op == "s_nop": states = int(ins.text.split()[1]) + 1
        emit_raw(ins, states)
        for r in ins.wr: st.pend.pop(r, None)
        if ins.kind in ("vm_ld", "vm_dma", "vm_st"):
            st.vm_issued += 1
            for r in ins.wr: st.pend[r] = ("vm", st.vm_issued)
            if ins.tok: st.tok[ins.tok] = ("vm", st.vm_issued)
        elif ins.kind in ("ds_rd", "ds_wr"):
            st.lg_issued += 1
            for r in ins.wr: st.pend[r] = ("lg", st.lg_issued)
            if ins.tok: st.tok[ins.tok] = ("lg", st.lg_issued)
        elif ins.kind == "smem":
            st.smem_pending = True
            for r in ins.wr: st.pend[r] = ("sm", 0)
        elif ins.op == "s_waitcnt":
            m = re.search(r'vmcnt\((\d+)\)', ins.text)
            if m: st.vm_done = max(st.vm_done, st.vm_issued - int(m.group(1)))
            m = re.search(r'lgkmcnt\((\d+)\)', ins.text)
            if m:
                if int(m.group(1)) == 0:
                    st.lg_done = st.lg_issued; st.smem_pending = False
                    for r in [r for r, v in st.pend.items() if v[0] == "sm"]: del st.pend[r]
                elif not st.smem_pending: st.lg_done = max(st.lg_done, st.lg_issued - int(m.group(1)))
        if len(st.pend) > 600:
            st.pend = {r: v for r, v in st.pend.items() if not ((v[0] == "vm" and v[1] <= st.vm_done) or (v[0] == "lg" and v[1] <= st.lg_done))}
    return st

def interleave(main_slots, side, per_slot, start=0):
    side = list(side); i = 0; credit = 0.0
    for k in range(start, len(main_slots)):
        credit = min(credit + per_slot, per_slot + 2.0)
        while i < len(side):
            c = 2 if side[i].kind == "trans" else (0 if side[i].kind in ("salu", "pseudo_wait") else 1)
            if c > credit: break
            main_slots[k].append(side[i]); credit -= c; i += 1
    return side[i:]
```

```python
import sys
from emit import Stream, State, Ins, finalize, interleave

KN = "parallel_sum__linear_kernel_hedgehog__glu_gated_glu__prompt_kernel"
WS_HFLAG = 0
WS_KVFLAG = 2048
WS_KV = 4096
WS_STAT = 262144
WS_STAMP = 524288
WS_AP = 1 << 20
WS_WP = 12 << 20
WS_SIZE = 16 << 20
HUGE = 0x7F000000
L_XS = 0
L_TB = 0; RS = 528
L_WR = 67584
L_MISC = 149504
L_PACK = 133120
L_CSF = L_MISC + 6144
L_PHI = L_MISC + 4096
L_ZERO = L_MISC + 8192
L_CS = L_MISC + 8448
L_KB = 0
SX, SW, SWS, SDBG, SOUT, SAUX = "s[4:7]", "s[8:11]", "s[12:15]", "s[16:19]", "s[20:23]", "s[24:27]"
sW, sMT, sSL, sRT, sNT, sROT = 28, 29, 30, 31, 52, 53
sXB, sWB, sKX, sKW, sT0, sT1, sT2, sT3 = 54, 55, 56, 57, 58, 59, 60, 61
sXM0, sWM0, sAPB, sONE, sWPB, sACB, sWP4, sWP5 = 62, 63, 64, 65, 66, 67, 68, 69
sST = 70
sSPIN = 74
sPKS, sPKD = 75, 76
sSTAMP = 80
vL, vL16, vXO, vWO, vQO = 1, 2, 3, 5, 10
vXA, vWA, vWB_, vQA, vQB = 16, 20, 24, 28, 32
vSEL, vMB, vC, vSD, vST = 36, 40, 44, 45, 46
vCS = 48
vT = 68
vFL = 15
NF, DPF = 10, 6
aWF = 160

STAMPS = False
nstamp = [0]
def stamp(S):
    if STAMPS:
        i = nstamp[0]; nstamp[0] += 1
        S(f"s_memrealtime s[{sSTAMP+2*i}:{sSTAMP+2*i+1}]")
        S.drain(vm=False)

def v(a, n=1): return f"v{a}" if n == 1 else f"v[{a}:{a+n-1}]"
def a_(a, n=1): return f"a{a}" if n == 1 else f"a[{a}:{a+n-1}]"

slow_paths = []
def poll_check(S, name, vreg, srd, voff, soff, const_s, mask, nlanes_exec=None):
    lo, hi = mask & 0xFFFFFFFF, mask >> 32
    S(f"v_cmp_eq_u32 vcc, s{const_s}, {v(vreg)}")
    S(f"s_and_b32 s{sT0}, vcc_lo, {hex(lo)}", f"s_and_b32 s{sT1}, vcc_hi, {hex(hi)}")
    S(f"s_xor_b32 s{sT0}, s{sT0}, {hex(lo)}", f"s_xor_b32 s{sT1}, s{sT1}, {hex(hi)}", f"s_or_b32 s{sT0}, s{sT0}, s{sT1}")
    S(f"s_cbranch_scc1 L_slow_{name}")
    S(f"L_back_{name}:")
    L = [f"L_slow_{name}:", f"    s_mov_b32 s{sSPIN}, 0x8000",
         f"L_spin_{name}:", "    s_sleep 2",
         f"    buffer_load_dword {v(vreg)}, {v(voff)}, {srd}, {soff} offen sc1",
         "    s_waitcnt vmcnt(0)",
         f"    v_cmp_eq_u32 vcc, s{const_s}, {v(vreg)}", "    s_nop 1",
         f"    s_sub_u32 s{sSPIN}, s{sSPIN}, 1", f"    s_cbranch_scc1 L_back_{name}",
         f"    s_and_b32 s{sT0}, vcc_lo, {hex(lo)}", f"    s_and_b32 s{sT1}, vcc_hi, {hex(hi)}",
         f"    s_xor_b32 s{sT0}, s{sT0}, {hex(lo)}", f"    s_xor_b32 s{sT1}, s{sT1}, {hex(hi)}", f"    s_or_b32 s{sT0}, s{sT0}, s{sT1}",
         f"    s_cbranch_scc1 L_spin_{name}", f"    s_branch L_back_{name}"]
    slow_paths.append(L)

def divmod_v(S, q, r, x, d, tmp_s=sT0):
    m = (1 << 16) // d + 1
    S(f"v_mul_u32_u24 {v(q)}, {m}, {v(x)}", f"v_lshrrev_b32 {v(q)}, 16, {v(q)}",
      f"v_mul_u32_u24 {v(r)}, {d}, {v(q)}", f"v_sub_u32 {v(r)}, {v(x)}, {v(r)}")

def prologue():
    S = Stream()
    S("s_cmp_ge_u32 s2, 256", "s_cbranch_scc1 L_end")
    S("s_load_dwordx16 s[32:47], s[0:1], 0", "s_load_dwordx4 s[48:51], s[0:1], 64", "s_load_dwordx2 s[12:13], s[0:1], 80")
    S(f"v_lshrrev_b32 {v(vT)}, 6, v0", f"v_and_b32 {v(vL)}, 63, v0", f"v_readfirstlane_b32 s{sW}, {v(vT)}")
    S(f"v_lshlrev_b32 {v(vL16)}, 4, {v(vL)}")
    S("s_and_b32 s3, s2, 7", f"s_lshr_b32 s{sT0}, s2, 3")
    S(f"s_and_b32 s{sMT}, s3, 1", f"s_lshl_b32 s{sMT}, s{sMT}, 3", f"s_and_b32 s{sT1}, s{sT0}, 7", f"s_add_u32 s{sMT}, s{sMT}, s{sT1}")
    S(f"s_lshr_b32 s{sT1}, s{sT0}, 3")
    S(f"s_and_b32 s{sSL}, s3, 6", f"s_and_b32 s{sT2}, s{sT1}, 1", f"s_add_u32 s{sSL}, s{sSL}, s{sT2}")
    S(f"s_lshl_b32 s{sRT}, s3, 2", f"s_and_b32 s{sT2}, s{sT0}, 3", f"s_add_u32 s{sRT}, s{sRT}, s{sT2}", f"s_lshr_b32 s{sNT}, s{sT0}, 2")
    S(f"s_lshr_b32 s{sT3}, s{sT1}, 1")
    S(f"s_add_u32 s{sROT}, s{sMT}, s{sSL}", f"s_mul_i32 s{sT2}, s{sROT}, 52", f"s_lshr_b32 s{sT2}, s{sT2}, 8", f"s_mul_i32 s{sT2}, s{sT2}, 5",
      f"s_sub_u32 s{sROT}, s{sROT}, s{sT2}", f"s_lshl_b32 s{sROT}, s{sROT}, 1")
    S(f"v_mov_b32 {v(vFL)}, {hex(HUGE)}", "v_cmp_eq_u32 vcc, 0, v0", f"v_cndmask_b32 {v(vFL)}, {v(vFL)}, 0, vcc")
    S(f"s_mov_b32 s{sONE}, 1")
    t = vT
    S(f"v_lshrrev_b32 {v(t)}, 3, {v(vL)}", f"v_mul_u32_u24 {v(t)}, 1280, {v(t)}",
      f"v_lshrrev_b32 {v(t+1)}, 4, {v(vL)}", f"v_and_b32 {v(t+2)}, 7, {v(vL)}", f"v_xor_b32 {v(t+1)}, {v(t+1)}, {v(t+2)}",
      f"v_lshl_add_u32 {v(vXO)}, {v(t+1)}, 4, {v(t)}", f"v_xor_b32 {v(t+1)}, 4, {v(t+1)}", f"v_lshl_add_u32 {v(vXO+1)}, {v(t+1)}, 4, {v(t)}")
    S("s_mov_b32 s4, s32", "s_mov_b32 s5, s33", "s_mov_b32 s6, 2621440", "s_mov_b32 s7, 0x20000")
    S(f"s_mov_b32 s14, {WS_SIZE}", "s_mov_b32 s15, 0x20000")
    S("s_mov_b32 s16, s50", "s_mov_b32 s17, s51", "s_mov_b32 s18, 256", "s_mov_b32 s19, 0x20000")
    S("s_mov_b32 s20, s48", "s_mov_b32 s21, s49", "s_mov_b32 s22, 2621440", "s_mov_b32 s23, 0x20000")
    S("s_mov_b32 s11, 0x20000", "s_mov_b32 s27, 0x20000")
    S(f"s_lshl_b32 s{sXB}, s{sMT}, 2", f"s_add_u32 s{sXB}, s{sXB}, s{sW}", f"s_mul_i32 s{sAPB}, s{sXB}, {136*1024}", f"s_add_u32 s{sAPB}, s{sAPB}, {WS_AP}",
      f"s_mul_i32 s{sXB}, s{sXB}, {32*1280}", f"s_lshl_b32 s{sXM0}, s{sW}, 14")
    S(f"s_mov_b32 s{sKX}, s{sROT}", f"s_mov_b32 s{sKW}, s{sROT}")
    stamp(S)
    S(f"s_cmp_eq_u32 s{sT3}, 1", "s_cbranch_scc1 L_qkv")
    return S

def x_dma(i):
    S = Stream()
    S(f"s_add_u32 m0, s{sXM0}, {L_XS + (i % 4) * 4096}", f"s_lshl_b32 s{sT0}, s{sKX}, 7", f"s_add_u32 s{sT0}, s{sT0}, s{sXB}")
    for j in range(4):
        S.I(f"buffer_load_dwordx4 {v(vXO + (j & 1))}, {SX}, s{sT0} offen offset:{j*1024} lds", tok=f"x{i}" if j == 3 else None)
        if j < 3: S(f"s_add_u32 s{sT0}, s{sT0}, {10240-1024}")
    S(f"s_add_u32 s{sKX}, s{sKX}, 1", f"s_cmp_eq_u32 s{sKX}, 10", f"s_cselect_b32 s{sKX}, 0, s{sKX}")
    return S

def x_reads(i):
    S = Stream()
    for p in range(4):
        S.I(f"ds_read_b128 {a_(16*i+4*p,4)}, {v(vXA+p)} offset:{(i % 4)*4096}", tok=f"xr{i}" if p == 3 else None)
    return S

def xaddr_setup(S, wave_xor):
    t = vT
    S(f"v_and_b32 {v(t)}, 31, {v(vL)}", f"v_bfe_u32 {v(t+1)}, {v(vL)}, 1, 3", f"v_lshrrev_b32 {v(t+2)}, 5, {v(vL)}", f"v_xor_b32 {v(t+1)}, {v(t+1)}, {v(t+2)}")
    if wave_xor:
        S(f"s_lshl_b32 s{sT0}, s{sW}, 1", f"v_xor_b32 {v(t+1)}, s{sT0}, {v(t+1)}")
    S(f"v_lshlrev_b32 {v(t)}, 7, {v(t)}", f"v_add_u32 {v(t)}, s{sXM0}, {v(t)}")
    for p in range(4):
        S(f"v_xor_b32 {v(t+2)}, {2*p}, {v(t+1)}", f"v_lshl_add_u32 {v(vXA+p)}, {v(t+2)}, 4, {v(t)}")

def sel_setup(S):
    t = vT
    S(f"v_lshrrev_b32 {v(t)}, 4, {v(vL)}", f"v_xor_b32 {v(t)}, {v(t)}, {v(vL)}", f"v_and_b32 {v(t)}, 1, {v(t)}", f"v_cmp_eq_u32 vcc, 0, {v(t)}",
      f"v_mov_b32 {v(t+1)}, 0x3f803f80")
    for i in range(4): S(f"v_cndmask_b32 {v(vSEL+i)}, 0, {v(t+1)}, vcc")
    S("s_mov_b32 s96, 0x0000ffff", "s_mov_b32 s97, 0x0000ffff")

def pack_setup(S, unit_s, valid_always):
    S(f"s_lshr_b32 s{sT0}, s{unit_s}, 1", f"s_lshl_b32 s{sT1}, s{sT0}, 1", f"s_lshr_b32 s{sT2}, s{sW}, 1", f"s_add_u32 s{sT1}, s{sT1}, s{sT2}")
    S(f"s_and_b32 s{sT2}, s{unit_s}, 1", f"s_lshl_b32 s{sPKD}, s{sT2}, 2", f"s_add_u32 s{sPKD}, s{sPKD}, s{sW}", f"s_mul_i32 s{sPKD}, s{sPKD}, 68", f"s_add_u32 s{sPKD}, s{sPKD}, s{sT0}",
      f"s_mul_i32 s{sPKD}, s{sPKD}, 5120", f"s_add_u32 s{sPKD}, s{sPKD}, {WS_WP}")
    S(f"s_mul_i32 s{sT2}, s{sT2}, 640")
    S(f"s_and_b32 s{sT3}, s{sW}, 1", f"s_lshl_b32 s{sPKS}, s{sT1}, 4", f"s_lshl_b32 s3, s{sT3}, 3", f"s_add_u32 s{sPKS}, s{sPKS}, s3")
    S(f"s_sub_u32 s{sT1}, s{sT1}, 96", f"s_max_i32 s{sT1}, s{sT1}, 0", f"s_mul_i32 s3, s{sT1}, 52", "s_lshr_b32 s3, s3, 8")
    S(f"s_mul_i32 s3, s3, 40", f"s_lshl_b32 s{sT1}, s{sT1}, 3", f"s_add_u32 s{sT1}, s{sT1}, s3")
    S(f"s_mul_i32 s{sT3}, s{sT3}, 40", f"s_add_u32 s{sT1}, s{sT1}, s{sT3}")
    S(f"s_cmp_lt_u32 s{sT0}, 48", f"s_cselect_b32 s{sPKS}, s{sPKS}, s{sT1}", "s_cselect_b32 s24, s46, s38", "s_cselect_b32 s25, s47, s39", "s_mov_b32 s26, 819200", "s_cselect_b32 s26, 1966080, s26")
    S(f"s_mul_i32 s{sPKS}, s{sPKS}, 1280", f"s_add_u32 s{sPKS}, s{sPKS}, s{sT2}")
    if not valid_always:
        S(f"s_cmp_lt_u32 s{unit_s}, 136", f"s_cselect_b32 s{sPKS}, s{sPKS}, 0", f"s_cselect_b32 s{sPKD}, s{sPKD}, 0", "s_cselect_b32 s26, s26, 0")
    t = vT
    for j in range(5):
        S(f"v_add_u32 {v(t)}, {64*j}, {v(vL)}")
        divmod_v(S, t+1, t+2, t, 40)
        S(f"v_mul_u32_u24 {v(t+1)}, 1280, {v(t+1)}", f"v_lshl_add_u32 {v(t+40+j)}, {v(t+2)}, 4, {v(t+1)}")
        if 0 < j < 4: S(f"v_subrev_u32 {v(t+40+j)}, {1024*j}, {v(t+40+j)}")
    S(f"v_lshrrev_b32 {v(t)}, 4, {v(vL)}", f"v_bfe_u32 {v(t+1)}, {v(vL)}, 2, 2", f"v_lshl_add_u32 {v(t)}, {v(t)}, 3, {v(t+1)}", f"v_mul_u32_u24 {v(t)}, 640, {v(t)}",
      f"v_and_b32 {v(t+1)}, 3, {v(vL)}", f"v_mul_u32_u24 {v(t+1)}, 40, {v(t+1)}", f"s_mul_i32 s{sT0}, s{sW}, 160", f"s_add_u32 s{sT0}, s{sT0}, {L_PACK}",
      f"v_add3_u32 {v(t+45)}, {v(t)}, {v(t+1)}, s{sT0}")

def pack_dma():
    S = Stream()
    S(f"s_mul_i32 s{sT0}, s{sW}, 5120", f"s_add_u32 m0, s{sT0}, {L_PACK}")
    for j in range(4):
        S(f"buffer_load_dwordx4 {v(vT+40+j)}, {SAUX}, s{sPKS} offen offset:{j*1024} lds")
    S(f"s_add_u32 m0, s{sT0}, {L_PACK+4096}")
    S.I(f"buffer_load_dwordx4 {v(vT+44)}, {SAUX}, s{sPKS} offen lds", tok="packdma")
    S("s_mov_b32 s24, s12", "s_mov_b32 s25, s13", "s_cmp_eq_u32 s26, 0", f"s_cselect_b32 s26, 0, {WS_SIZE}")
    return S

def pack_finish():
    S = Stream()
    d = vT + 20
    for t in range(5):
        for r2 in range(2):
            S.I(f"ds_read_b64_tr_b16 {v(d+4*t+2*r2,2)}, {v(vT+45)} offset:{r2*2560+8*t}", tok="packrd" if (t == 4 and r2 == 1) else None)
    S(f"s_add_u32 s{sT2}, s{sPKD}, 4096")
    for t in range(4):
        S(f"buffer_store_dwordx4 {v(d+4*t,4)}, {v(vL16)}, {SAUX}, s{sPKD} offen offset:{t*1024} sc1")
    S.I(f"buffer_store_dwordx4 {v(d+16,4)}, {v(vL16)}, {SAUX}, s{sT2} offen sc1", tok="chores")
    return S

def chore_flag():
    S = Stream()
    S(f"v_mov_b32 {v(vT+19)}, 1")
    S(f"buffer_store_byte {v(vT+19)}, {v(vFL)}, {SDBG}, s2 offen sc1")
    return S

def chore_poll_issue():
    S = Stream()
    S(f"v_lshlrev_b32 {v(vT+18)}, 2, {v(vL)}", f"buffer_load_dword {v(vT+17)}, {v(vT+18)}, {SDBG}, 0 offen sc1")
    return S

def chore_poll_check(tag):
    S = Stream()
    S(f"s_mov_b32 s{sT2}, 0x01010101")
    poll_check(S, "ch" + tag, vT+17, SDBG, vT+18, "0", sT2, (1 << 64) - 1)
    S(f"v_and_b32 {v(vT+16)}, 31, {v(vL)}", f"v_lshlrev_b32 {v(vT+16)}, 3, {v(vT+16)}",
      f"s_lshl_b32 s{sT0}, s{sMT}, 2", f"s_add_u32 s{sT0}, s{sT0}, s{sW}", f"s_lshl_b32 s{sT0}, s{sT0}, 8", f"s_add_u32 s{sT0}, s{sT0}, {WS_STAT}",
      f"buffer_load_dwordx2 {v(vST,2)}, {v(vT+16)}, {SWS}, s{sT0} offen sc1")
    return S

def split3(S, d, x, t, side):
    S(f"v_cvt_pk_bf16_f32 {v(t)}, {v(x)}, {v(x)}", f"v_lshlrev_b32 {v(t+2)}, 16, {v(t)}", f"v_sub_f32 {v(t+1)}, {v(x)}, {v(t+2)}")
    if side == "A":
        S(f"v_mov_b32 {v(d)}, {v(t)}", f"v_cvt_pk_bf16_f32 {v(d+1)}, {v(x)}, {v(t+1)}", f"v_and_b32 {v(t+2)}, 0xffff0000, {v(d+1)}",
          f"v_sub_f32 {v(t+2)}, {v(t+1)}, {v(t+2)}", f"v_cvt_pk_bf16_f32 {v(d+2)}, {v(t+1)}, {v(t+2)}", f"v_mov_b32 {v(d+3)}, 0")
    else:
        S(f"v_cvt_pk_bf16_f32 {v(d)}, {v(x)}, {v(t+1)}", f"v_and_b32 {v(t+2)}, 0xffff0000, {v(d)}", f"v_sub_f32 {v(t+2)}, {v(t+1)}, {v(t+2)}",
          f"v_cvt_pk_bf16_f32 {v(d+1)}, {v(t+2)}, {v(x)}", f"v_cvt_pk_bf16_f32 {v(d+2)}, {v(t+1)}, {v(x)}", f"v_mov_b32 {v(d+3)}, 0")

def stats_consume(cmul):
    S = Stream(); t = vT + 12
    S(f"v_cmp_gt_u32 vcc, 32, {v(vL)}", f"v_sub_f32 {v(t)}, 0, {v(vST)}", f"v_cndmask_b32 {v(t)}, 0, {v(t)}, vcc")
    split3(S, vMB, t, t+1, "B")
    S(f"v_mul_f32 {v(vC)}, {cmul}, {v(vST+1)}", f"v_rcp_f32 {v(vSD)}, {v(vST+1)}")
    return S

class Core:
    def __init__(self, stages, R, tokbase):
        self.stages = stages; self.R = R; self.tb = tokbase
    def build(self, pre_issued, hooks_bar=None, hooks_after=None, first_wait=()):
        hooks_bar = hooks_bar or {}; hooks_after = hooks_after or {}
        st = self.stages
        seq = [(i, m) for i, s in enumerate(st) for m in s["mf"]]
        first = {}
        for n, (i, m) in enumerate(seq): first.setdefault(i, n)
        N = len(seq)
        def reads(n):
            (acc, r0, r1, xr, cs, zero) = seq[n][1]
            f = aWF + 4 * (n % NF)
            return [f"ds_read_b64_tr_b16 {a_(f,2)}, {r0}", f"ds_read_b64_tr_b16 {a_(f+2,2)}, {r1}"]
        def open_stage(S, i):
            toks = [f"{self.tb}{i}"] + list(hooks_bar.get(i, []))
            if st[i]["xs"] is not None: toks.append(f"x{st[i]['xs']}")
            S.wait(*toks); S("s_barrier")
        head = Stream()
        open_stage(head, 0)
        if st[0]["xs"] is not None: head += x_reads(st[0]["xs"])
        for n in range(DPF): head(*reads(n))
        slots = [Stream() for _ in range(N)]
        extras = [[] for _ in range(N)]
        def spread(n0, stream, dscost=0.5):
            grp = Stream(); cnt = 0; n = n0
            for ins in stream:
                grp.append(ins)
                if ins.kind in ("vm_dma", "vm_ld", "vm_st", "mfma"): cnt += 1
                elif ins.kind in ("ds_rd", "ds_wr"): cnt += dscost
                if cnt >= 1:
                    extras[min(n, N-1)].append(grp); grp = Stream(); cnt = 0; n += 1
            if grp: extras[min(max(n-1, n0), N-1)].append(grp)
            return n
        qptr = [0]
        for n in range(N):
            i, (acc, r0, r1, xr, cs, zero) = seq[n]
            S = slots[n]; f = aWF + 4 * (n % NF)
            S(f"v_mfma_f32_32x32x16_bf16 {v(acc,16)}, {a_(f,4)}, {a_(xr,4)}, {'0' if zero else v(acc,16)}")
            if cs is not None:
                S(f"v_mfma_f32_16x16x32_bf16 {v(cs[0],4)}, {v(vSEL,4)}, {a_(f,4)}, {'0' if cs[1] else v(cs[0],4)}")
            m = n + DPF
            if m < N:
                j = seq[m][0]
                if first[j] == m:
                    open_stage(S, j)
                    k = n
                    if st[j]["xs"] is not None: k = spread(k, x_reads(st[j]["xs"]), dscost=1)
                    k = max(k, qptr[0])
                    d = Stream()
                    if st[j]["xs"] is not None and st[j]["xs"] + 3 < 10 and st[j]["xs"] >= 1:
                        d.wait(f"xr{st[j]['xs']-1}"); d += x_dma(st[j]["xs"] + 3)
                    w = j - 2 + self.R
                    if w >= pre_issued and w < len(st): d += st[w]["dma"]
                    if j in hooks_after: d += hooks_after[j]
                    qptr[0] = spread(k, d)
                S(*reads(m))
            for g in extras[n]: S += g
        return head, slots, first

def w2_slot(k):
    k = k % 14
    return ("a", 20 * k) if k < 8 else ("v", 128 + 20 * (k - 8))
def rg(b, off, n): return (a_ if b[0] == "a" else v)(b[1] + off, n)

P2_STEPS = [("h", 0, i) for i in range(4)] + [("h", 1, i) for i in range(4)] + [("o", 0, i) for i in range(5)] + [("h", 2, i) for i in range(4)]
def p2_setup():
    S = Stream()
    S(f"s_add_u32 s{sT2}, s{sW}, s{sNT}", f"s_and_b32 s{sT2}, s{sT2}, 3", f"s_lshl_b32 s{sWP4}, s{sT2}, 2", f"s_mul_i32 s{sWP5}, s{sT2}, 5", f"s_add_u32 s{sWP5}, s{sWP5}, 48")
    S(f"s_mul_i32 s{sWPB}, s{sNT}, {68*5120}", f"s_add_u32 s{sWPB}, s{sWPB}, {WS_WP}")
    S(f"s_mul_i32 s{sACB}, s{sRT}, {2*136*1024}", f"s_add_u32 s{sACB}, s{sACB}, {WS_AP}")
    return S
def p2_S(S, k, dst, mult, base):
    kind, c, i = P2_STEPS[k]
    if kind == "h": S(f"s_add_u32 s{dst}, s{sWP4}, {16*c+i}")
    else: S(f"s_add_u32 s{dst}, s{sWP5}, {i}")
    S(f"s_mul_i32 s{dst}, s{dst}, {mult}", f"s_add_u32 s{dst}, s{dst}, s{base}")
def w2_load(k):
    S = Stream(); b = w2_slot(k)
    p2_S(S, k, sT2, 5120, sWPB)
    for t in range(4): S(f"buffer_load_dwordx4 {rg(b,4*t,4)}, {v(vL16)}, {SWS}, s{sT2} offen offset:{t*1024} sc1")
    S(f"s_add_u32 s{sT2}, s{sT2}, 4096", f"buffer_load_dwordx4 {rg(b,16,4)}, {v(vL16)}, {SWS}, s{sT2} offen sc1")
    return S
ACT0 = 48; ACTD = 5
vA1, vA2, vPF, vPV, vXR, vRA = 3, 4, 5, 6, 24, 36
def act_load(k):
    S = Stream(); r = ACT0 + 16 * (k % ACTD)
    p2_S(S, k, sT3, 2048, sACB)
    for m4 in range(4):
        S(f"buffer_load_dwordx4 {v(r+4*m4,4)}, {v(vA1 if m4 < 2 else vA2)}, {SWS}, s{sT3} offen offset:{(m4&1)*256} sc1")
    return S
ACC2 = 160
def phase2(tag, w2_done):
    S = Stream(); t = vRA
    stamp(S)
    S(f"v_lshrrev_b32 {v(t)}, 4, {v(vL)}", f"v_and_b32 {v(t+1)}, 15, {v(vL)}", f"v_lshlrev_b32 {v(vA1)}, 9, {v(t)}", f"v_lshl_add_u32 {v(vA1)}, {v(t+1)}, 4, {v(vA1)}",
      f"v_add_u32 {v(vA2)}, {136*1024}, {v(vA1)}")
    S(f"v_and_b32 {v(vPF)}, 31, {v(vL)}", f"v_lshlrev_b32 {v(vPF)}, 2, {v(vPF)}", f"s_lshr_b32 s{sST}, s{sRT}, 1", f"s_lshl_b32 s{sST}, s{sST}, 7")
    S(f"v_mul_u32_u24 {v(t+2)}, 1280, {v(t+1)}", f"v_mul_u32_u24 {v(t+3)}, 40, {v(t)}", f"v_add_u32 {v(t+2)}, {v(t+2)}, {v(t+3)}",
      f"s_lshl_b32 s{sST+1}, s{sRT}, 2", f"s_add_u32 s{sST+1}, s{sST+1}, s{sW}", f"s_mul_i32 s{sST+1}, s{sST+1}, {16*1280}", f"s_mul_i32 s{sT0}, s{sNT}, 160", f"s_add_u32 s{sST+1}, s{sST+1}, s{sT0}")
    vOO = t + 2
    def poll(name, mask):
        S(f"buffer_load_dword {v(vPV)}, {v(vPF)}, {SWS}, s{sST} offen sc1")
        poll_check(S, name + tag, vPV, SWS, vPF, f"s{sST}", sONE, mask)
    masks = {0: 0xFFFF, 8: 0xFF000000, 13: 0xFF0000}
    nact = 0; nw2 = w2_done
    def issue_act(k):
        if k in masks: poll(f"p{k}", masks[k])
        S.extend(act_load(k))
    for k in range(ACTD - 1): issue_act(k); nact += 1
    while nw2 < 14: S.extend(w2_load(nw2)); nw2 += 1
    S(f"buffer_load_dwordx4 {v(vXR,4)}, {v(vOO)}, {SX}, s{sST+1} offen", f"buffer_load_dwordx4 {v(vXR+4,4)}, {v(vOO)}, {SX}, s{sST+1} offen offset:16",
      f"buffer_load_dwordx2 {v(vXR+8,2)}, {v(vOO)}, {SX}, s{sST+1} offen offset:32")
    for k in range(17):
        b = w2_slot(k); r = ACT0 + 16 * (k % ACTD)
        if nact < 17: issue_act(nact); nact += 1
        for m4 in range(4):
            for tt in range(5):
                acc = a_(ACC2 + 20*m4 + 4*tt, 4)
                S(f"v_mfma_f32_16x16x32_bf16 {acc}, {rg(b,4*tt,4)}, {v(r+4*m4,4)}, {'0' if k == 0 else acc}")
        if nw2 < 17: S.extend(w2_load(nw2)); nw2 += 1
    stamp(S)
    S("s_barrier")
    S(f"s_mul_i32 s{sT0}, s{sW}, 5120", f"v_add_u32 {v(t+4)}, s{sT0}, {v(vL16)}", f"v_add_u32 {v(t+5)}, 40960, {v(t+4)}")
    for m4 in range(4):
        for tt in range(5):
            S(f"ds_write_b128 {v(t+4+(m4>>1))}, {a_(ACC2+20*m4+4*tt,4)} offset:{(m4&1)*20480+tt*1024}")
    S.drain(vm=False); S("s_barrier")
    S(f"s_mul_i32 s{sT0}, s{sW}, 20480", f"v_add_u32 {v(t+4)}, s{sT0}, {v(vL16)}")
    R0 = 48
    for s in range(4):
        for tt in range(5): S(f"ds_read_b128 {v(R0+20*s+4*tt,4)}, {v(t+4)} offset:{s*5120+tt*1024}")
    X = 128
    for i in range(10): S(f"v_lshlrev_b32 {v(X+2*i)}, 16, {v(vXR+i)}", f"v_and_b32 {v(X+2*i+1)}, 0xffff0000, {v(vXR+i)}")
    for s in range(4):
        for i in range(10): S(f"v_pk_add_f32 {v(X+2*i,2)}, {v(X+2*i,2)}, {v(R0+20*s+2*i,2)}")
    for i in range(10): S(f"v_cvt_pk_bf16_f32 {v(vXR+i)}, {v(X+2*i)}, {v(X+2*i+1)}")
    S(f"buffer_store_dwordx4 {v(vXR,4)}, {v(vOO)}, {SOUT}, s{sST+1} offen", f"buffer_store_dwordx4 {v(vXR+4,4)}, {v(vOO)}, {SOUT}, s{sST+1} offen offset:16",
      f"buffer_store_dwordx2 {v(vXR+8,2)}, {v(vOO)}, {SOUT}, s{sST+1} offen offset:32")
    stamp(S)
    if STAMPS:
        n = nstamp[0]
        for i in range(n): S(f"v_mov_b32 {v(48+i)}, s{sSTAMP+2*i}")
        S(f"s_lshl_b32 s{sT0}, s2, 6", f"s_add_u32 s{sT0}, s{sT0}, {WS_STAMP}")
        for i in range(n): S(f"buffer_store_dword {v(48+i)}, {v(vFL)}, {SWS}, s{sT0} offen offset:{4*i}")
    S("s_endpgm")
    return S

def flag_store(off_s, imm):
    S = Stream()
    S(f"v_mov_b32 {v(vT+19)}, 1", f"buffer_store_dword {v(vT+19)}, {v(vFL)}, {SWS}, s{off_s} offen offset:{imm} sc1")
    return S

def glu_path():
    S = Stream(); t = vT
    ACC = [128, 192, 128]
    S(f"s_cmp_lt_u32 s{sW}, 2", "s_cselect_b32 s8, s42, s44", "s_cselect_b32 s9, s43, s45", "s_mov_b32 s10, 1966080")
    S(f"v_lshrrev_b32 {v(t)}, 3, {v(vL)}", f"v_mul_u32_u24 {v(t)}, 3072, {v(t)}", f"v_bfe_u32 {v(t+1)}, {v(vL)}, 4, 1", f"s_and_b32 s{sT0}, s{sW}, 2", f"v_or_b32 {v(t+1)}, s{sT0}, {v(t+1)}",
      f"v_lshlrev_b32 {v(t+1)}, 1, {v(t+1)}", f"v_and_b32 {v(t+2)}, 7, {v(vL)}", f"v_xor_b32 {v(t+1)}, {v(t+1)}, {v(t+2)}", f"v_lshl_add_u32 {v(vWO)}, {v(t+1)}, 4, {v(t)}")
    S(f"s_and_b32 s{sWB}, s{sW}, 1", f"s_mul_i32 s{sWB}, s{sWB}, {32*3072}", f"s_lshl_b32 s{sT0}, s{sSL}, 7", f"s_add_u32 s{sWB}, s{sWB}, s{sT0}",
      f"s_lshl_b32 s{sWM0}, s{sW}, 12")
    def w_dma(g):
        c = g // 10; D = Stream()
        D(f"s_add_u32 m0, s{sWM0}, {L_WR + (g % 5) * 16384}", f"s_mul_i32 s{sT1}, s{sKW}, {64*3072}", f"s_add_u32 s{sT1}, s{sT1}, s{sWB}")
        if c: D(f"s_add_u32 s{sT1}, s{sT1}, {c*1024}")
        for j in range(4):
            D.I(f"buffer_load_dwordx4 {v(vWO)}, {SW}, s{sT1} offen offset:{j*1024} lds", tok=f"w{g}" if j == 3 else None)
            if j < 3: D(f"s_add_u32 s{sT1}, s{sT1}, {8*3072-1024}")
        D(f"s_add_u32 s{sKW}, s{sKW}, 1", f"s_cmp_eq_u32 s{sKW}, 10", f"s_cselect_b32 s{sKW}, 0, s{sKW}")
        return D
    S += x_dma(0); S += w_dma(0); S += x_dma(1); S += w_dma(1)
    S(f"s_lshl_b32 s{sST}, s{sMT}, 3", f"s_add_u32 s{sST}, s{sST}, s{sSL}")
    pack_setup(S, sST, True)
    S += pack_dma()
    S += x_dma(2); S += w_dma(2); S += x_dma(3); S += w_dma(3)
    xaddr_setup(S, False); sel_setup(S)
    S(f"v_bfe_u32 {v(t)}, {v(vL)}, 4, 1", f"v_lshrrev_b32 {v(t+1)}, 5, {v(vL)}", f"v_bfe_u32 {v(t+2)}, {v(vL)}, 2, 2",
      f"v_lshl_add_u32 {v(t+1)}, {v(t+1)}, 3, {v(t+2)}", f"v_lshlrev_b32 {v(t+1)}, 7, {v(t+1)}", f"v_lshl_add_u32 {v(t+1)}, {v(t)}, 13, {v(t+1)}",
      f"v_and_b32 {v(t+3)}, 1, {v(vL)}", f"v_bfe_u32 {v(t+4)}, {v(vL)}, 1, 1", f"v_lshl_add_u32 {v(t+3)}, {v(t+3)}, 1, {v(t+4)}", f"v_lshl_add_u32 {v(t+1)}, {v(t+3)}, 3, {v(t+1)}",
      f"v_add_u32 {v(t+1)}, {L_WR}, {v(t+1)}",
      f"v_lshrrev_b32 {v(t+2)}, 1, {v(t+2)}", f"v_lshl_add_u32 {v(t+2)}, {v(t)}, 1, {v(t+2)}", f"v_xor_b32 {v(t+2)}, s{sW}, {v(t+2)}")
    for p in range(4):
        S(f"v_xor_b32 {v(t+3)}, {p}, {v(t+2)}", f"v_lshl_add_u32 {v(vWA+p)}, {v(t+3)}, 5, {v(t+1)}", f"v_add_u32 {v(vWB_+p)}, 0x10000, {v(vWA+p)}")
    S(f"s_lshl_b32 s{sT0}, s{sSL}, 12", f"s_add_u32 s{sAPB}, s{sAPB}, s{sT0}")
    for p in range(4):
        S(f"s_xor_b32 s{sST+p}, s{sW}, {p}", f"s_lshl_b32 s{sST+p}, s{sST+p}, 10", f"s_add_u32 s{sST+p}, s{sST+p}, s{sAPB}")
    S(f"s_lshl_b32 s{sT0}, s{sW}, 10", f"s_add_u32 s{sT0}, s{sT0}, {L_CSF}", f"v_add_u32 {v(vQA)}, s{sT0}, {v(vL16)}")
    for p in range(1, 4): S(f"v_xor_b32 {v(vQB+p)}, {p*1024}, {v(vQA)}")
    assert L_CSF % 4096 == 0
    S(f"s_lshl_b32 s{sPKS}, s{sMT}, 7", f"s_lshl_b32 s{sT0}, s{sSL}, 2", f"s_add_u32 s{sPKS+2}, s{sPKS}, s{sT0}")
    sFLG = sPKS + 2
    S += p2_setup()
    stages = []
    for g in range(30):
        c, i = divmod(g, 10); mf = []
        for s in range(4):
            for p in range(4):
                off = (g % 5) * 16384 + s * 2048
                ar = vWA + p
                if off >= 65536 - 1024: ar = vWB_ + p; off -= 65536
                mf.append((ACC[c] + 16 * p, f"{v(ar)} offset:{off}", f"{v(ar)} offset:{off+512}", 16 * i + 4 * s,
                           (vCS + 4 * (c & 1), i == 0 and s == 0) if p == 0 else None, i == 0 and s == 0))
        stages.append(dict(mf=mf, dma=w_dma(g), xs=i if c == 0 else None))
    def cs_publish(c):
        E = Stream(); cs = vCS + 4 * (c & 1); q = vT
        E(f"v_cndmask_b32 {v(q)}, {v(cs+1)}, {v(cs)}, s[96:97]")
        split3(E, vT + 4, q, q + 1, "A")
        E.I(f"ds_write_b128 {v(vQA)}, {v(vT+4,4)}", tok=f"csw{c}")
        return E
    def corr(c):
        E = Stream()
        for p in range(1, 4): E(f"ds_read_b128 {v(vT+20+4*p,4)}, {v(vQB+p)}")
        for p in range(4):
            E(f"v_mfma_f32_32x32x16_bf16 {v(ACC[c]+16*p,16)}, {v(vT+4 if p == 0 else vT+20+4*p,4)}, {v(vMB,4)}, {v(ACC[c]+16*p,16)}")
        return E
    def epi(c, packed):
        E = Stream()
        for p in range(4):
            A = ACC[c] + 16 * p
            if packed:
                for i in range(0, 8, 2): E(f"v_pk_mul_f32 {v(A+i,2)}, {v(A+i,2)}, {v(vC,2)} op_sel_hi:[1,0]")
            for i in range(8):
                if not packed: E(f"v_mul_f32 {v(A+i)}, {v(A+i)}, {v(vC)}")
                E(f"v_exp_f32 {v(A+i)}, {v(A+i)}")
            for i in range(8): E(f"v_fma_f32 {v(A+i)}, {v(A+i)}, {v(vSD)}, {v(vSD)}")
            for i in range(8): E(f"v_rcp_f32 {v(A+i)}, {v(A+i)}")
            if packed:
                for i in range(0, 8, 2): E(f"v_pk_mul_f32 {v(A+8+i,2)}, {v(A+8+i,2)}, {v(A+i,2)}")
            else:
                for i in range(8): E(f"v_mul_f32 {v(A+8+i)}, {v(A+8+i)}, {v(A+i)}")
            for i in range(4): E(f"v_cvt_pk_bf16_f32 {v(A+i)}, {v(A+8+2*i)}, {v(A+9+2*i)}")
            E(f"s_add_u32 s{sT3}, s{sST+p}, {c*32*1024}")
            E.I(f"buffer_store_dwordx4 {v(A,4)}, {v(vL16)}, {SWS}, s{sT3} offen sc1", tok=f"h{c}" if p == 3 else None)
        return E
    hb = {1: ["packdma"], 2: ["packrd"], 5: ["chores"], 11: ["csw0"], 21: ["csw1"], 23: ["h0"]}
    ha = {1: pack_finish(), 5: chore_flag(), 8: chore_poll_issue(), 10: chore_poll_check("g"), 23: flag_store(sFLG, 0)}
    core = Core(stages, 5, "w")
    d4 = stages[4]["dma"]; d5 = stages[5]["dma"]
    stages[4]["dma"] = Stream(); stages[5]["dma"] = Stream(d4 + d5)
    ha[13] = Stream(stats_consume("0xbfb8aa3b") + corr(0))
    ha[21] = corr(1)
    for k in range(7):
        j = 20 + (20 * k + 19) // 16 + 2
        if j < 30: ha[j] = Stream(ha.get(j, Stream()) + w2_load(k))
    nw2 = sum(1 for k in range(7) if 20 + (20 * k + 19) // 16 + 2 < 30)
    head, slots, first = core.build(4, hb, ha)
    for c in range(2):
        left = interleave(slots, cs_publish(c), 2, start=first[10 * (c + 1)]); assert not left
    left = interleave(slots[:first[20]], epi(0, False), 2.7, start=first[14]); assert not left, len(left)
    left = interleave(slots, epi(1, False), 2.2, start=first[22]); assert not left, len(left)
    S += head
    for n, sl in enumerate(slots):
        S += sl
        if STAMPS and n + 1 in (first[10], first[20]): stamp(S)
    stamp(S)
    S += cs_publish(2)
    S.wait("csw2", "h1"); S("s_barrier")
    S += flag_store(sFLG, 32)
    while nw2 < 8: S += w2_load(nw2); nw2 += 1
    S += corr(2); S += epi(2, True)
    S.wait("h2"); S("s_barrier")
    S += flag_store(sFLG, 64)
    S += phase2("g", nw2)
    return S

def softmax_pair(E, P, O, T, qmode):
    mx, mn = T + 40, T + 41
    E(f"v_max3_f32 {v(mx)}, {v(P)}, {v(P+1)}, {v(P+2)}", f"v_min3_f32 {v(mn)}, {v(P)}, {v(P+1)}, {v(P+2)}")
    for i in range(3, 19, 2):
        E(f"v_max3_f32 {v(mx)}, {v(mx)}, {v(P+i)}, {v(P+i+1)}", f"v_min3_f32 {v(mn)}, {v(mn)}, {v(P+i)}, {v(P+i+1)}")
    E(f"v_max_f32 {v(mx)}, {v(mx)}, {v(P+19)}", f"v_min_f32 {v(mn)}, {v(mn)}, {v(P+19)}")
    E(f"v_mul_f32 {v(mx)}, {v(mx)}, {v(vC)}", f"v_mul_f32 {v(mn)}, {v(mn)}, {v(vC)}")
    for i in range(0, 20, 2):
        E(f"v_pk_fma_f32 {v(T+i,2)}, {v(P+i,2)}, {v(vC,2)}, {v(mx,2)} op_sel:[0,0,0] op_sel_hi:[1,0,0] neg_lo:[0,0,1] neg_hi:[0,0,1]")
    for i in range(0, 20, 2):
        E(f"v_pk_fma_f32 {v(T+20+i,2)}, {v(P+i,2)}, {v(vC,2)}, {v(mx,2)} op_sel:[0,0,1] op_sel_hi:[1,0,1] neg_lo:[1,0,0] neg_hi:[1,0,0]")
    for i in range(40): E(f"v_exp_f32 {v(T+i)}, {v(T+i)}")
    for h in range(2):
        B = T + 20 * h; A = P + 10 * h
        for i in range(5): E(f"v_pk_add_f32 {v(A+2*i,2)}, {v(B+4*i,2)}, {v(B+4*i+2,2)}")
    for h in range(2):
        A = P + 10 * h
        E(f"v_pk_add_f32 {v(A,2)}, {v(A,2)}, {v(A+2,2)}", f"v_pk_add_f32 {v(A+4,2)}, {v(A+4,2)}, {v(A+6,2)}")
    for h in range(2):
        A = P + 10 * h
        E(f"v_pk_add_f32 {v(A,2)}, {v(A,2)}, {v(A+4,2)}")
    for h in range(2):
        A = P + 10 * h
        E(f"v_pk_add_f32 {v(A,2)}, {v(A,2)}, {v(A+8,2)}")
    E(f"v_add_f32 {v(T+44)}, {v(P)}, {v(P+1)}", f"v_add_f32 {v(T+45)}, {v(P+10)}, {v(P+11)}")
    if qmode:
        E(f"v_rcp_f32 {v(T+42)}, {v(T+45)}", f"v_mul_f32 {v(T+42)}, {v(T+42)}, {v(T+44)}")
        for i in range(0, 20, 2): E(f"v_pk_mul_f32 {v(T+20+i,2)}, {v(T+20+i,2)}, {v(T+42,2)} op_sel_hi:[1,0]")
    else:
        E(f"v_rcp_f32 {v(T+42)}, {v(T+44)}", f"v_rcp_f32 {v(T+43)}, {v(T+45)}")
        for i in range(0, 20, 2): E(f"v_pk_mul_f32 {v(T+i,2)}, {v(T+i,2)}, {v(T+42,2)} op_sel_hi:[1,0]")
        for i in range(0, 20, 2): E(f"v_pk_mul_f32 {v(T+20+i,2)}, {v(T+20+i,2)}, {v(T+42,2)} op_sel:[0,1] op_sel_hi:[1,1]")
    for i in range(20): E(f"v_cvt_pk_bf16_f32 {v(O+i)}, {v(T+2*i)}, {v(T+2*i+1)}")

PROJ = [(0, 0), (0, 1), (0, 2), (1, 0), (1, 1), (1, 2), (1, 3), (1, 4), (2, 2), (2, 3), (2, 4)]
aPH = 200
def project(E, SRC, PK, OUT):
    for i in range(20): E(f"v_cvt_pk_bf16_f32 {v(PK+i)}, {v(SRC+2*i)}, {v(SRC+2*i+1)}")
    seen = set()
    for n, (T, sl) in enumerate(PROJ):
        E(f"v_mfma_f32_32x32x16_bf16 {v(OUT+16*T,16)}, {a_(aPH+4*n,4)}, {v(PK+4*sl,4)}, {v(OUT+16*T,16) if T in seen else '0'}")
        seen.add(T)

def qkv_path():
    S = Stream(); t = vT
    S("L_qkv:")
    AKV, AQ = 128, 208
    S("s_mov_b32 s8, s34", "s_mov_b32 s9, s35", "s_mov_b32 s10, 2457600")
    SR = 128
    S(f"v_lshrrev_b32 {v(t)}, 4, {v(vL)}", f"v_mul_u32_u24 {v(t)}, 1280, {v(t)}", f"v_and_b32 {v(t+1)}, 15, {v(vL)}", f"v_lshl_add_u32 {v(t+46)}, {v(t+1)}, 4, {v(t)}",
      f"s_lshl_b32 s{sST}, s{sMT}, 3", f"s_add_u32 s{sST}, s{sST}, s{sSL}", f"s_lshl_b32 s{sST+1}, s{sST}, 2", f"s_add_u32 s{sST+1}, s{sST+1}, s{sW}", f"s_mul_i32 s{sT0}, s{sST+1}, {4*1280}")
    for j in range(5): S(f"buffer_load_dwordx4 {v(SR+4*j,4)}, {v(t+46)}, {SX}, s{sT0} offen offset:{256*j}")
    S(f"v_mov_b32 {v(t+2)}, 0", f"v_mov_b32 {v(t+3)}, 0", f"v_lshlrev_b32 {v(t+4)}, 3, {v(vL)}", f"s_lshl_b32 s{sT1}, s{sST+1}, 9",
      f"buffer_store_dwordx2 {v(t+2,2)}, {v(t+4)}, {SWS}, s{sT1} offen sc1")
    for j in range(5):
        S(f"v_add_u32 {v(t)}, {64*j}, {v(vL)}")
        divmod_v(S, t+1, t+2, t, 20)
        divmod_v(S, t+3, t+4, t+2, 5)
        S(f"v_and_b32 {v(t+5)}, 1, {v(t+3)}", f"v_lshrrev_b32 {v(t+3)}, 1, {v(t+3)}", f"v_mul_u32_u24 {v(t+3)}, 80, {v(t+3)}", f"v_lshl_add_u32 {v(t+3)}, {v(t+4)}, 4, {v(t+3)}")
        if 0 < j < 4: S(f"v_subrev_u32 {v(t+3)}, {1024*j}, {v(t+3)}")
        S(f"v_mul_u32_u24 {v(t+6)}, 3840, {v(t+1)}", f"v_mul_u32_u24 {v(t+7)}, 1280, {v(t+5)}", f"v_add3_u32 {v(vWO+j)}, {v(t+6)}, {v(t+7)}, {v(t+3)}")
        S(f"v_lshrrev_b32 {v(t+6)}, 2, {v(t+1)}", f"v_lshl_add_u32 {v(t+6)}, {v(t+6)}, 2, {v(t+1)}", f"v_lshl_add_u32 {v(t+6)}, {v(t+5)}, 2, {v(t+6)}",
          f"v_mul_u32_u24 {v(t+6)}, 3840, {v(t+6)}", f"v_add_u32 {v(vQO+j)}, {v(t+6)}, {v(t+3)}")
    sQB = 78
    S(f"s_mul_i32 s{sT0}, s{sSL}, 160", f"s_mul_i32 s{sWB}, s{sW}, {16*3840}", f"s_lshl_b32 s{sQB}, s{sWB}, 1", f"s_add_u32 s{sQB}, s{sQB}, s{sT0}",
      f"s_add_u32 s{sWB}, s{sWB}, s{sT0}", f"s_add_u32 s{sWB}, s{sWB}, 1280", f"s_mul_i32 s{sWM0}, s{sW}, 5120")
    def w_dma(g):
        D = Stream(); q = g >= 10
        D(f"s_add_u32 m0, s{sWM0}, {L_WR + (g % 4) * 20480}", f"s_mul_i32 s{sT1}, s{sKW}, {64*3840}", f"s_add_u32 s{sT1}, s{sT1}, s{sQB if q else sWB}")
        vo = vQO if q else vWO
        for j in range(4): D(f"buffer_load_dwordx4 {v(vo+j)}, {SW}, s{sT1} offen offset:{j*1024} lds")
        D(f"s_add_u32 m0, s{sWM0}, {L_WR + (g % 4) * 20480 + 4096}")
        D.I(f"buffer_load_dwordx4 {v(vo+4)}, {SW}, s{sT1} offen lds", tok=(f"q{g-10}" if q else f"w{g}"))
        D(f"s_add_u32 s{sKW}, s{sKW}, {2 if q else 1}", f"s_cmp_eq_u32 s{sKW}, 10", f"s_cselect_b32 s{sKW}, 0, s{sKW}")
        return D
    S += x_dma(0); S += w_dma(0); S += x_dma(1); S += w_dma(1)
    S("s_mov_b32 s24, s36", "s_mov_b32 s25, s37", "s_mov_b32 s26, 25600", f"s_mul_i32 s{sT0}, s{sSL}, 3200", f"s_lshl_b32 s{sT1}, s{sW}, 10", f"s_add_u32 s{sT0}, s{sT0}, s{sT1}",
      f"s_add_u32 m0, s{sT1}, {L_PHI}")
    S.I(f"buffer_load_dwordx4 {v(vL16)}, {SAUX}, s{sT0} offen lds", tok="phid")
    S(f"s_add_u32 s{sST+2}, s{sMT}, 128", f"s_cmp_eq_u32 s{sSL}, 0", f"s_cselect_b32 s{sST+2}, s{sST+2}, 999")
    pack_setup(S, sST + 2, False)
    S += pack_dma()
    S += x_dma(2); S += w_dma(2); S += x_dma(3)
    S(f"v_mov_b32 {v(t+2)}, 0", f"v_mov_b32 {v(t+3)}, 0", f"v_lshlrev_b32 {v(t+4)}, 3, v0", f"v_add_u32 {v(t+4)}, {L_ZERO}, {v(t+4)}")
    S.I(f"ds_write_b64 {v(t+4)}, {v(t+2,2)}", tok="ldsz")
    xaddr_setup(S, True); sel_setup(S)
    S(f"v_lshrrev_b32 {v(t)}, 5, {v(vL)}", f"v_bfe_u32 {v(t+1)}, {v(vL)}, 2, 2", f"v_lshl_add_u32 {v(t+2)}, {v(t)}, 3, {v(t+1)}", f"v_lshl_add_u32 {v(t+3)}, {v(t)}, 2, {v(t+1)}",
      f"v_mul_u32_u24 {v(t+2)}, 320, {v(t+2)}", f"v_mul_u32_u24 {v(t+3)}, 320, {v(t+3)}",
      f"v_and_b32 {v(t+4)}, 1, {v(vL)}", f"v_mul_u32_u24 {v(t+4)}, 160, {v(t+4)}", f"v_bfe_u32 {v(t+5)}, {v(vL)}, 4, 1", f"v_bfe_u32 {v(t+6)}, {v(vL)}, 1, 1",
      f"v_lshl_add_u32 {v(t+5)}, {v(t+5)}, 1, {v(t+6)}", f"v_lshl_add_u32 {v(t+4)}, {v(t+5)}, 3, {v(t+4)}", f"v_add_u32 {v(t+4)}, {L_WR}, {v(t+4)}",
      f"v_add_u32 {v(t+2)}, {v(t+2)}, {v(t+4)}", f"v_add_u32 {v(t+3)}, {v(t+3)}, {v(t+4)}")
    for p in range(4):
        S(f"s_xor_b32 s{sT0}, s{sW}, {p}", f"s_mul_i32 s{sT1}, s{sT0}, 5120", f"s_mul_i32 s{sT0}, s{sT0}, 2560",
          f"v_add_u32 {v(vWA+p)}, s{sT1}, {v(t+2)}", f"v_add_u32 {v(vQA+p)}, s{sT0}, {v(t+3)}",
          f"v_add_u32 {v(vWB_+p)}, {3*20480}, {v(vWA+p)}", f"v_add_u32 {v(vQB+p)}, {3*20480}, {v(vQA+p)}")
    S += p2_setup()
    q = 150
    S(f"v_mov_b32 {v(q)}, 0", f"v_mov_b32 {v(q+1)}, 0", f"v_mov_b32 {v(q+2)}, 0x3f803f80")
    for i in range(20): S(f"v_dot2c_f32_bf16 {v(q+(i&1))}, {v(SR+i)}, {v(q+2)}")
    S(f"v_add_f32 {v(q)}, {v(q)}, {v(q+1)}")
    def red16(r):
        for sh in (1, 2, 4, 8): S(f"v_add_f32_dpp {v(r)}, {v(r)}, {v(r)} row_ror:{sh} row_mask:0xf bank_mask:0xf")
    red16(q)
    S(f"v_mul_f32 {v(q)}, {hex(0x3acccccd)}, {v(q)}")
    S(f"v_mov_b32 {v(q+4)}, 0", f"v_mov_b32 {v(q+5)}, 0")
    for i in range(20):
        S(f"v_lshlrev_b32 {v(q+6)}, 16, {v(SR+i)}", f"v_and_b32 {v(q+7)}, 0xffff0000, {v(SR+i)}",
          f"v_pk_add_f32 {v(q+6,2)}, {v(q+6,2)}, {v(q,2)} op_sel_hi:[1,0] neg_lo:[0,1] neg_hi:[0,1]", f"v_pk_fma_f32 {v(q+4,2)}, {v(q+6,2)}, {v(q+6,2)}, {v(q+4,2)}")
    S(f"v_add_f32 {v(q+4)}, {v(q+4)}, {v(q+5)}")
    red16(q + 4)
    S(f"v_mov_b32 {v(q+5)}, {hex(0x3727c5ac)}", f"v_fmac_f32 {v(q+5)}, {hex(0x3acccccd)}, {v(q+4)}", f"v_rsq_f32 {v(q+1)}, {v(q+5)}")
    S(f"v_lshrrev_b32 {v(q+6)}, 4, {v(vL)}", f"v_lshlrev_b32 {v(q+6)}, 3, {v(q+6)}", f"v_and_b32 {v(q+7)}, 15, {v(vL)}", f"v_cmp_eq_u32 vcc, 0, {v(q+7)}", f"v_mov_b32 {v(q+7)}, {hex(HUGE)}",
      f"v_cndmask_b32 {v(q+6)}, {v(q+7)}, {v(q+6)}, vcc", f"s_lshl_b32 s{sT0}, s{sST+1}, 5", f"s_add_u32 s{sT0}, s{sT0}, {WS_STAT}",
      f"buffer_store_dwordx2 {v(q,2)}, {v(q+6)}, {SWS}, s{sT0} offen sc1")
    stages = []
    for g in range(10):
        mf = []
        for p in range(4):
            for T in range(5):
                ar, off = (vWA + p, (g % 4) * 20480) if g % 4 < 3 else (vWB_ + p, 0)
                off += 32 * T
                mf.append((AKV + 16 * T, f"{v(ar)} offset:{off}", f"{v(ar)} offset:{off+1280}", 16 * g + 4 * p, (vCS + 4 * T, g == 0) if p == 0 else None, g == 0 and p == 0))
        stages.append(dict(mf=mf, dma=w_dma(g), xs=g))
    PHF = Stream(); u = vT
    PHF(f"v_bfe_u32 {v(u)}, {v(vL)}, 4, 1", f"v_bfe_u32 {v(u+1)}, {v(vL)}, 1, 1", f"v_lshl_add_u32 {v(u)}, {v(u)}, 1, {v(u+1)}",
        f"v_lshrrev_b32 {v(u+1)}, 5, {v(vL)}", f"v_and_b32 {v(u+2)}, 1, {v(vL)}", f"v_cmp_eq_u32 s[{sPKS+4}:{sPKS+5}], {v(u+1)}, {v(u+2)}".replace(f"s[{sPKS+4}:{sPKS+5}]", "s[98:99]"),
        f"v_mul_u32_u24 {v(u+1)}, 1600, {v(u+1)}", f"v_bfe_u32 {v(u+2)}, {v(vL)}, 2, 2", f"v_mul_u32_u24 {v(u+2)}, 40, {v(u+2)}", f"v_add3_u32 {v(u+1)}, {v(u+1)}, {v(u+2)}, {L_PHI & 63}".replace(f", {L_PHI & 63}", ", 0"),
        f"v_add_u32 {v(u+1)}, {L_PHI}, {v(u+1)}", f"v_lshl_add_u32 {v(u+1)}, {v(u)}, 3, {v(u+1)}", f"v_mov_b32 {v(u+3)}, {L_ZERO}")
    amap = {}
    k = 4
    for (T, s) in [(0, 0), (1, 0), (1, 1), (2, 1)]:
        lo, hi = 5 * s - 4 * T, 5 * s + 5 - 4 * T
        PHF(f"v_add_u32 {v(u+k)}, {s*800+(4*T-5*s)*8}, {v(u+1)}", f"v_cndmask_b32 {v(u+k)}, {v(u+3)}, {v(u+k)}, s[98:99]")
        if lo > 0: PHF(f"v_cmp_le_u32 vcc, {lo}, {v(u)}", f"v_cndmask_b32 {v(u+k)}, {v(u+3)}, {v(u+k)}, vcc")
        if hi < 4: PHF(f"v_cmp_gt_u32 vcc, {hi}, {v(u)}", f"v_cndmask_b32 {v(u+k)}, {v(u+3)}, {v(u+k)}, vcc")
        amap[(T, s)] = u + k; k += 1
    for n, (T, sl) in enumerate(PROJ):
        for r2 in range(2):
            rho = 2 * sl + r2; s = rho // 5
            if (T, s) in amap: PHF(f"ds_read_b64_tr_b16 {a_(aPH+4*n+2*r2,2)}, {v(amap[(T,s)])} offset:{(rho%5)*160}")
            else: PHF(f"ds_read_b64_tr_b16 {a_(aPH+4*n+2*r2,2)}, {v(u+3)}")
    hb = {2: ["packdma", "phid", "ldsz"], 3: ["packrd"], 5: ["chores"]}
    ha = {2: pack_finish(), 4: PHF, 5: chore_flag(), 7: chore_poll_issue(), 9: chore_poll_check("q")}
    core = Core(stages, 4, "w")
    hb = {1: ["packdma"], 2: ["packrd", "phid", "ldsz"], 5: ["chores"]}
    ha[1] = ha.pop(2)
    d3 = stages[3]["dma"]; d4 = stages[4]["dma"]
    stages[3]["dma"] = Stream(); stages[4]["dma"] = Stream(d3 + d4)
    ha[8] = w_dma(10)
    ha[9] = Stream(w_dma(11) + ha[9])
    head, slots, first = core.build(3, hb, ha)
    S += head
    for sl in slots: S += sl
    stamp(S)
    def cs_finish(ntile, acc, lcs, tag, extra_after_bar):
        E = Stream(); q = vT
        E(f"v_and_b32 {v(q+1)}, 31, {v(vL)}", f"v_lshlrev_b32 {v(q+1)}, 2, {v(q+1)}", f"v_add_u32 {v(q+1)}, {lcs}, {v(q+1)}")
        for T in range(ntile): E(f"v_cndmask_b32 {v(vCS+4*T)}, {v(vCS+4*T+1)}, {v(vCS+4*T)}, s[96:97]")
        E("s_mov_b64 exec, 0xffffffff")
        for T in range(ntile): E(f"ds_add_f32 {v(q+1)}, {v(vCS+4*T)} offset:{128*T}")
        E("s_mov_b64 exec, -1")
        E.drain(vm=False); E("s_barrier")
        E += extra_after_bar
        for T in range(ntile): E(f"ds_read_b32 {v(q+4+T)}, {v(q+1)} offset:{128*T}")
        for T in range(ntile):
            split3(E, vCS + 4 * T, q + 4 + T, q + 9, "A")
        for T in range(ntile):
            E(f"v_mfma_f32_32x32x16_bf16 {v(acc+16*T,16)}, {v(vCS+4*T,4)}, {v(vMB,4)}, {v(acc+16*T,16)}")
        return E
    S += stats_consume("0x3fb8aa3b")
    S += cs_finish(5, AKV, L_CS, "kv", Stream(w_dma(12) + w_dma(13)))
    PK = vCS
    TT = vT
    project(S, AKV, PK, AQ)
    for i in range(0, 40, 2): S(f"v_pk_mul_f32 {v(AKV+40+i,2)}, {v(AKV+40+i,2)}, {v(vST,2)} op_sel:[0,1] op_sel_hi:[1,1]")
    for s in range(2):
        for i in range(10): S(f"v_cvt_pk_bf16_f32 {v(AKV+12*s+i)}, {v(AKV+40+20*s+2*i)}, {v(AKV+41+20*s+2*i)}")
        S(f"v_mov_b32 {v(AKV+12*s+10)}, 0x3f80", f"v_mov_b32 {v(AKV+12*s+11)}, 0")
    ta = 120
    S(f"v_and_b32 {v(ta)}, 31, {v(vL)}", f"s_lshl_b32 s{sT0}, s{sW}, 5", f"v_add_u32 {v(ta)}, s{sT0}, {v(ta)}", f"v_mul_u32_u24 {v(ta)}, {RS}, {v(ta)}",
      f"v_lshrrev_b32 {v(ta+1)}, 5, {v(vL)}", f"v_mul_u32_u24 {v(ta+2)}, 96, {v(ta+1)}", f"v_add_u32 {v(ta+2)}, {v(ta+2)}, {v(ta)}",
      f"v_mul_u32_u24 {v(ta+1)}, 160, {v(ta+1)}", f"v_add_u32 {v(ta+1)}, {v(ta+1)}, {v(ta)}")
    for i in range(6): S(f"ds_write_b128 {v(ta+2)}, {v(AKV+4*i,4)} offset:{L_TB+320+16*i}")
    for s in range(2):
        O = AKV + 40 + 20 * s
        softmax_pair(S, AQ + 20 * s, O, TT, False)
        for i in range(5): S(f"ds_write_b128 {v(ta+1)}, {v(O+4*i,4)} offset:{L_TB+80*s+16*i}")
    S(f"v_lshrrev_b32 {v(ta)}, 4, {v(vL)}", f"v_bfe_u32 {v(ta+1)}, {v(vL)}, 2, 2", f"v_lshl_add_u32 {v(ta+1)}, {v(ta)}, 3, {v(ta+1)}", f"v_mul_u32_u24 {v(ta+1)}, {RS}, {v(ta+1)}",
      f"v_and_b32 {v(ta+2)}, 3, {v(vL)}", f"v_lshl_add_u32 {v(ta+1)}, {v(ta+2)}, 3, {v(ta+1)}",
      f"s_mul_i32 s{sT0}, s{sW}, 80", f"s_mul_i32 s{sT1}, s{sW}, 48", f"s_add_u32 s{sT1}, s{sT1}, 320", f"v_add_u32 {v(ta+2)}, s{sT0}, {v(ta+1)}", f"v_add_u32 {v(ta+3)}, s{sT1}, {v(ta+1)}",
      f"v_mul_u32_u24 {v(ta+4)}, 768, {v(ta)}", f"v_and_b32 {v(ta+5)}, 15, {v(vL)}", f"v_lshl_add_u32 {v(ta+4)}, {v(ta+5)}, 2, {v(ta+4)}",
      f"s_lshl_b32 s{sT2}, s{sSL}, 2", f"s_add_u32 s{sT2}, s{sT2}, s{sW}", f"s_mul_i32 s{sT2}, s{sT2}, 4032", f"s_add_u32 s{sT2}, s{sT2}, {WS_KV}")
    S.drain(vm=False); S("s_barrier")
    FR = AKV
    for ks in range(4):
        for x in range(5):
            for r2 in range(2):
                ar, co = (ta + 3, 32 * x) if x < 2 else (ta + 2, 32 * (x - 2))
                S(f"ds_read_b64_tr_b16 {v(FR+20*ks+4*x+2*r2,2)}, {v(ar)} offset:{L_TB+(32*ks+4*r2)*RS+co}")
    for ks in range(4):
        for a in range(2):
            for b in range(3):
                acc = v(TT + 12 * a + 4 * b, 4)
                S(f"v_mfma_f32_16x16x32_bf16 {acc}, {v(FR+20*ks+4*a,4)}, {v(FR+20*ks+8+4*b,4)}, {'0' if ks == 0 else acc}")
    cur = None
    todo = []
    for a in range(2):
        for r in range(4):
            for b in range(3):
                m = (1 << 64) - 1 if a == 0 else (0xFFFFFFFF if r == 0 else 0xFFFF)
                if b == 2: m &= 0x00FF00FF00FF00FF
                todo.append((m, a, r, b))
    todo.sort(key=lambda x: -x[0])
    for n, (m, a, r, b) in enumerate(todo):
        if m != cur:
            S(f"s_mov_b32 exec_lo, {hex(m & 0xFFFFFFFF)}", f"s_mov_b32 exec_hi, {hex(m >> 32)}"); cur = m
        S.I(f"buffer_atomic_add_f32 {v(TT+12*a+4*b+r)}, {v(ta+4)}, {SWS}, s{sT2} offen offset:{(16*a+r)*192+64*b}", tok="kvat" if n == len(todo) - 1 else None)
    S("s_mov_b64 exec, -1")
    stamp(S)
    stages = []
    for g in range(5):
        gg = 10 + g; mf = []
        for p8 in range(8):
            p = p8 & 3
            for T in range(3):
                ar, off = (vQA + p, (gg % 4) * 20480) if gg % 4 < 3 else (vQB + p, 0)
                off += 32 * T + (p8 >> 2) * 10240
                mf.append((AQ + 16 * T, f"{v(ar)} offset:{off}", f"{v(ar)} offset:{off+80}", 32 * g + 4 * p8, (vCS + 4 * T, g == 0 and p8 == 0) if p == 0 else None, g == 0 and p8 == 0))
        stages.append(dict(mf=mf, dma=w_dma(gg) if g == 4 else Stream(), xs=None))
    sKF = 79
    S(f"s_lshl_b32 s{sKF}, s{sSL}, 7", f"s_add_u32 s{sKF}, s{sKF}, {WS_KVFLAG}", f"s_lshl_b32 s{sT0}, s{sMT}, 2", f"s_add_u32 s{sQB+22}, s{sKF}, s{sT0}")
    hb = {3: ["kvat"]}
    ha = {3: flag_store(sQB + 22, 0)}
    nw2 = 0
    for k in range(8):
        j = (20 * k + 19) // 32 + 2
        if j < 5: ha[j] = Stream(ha.get(j, Stream()) + w2_load(k)); nw2 += 1
    core = Core(stages, 4, "q")
    head, slots, first = core.build(4, hb, ha)
    S += head
    for sl in slots: S += sl
    stamp(S)
    W2rest = Stream()
    while nw2 < 8: W2rest += w2_load(nw2); nw2 += 1
    S(f"v_and_b32 {v(ta+6)}, 15, {v(vL)}", f"v_lshlrev_b32 {v(ta+6)}, 2, {v(ta+6)}")
    S += cs_finish(3, AQ, L_CS + 640, "q", Stream())
    project(S, AQ, PK, AKV)
    S(f"buffer_load_dword {v(ta+7)}, {v(ta+6)}, {SWS}, s{sKF} offen sc1")
    PQ = AQ
    softmax_pair(S, AKV, PQ, TT, True)
    S(f"v_mul_f32 {v(ta)}, {hex(0x358637bd)}, {v(TT+44)}")
    poll_check(S, "kv", ta + 7, SWS, ta + 6, f"s{sKF}", sONE, 0xFFFF)
    KL = AKV + 48
    S(f"v_lshlrev_b32 {v(ta+2)}, 4, v0", f"s_mul_i32 s{sT2}, s{sSL}, {4*4032}", f"s_add_u32 s{sT2}, s{sT2}, {WS_KV}")
    for i in range(4):
        S(f"buffer_load_dwordx4 {v(KL+4*i,4)}, {v(ta+2)}, {SWS}, s{sT2} offen sc1")
        if i < 3: S(f"s_add_u32 s{sT2}, s{sT2}, 4096")
    S += W2rest
    softmax_pair(S, AKV + 20, PQ + 20, TT, True)
    S(f"v_mul_f32 {v(ta+1)}, {hex(0x358637bd)}, {v(TT+44)}")
    S(f"v_lshlrev_b32 {v(ta+2)}, 3, v0")
    for i in range(4):
        S(f"v_cvt_pk_bf16_f32 {v(KL+4*i)}, {v(KL+4*i)}, {v(KL+4*i+1)}", f"v_cvt_pk_bf16_f32 {v(KL+4*i+1)}, {v(KL+4*i+2)}, {v(KL+4*i+3)}",
          f"ds_write_b64 {v(ta+2)}, {v(KL+4*i,2)} offset:{L_KB+2048*i}")
    u = TT
    S(f"v_bfe_u32 {v(u)}, {v(vL)}, 3, 2", f"v_bfe_u32 {v(u+1)}, {v(vL)}, 2, 1", f"v_lshrrev_b32 {v(u+2)}, 5, {v(vL)}", f"v_cmp_eq_u32 s[98:99], {v(u+1)}, {v(u+2)}",
      f"v_and_b32 {v(u+2)}, 3, {v(vL)}", f"v_lshl_add_u32 {v(u+2)}, {v(u)}, 2, {v(u+2)}", f"v_mul_u32_u24 {v(u+1)}, 42, {v(u+1)}", f"v_add_u32 {v(u+2)}, {v(u+2)}, {v(u+1)}",
      f"v_mul_u32_u24 {v(u+2)}, 96, {v(u+2)}", f"v_mov_b32 {v(u+3)}, {L_ZERO}", f"v_cmp_gt_u32 vcc, 2, {v(u)}")
    S(f"v_add_u32 {v(u+4)}, {L_KB}, {v(u+2)}", f"v_add_u32 {v(u+5)}, {L_KB+21*96}, {v(u+2)}", f"v_add_u32 {v(u+6)}, {L_KB+16*96}, {v(u+2)}", f"v_add_u32 {v(u+7)}, {L_KB+(21+16-8)*96}, {v(u+2)}",
      f"v_cndmask_b32 {v(u+6)}, {v(u+3)}, {v(u+6)}, vcc", f"v_cndmask_b32 {v(u+7)}, {v(u+7)}, {v(u+3)}, vcc")
    for k in range(4, 8): S(f"v_cndmask_b32 {v(u+k)}, {v(u+3)}, {v(u+k)}, s[98:99]")
    S.drain(vm=False); S("s_barrier")
    FRO = AKV
    ON = TT + 8
    ON = vCS
    for k in range(4):
        for s in range(5): S(f"ds_read_b128 {v(FRO+20*k+4*s,4)}, {v(u+4+k)} offset:{16*s}")
    for k in range(4):
        T = min(k, 2); slot = k & 1
        for s in range(5):
            acc = v(ON + 16 * T, 16)
            S(f"v_mfma_f32_32x32x16_bf16 {acc}, {v(FRO+20*k+4*s,4)}, {v(PQ+20*slot+4*s,4)}, {'0' if (s == 0 and k < 3) else acc}")
    S(f"v_add_f32 {v(ta)}, {v(ON+36)}, {v(ta)}", f"v_add_f32 {v(ta+1)}, {v(ON+44)}, {v(ta+1)}", f"v_rcp_f32 {v(ta+2)}, {v(ta)}", f"v_rcp_f32 {v(ta+3)}, {v(ta+1)}")
    OP = AKV
    for s in range(2):
        src = [ON + 16 * s + i for i in range(16)] + [ON + 32 + 8 * s + i for i in range(4)]
        sel = "op_sel_hi:[1,0]" if s == 0 else "op_sel:[0,1] op_sel_hi:[1,1]"
        for i in range(0, 20, 2): S(f"v_pk_mul_f32 {v(src[i],2)}, {v(src[i],2)}, {v(ta+2,2)} {sel}")
        for i in range(10): S(f"v_cvt_pk_bf16_f32 {v(OP+10*s+i)}, {v(src[2*i])}, {v(src[2*i+1])}")
    S(f"s_mul_i32 s{sT0}, s{sSL}, 5120", f"s_add_u32 s{sT0}, s{sT0}, s{sAPB}", f"s_add_u32 s{sT0}, s{sT0}, {96*1024}", f"s_add_u32 s{sT1}, s{sT0}, 4096")
    for i in range(4): S(f"buffer_store_dwordx4 {v(OP+4*i,4)}, {v(vL16)}, {SWS}, s{sT0} offen offset:{1024*i} sc1")
    S.I(f"buffer_store_dwordx4 {v(OP+16,4)}, {v(vL16)}, {SWS}, s{sT1} offen sc1", tok="ost")
    S(f"s_lshl_b32 s{sT2}, s{sMT}, 7", f"s_lshl_b32 s{sT0}, s{sSL}, 2", f"s_add_u32 s{sT2}, s{sT2}, s{sT0}")
    S.wait("ost"); S("s_barrier")
    S += flag_store(sT2, 96)
    S += phase2("q", nw2)
    return S

def main(outpath):
    hdr = open("parallel_sum__linear_kernel_hedgehog__glu_gated_glu__prompt.s.ref").read().split("; Override launch")[0]
    out = []
    st = State()
    finalize(prologue(), st, out)
    n0 = nstamp[0]
    finalize(glu_path(), st.copy(), out)
    nstamp[0] = n0
    st2 = st.copy(); st2.hist = []
    out.append("    s_nop 7")
    finalize(qkv_path(), st2, out)
    for L in slow_paths: out += L
    out.append("L_end:")
    txt = hdr + "; @launch grid=(256,1,1) block=(256,1,1) lds=163840\n" + f""".amdgcn_target "amdgcn-amd-amdhsa--gfx950"
.text
.globl {KN}
.p2align 8
.type {KN},@function
{KN}:
""" + "\n".join(out) + f"""
    s_endpgm
.section .rodata,"a"
.p2align 6
.amdhsa_kernel {KN}
  .amdhsa_next_free_vgpr 512
  .amdhsa_next_free_sgpr 102
  .amdhsa_accum_offset 256
  .amdhsa_group_segment_fixed_size 0
  .amdhsa_kernarg_size 88
  .amdhsa_user_sgpr_count 2
  .amdhsa_user_sgpr_kernarg_segment_ptr 1
  .amdhsa_system_sgpr_workgroup_id_x 1
.end_amdhsa_kernel
"""
    open(outpath, "w").write(txt)
    print("lines", len(out))

if __name__ == "__main__":
    if "--stamps" in sys.argv: STAMPS = True
    main([a for a in sys.argv[1:] if not a.startswith("--")][0])
```

```python
import re

REG = re.compile(r'\b([vas])(\d+)\b|\b([vas])\[(\d+):(\d+)\]')

def regs_of(op):
    out = []
    for m in REG.finditer(op):
        if m.group(1):
            out.append((m.group(1), int(m.group(2))))
        else:
            for i in range(int(m.group(4)), int(m.group(5)) + 1):
                out.append((m.group(3), i))
    o = op.strip()
    if o in ("vcc", "vcc_lo", "vcc_hi"): out.append(("vcc", 0))
    if o in ("exec", "exec_lo", "exec_hi"): out.append(("exec", 0))
    if o == "m0": out.append(("m0", 0))
    return out

TRANS = ("v_exp_f32", "v_log_f32", "v_rcp_f32", "v_rsq_f32", "v_sqrt_f32", "v_sin_f32", "v_cos_f32")

class Ins:
    __slots__ = ("text", "op", "kind", "wr", "rd", "tok", "waits", "passes", "srcC", "srcAB", "wide", "dpp")
    def __init__(self, text, tok=None, waits=()):
        self.text = text; self.tok = tok; self.waits = list(waits)
        self.passes = 0; self.srcC = []; self.srcAB = []; self.wide = False; self.dpp = False
        t = text.split(";")[0].strip()
        if t.endswith(":") or t.startswith("."):
            self.op = t; self.kind = "label"; self.wr = []; self.rd = []; return
        sp = t.split(None, 1)
        op = sp[0]; self.op = op
        rest = sp[1] if len(sp) > 1 else ""
        ops = []; cur = ""; d = 0
        for ch in rest:
            if ch == "[": d += 1
            if ch == "]": d -= 1
            if ch == "," and d == 0: ops.append(cur.strip()); cur = ""
            else: cur += ch
        if cur.strip(): ops.append(cur.strip())
        mods = ""
        if ops:
            parts = ops[-1].split(None, 1)
            ops[-1] = parts[0]
            if len(parts) > 1: mods = parts[1]
        R = [regs_of(o) for o in ops]
        flat = lambda L: [r for x in L for r in x]
        self.wr = []; self.rd = []
        if op.startswith("v_mfma"):
            self.kind = "mfma"
            self.wr = R[0]; self.srcAB = R[1] + R[2]; self.srcC = R[3]; self.rd = self.srcAB + self.srcC
            self.passes = 8 if "32x32" in op else (4 if "16x16" in op else 2)
        elif op.startswith("ds_read") or op.startswith("ds_bpermute") or op.startswith("ds_swizzle"):
            self.kind = "ds_rd"; self.wr = R[0]; self.rd = flat(R[1:])
        elif op.startswith("ds_"):
            self.kind = "ds_wr"; self.rd = flat(R)
        elif op.startswith("buffer_load") or op.startswith("global_load"):
            if re.search(r'\blds\b', mods):
                self.kind = "vm_dma"; self.rd = flat(R) + [("m0", 0)]
            else:
                self.kind = "vm_ld"; self.wr = R[0]; self.rd = flat(R[1:])
        elif op.startswith("buffer_store") or op.startswith("buffer_atomic") or op.startswith("global_store") or op.startswith("global_atomic"):
            self.kind = "vm_st"; self.rd = flat(R)
            self.wide = ("x4" in op or "x3" in op)
            self.srcC = R[0] if op.startswith("buffer") else R[1]
        elif op.startswith("s_load") or op.startswith("s_memtime") or op.startswith("s_memrealtime") or op.startswith("s_buffer_load"):
            self.kind = "smem"; self.wr = R[0]; self.rd = flat(R[1:])
        elif op in ("s_waitcnt", "s_nop", "s_barrier", "s_endpgm", "s_sleep", "s_setprio") or op.startswith("s_cbranch") or op == "s_branch":
            self.kind = "ctl"
        elif op.startswith("s_cmp") or op.startswith("s_bitcmp"):
            self.kind = "salu"; self.rd = flat(R)
        elif op.startswith("s_"):
            self.kind = "salu"; self.wr = R[0]; self.rd = flat(R[1:])
            if "saveexec" in op: self.wr = self.wr + [("exec", 0)]
        elif op.startswith("v_"):
            self.kind = "trans" if op.replace("_e32", "").replace("_e64", "") in TRANS else "valu"
            if op.startswith("v_cmp"):
                self.wr = R[0]; self.rd = flat(R[1:])
            elif op.startswith("v_permlane") or op.startswith("v_swap"):
                self.wr = R[0] + R[1]; self.rd = R[0] + R[1]
            elif op.startswith("v_add_co") or op.startswith("v_addc_co") or op.startswith("v_sub_co"):
                self.wr = R[0] + R[1]; self.rd = flat(R[2:])
            else:
                self.wr = R[0]; self.rd = flat(R[1:])
                if op.startswith("v_fmac") or op.startswith("v_dot2c") or op.startswith("v_writelane"): self.rd = self.rd + R[0]
                if op.startswith("v_cndmask") and len(ops) == 3: self.rd = self.rd + [("vcc", 0)]
            if "row_" in mods or "quad_perm" in mods or "wave_" in mods or "_dpp" in op:
                self.dpp = True; self.rd = self.rd + R[0]
            if op.startswith("v_dot"): self.kind = "dot"
        else:
            raise ValueError("unknown instr: " + text)

class Stream(list):
    def I(self, text, tok=None, waits=()):
        self.append(Ins(text, tok, waits)); return self
    def __call__(self, *texts):
        for t in texts: self.I(t)
        return self
    def wait(self, *toks):
        x = Ins("s_nop 0"); x.kind = "pseudo_wait"; x.waits = list(toks); self.append(x); return self
    def drain(self, vm=True, lgkm=True):
        x = Ins("s_nop 0"); x.kind = "pseudo_drain"; x.waits = [vm, lgkm]; self.append(x); return self

VALUK = ("valu", "trans", "dot")

class State:
    def __init__(self):
        self.vm_issued = 0; self.vm_done = 0
        self.lg_issued = 0; self.lg_done = 0
        self.smem_pending = False
        self.pend = {}
        self.tok = {}
        self.hist = []
        self.pos = 0
    def copy(self):
        s = State(); s.__dict__.update(self.__dict__)
        s.pend = dict(self.pend); s.tok = dict(self.tok); s.hist = list(self.hist); return s

def need_states(p, c):
    n = 0
    pw = set(p.wr)
    if p.kind == "mfma":
        big = {2: 5, 4: 8, 8: 12}[p.passes]
        if c.kind == "mfma":
            if pw & set(c.srcAB): n = max(n, big)
            if pw & set(c.srcC):
                if list(c.srcC) == list(p.wr) and c.passes == p.passes: n = max(n, 2 if p.passes == 2 else 0)
                else: n = max(n, p.passes + 2)
            elif pw & set(c.wr): n = max(n, p.passes + 2)
        elif c.kind in VALUK or c.kind in ("ds_rd", "ds_wr", "vm_ld", "vm_st", "vm_dma"):
            if pw & (set(c.rd) | set(c.wr)): n = max(n, big)
            if c.kind in VALUK and set(p.srcC) & set(c.wr): n = max(n, p.passes - 1)
        return n
    if p.kind in VALUK:
        vw = {r for r in pw if r[0] in "va"}
        sw = {r for r in pw if r[0] in ("s", "vcc")}
        if c.kind == "mfma" and vw & set(c.rd): n = max(n, 3 if p.kind == "dot" else 2)
        if c.kind in VALUK:
            if sw & set(c.rd): n = max(n, 4 if c.op.startswith("v_readlane") or c.op.startswith("v_writelane") else 2)
            if vw & set(c.rd):
                if c.op.startswith("v_readfirstlane") or c.op.startswith("v_readlane"): n = max(n, 1)
                if c.dpp or c.op.startswith("v_permlane"): n = max(n, 2)
                if p.kind == "trans" and c.kind != "trans": n = max(n, 1)
            if p.kind == "dot" and vw & (set(c.rd) | set(c.wr)):
                if not (c.op == p.op and not (vw & (set(c.rd) - set(c.wr)))): n = max(n, 3)
            if ("exec", 0) in pw: n = max(n, 5)
        if p.kind == "dot" and c.kind in ("ds_wr", "vm_st") and vw & set(c.rd): n = max(n, 3)
        if p.kind == "trans" and c.kind in ("ds_wr", "vm_st", "ds_rd", "vm_ld") and vw & set(c.rd): n = max(n, 1)
        if c.kind in ("vm_ld", "vm_st", "vm_dma") and sw & set(c.rd): n = max(n, 5)
        if c.kind == "salu" and sw & set(c.rd): n = max(n, 1)
        return n
    if p.kind == "vm_st" and p.wide:
        if (c.kind in VALUK or c.kind in ("ds_rd", "vm_ld", "mfma")) and set(p.srcC) & set(c.wr): n = max(n, 2)
    if p.kind == "ds_wr":
        if c.kind in VALUK and set(p.rd) & set(c.wr): n = max(n, 1)
    if p.kind == "salu" and ("m0", 0) in pw and c.kind == "vm_dma": n = max(n, 1)
    return n

def finalize(stream, st, out):
    def emit_raw(ins, states=1):
        out.append("    " + ins.text if ins.kind != "label" else ins.text)
        if ins.kind == "label": return
        st.hist.append((ins, st.pos)); st.pos += states
        if len(st.hist) > 24: st.hist.pop(0)
    def do_wait(vm_seq, lg_seq, lg_all=False):
        parts = []
        if vm_seq is not None and vm_seq > st.vm_done:
            cnt = min(st.vm_issued - vm_seq, 63)
            parts.append(f"vmcnt({cnt})"); st.vm_done = st.vm_issued - cnt
        if lg_all or (lg_seq is not None and lg_seq > st.lg_done and st.smem_pending):
            if st.lg_done < st.lg_issued or st.smem_pending:
                parts.append("lgkmcnt(0)"); st.lg_done = st.lg_issued; st.smem_pending = False
                for r in [r for r, v in st.pend.items() if v[0] == "sm"]: del st.pend[r]
        elif lg_seq is not None and lg_seq > st.lg_done:
            cnt = min(st.lg_issued - lg_seq, 15)
            parts.append(f"lgkmcnt({cnt})"); st.lg_done = st.lg_issued - cnt
        if parts: emit_raw(Ins("s_waitcnt " + " ".join(parts)))
    for ins in stream:
        if ins.kind == "pseudo_drain":
            do_wait(st.vm_issued if ins.waits[0] else None, None, lg_all=ins.waits[1]); continue
        vm_seq = None; lg_seq = None; lg_all = False
        deps = [st.tok[t] for t in ins.waits]
        if ins.kind != "pseudo_wait":
            for r in set(ins.rd) | set(ins.wr):
                if r in st.pend: deps.append(st.pend[r])
        for (q, s) in deps:
            if q == "vm": vm_seq = s if vm_seq is None else max(vm_seq, s)
            elif q == "lg": lg_seq = s if lg_seq is None else max(lg_seq, s)
            else: lg_all = True
        do_wait(vm_seq, lg_seq, lg_all)
        if ins.kind == "pseudo_wait": continue
        if ins.kind == "label": emit_raw(ins); continue
        need = 0
        for (p, pos) in st.hist:
            n = need_states(p, ins)
            if n:
                have = st.pos - pos - 1
                need = max(need, n - have)
        while need > 0:
            k = min(need, 16)
            emit_raw(Ins(f"s_nop {k-1}"), states=k); need -= k
        states = 1
        if ins.op == "s_nop": states = int(ins.text.split()[1]) + 1
        emit_raw(ins, states)
        for r in ins.wr: st.pend.pop(r, None)
        if ins.kind in ("vm_ld", "vm_dma", "vm_st"):
            st.vm_issued += 1
            for r in ins.wr: st.pend[r] = ("vm", st.vm_issued)
            if ins.tok: st.tok[ins.tok] = ("vm", st.vm_issued)
        elif ins.kind in ("ds_rd", "ds_wr"):
            st.lg_issued += 1
            for r in ins.wr: st.pend[r] = ("lg", st.lg_issued)
            if ins.tok: st.tok[ins.tok] = ("lg", st.lg_issued)
        elif ins.kind == "smem":
            st.smem_pending = True
            for r in ins.wr: st.pend[r] = ("sm", 0)
        elif ins.op == "s_waitcnt":
            m = re.search(r'vmcnt\((\d+)\)', ins.text)
            if m: st.vm_done = max(st.vm_done, st.vm_issued - int(m.group(1)))
            m = re.search(r'lgkmcnt\((\d+)\)', ins.text)
            if m:
                if int(m.group(1)) == 0:
                    st.lg_done = st.lg_issued; st.smem_pending = False
                    for r in [r for r, v in st.pend.items() if v[0] == "sm"]: del st.pend[r]
                elif not st.smem_pending: st.lg_done = max(st.lg_done, st.lg_issued - int(m.group(1)))
        if len(st.pend) > 600:
            st.pend = {r: v for r, v in st.pend.items() if not ((v[0] == "vm" and v[1] <= st.vm_done) or (v[0] == "lg" and v[1] <= st.lg_done))}
    return st

def interleave(main_slots, side, per_slot, start=0):
    side = list(side); i = 0; credit = 0.0
    for k in range(start, len(main_slots)):
        credit = min(credit + per_slot, per_slot + 2.0)
        while i < len(side):
            c = 2 if side[i].kind == "trans" else (0 if side[i].kind in ("salu", "pseudo_wait") else 1)
            if c > credit: break
            main_slots[k].append(side[i]); credit -= c; i += 1
    return side[i:]

def est(ins):
    k = ins.kind
    if k == "mfma": return 4 * ins.passes
    if k == "trans": return 8
    if k in ("valu", "dot"): return 5
    if k in ("ds_rd", "ds_wr"): return 8
    if k in ("vm_ld", "vm_st", "vm_dma"): return 16
    if k == "salu": return 2
    return 1

def vm_groups(stream):
    G = []; cur = Stream()
    for ins in stream:
        cur.append(ins)
        if ins.kind in ("vm_ld", "vm_st", "vm_dma"): G.append(cur); cur = Stream()
    if cur:
        if G: G[-1] += cur
        else: G.append(cur)
    return G

def sprinkle(main, bg, period, lead=0):
    G = vm_groups(bg); out = Stream(); acc = period - lead; full = True
    ok = ("valu", "trans", "mfma", "ds_rd", "ds_wr", "dot")
    prev = None
    for ins in main:
        if G and acc >= period and full and prev is not None and prev.kind in ok and ins.kind in ok:
            out += G.pop(0); acc = 0
        out.append(ins); acc += est(ins); prev = ins
        if ("exec", 0) in ins.wr: full = ins.text.strip().endswith("exec, -1")
    for g in G: out += g
    return out
```

```python
import sys
from emit import Stream, State, Ins, finalize, interleave, sprinkle, vm_groups

KN = "parallel_sum__linear_kernel_hedgehog__glu_gated_glu__prompt_kernel"
WS_HFLAG = 0
WS_KVFLAG = 8192
WS_PFLAG = 9216
WS_KV = 12288
WS_STAT = 262144
WS_STAMP = 524288
WS_AP = 1 << 20
WS_WP = 12 << 20
WS_SIZE = 16 << 20
HUGE = 0x7F000000
L_XS = 0
L_TB = 0; RS = 528
L_WR = 67584
L_MISC = 149504
L_PACK = 0
LG_WR = 65536
LG_MISC = 147456
L_CSF = LG_MISC + 12288
L_PHI = L_MISC + 4096
L_ZERO = L_MISC
L_CS = L_MISC + 10240
L_KB = L_MISC + 2048
SX, SW, SWS, SDBG, SOUT, SAUX = "s[4:7]", "s[8:11]", "s[12:15]", "s[16:19]", "s[20:23]", "s[24:27]"
sW, sMT, sSL, sRT, sNT, sROT = 28, 29, 30, 31, 52, 53
sXB, sWB, sKX, sKW, sT0, sT1, sT2, sT3 = 54, 55, 56, 57, 58, 59, 60, 61
sXM0, sWM0, sAPB, sONE, sWPB, sACB, sWP4, sWP5 = 62, 63, 64, 65, 66, 67, 68, 69
sST = 70
sSPIN = 74
sPKS, sPKD = 75, 76
sPKF = 101
sSTAMP = 80
vL, vL16, vXO, vWO, vQO = 1, 2, 3, 5, 10
vXA, vWA, vWB_, vQA, vQB = 16, 20, 24, 28, 32
vSEL, vMB, vC, vSD, vST = 36, 40, 44, 45, 46
vCS = 48
vT = 68
vONE = 115
vFL = 15
NF, DPF = 10, 7
aWF = 160

STAMPS = False
GROT = 1
PREF = 0
CODEPF = 1
ROLE = ['g']
STGRP = 0
ABL = set()
STAMPOP = 's_memrealtime'
nstamp = [0]
def stamp(S, grp=0):
    if STAMPS and (grp == STGRP or grp < 0):
        i = nstamp[0]; nstamp[0] += 1
        S(f"{STAMPOP} s[94:95]")
        S.drain(vm=False)
        S(f"v_writelane_b32 v0, s94, {i}")

def v(a, n=1): return f"v{a}" if n == 1 else f"v[{a}:{a+n-1}]"
def a_(a, n=1): return f"a{a}" if n == 1 else f"a[{a}:{a+n-1}]"

slow_paths = []
def cmp_mask(vreg, n, mask):
    lo, hi = mask & 0xFFFFFFFF, mask >> 32
    L = []
    if n == 2: L.append(f"v_and_b32 {v(vreg)}, {v(vreg)}, {v(vreg+1)}")
    L.append(f"v_cmp_ne_u32 vcc, 1, {v(vreg)}")
    if hi:
        L += [f"s_and_b32 s{sT0}, vcc_lo, {hex(lo)}", f"s_and_b32 s{sT1}, vcc_hi, {hex(hi)}", f"s_or_b32 s{sT0}, s{sT0}, s{sT1}"]
    else:
        L += [f"s_and_b32 s{sT0}, vcc_lo, {hex(lo)}"]
    return L
def spin_lines(name, vreg, n, load, mask, sleep=6):
    C = cmp_mask(vreg, n, mask)
    k = 2 if n == 2 else 1
    return [f"    s_mov_b32 s{sSPIN}, 0x8000", f"L_spin_{name}:", f"    s_sleep {sleep}", "    " + load, "    s_waitcnt vmcnt(0)",
            f"    s_sub_u32 s{sSPIN}, s{sSPIN}, 1", f"    s_cbranch_scc1 L_out_{name}"] + ["    " + c for c in C[:k]] + ["    s_nop 1"] + ["    " + c for c in C[k:]] + \
           [f"    s_cbranch_scc1 L_spin_{name}", f"L_out_{name}:"]
def poll_check(S, name, vreg, n, load, mask):
    S(*cmp_mask(vreg, n, mask))
    S(f"s_cbranch_scc1 L_slow_{name}", f"L_back_{name}:")
    slow_paths.append([f"L_slow_{name}:"] + spin_lines(name, vreg, n, load, mask) + [f"    s_branch L_back_{name}"])

def divmod_v(S, q, r, x, d, tmp_s=sT0):
    m = (1 << 16) // d + 1
    S(f"v_mul_u32_u24 {v(q)}, {m}, {v(x)}", f"v_lshrrev_b32 {v(q)}, 16, {v(q)}",
      f"v_mul_u32_u24 {v(r)}, {d}, {v(q)}", f"v_sub_u32 {v(r)}, {v(x)}, {v(r)}")

def prologue():
    S = Stream()
    S("s_cmp_ge_u32 s2, 256", "s_cbranch_scc1 L_end")
    S("s_load_dwordx16 s[32:47], s[0:1], 0", "s_load_dwordx4 s[48:51], s[0:1], 64", "s_load_dwordx2 s[12:13], s[0:1], 80")
    S(f"v_lshrrev_b32 {v(vT)}, 6, v0", f"v_and_b32 {v(vL)}, 63, v0", f"v_readfirstlane_b32 s{sW}, {v(vT)}")
    S(f"v_lshlrev_b32 {v(vL16)}, 4, {v(vL)}")
    S("s_and_b32 s3, s2, 7", f"s_lshr_b32 s{sT0}, s2, 3")
    S(f"s_and_b32 s{sMT}, s3, 1", f"s_lshl_b32 s{sMT}, s{sMT}, 3", f"s_and_b32 s{sT1}, s{sT0}, 7", f"s_add_u32 s{sMT}, s{sMT}, s{sT1}")
    S(f"s_lshr_b32 s{sT1}, s{sT0}, 3")
    S(f"s_and_b32 s{sSL}, s3, 6", f"s_and_b32 s{sT2}, s{sT1}, 1", f"s_add_u32 s{sSL}, s{sSL}, s{sT2}")
    S(f"s_lshl_b32 s{sRT}, s3, 2", f"s_and_b32 s{sT2}, s{sT0}, 3", f"s_add_u32 s{sRT}, s{sRT}, s{sT2}", f"s_lshr_b32 s{sNT}, s{sT0}, 2")
    S(f"s_lshr_b32 s{sT3}, s{sT1}, 1")
    S(f"s_and_b32 s{sT2}, s{sSL}, 1", f"s_mul_i32 s{sT2}, s{sT2}, 5", f"s_and_b32 s{sT1}, s{sMT}, 7", f"s_add_u32 s{sT2}, s{sT2}, s{sT1}", f"s_mul_i32 s{sT1}, s{sT3}, 3", f"s_add_u32 s{sT2}, s{sT2}, s{sT1}",
      f"s_sub_u32 s{sT1}, s{sT2}, 10", f"s_cmp_ge_u32 s{sT2}, 10", f"s_cselect_b32 s{sT2}, s{sT1}, s{sT2}", f"s_andn2_b32 s{sROT}, s{sT2}, s{sT3}")
    S(f"v_mov_b32 {v(vFL)}, {hex(HUGE)}", "v_cmp_eq_u32 vcc, 0, v0", f"v_cndmask_b32 {v(vFL)}, {v(vFL)}, 0, vcc")
    S(f"s_mov_b32 s{sONE}, 1", "v_accvgpr_write_b32 a255, 1")
    t = vT
    S(f"v_lshrrev_b32 {v(t)}, 3, {v(vL)}", f"v_mul_u32_u24 {v(t)}, 1280, {v(t)}",
      f"v_lshrrev_b32 {v(t+1)}, 4, {v(vL)}", f"v_and_b32 {v(t+2)}, 7, {v(vL)}", f"v_xor_b32 {v(t+1)}, {v(t+1)}, {v(t+2)}",
      f"v_lshl_add_u32 {v(vXO)}, {v(t+1)}, 4, {v(t)}", f"v_xor_b32 {v(t+1)}, 4, {v(t+1)}", f"v_lshl_add_u32 {v(vXO+1)}, {v(t+1)}, 4, {v(t)}",
      f"v_add_u32 {v(XO[1])}, 9216, {v(XO[1])}", f"v_add_u32 {v(XO[2])}, {2*9216}, {v(XO[0])}", f"v_add_u32 {v(XO[3])}, {2*9216}, {v(XO[1])}")
    S("s_mov_b32 s4, s32", "s_mov_b32 s5, s33", "s_mov_b32 s6, 2621440", "s_mov_b32 s7, 0x20000")
    S(f"s_mov_b32 s14, {WS_SIZE}", "s_mov_b32 s15, 0x20000")
    S("s_mov_b32 s16, s50", "s_mov_b32 s17, s51", "s_mov_b32 s18, 256", "s_mov_b32 s19, 0x20000")
    S("s_mov_b32 s20, s48", "s_mov_b32 s21, s49", "s_mov_b32 s22, 2621440", "s_mov_b32 s23, 0x20000")
    S("s_mov_b32 s11, 0x20000", "s_mov_b32 s27, 0x20000")
    S(f"s_lshl_b32 s{sXB}, s{sMT}, 2", f"s_add_u32 s{sXB}, s{sXB}, s{sW}", f"s_mul_i32 s{sAPB}, s{sXB}, {136*1024}", f"s_add_u32 s{sAPB}, s{sAPB}, {WS_AP}",
      f"s_mul_i32 s{sXB}, s{sXB}, {32*1280}", f"s_lshl_b32 s{sXM0}, s{sW}, 14")
    S(f"s_lshl_b32 s{sKX}, s{sROT}, 7", f"s_add_u32 s{sKX}, s{sKX}, s{sXB}", f"s_add_u32 s90, s{sXB}, 1280")
    stamp(S, -1)
    for i in range(4): S += x_dma(i)
    if CODEPF:
        S("s_getpc_b64 s[48:49]", "L_pc:")
        S(f"s_lshr_b32 s50, s2, 3", "s_lshl_b32 s50, s50, 2", f"s_add_u32 s50, s50, s{sW}", "s_lshl_b32 s50, s50, 10",
          f"v_and_b32 {v(vT)}, 7, {v(vL)}", f"v_lshl_add_u32 {v(vT)}, {v(vT)}, 7, s50", f"v_min_u32 {v(vT)}, (L_end-L_pc), {v(vT)}",
          f"global_load_dword a254, {v(vT)}, s[48:49]")
    S(f"s_cmp_eq_u32 s{sT3}, 1", "s_cbranch_scc1 L_qkv")
    return S

XO = [3, 4, 36, 37]
def x_dma(i):
    S = Stream()
    S(f"s_add_u32 m0, s{sXM0}, {L_XS + (i % 4) * 4096}")
    for j in range(4):
        S.I(f"buffer_load_dwordx4 {v(XO[j])}, {SX}, s{sKX} offen offset:{j*1024} lds", tok=f"x{i}" if j == 3 else None)
    if i < 9: S(f"s_add_u32 s{sKX}, s{sKX}, 128", f"s_cmp_eq_u32 s{sKX}, s90", f"s_cselect_b32 s{sKX}, s{sXB}, s{sKX}")
    return S
sKT = 80
def ktable(S, mult, base_s):
    S(f"s_mul_i32 s{sKT}, s{sROT}, {mult}", f"s_add_u32 s{sKT}, s{sKT}, s{base_s}", f"s_add_u32 s91, s{base_s}, {10*mult}")
def ktable_rest(S, mult, base_s):
    for i in range(1, 10):
        S(f"s_add_u32 s{sKT+i}, s{sKT+i-1}, {mult}")
        if i % 2 == 0 or ROLE[0] == 'g': S(f"s_cmp_eq_u32 s{sKT+i}, s91", f"s_cselect_b32 s{sKT+i}, s{base_s}, s{sKT+i}")

XR = 96
vSA = 38
def phase_x(cmul, early, bg, period):
    S = Stream()
    for i in range(4): S(f"v_mov_b32 {v(vSA+i)}, 0")
    S(f"v_mov_b32 {v(vSA+4)}, 0x3f803f80", f"v_mov_b32 {v(vSA+5)}, 0x3f80", f"v_mov_b32 {v(48)}, 0x3f800000")
    def rd(i):
        S.wait(f"x{i}")
        for p in range(4): S(f"ds_read_b128 {v(XR+16*i+4*p,4)}, {v(vXA+p)} offset:{(i % 4)*4096}")
    rd(0)
    for i in range(10):
        if i < 9: rd(i + 1)
        for d in range(16):
            r = XR + 16 * i + d
            S(f"v_dot2c_f32_bf16 {v(vSA+(d&1))}, {v(r)}, {v(vSA+4)}", f"v_dot2c_f32_bf16 {v(vSA+2+(d&1))}, {v(r)}, {v(r)}")
            if d == 12 and i + 4 < 10: S += x_dma(i + 4)
        if i in early: S += early[i]
        stamp(S, 1)
    q = 50
    S(f"v_add_f32 {v(q)}, {v(vSA)}, {v(vSA+1)}", f"v_add_f32 {v(q+2)}, {v(vSA+2)}, {v(vSA+3)}", f"v_mov_b32 {v(q+1)}, {v(q)}", f"v_mov_b32 {v(q+3)}, {v(q+2)}")
    S(f"v_permlane32_swap_b32 {v(q)}, {v(q+1)}", f"v_permlane32_swap_b32 {v(q+2)}, {v(q+3)}", f"v_add_f32 {v(q)}, {v(q)}, {v(q+1)}", f"v_add_f32 {v(q+2)}, {v(q+2)}, {v(q+3)}")
    S(f"v_mul_f32 {v(49)}, {hex(0xbacccccd)}, {v(q)}")
    C = Stream()
    def dots(f):
        T = 56 + 8 * (f & 1)
        for d in range(4):
            r = XR + 4 * f + d
            C(f"v_dot2_f32_bf16 {v(T+2*d)}, {v(r)}, {v(vSA+5)}, {v(49)}", f"v_dot2_f32_bf16 {v(T+2*d+1)}, {v(r)}, {v(48)}, {v(49)}")
    def fin(f):
        T = 56 + 8 * (f & 1)
        for d in range(4): C(f"v_cvt_pk_bf16_f32 {v(XR+4*f+d)}, {v(T+2*d)}, {v(T+2*d+1)}")
    def mov(f):
        for d in range(4): C(f"v_accvgpr_write_b32 {a_(4*f+d)}, {v(XR+4*f+d)}")
    dots(0)
    for f in range(40):
        if f < 39: dots(f + 1)
        fin(f)
        if f: mov(f - 1)
        if f == 2:
            C(f"v_mul_f32 {v(q+2)}, {hex(0x3acccccd)}, {v(q+2)}", f"v_fma_f32 {v(q+2)}, -{v(49)}, {v(49)}, {v(q+2)}", f"v_max_f32 {v(q+2)}, 0, {v(q+2)}", f"v_add_f32 {v(q+2)}, {hex(0x3727c5ac)}, {v(q+2)}",
              f"v_rsq_f32 {v(vST+1)}, {v(q+2)}", f"v_sqrt_f32 {v(vSD)}, {v(q+2)}", f"v_mul_f32 {v(vC)}, {cmul}, {v(vST+1)}")
    mov(39)
    S += sprinkle(C, bg, period)
    stamp(S, 1)
    return S

def xaddr_setup(S, wave_xor):
    t = vT
    S(f"v_and_b32 {v(t)}, 31, {v(vL)}", f"v_bfe_u32 {v(t+1)}, {v(vL)}, 1, 3", f"v_lshrrev_b32 {v(t+2)}, 5, {v(vL)}", f"v_xor_b32 {v(t+1)}, {v(t+1)}, {v(t+2)}")
    if wave_xor:
        S(f"s_lshl_b32 s{sT0}, s{sW}, 1", f"v_xor_b32 {v(t+1)}, s{sT0}, {v(t+1)}")
    S(f"v_lshlrev_b32 {v(t)}, 7, {v(t)}", f"v_add_u32 {v(t)}, s{sXM0}, {v(t)}")
    for p in range(4):
        S(f"v_xor_b32 {v(t+2)}, {2*p}, {v(t+1)}", f"v_lshl_add_u32 {v(vXA+p)}, {v(t+2)}, 4, {v(t)}")

def sel_setup(S):
    t = vT
    S(f"v_lshrrev_b32 {v(t)}, 4, {v(vL)}", f"v_xor_b32 {v(t)}, {v(t)}, {v(vL)}", f"v_and_b32 {v(t)}, 1, {v(t)}", f"v_cmp_eq_u32 vcc, 0, {v(t)}",
      f"v_mov_b32 {v(t+1)}, 0x3f803f80")
    for i in range(4): S(f"v_cndmask_b32 {v(vSEL+i)}, 0, {v(t+1)}, vcc")
    S("s_mov_b32 s96, 0x0000ffff", "s_mov_b32 s97, 0x0000ffff")

vPK = 88
def pack_vec(S):
    t = vT
    S(f"v_lshrrev_b32 {v(t)}, 3, {v(vL)}", f"v_mul_u32_u24 {v(t)}, 1280, {v(t)}", f"v_and_b32 {v(t+1)}, 7, {v(vL)}", f"v_lshl_add_u32 {v(vPK)}, {v(t+1)}, 4, {v(t)}")
    S(f"v_lshrrev_b32 {v(t)}, 4, {v(vL)}", f"v_bfe_u32 {v(t+1)}, {v(vL)}, 2, 2", f"v_lshl_add_u32 {v(t)}, {v(t)}, 3, {v(t+1)}", f"v_lshlrev_b32 {v(t)}, 7, {v(t)}",
      f"v_and_b32 {v(t+1)}, 3, {v(vL)}", f"v_lshl_add_u32 {v(t)}, {v(t+1)}, 3, {v(t)}", f"v_add_u32 {v(vPK+1)}, s{sXM0}, {v(t)}")
def pack_dma(u, unit_s):
    S = Stream(); A, B, C, D = 48, 49, 50, 51
    S(f"s_mul_i32 s40, s{unit_s}, 6554", "s_lshr_b32 s40, s40, 16", "s_mul_i32 s41, s40, 10", f"s_sub_u32 s41, s{unit_s}, s41")
    S("s_cmp_lt_u32 s40, 48", "s_cselect_b32 s24, s46, s38", "s_cselect_b32 s25, s47, s39", "s_mov_b32 s26, 819200", "s_cselect_b32 s26, 1966080, s26")
    if u: S(f"s_cmp_lt_u32 s{unit_s}, 680", "s_cselect_b32 s26, s26, 0", "s_cselect_b32 s40, s40, 0")
    for j in range(4):
        if j % 2 == 0:
            S(f"s_lshl_b32 s{C}, s40, 1")
            if j: S(f"s_add_u32 s{C}, s{C}, 1")
            S(f"s_lshl_b32 s{A}, s{C}, 4", f"s_sub_u32 s{C}, s{C}, 96", f"s_max_i32 s{C}, s{C}, 0", f"s_mul_i32 s3, s{C}, 52", "s_lshr_b32 s3, s3, 8", "s_mul_i32 s3, s3, 40",
              f"s_lshl_b32 s{C}, s{C}, 3", f"s_add_u32 s{C}, s{C}, s3", "s_cmp_lt_u32 s40, 48", f"s_cselect_b32 s{A}, s{A}, s{C}", f"s_cselect_b32 s{B}, {8*1280}, s{B}",
              f"s_mov_b32 s3, {40*1280}", f"s_cselect_b32 s{B}, s{B}, s3", f"s_mul_i32 s{A}, s{A}, 1280", "s_lshl_b32 s3, s41, 7", f"s_add_u32 s{A}, s{A}, s3")
        else:
            S(f"s_add_u32 s{A}, s{A}, s{B}")
        S(f"s_add_u32 m0, s{sXM0}, {8192 + 1024*j}")
        S.I(f"buffer_load_dwordx4 {v(vPK)}, {SAUX}, s{A} offen lds", tok=f"packdma{u}" if j == 3 else None)
    S("s_mov_b32 s24, s12", "s_mov_b32 s25, s13", "s_cmp_eq_u32 s26, 0", f"s_cselect_b32 s26, 0, {WS_SIZE}")
    return S
def pack_finish(u):
    S = Stream(); d = 72
    S.wait(f"packdma{u}")
    for t in range(4):
        for r2 in range(2):
            S(f"ds_read_b64_tr_b16 {v(d+4*t+2*r2,2)}, {v(vPK+1)} offset:{8192+r2*512+32*t}")
    for t in range(4):
        S("s_lshl_b32 s48, s41, 2")
        if t: S(f"s_add_u32 s48, s48, {t}")
        S("s_mul_i32 s49, s48, 52", "s_lshr_b32 s49, s49, 8", "s_mul_i32 s49, s49, 335", "s_add_u32 s48, s48, s49", "s_mul_i32 s49, s40, 5", "s_add_u32 s48, s48, s49",
          "s_lshl_b32 s48, s48, 10", f"s_add_u32 s48, s48, {WS_WP}")
        S.I(f"buffer_store_dwordx4 {v(d+4*t,4)}, {v(vL16)}, {SAUX}, s48 offen sc1", tok=f"chores{u}" if t == 3 else None)
    return S

def pv(): return 116 if ROLE[0] == 'g' else 84
def poll1_issue():
    S = Stream()
    S(f"v_and_b32 {v(pv()+2)}, 15, {v(vL)}", f"v_lshlrev_b32 {v(pv()+2)}, 2, {v(pv()+2)}", f"buffer_load_dword {v(pv())}, {v(pv()+2)}, {SDBG}, 0 offen sc1")
    return S
def poll1_check(tag):
    S = Stream()
    poll_check(S, "i" + tag, pv(), 1, f"buffer_load_dword {v(pv())}, {v(pv()+2)}, {SDBG}, 0 offen sc1", 0xFFFF)
    return S
def poll2_issue():
    S = Stream()
    S(f"v_lshrrev_b32 {v(pv()+2)}, 2, {v(vL)}", f"v_lshlrev_b32 {v(pv()+2)}, 7, {v(pv()+2)}", f"v_and_b32 {v(pv())}, 3, {v(vL)}", f"v_lshl_add_u32 {v(pv()+2)}, {v(pv())}, 3, {v(pv()+2)}",
      f"s_mov_b32 s{sPKF}, {WS_PFLAG}",
      f"buffer_load_dwordx2 {v(pv(),2)}, {v(pv()+2)}, {SWS}, s{sPKF} offen sc1")
    return S
def poll2_check(tag):
    S = Stream()
    poll_check(S, "k" + tag, pv(), 2, f"buffer_load_dwordx2 {v(pv(),2)}, {v(pv()+2)}, {SWS}, s{sPKF} offen sc1", (1 << 64) - 1)
    return S

vRS, vSQ = 116, 120
def stat_mfma(which, xr, zero):
    if which == 0: return f"v_mfma_f32_16x16x32_bf16 {v(vRS,4)}, {v(vSEL,4)}, {a_(xr,4)}, {'0' if zero else v(vRS,4)}"
    h = which - 1
    return f"v_mfma_f32_4x4x4_16b_bf16 {v(vSQ+4*h,4)}, {a_(xr+2*h,2)}, {a_(xr+2*h,2)}, {'0' if zero else v(vSQ+4*h,4)}"

def split3(S, d, x, t, side):
    S(f"v_cvt_pk_bf16_f32 {v(t)}, {v(x)}, {v(x)}", f"v_lshlrev_b32 {v(t+2)}, 16, {v(t)}", f"v_sub_f32 {v(t+1)}, {v(x)}, {v(t+2)}")
    if side == "A":
        S(f"v_mov_b32 {v(d)}, {v(t)}", f"v_cvt_pk_bf16_f32 {v(d+1)}, {v(x)}, {v(t+1)}", f"v_and_b32 {v(t+2)}, 0xffff0000, {v(d+1)}",
          f"v_sub_f32 {v(t+2)}, {v(t+1)}, {v(t+2)}", f"v_cvt_pk_bf16_f32 {v(d+2)}, {v(t+1)}, {v(t+2)}", f"v_mov_b32 {v(d+3)}, 0")
    else:
        S(f"v_cvt_pk_bf16_f32 {v(d)}, {v(x)}, {v(t+1)}", f"v_and_b32 {v(t+2)}, 0xffff0000, {v(d)}", f"v_sub_f32 {v(t+2)}, {v(t+1)}, {v(t+2)}",
          f"v_cvt_pk_bf16_f32 {v(d+1)}, {v(t+2)}, {v(x)}", f"v_cvt_pk_bf16_f32 {v(d+2)}, {v(t+1)}, {v(x)}", f"v_mov_b32 {v(d+3)}, 0")

def stats_consume(cmul):
    S = Stream(); t = vT + 12
    S(f"v_cndmask_b32 {v(vST)}, {v(vRS+1)}, {v(vRS)}, s[96:97]")
    for i in range(4): S(f"v_add_f32 {v(vSQ+i)}, {v(vSQ+i)}, {v(vSQ+4+i)}")
    S("s_mov_b32 s98, 0xaaaaaaaa", "s_mov_b32 s99, 0xaaaaaaaa")
    S(f"v_cndmask_b32 {v(vSQ)}, {v(vSQ)}, {v(vSQ+1)}, s[98:99]", f"v_cndmask_b32 {v(vSQ+2)}, {v(vSQ+2)}, {v(vSQ+3)}, s[98:99]")
    S("s_mov_b32 s98, 0xcccccccc", "s_mov_b32 s99, 0xcccccccc")
    S(f"v_cndmask_b32 {v(vSQ)}, {v(vSQ)}, {v(vSQ+2)}, s[98:99]", f"v_mul_f32 {v(vST)}, {hex(0x3acccccd)}, {v(vST)}", f"v_mov_b32 {v(vSQ+1)}, {v(vSQ)}")
    S(f"v_permlane32_swap_b32 {v(vSQ)}, {v(vSQ+1)}", f"v_add_f32 {v(vSQ)}, {v(vSQ)}, {v(vSQ+1)}", f"v_mul_f32 {v(vSQ)}, {hex(0x3acccccd)}, {v(vSQ)}")
    S(f"v_fma_f32 {v(vSQ)}, -{v(vST)}, {v(vST)}, {v(vSQ)}", f"v_max_f32 {v(vSQ)}, 0, {v(vSQ)}", f"v_add_f32 {v(vSQ)}, {hex(0x3727c5ac)}, {v(vSQ)}")
    S(f"v_rsq_f32 {v(vST+1)}, {v(vSQ)}", f"v_sqrt_f32 {v(vSD)}, {v(vSQ)}")
    S("s_mov_b32 s98, -1", "s_mov_b32 s99, 0", f"v_sub_f32 {v(t)}, 0, {v(vST)}", f"v_cndmask_b32 {v(t)}, 0, {v(t)}, s[98:99]")
    split3(S, vMB, t, t+1, "B")
    S(f"v_mul_f32 {v(vC)}, {cmul}, {v(vST+1)}")
    return S

class Core:
    def __init__(self, stages, R, tokbase):
        self.stages = stages; self.R = R; self.tb = tokbase
    def build(self, pre_issued, hooks_bar=None, hooks_after=None, first_wait=()):
        hooks_bar = hooks_bar or {}; hooks_after = hooks_after or {}
        st = self.stages
        seq = [(i, m) for i, s in enumerate(st) for m in s["mf"]]
        first = {}
        for n, (i, m) in enumerate(seq): first.setdefault(i, n)
        N = len(seq)
        def reads(n):
            (acc, r0, r1, xr, cs, zero, ex) = seq[n][1]
            f = aWF + 4 * (n % NF)
            return [Ins(f"ds_read_b64_tr_b16 {a_(f,2)}, {r0}"), Ins(f"ds_read_b64_tr_b16 {a_(f+2,2)}, {r1}", tok=f"fr{self.tb}{n}")]
        def open_stage(S, i):
            toks = [f"{self.tb}{i}"] + list(hooks_bar.get(i, []))
            if st[i]["xs"] is not None: toks.append(f"x{st[i]['xs']}")
            if 'nowait' not in ABL: S.wait(*toks)
            if 'nobar' not in ABL: S("s_barrier")
        head = Stream()
        open_stage(head, 0)
        if st[0]["xs"] is not None: head += x_reads(st[0]["xs"])
        for n in range(DPF): head += reads(n)
        slots = [Stream() for _ in range(N)]
        tails = [Stream() for _ in range(N)]
        extras = [[] for _ in range(N)]
        def spread(n0, stream, dscost=0.5, pace=1):
            grp = Stream(); cnt = 0; n = n0; last = n0
            for ins in stream:
                grp.append(ins)
                vm = ins.kind in ("vm_dma", "vm_ld", "vm_st")
                if vm or ins.kind == "mfma": cnt += 1
                elif ins.kind in ("ds_rd", "ds_wr"): cnt += dscost
                if cnt >= 1:
                    extras[min(int(n), N-1)].append(grp); grp = Stream(); cnt = 0; last = n; n += (pace if vm else 1)
            if grp: extras[min(int(last), N-1)].append(grp)
            return n
        qptr = [0]
        if 0 in hooks_after: qptr[0] = spread(0, hooks_after[0], pace=st[0].get("pace", 1))
        for n in range(N):
            i, (acc, r0, r1, xr, cs, zero, ex) = seq[n]
            S = slots[n]; f = aWF + 4 * (n % NF)
            if PAIRWAIT and n % 2 == 0 and n + 1 < N: S.wait(f"fr{self.tb}{n+1}")
            S(f"v_mfma_f32_32x32x16_bf16 {v(acc,16)}, {a_(f,4)}, {a_(xr,4)}, {'0' if zero else v(acc,16)}")
            if cs is not None and 'nocs' not in ABL:
                tails[n](f"v_mfma_f32_16x16x32_bf16 {v(cs[0],4)}, {v(vSEL,4)}, {a_(f,4)}, {'0' if cs[1] else v(cs[0],4)}")
            if ex and 'nostat' not in ABL: tails[n](ex)
            m = n + DPF
            if m < N:
                j = seq[m][0]
                if first[j] == m:
                    open_stage(S, j)
                    k = n
                    if st[j]["xs"] is not None: k = spread(k, x_reads(st[j]["xs"]), dscost=1) - 3
                    k = max(k, qptr[0])
                    d = Stream()
                    if st[j]["xs"] is not None and st[j]["xs"] + 3 < 10 and st[j]["xs"] >= 1:
                        d.wait(f"xr{st[j]['xs']-1}"); d += x_dma(st[j]["xs"] + 3)
                    w = j - 2 + self.R
                    if w >= pre_issued and w < len(st): d += st[w]["dma"]
                    if j in hooks_after: d += hooks_after[j]
                    qptr[0] = spread(k, d, pace=st[j].get("pace", 1))
                S += reads(m)
            for g in extras[n]: S += g
        self.tails = tails
        return head, slots, first

ST0 = 7
def w2_slot(k):
    if ST0 <= k < ST0 + 7: k -= 7
    if ROLE[0] == "g":
        H = {0: ("v", 56), 1: ("v", 76), 2: ("v", 96), 3: ("a", 200), 4: ("a", 220), 5: ("a", 0), 6: ("a", 20), 14: ("a", 40), 15: ("a", 60), 16: ("v", 168)}
        return H[k]
    if k < 5: return ("a", 20 * k)
    if k >= 14: return ("a", 20 * (k - 9))
    return ("v", 208 + 20 * (k - 5))
def acc2(m4, tt):
    if ROLE[0] == "q": return v(128 + 20 * m4 + 4 * tt, 4)
    return a_(160 + 20 * (m4 - 2) + 4 * tt, 4) if m4 >= 2 else v(128 + 20 * m4 + 4 * tt, 4)
def act_base(i):
    n = parts()[i][1]
    if ROLE[0] == "g":
        if i & 1: return [("a", b) for b in (96, 112, 128, 144, 80)][:n]
        return [("v", 192), ("v", 208), ("v", 224), ("v", 240), ("a", 80)][:n]
    if i & 1: return [("v", b) for b in (64, 80, 96, 112, 48)][:n]
    return [("a", 160 + 16 * s) for s in range(n)]
def xs_home(f):
    homes = {}; free = list(range(16))
    for x in range(16):
        imm = (w2_off(ST0 + x // 5, x % 5)[1] & 4095) >> 10
        c = [h for h in free if h % 4 == imm] or [h for h in free if h >= imm]
        homes[x] = c[0]; free.remove(c[0])
    return homes[f]
def w2_lds_addr(role, f):
    if role == "g":
        if f < 16: return (16384, xs_home(f) * 1024)
        if f < 19: return (4096, LG_MISC + (f - 16 + 1) * 1024 )
        return (4096, LG_WR + ((f - 19) // 4) * 16384 + ((f - 19) % 4) * 1024)
    return (10240, 3072 + f * 1024) if f < 10 else (25600, 45056 + (f - 10) * 1024)
def w2_off(k, t):
    for (k0, n, lp) in parts():
        if k0 <= k < k0 + n: return sW2P + lp, ((k - k0) * 5 + t) * 1024
def w2_stage(role, f0, f1):
    S = Stream(); run = None
    for f in range(f0, f1):
        ws_, base = w2_lds_addr(role, f); sp, off = w2_off(ST0 + f // 5, f % 5)
        imm = off & 4095
        if run != (ws_, base - imm, sp, off >> 12) :
            run = (ws_, base - imm, sp, off >> 12)
            assert base >= imm
            S(f"s_add_u32 m0, s{sWS[ws_]}, {base - imm}")
        S.I(f"buffer_load_dwordx4 {v(VW[off >> 12])}, {SWS}, s{sp} offen offset:{imm} sc1 lds", tok=f"w2s{f}")
    return S
vLA = 43
def w2_lds_regs(role):
    keys = []
    for f in range(35):
        ws_, base = w2_lds_addr(role, f); k = (ws_, base >> 16)
        if k not in keys: keys.append(k)
    return keys
def w2_lds_setup(role):
    S = Stream()
    for n, (ws_, hi) in enumerate(w2_lds_regs(role)):
        S(f"s_add_u32 s47, s{sWS[ws_]}, {hi << 16}", f"v_add_u32 {v(vLA+n)}, s47, {v(vL16)}")
    return S
def w2_copy(role, k):
    S = Stream(); b = w2_slot(k)
    for t in range(5):
        f = (k - ST0) * 5 + t; ws_, base = w2_lds_addr(role, f)
        r = vLA + w2_lds_regs(role).index((ws_, base >> 16))
        S.I(f"ds_read_b128 {rg(b,4*t,4)}, {v(r)} offset:{base & 0xFFFF}", waits=[f"w2s{f}"])
    return S
def rg(b, off, n): return (a_ if b[0] == "a" else v)(b[1] + off, n)

ORDER = [0, 1, 3, 2]
def parts():
    P = []; k = 0
    for lp in ORDER:
        n = 5 if lp == 3 else 4
        P.append((k, n, lp)); k += n
    return P
sW2P, sACP = 66, 36
sWS = {16384: sXM0, 4096: sWM0, 1024: 92, 10240: 92, 25600: 93}
VW = [2, 16, 17, 18, 19, 13, 14]
def p2_setup():
    S = Stream()
    S(f"s_add_u32 s{sT2}, s{sW}, s{sNT}", f"s_and_b32 s{sR2}, s{sT2}, 3")
    S(f"s_mul_i32 s{sT2}, s{sNT}, {68*5120}", f"s_add_u32 s{sT2}, s{sT2}, {WS_WP}", f"s_mul_i32 s{sW2P}, s{sR2}, {4*5120}", f"s_add_u32 s{sW2P}, s{sW2P}, s{sT2}",
      f"s_add_u32 s{sW2P+1}, s{sW2P}, {16*5120}", f"s_add_u32 s{sW2P+2}, s{sW2P}, {32*5120}", f"s_mul_i32 s{sW2P+3}, s{sR2}, {5*5120}", f"s_add_u32 s{sW2P+3}, s{sW2P+3}, s{sT2}",
      f"s_add_u32 s{sW2P+3}, s{sW2P+3}, {48*5120}")
    if ROLE[0] == "g": S(f"s_lshl_b32 s92, s{sW}, 10")
    else: S(f"s_mul_i32 s92, s{sW}, 10240", f"s_mul_i32 s93, s{sW}, 25600")
    return S
def vw_setup():
    S = Stream()
    for j in range(1, 7): S(f"v_add_u32 {v(VW[j])}, {4096*j}, {v(vL16)}")
    return S
sR2 = 65
def w2_load(k):
    S = Stream(); b = w2_slot(k)
    for t in range(5):
        sp, off = w2_off(k, t)
        S(f"buffer_load_dwordx4 {rg(b,4*t,4)}, {v(VW[off >> 12])}, {SWS}, s{sp} offen offset:{off & 4095} sc1")
    return S
vPF, vPV, vOO, vXR, vRA = 6, 7, 9, 24, 36
VA = [3, 4, 30, 31]
sPF, sOB = 56, 54
def p2_pre():
    S = Stream(); t = 120 if ROLE[0] == "g" else vT + 8
    S(f"v_lshrrev_b32 {v(t)}, 4, {v(vL)}", f"v_and_b32 {v(t+1)}, 15, {v(vL)}", f"v_lshlrev_b32 {v(t+3)}, 9, {v(t)}", f"v_lshl_add_u32 {v(t+3)}, {v(t+1)}, 4, {v(t+3)}")
    for j in range(4):
        S(f"s_add_u32 s{sT2}, s{sW}, {j}", f"s_and_b32 s47, s{sT2}, 1", "s_lshl_b32 s47, s47, 8", f"s_bfe_u32 s{sT2}, s{sT2}, 0x10001", f"s_mul_i32 s{sT2}, s{sT2}, {136*1024}", f"s_add_u32 s{sT2}, s{sT2}, s47",
          f"v_add_u32 {v(VA[j])}, s{sT2}, {v(t+3)}")
    S(f"v_and_b32 {v(vPF)}, 7, {v(vL)}", f"v_lshlrev_b32 {v(vPF)}, 2, {v(vPF)}", f"v_bfe_u32 {v(t+2)}, {v(vL)}, 3, 1", f"v_lshl_add_u32 {v(vPF)}, {v(t+2)}, 7, {v(vPF)}", f"s_lshr_b32 s{sPF}, s{sRT}, 1", f"s_lshl_b32 s{sPF}, s{sPF}, 9")
    S(f"v_mul_u32_u24 {v(vOO)}, 1280, {v(t+1)}", f"v_lshl_add_u32 {v(vOO)}, {v(t)}, 3, {v(vOO)}",
      f"s_lshl_b32 s{sOB}, s{sRT}, 2", f"s_add_u32 s{sOB}, s{sOB}, s{sW}", f"s_mul_i32 s{sOB}, s{sOB}, {16*1280}", f"s_mul_i32 s{sT2}, s{sNT}, 160", f"s_add_u32 s{sOB}, s{sOB}, s{sT2}")
    S(f"s_mul_i32 s{sT2}, s{sRT}, {2*136*1024}", f"s_add_u32 s{sT2}, s{sT2}, {WS_AP}", f"s_lshl_b32 s44, s{sR2}, 13", f"s_add_u32 s44, s44, s{sT2}",
      f"s_mul_i32 s45, s{sR2}, {5*2048}", f"s_add_u32 s45, s45, s{sT2}", f"s_add_u32 s45, s45, {48*2048}")
    return S
def p2_poll_txt(r, late=0): return f"buffer_load_dword {v(vPV+r)}, {v(vPF)}, {SWS}, s{sPF} offen offset:{256*late} sc1"
def p2_poll(r): return Stream([Ins(p2_poll_txt(r))])
def pmask(i): return 0xFF << (8 * (parts()[i][2] & 1))
def p2_L(i, srd):
    S = Stream(); k0, n, lp = parts()[i]; r0 = act_base(i)
    if lp < 3: S(f"s_add_u32 s46, s44, {lp*16*2048}")
    else: S("s_mov_b32 s46, s45")
    for s in range(n):
        for m4 in range(4):
            S(f"buffer_load_dwordx4 {rg(r0[s],4*m4,4)}, {v(VA[m4])}, {srd}, s46 offen offset:{(s&1)*2048} sc1")
        if s & 1 and s + 1 < n: S(f"s_add_u32 s46, s46, 4096")
    return S
def p2_try(i, r):
    S = Stream()
    S(*cmp_mask(vPV + r, 1, pmask(i))); S(f"s_cselect_b32 s26, 0, {WS_SIZE}")
    return S
class Fork:
    kind = "fork"
    def __init__(self, label, stream): self.label = label; self.stream = stream
class Reset:
    kind = "reset"
def phase2(tag, rest, store_tok, flag, l1_done):
    S = Stream(); t = vRA
    vXR = 20 if tag == "g" else 24
    stamp(S)
    stamp(S, 3)
    S += w2_lds_setup(tag)
    P = parts()
    def step(i, s):
        k0, n, _ = P[i]; r0 = act_base(i); k = k0 + s; b = w2_slot(k); M = Stream()
        if i > 0: M(f"s_nop {s} ; WAITX")
        if i == 0 and s == FLAG_AFTER:
            M.wait(store_tok); M("s_barrier"); M += flag
        if k == 13:
            M.drain(vm=False); M("s_barrier")
            for j in range(1, 4):
                M(f"s_add_u32 s{sT0}, s{sW}, {j}", f"s_and_b32 s{sT0}, s{sT0}, 3", f"s_mul_i32 s{sT0}, s{sT0}, 15360", f"s_add_u32 s{sT0}, s{sT0}, {(j-1)*5120}", f"v_add_u32 {v(t+j)}, s{sT0}, {v(vL16)}")
            M(f"s_mul_i32 s{sT0}, s{sW}, 15360", f"v_add_u32 {v(t)}, s{sT0}, {v(vL16)}")
        for m4 in ([0, 1, 2, 3] if k < 16 else [1, 2, 3, 0]):
            for tt in range(5):
                acc = acc2(m4, tt)
                M(f"v_mfma_f32_16x16x32_bf16 {acc}, {rg(b,4*tt,4)}, {rg(r0[s],4*m4,4)}, {'0' if k == 0 else acc}")
                if 5 <= k < 12 and m4 == 1: M.append(w2_copy(tag, k + 2)[tt])
                if k == 14 and m4 < 2: M(f"v_lshlrev_b32 {v(XU+10*m4+2*tt)}, 16, {v(vXR+5*m4+tt)}")
                if k == 15 and m4 < 2: M(f"v_and_b32 {v(XU+10*m4+2*tt+1)}, 0xffff0000, {v(vXR+5*m4+tt)}")
                if k == 16 and m4 != 1:
                    pm = (m4 - 1) & 3
                    M(f"ds_write_b128 {v(t+pm)}, {acc2(pm,tt)} offset:{tt*1024}")
        return M
    def fix(M, n, cnt):
        O = Stream()
        for x in M:
            if x.kind in ("vm_ld", "vm_st", "vm_dma"): cnt += 1
            if x.kind not in ("fork", "reset") and "WAITX" in x.text:
                s = int(x.text.split()[1]); O(f"s_waitcnt vmcnt({min(63, 4*(n-1-s)+cnt)})")
            else: O.append(x)
        return O, cnt
    bg = Stream()
    if not l1_done:
        S += p2_try(1, 1); bg += p2_L(1, SAUX)
    bg += rest
    for tt in range(5): bg.I(f"buffer_load_dwordx2 {v(vXR+2*tt,2)}, {v(vOO)}, {SX}, s{sOB} offen offset:{32*tt}")
    bg.I(p2_poll_txt(0, 1), tok="pp0")
    M = Stream()
    for s in range(4): M += step(0, s)
    S += sprinkle(M, bg, P2_PERIOD0)
    stamp(S, 3)
    S.wait("pp0")
    nm = f"p1{tag}"
    S("s_cmp_eq_u32 s26, 0", f"s_cbranch_scc1 L_slow_{nm}", f"L_back_{nm}:")
    slow_paths.append([f"L_slow_{nm}:"] + spin_lines(nm, vPV + 1, 1, p2_poll_txt(1) + "\n    " + p2_poll_txt(0, 1), pmask(1), sleep=3) + ["    " + x.text for x in p2_L(1, SWS)] + [f"    s_branch L_back_{nm}"])
    stamp(S); stamp(S, 3)
    for i in (1, 2):
        n = P[i][1]; cnt = 0
        for s in range(n):
            if s in DYN:
                S(*cmp_mask(vPV, 1, pmask(i + 1)))
                S(f"s_cbranch_scc0 L_var_{tag}{i}_{s}")
                V = Stream()
                for s2 in range(s, n): V += step(i, s2)
                V, _ = fix(sprinkle(V, p2_L(i + 1, SWS), P2_PERIOD), n, cnt)
                V.drain(vm=False); V(f"s_branch L_join_{tag}{i}")
                S.append(Fork(f"L_var_{tag}{i}_{s}", V))
            M = step(i, s)
            if s in DYN or s == n - 2: M.insert(1, Ins(p2_poll_txt(0, 1)))
            M, cnt = fix(M, n, cnt)
            S += M
        nm = f"q{i+1}{tag}"
        S.drain()
        S(*cmp_mask(vPV, 1, pmask(i + 1)))
        S(f"s_cbranch_scc1 L_slow_{nm}", f"L_back_{nm}:")
        slow_paths.append([f"L_slow_{nm}:"] + spin_lines(nm, vPV, 1, p2_poll_txt(0, 1), pmask(i + 1), sleep=SPIN_SLEEP) + [f"    s_branch L_back_{nm}"])
        S += p2_L(i + 1, SWS)
        S(f"L_join_{tag}{i}:", "s_nop 7")
        S.append(Reset())
        stamp(S); stamp(S, 3)
    M = Stream()
    for s in range(P[3][1]): M += step(3, s)
    M, _ = fix(M, P[3][1], 0)
    S += M
    stamp(S); stamp(S, 3)
    S.drain(vm=False); S("s_barrier")
    R0 = 48
    for s in range(3):
        for tt in range(5): S(f"ds_read_b128 {v(R0+20*s+4*tt,4)}, {v(t)} offset:{s*5120+tt*1024}")
    for i in range(10): S(f"v_pk_add_f32 {v(XU+2*i,2)}, {v(XU+2*i,2)}, {v(128+2*i,2)}")
    for s in range(3):
        for i in range(10): S(f"v_pk_add_f32 {v(XU+2*i,2)}, {v(XU+2*i,2)}, {v(R0+20*s+2*i,2)}")
    for tt in range(5):
        S(f"v_cvt_pk_bf16_f32 {v(vXR+2*tt)}, {v(XU+4*tt)}, {v(XU+4*tt+1)}", f"v_cvt_pk_bf16_f32 {v(vXR+2*tt+1)}, {v(XU+4*tt+2)}, {v(XU+4*tt+3)}")
        S(f"buffer_store_dwordx2 {v(vXR+2*tt,2)}, {v(vOO)}, {SOUT}, s{sOB} offen offset:{32*tt} {OUTFLAGS}")
    stamp(S)
    if STAMPS:
        S(f"s_lshl_b32 s{sT0}, s2, 8", f"s_add_u32 s{sT0}, s{sT0}, {WS_STAMP}", f"s_cmp_eq_u32 s{sW}, 0", f"s_cselect_b32 s{sT1}, 0, {hex(HUGE)}",
          f"v_lshlrev_b32 {v(48)}, 2, {v(vL)}", f"v_or_b32 {v(48)}, s{sT1}, {v(48)}", f"buffer_store_dword v0, {v(48)}, {SWS}, s{sT0} offen")
    S("s_endpgm")
    return S
FLAG_AFTER = 1
P2_PERIOD = 32
P2_PERIOD0 = 40
DYN = (0, 2)
SPIN_SLEEP = 3
QP1 = 52
QP2 = 42
H1FLAG_AT = 27
XU = 208
OUTFLAGS = ''
POLL_STEP = 2
POLL2_AT = 12
H0FLAG_AT = 19
XPERIOD = 230
PK_AT = 0
ROT2MASK = 3
EPI_RATE = 2.05
EPI_RATE2 = 2.7
W2CAP17 = 0
EPI_LAG = 1
PAIRWAIT = 1

def flag_store(off_s, imm):
    S = Stream()
    S(f"buffer_store_dword a255, {v(vFL)}, {SWS}, s{off_s} offen offset:{imm} sc1")
    return S

def glu_path():
    S = Stream(); t = vT
    ACC = [128, 192, 128]
    S(f"s_cmp_lt_u32 s{sW}, 2", "s_cselect_b32 s8, s42, s44", "s_cselect_b32 s9, s43, s45", "s_mov_b32 s10, 1966080")
    S(f"v_lshrrev_b32 {v(t)}, 3, {v(vL)}", f"v_mul_u32_u24 {v(t)}, 3072, {v(t)}", f"v_bfe_u32 {v(t+1)}, {v(vL)}, 4, 1", f"s_and_b32 s{sT0}, s{sW}, 2", f"v_or_b32 {v(t+1)}, s{sT0}, {v(t+1)}",
      f"v_lshlrev_b32 {v(t+1)}, 1, {v(t+1)}", f"v_and_b32 {v(t+2)}, 7, {v(vL)}", f"v_xor_b32 {v(t+1)}, {v(t+1)}, {v(t+2)}", f"v_lshl_add_u32 {v(vWO)}, {v(t+1)}, 4, {v(t)}")
    S(f"s_and_b32 s{sWB}, s{sW}, 1", f"s_mul_i32 s{sWB}, s{sWB}, {32*3072}", f"s_lshl_b32 s{sT0}, s{sSL}, 7", f"s_add_u32 s{sWB}, s{sWB}, s{sT0}",
      f"s_lshl_b32 s{sWM0}, s{sW}, 12")
    WO = [5, 10, 11, 12]
    for j in range(1, 4): S(f"v_add_u32 {v(WO[j])}, {j*(8*3072-1024)}, {v(vWO)}")
    ktable(S, 64 * 3072, sWB)
    def w_dma(g):
        c, i = divmod(g, 10); D = Stream()
        if c and i == 0: D("s_add_u32 s8, s8, 1024", "s_addc_u32 s9, s9, 0", "s_sub_u32 s10, s10, 1024")
        D(f"s_add_u32 m0, s{sWM0}, {LG_WR + (g % 5) * 16384}")
        for j in range(4):
            D.I(f"buffer_load_dwordx4 {v(WO[j])}, {SW}, s{sKT+i} offen offset:{j*1024} lds", tok=f"w{g}" if j == 3 else None)
        return D
    ktable_rest(S, 64 * 3072, sWB)
    S(f"s_lshl_b32 s32, s{sMT}, 3", f"s_add_u32 s32, s32, s{sSL}", "s_lshl_b32 s32, s32, 2", f"s_add_u32 s32, s32, s{sW}", "s_add_u32 s33, s32, 512",
      f"s_lshl_b32 s34, s{sMT}, 7", f"s_lshl_b32 s35, s{sSL}, 2", "s_add_u32 s34, s34, s35", f"s_add_u32 s34, s34, {WS_PFLAG}")
    pack_vec(S)
    xaddr_setup(S, False)
    S(f"v_bfe_u32 {v(t)}, {v(vL)}, 4, 1", f"v_lshrrev_b32 {v(t+1)}, 5, {v(vL)}", f"v_bfe_u32 {v(t+2)}, {v(vL)}, 2, 2",
      f"v_lshl_add_u32 {v(t+1)}, {v(t+1)}, 3, {v(t+2)}", f"v_lshlrev_b32 {v(t+1)}, 7, {v(t+1)}", f"v_lshl_add_u32 {v(t+1)}, {v(t)}, 13, {v(t+1)}",
      f"v_and_b32 {v(t+3)}, 1, {v(vL)}", f"v_bfe_u32 {v(t+4)}, {v(vL)}, 1, 1", f"v_lshl_add_u32 {v(t+3)}, {v(t+3)}, 1, {v(t+4)}", f"v_lshl_add_u32 {v(t+1)}, {v(t+3)}, 3, {v(t+1)}",
      f"v_add_u32 {v(t+1)}, {LG_WR}, {v(t+1)}",
      f"v_lshrrev_b32 {v(t+2)}, 1, {v(t+2)}", f"v_lshl_add_u32 {v(t+2)}, {v(t)}, 1, {v(t+2)}", f"v_xor_b32 {v(t+2)}, s{sW}, {v(t+2)}")
    for p in range(4):
        S(f"v_xor_b32 {v(t+3)}, {p}, {v(t+2)}", f"v_lshl_add_u32 {v(vWA+p)}, {v(t+3)}, 5, {v(t+1)}", f"v_add_u32 {v(vWB_+p)}, 0x10000, {v(vWA+p)}")
    S(f"s_lshl_b32 s{sT0}, s{sSL}, 12", f"s_add_u32 s{sAPB}, s{sAPB}, s{sT0}")
    for p in range(4):
        S(f"s_xor_b32 s{sST+p}, s{sW}, {p}", f"s_lshl_b32 s{sST+p}, s{sST+p}, 10", f"s_add_u32 s{sST+p}, s{sST+p}, s{sAPB}")
    S(f"s_lshl_b32 s{sPKS+2}, s{sMT}, 9", f"s_lshl_b32 s{sT0}, s{sSL}, 2", f"s_add_u32 s{sPKS+2}, s{sPKS+2}, s{sT0}")
    sFLG = sPKS + 2
    S += p2_setup()
    stages = []
    for g in range(30):
        c, i = divmod(g, 10); mf = []
        order = [(s, p) for s in range(4) for p in range(4)] if g < 29 else [(s, p) for p in range(4) for s in range(4)]
        for (s, p) in order:
            if True:
                off = (g % 5) * 16384 + s * 2048
                ar = vWA + p
                if off >= 65536 - 1024: ar = vWB_ + p; off -= 65536
                mf.append((ACC[c] + 16 * p, f"{v(ar)} offset:{off}", f"{v(ar)} offset:{off+512}", 16 * i + 4 * s,
                           None, i == 0 and s == 0, None))
        stages.append(dict(mf=mf, dma=w_dma(g), xs=None))
    def epi(c, packed):
        E = epi_(c, packed)
        if 'noepi' in ABL and not packed: E = Stream([x for x in E if x.kind in ("vm_st", "salu")])
        return E
    def epi_(c, packed):
        E = Stream()
        def store(p):
            A = ACC[c] + 16 * p
            E(f"s_add_u32 s36, s{sST+p}, {c*32*1024}")
            E.I(f"buffer_store_dwordx4 {v(A,4)}, {v(vL16)}, {SWS}, s36 offen sc1", tok=f"h{c}" if p == 3 else None)
        if packed:
            for p in range(4):
                A = ACC[c] + 16 * p
                for i in range(0, 8, 2): E(f"v_pk_mul_f32 {v(A+i,2)}, {v(A+i,2)}, {v(vC,2)} op_sel_hi:[1,0]")
                for i in range(8): E(f"v_exp_f32 {v(A+i)}, {v(A+i)}")
                for i in range(0, 8, 2): E(f"v_pk_fma_f32 {v(A+i,2)}, {v(A+i,2)}, {v(vC,2)}, {v(vC,2)} op_sel:[0,1,1] op_sel_hi:[1,1,1]")
                for i in range(8): E(f"v_rcp_f32 {v(A+i)}, {v(A+i)}")
                for i in range(0, 8, 2): E(f"v_pk_mul_f32 {v(A+8+i,2)}, {v(A+8+i,2)}, {v(A+i,2)}")
                for i in range(4): E(f"v_cvt_pk_bf16_f32 {v(A+i)}, {v(A+8+2*i)}, {v(A+9+2*i)}")
                store(p)
            return E
        LAG = EPI_LAG
        ev = []
        for e in range(32):
            p, i = divmod(e, 8); A = ACC[c] + 16 * p
            ops = [f"v_mul_f32 {v(A+i)}, {v(A+i)}, {v(vC)}", f"v_exp_f32 {v(A+i)}, {v(A+i)}", f"v_fma_f32 {v(A+i)}, {v(A+i)}, {v(vSD)}, {v(vSD)}",
                   f"v_rcp_f32 {v(A+i)}, {v(A+i)}", f"v_mul_f32 {v(A+8+i)}, {v(A+8+i)}, {v(A+i)}"]
            for s, o in enumerate(ops): ev.append((e + LAG * s, s, o, None))
            if i & 1: ev.append((p * 8 + 7 + LAG * 5, 5 + i, f"v_cvt_pk_bf16_f32 {v(A+i//2)}, {v(A+8+i-1)}, {v(A+8+i)}", None))
            if i == 7: ev.append((p * 8 + 7 + LAG * 6, 20, None, p))
        for (_, _, o, p) in sorted(ev, key=lambda x: (x[0], x[1])):
            if o: E(o)
            else: store(p)
        return E
    bgx = Stream(w_dma(2) + w_dma(3) + w_dma(4))
    if 'nobgx' in ABL: S += bgx; bgx = Stream()
    S += phase_x("0xbfb8aa3b", {5: w_dma(0), 7: w_dma(1)}, bgx, XPERIOD)
    hb = {PK_AT + 7: ["chores1"], H0FLAG_AT: ["h0"]}
    ha = {PK_AT: pack_dma(0, 32), PK_AT + 3: Stream(pack_finish(0) + pack_dma(1, 33) + poll1_issue()), PK_AT + 5: pack_finish(1), PK_AT + 6: poll1_check("g"), PK_AT + 7: flag_store(34, 0),
          POLL2_AT - 2: Stream(vw_setup() + poll2_issue()), POLL2_AT: poll2_check("g")}
    core = Core(stages, 5, "w")
    for i in range(0, 30): stages[i]["pace"] = 1.33
    def add(j, st_): ha[j] = Stream(ha.get(j, Stream()) + st_)
    add(H0FLAG_AT, flag_store(sFLG, 0))
    items = []
    for f in range(0, 19, 4): items.append((POLL2_AT, w2_stage("g", f, min(f + 4, 19)), min(4, 19 - f)))
    for k in range(5): items.append((POLL2_AT, w2_load(k), 5))
    for n_, k in enumerate((5, 6, 14, 15)): items.append((20 + (20 * n_ + 19) // 16 + 2, w2_load(k), 5))
    for f in range(19, 27, 4): items.append((27 + (f - 19) // 4, w2_stage("g", f, f + 4), 4))
    add(H1FLAG_AT - 2, p2_poll(0))
    chk = Stream(); poll_check(chk, "p0g", vPV, 1, p2_poll_txt(0), pmask(0))
    hb[H1FLAG_AT] = ["h1"]; add(H1FLAG_AT, flag_store(sFLG, 128)); add(H1FLAG_AT, chk)
    G0 = vm_groups(p2_L(0, SWS))
    for q_ in range(0, 16, 4): items.append((max(H1FLAG_AT, 27) + 0.5, Stream([x for gg_ in G0[q_:q_+4] for x in gg_]), 4))
    for j in range(POLL2_AT, 30):
        cap = (5 if j < 22 else 8) if j <= 26 else 13
        if j in (7, 8, 17, 18): cap = W2CAP17
        for it in sorted(items, key=lambda x: x[0] if x[0] > 21 else 100):
            if it[0] <= j + 0.5 and it[2] <= cap:
                add(j, it[1]); cap -= it[2]; items.remove(it)
    assert not items, [(it[0], it[2]) for it in items]
    rest = Stream(w2_stage("g", 27, 35) + w2_load(16))
    add(29, p2_poll(1))
    head, slots, first = core.build(5, hb, ha)
    left = interleave(slots, p2_pre(), 1, start=first[8]); assert not left
    left = interleave(slots[:first[H0FLAG_AT - 1]], epi(0, False), EPI_RATE, start=first[10] + 1); assert not left, len(left)
    left = interleave(slots[:first[H1FLAG_AT - 1]], epi(1, False), EPI_RATE2, start=first[20] + 1); assert not left, len(left)
    stamp(S)
    S += head
    for n, sl in enumerate(slots):
        S += sl; S += core.tails[n]
        if n + 1 in (first[10], first[20]): stamp(S)
        if n + 1 in [first[i] for i in range(2, 30, 2)] + [len(slots)]: stamp(S, 2)
    stamp(S)
    e2 = epi(2, True); cut = len(e2) // 4
    S += e2[:cut]; S += p2_try(1, 1)
    S += sprinkle(Stream(e2[cut:]), p2_L(1, SAUX), 40)
    S += phase2("g", rest, "h2", flag_store(sFLG, 256), True)
    return S

def softmax_pair(E, P, O, T, qmode):
    mx, mn = T + 40, T + 41
    E(f"v_max3_f32 {v(mx)}, {v(P)}, {v(P+1)}, {v(P+2)}", f"v_min3_f32 {v(mn)}, {v(P)}, {v(P+1)}, {v(P+2)}")
    for i in range(3, 19, 2):
        E(f"v_max3_f32 {v(mx)}, {v(mx)}, {v(P+i)}, {v(P+i+1)}", f"v_min3_f32 {v(mn)}, {v(mn)}, {v(P+i)}, {v(P+i+1)}")
    E(f"v_max_f32 {v(mx)}, {v(mx)}, {v(P+19)}", f"v_min_f32 {v(mn)}, {v(mn)}, {v(P+19)}")
    E(f"v_mul_f32 {v(mx)}, {v(mx)}, {v(vC)}", f"v_mul_f32 {v(mn)}, {v(mn)}, {v(vC)}")
    for i in range(0, 20, 2):
        E(f"v_pk_fma_f32 {v(T+i,2)}, {v(P+i,2)}, {v(vC,2)}, {v(mx,2)} op_sel:[0,0,0] op_sel_hi:[1,0,0] neg_lo:[0,0,1] neg_hi:[0,0,1]")
    for i in range(0, 20, 2):
        E(f"v_pk_fma_f32 {v(T+20+i,2)}, {v(P+i,2)}, {v(vC,2)}, {v(mx,2)} op_sel:[0,0,1] op_sel_hi:[1,0,1] neg_lo:[1,0,0] neg_hi:[1,0,0]")
    for i in range(40): E(f"v_exp_f32 {v(T+i)}, {v(T+i)}")
    for h in range(2):
        B = T + 20 * h; A = P + 10 * h
        for i in range(5): E(f"v_pk_add_f32 {v(A+2*i,2)}, {v(B+4*i,2)}, {v(B+4*i+2,2)}")
    for h in range(2):
        A = P + 10 * h
        E(f"v_pk_add_f32 {v(A,2)}, {v(A,2)}, {v(A+2,2)}", f"v_pk_add_f32 {v(A+4,2)}, {v(A+4,2)}, {v(A+6,2)}")
    for h in range(2):
        A = P + 10 * h
        E(f"v_pk_add_f32 {v(A,2)}, {v(A,2)}, {v(A+4,2)}")
    for h in range(2):
        A = P + 10 * h
        E(f"v_pk_add_f32 {v(A,2)}, {v(A,2)}, {v(A+8,2)}")
    E(f"v_add_f32 {v(T+44)}, {v(P)}, {v(P+1)}", f"v_add_f32 {v(T+45)}, {v(P+10)}, {v(P+11)}")
    if qmode:
        E(f"v_rcp_f32 {v(T+42)}, {v(T+45)}", f"v_mul_f32 {v(T+42)}, {v(T+42)}, {v(T+44)}")
        for i in range(0, 20, 2): E(f"v_pk_mul_f32 {v(T+20+i,2)}, {v(T+20+i,2)}, {v(T+42,2)} op_sel_hi:[1,0]")
    else:
        E(f"v_rcp_f32 {v(T+42)}, {v(T+44)}", f"v_rcp_f32 {v(T+43)}, {v(T+45)}")
        for i in range(0, 20, 2): E(f"v_pk_mul_f32 {v(T+i,2)}, {v(T+i,2)}, {v(T+42,2)} op_sel_hi:[1,0]")
        for i in range(0, 20, 2): E(f"v_pk_mul_f32 {v(T+20+i,2)}, {v(T+20+i,2)}, {v(T+42,2)} op_sel:[0,1] op_sel_hi:[1,1]")
    for i in range(20): E(f"v_cvt_pk_bf16_f32 {v(O+i)}, {v(T+2*i)}, {v(T+2*i+1)}")

PROJ = [(0, 0), (0, 1), (0, 2), (1, 0), (1, 1), (1, 2), (1, 3), (1, 4), (2, 2), (2, 3), (2, 4)]
aPH = 200
def project(E, SRC, PK, OUT):
    for i in range(20): E(f"v_cvt_pk_bf16_f32 {v(PK+i)}, {v(SRC+2*i)}, {v(SRC+2*i+1)}")
    seen = set()
    for n, (T, sl) in enumerate(PROJ):
        E(f"v_mfma_f32_32x32x16_bf16 {v(OUT+16*T,16)}, {a_(aPH+4*n,4)}, {v(PK+4*sl,4)}, {v(OUT+16*T,16) if T in seen else '0'}")
        seen.add(T)

def qkv_path():
    ROLE[0] = "q"; VA[:] = [3, 4, 5, 20]
    S = Stream(); t = vT
    S("L_qkv:")
    AKV, AQ = 128, 208
    S("s_mov_b32 s8, s34", "s_mov_b32 s9, s35", "s_mov_b32 s10, 2457600")
    ZI = Stream(); QV = Stream()
    ZI("s_mov_b32 s24, s12", "s_mov_b32 s25, s13", f"s_cmp_eq_u32 s{sSL}, 7", f"s_cselect_b32 s26, {WS_SIZE}, 0", f"s_cselect_b32 s{sST+3}, 0, {hex(HUGE)}")
    for i in range(4): ZI(f"v_mov_b32 {v(72+i)}, 0")
    ZI(f"s_lshl_b32 s{sT1}, s{sMT}, 2", f"s_add_u32 s{sT1}, s{sT1}, s{sW}", f"s_mul_i32 s{sT1}, s{sT1}, 3072")
    for i in range(3): ZI.I(f"buffer_store_dwordx4 {v(72,4)}, {v(vL16)}, {SAUX}, s{sT1} offen offset:{1024*i} sc1", tok="zst" if i == 2 else None)
    ZI(f"v_or_b32 {v(76)}, s{sST+3}, {v(vFL)}", f"s_lshl_b32 s{sST+3}, s{sMT}, 2")
    S(f"s_mul_i32 s{sT1}, s{sW}, {16*3840}", f"s_add_u32 s{sT2}, s{sT1}, 1280", f"s_sub_u32 s{sT3}, s{sT1}, 1280")
    for j in range(5):
        S(f"v_add_u32 {v(t)}, {64*j}, {v(vL)}")
        divmod_v(S, t+1, t+2, t, 20)
        divmod_v(S, t+3, t+4, t+2, 5)
        S(f"v_and_b32 {v(t+5)}, 1, {v(t+3)}", f"v_lshrrev_b32 {v(t+3)}, 1, {v(t+3)}", f"v_mul_u32_u24 {v(t+3)}, 80, {v(t+3)}", f"v_lshl_add_u32 {v(t+3)}, {v(t+4)}, 4, {v(t+3)}")
        if 0 < j < 4: S(f"v_subrev_u32 {v(t+3)}, {1024*j}, {v(t+3)}")
        S(f"v_mul_u32_u24 {v(t+6)}, 3840, {v(t+1)}", f"v_mul_u32_u24 {v(t+7)}, 1280, {v(t+5)}", f"v_add3_u32 {v(vWO+j)}, {v(t+6)}, {v(t+7)}, {v(t+3)}", f"v_add_u32 {v(vWO+j)}, s{sT2}, {v(vWO+j)}")
        S(f"v_lshrrev_b32 {v(t+6)}, 2, {v(t+1)}", f"v_lshl_add_u32 {v(vQO+j)}, {v(t+6)}, 1, {v(t+5)}")
        QV(f"v_lshrrev_b32 {v(t+6)}, 1, {v(vQO+j)}", f"v_and_b32 {v(t+5)}, 1, {v(vQO+j)}", f"v_mul_u32_u24 {v(t+6)}, {4*3840}, {v(t+6)}", f"v_mul_u32_u24 {v(t+5)}, {4*3840-1280}, {v(t+5)}",
           f"v_add3_u32 {v(vQO+j)}, {v(t+6)}, {v(t+5)}, {v(vWO+j)}", f"v_add_u32 {v(vQO+j)}, s{sT3}, {v(vQO+j)}")
    sQB = 78
    S(f"s_mul_i32 s{sWB}, s{sSL}, 160", f"s_mul_i32 s{sWM0}, s{sW}, 5120")
    ktable(S, 64 * 3840, sWB)
    def w_dma(g):
        D = Stream(); q = g >= 10
        lb = L_WR + (g % 4) * 20480 if g < 14 else L_WR - 20480
        D(f"s_add_u32 m0, s{sWM0}, {lb}")
        vo = vQO if q else vWO; so = sKT + (2 * (g - 10) if q else g)
        for j in range(4): D(f"buffer_load_dwordx4 {v(vo+j)}, {SW}, s{so} offen offset:{j*1024} lds")
        D(f"s_add_u32 m0, s{sWM0}, {lb + 4096}")
        D.I(f"buffer_load_dwordx4 {v(vo+4)}, {SW}, s{so} offen lds", tok=(f"q{g-10}" if q else f"w{g}"))
        return D
    ktable_rest(S, 64 * 3840, sWB); S += QV
    LATE = Stream(ZI); S0 = S; S = LATE
    S("s_mov_b32 s24, s36", "s_mov_b32 s25, s37", "s_mov_b32 s26, 25600", f"s_mul_i32 s{sT0}, s{sSL}, 3200", f"s_lshl_b32 s{sT1}, s{sW}, 10", f"s_add_u32 s{sT0}, s{sT0}, s{sT1}",
      f"s_add_u32 m0, s{sT1}, {L_PHI}")
    S.I(f"buffer_load_dwordx4 {v(vL16)}, {SAUX}, s{sT0} offen lds", tok="phid")
    S("s_mov_b32 s24, s12", "s_mov_b32 s25, s13")
    S = S0
    S(f"v_mov_b32 {v(t+2)}, 0", f"v_mov_b32 {v(t+3)}, 0", f"s_lshl_b32 s{sT0}, s{sW}, 9", f"s_add_u32 s{sT0}, s{sT0}, {L_ZERO}", f"v_lshl_add_u32 {v(t+4)}, {v(vL)}, 3, s{sT0}")
    S.I(f"ds_write_b64 {v(t+4)}, {v(t+2,2)}", tok="ldsz")
    xaddr_setup(S, True)
    S(f"v_lshrrev_b32 {v(t)}, 5, {v(vL)}", f"v_bfe_u32 {v(t+1)}, {v(vL)}, 2, 2", f"v_lshl_add_u32 {v(t+2)}, {v(t)}, 3, {v(t+1)}", f"v_lshl_add_u32 {v(t+3)}, {v(t)}, 2, {v(t+1)}",
      f"v_mul_u32_u24 {v(t+2)}, 320, {v(t+2)}", f"v_mul_u32_u24 {v(t+3)}, 320, {v(t+3)}",
      f"v_and_b32 {v(t+4)}, 1, {v(vL)}", f"v_mul_u32_u24 {v(t+4)}, 160, {v(t+4)}", f"v_bfe_u32 {v(t+5)}, {v(vL)}, 4, 1", f"v_bfe_u32 {v(t+6)}, {v(vL)}, 1, 1",
      f"v_lshl_add_u32 {v(t+5)}, {v(t+5)}, 1, {v(t+6)}", f"v_lshl_add_u32 {v(t+4)}, {v(t+5)}, 3, {v(t+4)}", f"v_add_u32 {v(t+4)}, {L_WR}, {v(t+4)}",
      f"v_add_u32 {v(t+2)}, {v(t+2)}, {v(t+4)}", f"v_add_u32 {v(t+3)}, {v(t+3)}, {v(t+4)}")
    for p in range(4):
        S(f"s_xor_b32 s{sT0}, s{sW}, {p}", f"s_mul_i32 s{sT1}, s{sT0}, 5120", f"s_mul_i32 s{sT0}, s{sT0}, 2560",
          f"v_add_u32 {v(vWA+p)}, s{sT1}, {v(t+2)}", f"v_add_u32 {v(vQA+p)}, s{sT0}, {v(t+3)}",
          f"v_add_u32 {v(vWB_+p)}, {3*20480}, {v(vWA+p)}", f"v_add_u32 {v(vQB+p)}, {2*20480}, {v(vQA+p)}", f"v_subrev_u32 {v(vQA+p)}, 20480, {v(vQA+p)}")
    S += p2_setup()
    stages = []
    for g in range(10):
        mf = []
        for p in range(4):
            for T in range(5):
                ar, off = (vWA + p, (g % 4) * 20480) if g % 4 < 3 else (vWB_ + p, 0)
                off += 32 * T
                mf.append((AKV + 16 * T, f"{v(ar)} offset:{off}", f"{v(ar)} offset:{off+1280}", 16 * g + 4 * p, None, g == 0 and p == 0, None))
        stages.append(dict(mf=mf, dma=w_dma(g), xs=None, pace=2))
    PHF = Stream(); u = vT
    PHF(f"v_bfe_u32 {v(u)}, {v(vL)}, 4, 1", f"v_bfe_u32 {v(u+1)}, {v(vL)}, 1, 1", f"v_lshl_add_u32 {v(u)}, {v(u)}, 1, {v(u+1)}",
        f"v_lshrrev_b32 {v(u+1)}, 5, {v(vL)}", f"v_and_b32 {v(u+2)}, 1, {v(vL)}", f"v_cmp_eq_u32 s[{sPKS+4}:{sPKS+5}], {v(u+1)}, {v(u+2)}".replace(f"s[{sPKS+4}:{sPKS+5}]", "s[98:99]"),
        f"v_mul_u32_u24 {v(u+1)}, 1600, {v(u+1)}", f"v_bfe_u32 {v(u+2)}, {v(vL)}, 2, 2", f"v_mul_u32_u24 {v(u+2)}, 40, {v(u+2)}", f"v_add3_u32 {v(u+1)}, {v(u+1)}, {v(u+2)}, {L_PHI & 63}".replace(f", {L_PHI & 63}", ", 0"),
        f"v_add_u32 {v(u+1)}, {L_PHI}, {v(u+1)}", f"v_lshl_add_u32 {v(u+1)}, {v(u)}, 3, {v(u+1)}", f"v_mov_b32 {v(u+3)}, {L_ZERO}")
    amap = {}
    k = 4
    for (T, s) in [(0, 0), (1, 0), (1, 1), (2, 1)]:
        lo, hi = 5 * s - 4 * T, 5 * s + 5 - 4 * T
        PHF(f"v_add_u32 {v(u+k)}, {s*800+(4*T-5*s)*8}, {v(u+1)}", f"v_cndmask_b32 {v(u+k)}, {v(u+3)}, {v(u+k)}, s[98:99]")
        if lo > 0: PHF(f"v_cmp_le_u32 vcc, {lo}, {v(u)}", f"v_cndmask_b32 {v(u+k)}, {v(u+3)}, {v(u+k)}, vcc")
        if hi < 4: PHF(f"v_cmp_gt_u32 vcc, {hi}, {v(u)}", f"v_cndmask_b32 {v(u+k)}, {v(u+3)}, {v(u+k)}, vcc")
        amap[(T, s)] = u + k; k += 1
    for n, (T, sl) in enumerate(PROJ):
        for r2 in range(2):
            rho = 2 * sl + r2; s = rho // 5
            if (T, s) in amap: PHF(f"ds_read_b64_tr_b16 {a_(aPH+4*n+2*r2,2)}, {v(amap[(T,s)])} offset:{(rho%5)*160}")
            else: PHF(f"ds_read_b64_tr_b16 {a_(aPH+4*n+2*r2,2)}, {v(u+3)}")
    core = Core(stages, 4, "w")
    S += LATE
    IF = Stream(); IF.wait("zst"); IF("s_barrier"); IF(f"buffer_store_dword a255, {v(76)}, {SDBG}, s{sST+3} offen sc1")
    S += phase_x("0x3fb8aa3b", {4: IF, 5: w_dma(0), 8: w_dma(1)}, Stream(w_dma(2) + w_dma(3)), XPERIOD * 1.2)
    hb = {0: ["phid", "ldsz"]}
    ha = {0: PHF, 4: poll1_issue(), 7: poll1_check("q"), 8: w_dma(10), 9: w_dma(11)}
    head, slots, first = core.build(4, hb, ha)
    stamp(S)
    S += head
    for n, sl in enumerate(slots):
        S += sl; S += core.tails[n]
        if n + 1 in [first[i] for i in range(2, 10, 2)] + [len(slots)]: stamp(S, 2)
    stamp(S)
    S("s_barrier")
    S0 = S; S = Stream()
    PK = vCS
    TT = vT
    project(S, AKV, PK, AQ)
    for i in range(0, 40, 2): S(f"v_pk_mul_f32 {v(AKV+40+i,2)}, {v(AKV+40+i,2)}, {v(vST,2)} op_sel:[0,1] op_sel_hi:[1,1]")
    for s in range(2):
        for i in range(10): S(f"v_cvt_pk_bf16_f32 {v(AKV+12*s+i)}, {v(AKV+40+20*s+2*i)}, {v(AKV+41+20*s+2*i)}")
        S(f"v_mov_b32 {v(AKV+12*s+10)}, 0x3f80", f"v_mov_b32 {v(AKV+12*s+11)}, 0")
    ta = 120
    S(f"v_and_b32 {v(ta)}, 31, {v(vL)}", f"s_lshl_b32 s{sT0}, s{sW}, 5", f"v_add_u32 {v(ta)}, s{sT0}, {v(ta)}", f"v_mul_u32_u24 {v(ta)}, {RS}, {v(ta)}",
      f"v_lshrrev_b32 {v(ta+1)}, 5, {v(vL)}", f"v_mul_u32_u24 {v(ta+2)}, 96, {v(ta+1)}", f"v_add_u32 {v(ta+2)}, {v(ta+2)}, {v(ta)}",
      f"v_mul_u32_u24 {v(ta+1)}, 160, {v(ta+1)}", f"v_add_u32 {v(ta+1)}, {v(ta+1)}, {v(ta)}")
    for i in range(6): S(f"ds_write_b128 {v(ta+2)}, {v(AKV+4*i,4)} offset:{L_TB+320+16*i}")
    for s in range(2):
        O = AKV + 40 + 20 * s
        softmax_pair(S, AQ + 20 * s, O, TT, False)
        for i in range(5): S(f"ds_write_b128 {v(ta+1)}, {v(O+4*i,4)} offset:{L_TB+80*s+16*i}")
    S(f"v_lshrrev_b32 {v(ta)}, 4, {v(vL)}", f"v_bfe_u32 {v(ta+1)}, {v(vL)}, 2, 2", f"v_lshl_add_u32 {v(ta+1)}, {v(ta)}, 3, {v(ta+1)}", f"v_mul_u32_u24 {v(ta+1)}, {RS}, {v(ta+1)}",
      f"v_and_b32 {v(ta+2)}, 3, {v(vL)}", f"v_lshl_add_u32 {v(ta+1)}, {v(ta+2)}, 3, {v(ta+1)}",
      f"s_mul_i32 s{sT0}, s{sW}, 80", f"s_mul_i32 s{sT1}, s{sW}, 48", f"s_add_u32 s{sT1}, s{sT1}, 320", f"v_add_u32 {v(ta+2)}, s{sT0}, {v(ta+1)}", f"v_add_u32 {v(ta+3)}, s{sT1}, {v(ta+1)}",
      f"v_mul_u32_u24 {v(ta+4)}, 768, {v(ta)}", f"v_and_b32 {v(ta+5)}, 15, {v(vL)}", f"v_lshl_add_u32 {v(ta+4)}, {v(ta+5)}, 2, {v(ta+4)}",
      f"s_lshl_b32 s42, s{sSL}, 2", f"s_add_u32 s42, s42, s{sW}", f"s_mul_i32 s42, s42, 4032", f"s_add_u32 s42, s42, {WS_KV}")
    AV = [ta + 4, 116, 117, 118, 119, ta + 5]
    S(f"v_mov_b32 {v(ta)}, {hex(HUGE)}")
    for n, m in enumerate([None, 0xFFFFFFFF, 0xFFFF, 0x00FF00FF00FF00FF, 0x00FF00FF, 0x00FF]):
        if m is None: continue
        S(f"s_mov_b32 s98, {hex(m & 0xFFFFFFFF)}", f"s_mov_b32 s99, {hex(m >> 32)}", f"v_cndmask_b32 {v(AV[n])}, {v(ta)}, {v(ta+4)}, s[98:99]")
    S0 += sprinkle(S, Stream(w_dma(12) + w_dma(13)), 250)
    S = S0
    S.drain(vm=False); S("s_barrier")
    stamp(S)
    FR = AKV; KA = TT + 24
    for ks in range(4):
        for x in range(5):
            for r2 in range(2):
                ar, co = (ta + 3, 32 * x) if x < 2 else (ta + 2, 32 * (x - 2))
                S(f"ds_read_b64_tr_b16 {v(FR+20*ks+4*x+2*r2,2)}, {v(ar)} offset:{L_TB+(32*ks+4*r2)*RS+co}")
    for ks in range(4):
        for a in range(2):
            for b in range(3):
                acc = v(KA + 12 * a + 4 * b, 4)
                S(f"v_mfma_f32_16x16x32_bf16 {acc}, {v(FR+20*ks+4*a,4)}, {v(FR+20*ks+8+4*b,4)}, {'0' if ks == 0 else acc}")
    AT = Stream()
    todo = [(a, r, b) for a in range(2) for r in range(4) for b in range(3)]
    for n, (a, r, b) in enumerate(todo):
        av = AV[(0 if a == 0 else (1 if r == 0 else 2)) + (3 if b == 2 else 0)]
        AT.I(f"buffer_atomic_add_f32 {v(KA+12*a+4*b+r)}, {v(av)}, {SWS}, s42 offen offset:{(16*a+r)*192+64*b}", tok="kvat" if n == len(todo) - 1 else None)
    if 'noat' in ABL: AT = Stream(AT[-1:])
    stamp(S)
    S += poll2_issue()
    stages = []
    for g in range(5):
        gg = 10 + g; mf = []
        for p8 in range(8):
            p = p8 & 3
            for T in range(3):
                sl_ = gg % 4 if gg < 14 else -1
                ar, off = (vQA + p, (sl_ + 1) * 20480) if sl_ < 2 else (vQB + p, (sl_ - 2) * 20480)
                off += 32 * T + (p8 >> 2) * 10240
                mf.append((AQ + 16 * T, f"{v(ar)} offset:{off}", f"{v(ar)} offset:{off+80}", 32 * g + 4 * p8, None, g == 0 and p8 == 0, None))
        stages.append(dict(mf=mf, dma=Stream(), xs=None))
    sKF = 79
    S(f"s_lshl_b32 s{sKF}, s{sSL}, 7", f"s_add_u32 s{sKF}, s{sKF}, {WS_KVFLAG}", f"s_lshl_b32 s{sT0}, s{sMT}, 2", f"s_add_u32 s{sQB+22}, s{sKF}, s{sT0}")
    hb = {}
    ha = {0: Stream(w_dma(14) + vw_setup() + p2_pre() + AT), 2: poll2_check("q")}
    for s_ in stages: s_["pace"] = 2
    ha[2] += w2_stage("q", 0, 10)
    for k in range(4):
        j = max(3, (20 * k + 19) // 32 + 2)
        ha[j] = Stream(ha.get(j, Stream()) + w2_load(k))
    core = Core(stages, 4, "q")
    head, slots, first = core.build(4, hb, ha)
    S += head
    for n, sl in enumerate(slots): S += sl; S += core.tails[n]
    stamp(S)
    W2rest = Stream(w2_load(4) + w2_load(14) + w2_load(15) + w2_load(16))
    S(f"v_and_b32 {v(ta+6)}, 15, {v(vL)}", f"v_lshlrev_b32 {v(ta+6)}, 2, {v(ta+6)}")
    S.wait("kvat"); S("s_barrier"); S += flag_store(sQB + 22, 0)
    E = Stream()
    project(E, AQ, PK, AKV)
    PQ = AQ
    softmax_pair(E, AKV, PQ, TT, True)
    E(f"v_mul_f32 {v(ta)}, {hex(0x358637bd)}, {v(TT+44)}")
    bgA = W2rest; bgA += w2_stage("q", 10, 16); bgA += p2_poll(0)
    bgA(f"buffer_load_dword {v(ta+7)}, {v(ta+6)}, {SWS}, s{sKF} offen sc1")
    S += sprinkle(E, bgA, QP1)
    W2rest = p2_L(0, SWS)
    W2rest += w2_stage("q", 16, 22)
    W2r2 = w2_stage("q", 22, 35)
    W2r3 = Stream(w2_load(5) + w2_load(6))
    poll_check(S, "p0q", vPV, 1, p2_poll_txt(0), pmask(0))
    poll_check(S, "kv", ta + 7, 1, f"buffer_load_dword {v(ta+7)}, {v(ta+6)}, {SWS}, s{sKF} offen sc1", 0xFFFF)
    stamp(S)
    KL = AKV + 48
    S(f"s_mul_i32 s{sT2}, s{sSL}, {4*4032}", f"s_add_u32 s{sT2}, s{sT2}, {WS_KV}", f"s_lshl_b32 s{sT0}, s{sW}, 10", f"s_add_u32 s{sT2}, s{sT2}, s{sT0}")
    for i in range(4):
        S(f"buffer_load_dwordx4 {v(KL+4*i,4)}, {v(vL16)}, {SWS}, s{sT2} offen sc1")
        if i < 3: S(f"s_add_u32 s{sT2}, s{sT2}, 4096")
    E = Stream(); softmax_pair(E, AKV + 20, PQ + 20, TT, True)
    S += sprinkle(E, W2rest, QP2)
    S(f"v_mul_f32 {v(ta+1)}, {hex(0x358637bd)}, {v(TT+44)}")
    S(f"s_lshl_b32 s{sT0}, s{sW}, 9", f"s_add_u32 s{sT0}, s{sT0}, {L_KB}", f"v_lshl_add_u32 {v(ta+2)}, {v(vL)}, 3, s{sT0}")
    for i in range(4):
        S(f"v_cvt_pk_bf16_f32 {v(KL+4*i)}, {v(KL+4*i)}, {v(KL+4*i+1)}", f"v_cvt_pk_bf16_f32 {v(KL+4*i+1)}, {v(KL+4*i+2)}, {v(KL+4*i+3)}",
          f"ds_write_b64 {v(ta+2)}, {v(KL+4*i,2)} offset:{2048*i}")
    u = TT
    S(f"v_bfe_u32 {v(u)}, {v(vL)}, 3, 2", f"v_bfe_u32 {v(u+1)}, {v(vL)}, 2, 1", f"v_lshrrev_b32 {v(u+2)}, 5, {v(vL)}", f"v_cmp_eq_u32 s[98:99], {v(u+1)}, {v(u+2)}",
      f"v_and_b32 {v(u+2)}, 3, {v(vL)}", f"v_lshl_add_u32 {v(u+2)}, {v(u)}, 2, {v(u+2)}", f"v_mul_u32_u24 {v(u+1)}, 42, {v(u+1)}", f"v_add_u32 {v(u+2)}, {v(u+2)}, {v(u+1)}",
      f"v_mul_u32_u24 {v(u+2)}, 96, {v(u+2)}", f"v_mov_b32 {v(u+3)}, {L_ZERO}", f"v_cmp_gt_u32 vcc, 2, {v(u)}")
    S(f"v_add_u32 {v(u+4)}, {L_KB}, {v(u+2)}", f"v_add_u32 {v(u+5)}, {L_KB+21*96}, {v(u+2)}", f"v_add_u32 {v(u+6)}, {L_KB+16*96}, {v(u+2)}", f"v_add_u32 {v(u+7)}, {L_KB+(21+16-8)*96}, {v(u+2)}",
      f"v_cndmask_b32 {v(u+6)}, {v(u+3)}, {v(u+6)}, vcc", f"v_cndmask_b32 {v(u+7)}, {v(u+7)}, {v(u+3)}, vcc")
    for k in range(4, 8): S(f"v_cndmask_b32 {v(u+k)}, {v(u+3)}, {v(u+k)}, s[98:99]")
    S.drain(vm=False); S("s_barrier")
    W2r2 += p2_poll(1)
    S0 = S; S = Stream()
    FRO = AKV
    ON = TT + 8
    ON = vCS
    for k in range(4):
        for s in range(5): S(f"ds_read_b128 {v(FRO+20*k+4*s,4)}, {v(u+4+k)} offset:{16*s}")
    for k in range(4):
        T = min(k, 2); slot = k & 1
        for s in range(5):
            acc = v(ON + 16 * T, 16)
            S(f"v_mfma_f32_32x32x16_bf16 {acc}, {v(FRO+20*k+4*s,4)}, {v(PQ+20*slot+4*s,4)}, {'0' if (s == 0 and k < 3) else acc}")
    S(f"v_add_f32 {v(ta)}, {v(ON+36)}, {v(ta)}", f"v_add_f32 {v(ta+1)}, {v(ON+44)}, {v(ta+1)}", f"v_rcp_f32 {v(ta+2)}, {v(ta)}", f"v_rcp_f32 {v(ta+3)}, {v(ta+1)}")
    OP = AKV
    for s in range(2):
        src = [ON + 16 * s + i for i in range(16)] + [ON + 32 + 8 * s + i for i in range(4)]
        sel = "op_sel_hi:[1,0]" if s == 0 else "op_sel:[0,1] op_sel_hi:[1,1]"
        for i in range(0, 20, 2): S(f"v_pk_mul_f32 {v(src[i],2)}, {v(src[i],2)}, {v(ta+2,2)} {sel}")
        for i in range(10): S(f"v_cvt_pk_bf16_f32 {v(OP+10*s+i)}, {v(src[2*i])}, {v(src[2*i+1])}")
    S0 += sprinkle(S, W2r2, 80); S = S0
    S(f"s_mul_i32 s{sT0}, s{sSL}, 5120", f"s_add_u32 s{sT0}, s{sT0}, s{sAPB}", f"s_add_u32 s{sT0}, s{sT0}, {96*1024}", f"s_add_u32 s{sT1}, s{sT0}, 4096")
    for i in range(4): S(f"buffer_store_dwordx4 {v(OP+4*i,4)}, {v(vL16)}, {SWS}, s{sT0} offen offset:{1024*i} sc1")
    S.I(f"buffer_store_dwordx4 {v(OP+16,4)}, {v(vL16)}, {SWS}, s{sT1} offen sc1", tok="ost")
    S(f"s_lshl_b32 s{sKF}, s{sMT}, 9", f"s_lshl_b32 s{sT0}, s{sSL}, 2", f"s_add_u32 s{sKF}, s{sKF}, s{sT0}")
    S += phase2("q", W2r3, "ost", flag_store(sKF, 384), False)
    return S

def fin2(stream, st, out):
    cur = Stream()
    for x in stream:
        if x.kind == "fork":
            finalize(cur, st, out); cur = Stream()
            o2 = [x.label + ":"]; finalize(x.stream, st.copy(), o2); slow_paths.append(o2)
        elif x.kind == "reset":
            finalize(cur, st, out); cur = Stream()
            st.pend = {}; st.vm_done = st.vm_issued; st.lg_done = st.lg_issued; st.hist = []
        else: cur.append(x)
    finalize(cur, st, out)

def main(outpath):
    hdr = open("parallel_sum__linear_kernel_hedgehog__glu_gated_glu__prompt.s.ref").read().split("; Override launch")[0]
    out = []
    st = State()
    finalize(prologue(), st, out)
    n0 = nstamp[0]
    fin2(glu_path(), st.copy(), out)
    nstamp[0] = n0
    st2 = st.copy(); st2.hist = []
    out.append("    s_nop 7")
    fin2(qkv_path(), st2, out)
    for L in slow_paths: out += L
    out.append("L_end:")
    txt = hdr + "; @launch grid=(256,1,1) block=(256,1,1) lds=163840\n" + f""".amdgcn_target "amdgcn-amd-amdhsa--gfx950"
.text
.globl {KN}
.p2align 8
.type {KN},@function
{KN}:
""" + "\n".join(out) + f"""
    s_endpgm
.section .rodata,"a"
.p2align 6
.amdhsa_kernel {KN}
  .amdhsa_next_free_vgpr 512
  .amdhsa_next_free_sgpr 102
  .amdhsa_accum_offset 256
  .amdhsa_group_segment_fixed_size 0
  .amdhsa_kernarg_size 88
  .amdhsa_user_sgpr_count 2
  .amdhsa_user_sgpr_kernarg_segment_ptr 1
  .amdhsa_system_sgpr_workgroup_id_x 1
.end_amdhsa_kernel
"""
    open(outpath, "w").write(txt)
    print("lines", len(out))

if __name__ == "__main__":
    for a in sys.argv:
        if a.startswith("--abl="): ABL.update(a[6:].split(","))
    if "--c1" in sys.argv: STGRP = 1
    if "--c2" in sys.argv: STGRP = 2
    if "--c3" in sys.argv: STGRP = 3
    for a in sys.argv:
        if a.startswith("--set="):
            k_, v_ = a[6:].split("="); globals()[k_] = eval(v_)
    if "--stamps" in sys.argv: STAMPS = True
    if "--cyc" in sys.argv: STAMPS = True; STAMPOP = "s_memtime"
    main([a for a in sys.argv[1:] if not a.startswith("--")][0])
```

```python
import sys
from emit import Stream, State, Ins, finalize, interleave, sprinkle, vm_groups

KN = "parallel_sum__linear_kernel_hedgehog__glu_gated_glu__prompt_kernel"
WS_HFLAG = 0
WS_KVFLAG = 8192
WS_PFLAG = 9216
WS_KV = 12288
WS_STAT = 262144
WS_STAMP = 524288
WS_AP = 1 << 20
WS_WP = 12 << 20
WS_SIZE = 16 << 20
HUGE = 0x7F000000
L_XS = 0
L_TB = 0; RS = 528
L_WR = 67584
L_MISC = 149504
L_PACK = 0
LG_WR = 65536
LG_MISC = 147456
L_CSF = LG_MISC + 12288
L_PHI = L_MISC + 4096
L_ZERO = L_MISC
L_CS = L_MISC + 10240
L_KB = L_MISC + 2048
SX, SW, SWS, SDBG, SOUT, SAUX = "s[4:7]", "s[8:11]", "s[12:15]", "s[16:19]", "s[20:23]", "s[24:27]"
sW, sMT, sSL, sRT, sNT, sROT = 28, 29, 30, 31, 52, 53
sXB, sWB, sKX, sKW, sT0, sT1, sT2, sT3 = 54, 55, 56, 57, 58, 59, 60, 61
sXM0, sWM0, sAPB, sONE, sWPB, sACB, sWP4, sWP5 = 62, 63, 64, 65, 66, 67, 68, 69
sST = 70
sSPIN = 74
sPKS, sPKD = 75, 76
sPKF = 101
sSTAMP = 80
vL, vL16, vXO, vWO, vQO = 1, 2, 3, 5, 10
vXA, vWA, vWB_, vQA, vQB = 16, 20, 24, 28, 32
vSEL, vMB, vC, vSD, vST = 36, 40, 44, 45, 46
vCS = 48
vT = 68
vONE = 115
vFL = 15
NF, DPF = 10, 7
aWF = 160

STAMPS = False
GROT = 1
PREF = 0
CODEPF = 1
T2AT = 0
T3AT = 11
XRAT = 11
H0AT = 22
QS1 = 0
WPT = 0
WPD = 0
QTAT = 0
QWPT = 0
XRE = 1
PACE = 1.33
QPACE = 2
QP1 = 68
QP2 = 42
QP3 = 80
E3P = 40
E3CUT = 4
KP = 250
CAPA = 6
CAPB = 8
ROLE = ['g']
STGRP = 0
ABL = set()
STAMPOP = 's_memrealtime'
nstamp = [0]
def stamp(S, grp=0):
    if STAMPS and (grp == STGRP or grp < 0 or (grp == 0 and STGRP == 2 and ROLE[0] == "q")):
        i = nstamp[0]; nstamp[0] += 1
        S(f"{STAMPOP} s[94:95]")
        S.drain(vm=False)
        S(f"v_writelane_b32 v0, s94, {i}")

def v(a, n=1): return f"v{a}" if n == 1 else f"v[{a}:{a+n-1}]"
def a_(a, n=1): return f"a{a}" if n == 1 else f"a[{a}:{a+n-1}]"

slow_paths = []
def cmp_mask(vreg, n, mask):
    lo, hi = mask & 0xFFFFFFFF, mask >> 32
    L = []
    if n == 2: L.append(f"v_and_b32 {v(vreg)}, {v(vreg)}, {v(vreg+1)}")
    L.append(f"v_cmp_ne_u32 vcc, 1, {v(vreg)}")
    if hi:
        L += [f"s_and_b32 s{sT0}, vcc_lo, {hex(lo)}", f"s_and_b32 s{sT1}, vcc_hi, {hex(hi)}", f"s_or_b32 s{sT0}, s{sT0}, s{sT1}"]
    else:
        L += [f"s_and_b32 s{sT0}, vcc_lo, {hex(lo)}"]
    return L
def spin_lines(name, vreg, n, load, mask, sleep=6):
    C = cmp_mask(vreg, n, mask)
    k = 2 if n == 2 else 1
    return [f"    s_mov_b32 s{sSPIN}, 0x8000", f"L_spin_{name}:", f"    s_sleep {sleep}", "    " + load, "    s_waitcnt vmcnt(0)",
            f"    s_sub_u32 s{sSPIN}, s{sSPIN}, 1", f"    s_cbranch_scc1 L_out_{name}"] + ["    " + c for c in C[:k]] + ["    s_nop 1"] + ["    " + c for c in C[k:]] + \
           [f"    s_cbranch_scc1 L_spin_{name}", f"L_out_{name}:"]
def poll_check(S, name, vreg, n, load, mask):
    S(*cmp_mask(vreg, n, mask))
    S(f"s_cbranch_scc1 L_slow_{name}", f"L_back_{name}:")
    slow_paths.append([f"L_slow_{name}:"] + spin_lines(name, vreg, n, load, mask) + [f"    s_branch L_back_{name}"])

def divmod_v(S, q, r, x, d, tmp_s=sT0):
    m = (1 << 16) // d + 1
    S(f"v_mul_u32_u24 {v(q)}, {m}, {v(x)}", f"v_lshrrev_b32 {v(q)}, 16, {v(q)}",
      f"v_mul_u32_u24 {v(r)}, {d}, {v(q)}", f"v_sub_u32 {v(r)}, {v(x)}, {v(r)}")

def prologue():
    S = Stream()
    S("s_cmp_ge_u32 s2, 256", "s_cbranch_scc1 L_end")
    S("s_load_dwordx16 s[32:47], s[0:1], 0", "s_load_dwordx4 s[48:51], s[0:1], 64", "s_load_dwordx2 s[12:13], s[0:1], 80")
    S(f"v_lshrrev_b32 {v(vT)}, 6, v0", f"v_and_b32 {v(vL)}, 63, v0", f"v_readfirstlane_b32 s{sW}, {v(vT)}")
    S(f"v_lshlrev_b32 {v(vL16)}, 4, {v(vL)}")
    S("s_and_b32 s3, s2, 7", f"s_lshr_b32 s{sT0}, s2, 3")
    S(f"s_and_b32 s{sMT}, s3, 1", f"s_lshl_b32 s{sMT}, s{sMT}, 3", f"s_and_b32 s{sT1}, s{sT0}, 7", f"s_add_u32 s{sMT}, s{sMT}, s{sT1}")
    S(f"s_lshr_b32 s{sT1}, s{sT0}, 3")
    S(f"s_and_b32 s{sSL}, s3, 6", f"s_and_b32 s{sT2}, s{sT1}, 1", f"s_add_u32 s{sSL}, s{sSL}, s{sT2}")
    S(f"s_lshl_b32 s{sRT}, s3, 2", f"s_and_b32 s{sT2}, s{sT0}, 3", f"s_add_u32 s{sRT}, s{sRT}, s{sT2}", f"s_lshr_b32 s{sNT}, s{sT0}, 2")
    S(f"s_lshr_b32 s{sT3}, s{sT1}, 1")
    S(f"s_add_u32 s{sROT}, s{sMT}, s{sSL}", f"s_mul_i32 s{sT2}, s{sROT}, 52", f"s_lshr_b32 s{sT2}, s{sT2}, 8", f"s_mul_i32 s{sT2}, s{sT2}, 5",
      f"s_sub_u32 s{sROT}, s{sROT}, s{sT2}", f"s_lshl_b32 s{sROT}, s{sROT}, 1")
    if PREF: S(f"s_mov_b32 s{sROT}, 0")
    if GROT:
        S(f"s_and_b32 s{sT2}, s{sSL}, 1", f"s_mul_i32 s{sT2}, s{sT2}, 5", f"s_and_b32 s{sT1}, s{sMT}, 7", f"s_add_u32 s{sT2}, s{sT2}, s{sT1}", f"s_sub_u32 s{sT1}, s{sT2}, 10",
          f"s_cmp_ge_u32 s{sT2}, 10", f"s_cselect_b32 s{sT2}, s{sT1}, s{sT2}", f"s_cmp_eq_u32 s{sT3}, 0", f"s_cselect_b32 s{sROT}, s{sT2}, s{sROT}")
    S(f"v_mov_b32 {v(vFL)}, {hex(HUGE)}", "v_cmp_eq_u32 vcc, 0, v0", f"v_cndmask_b32 {v(vFL)}, {v(vFL)}, 0, vcc")
    S(f"s_mov_b32 s{sONE}, 1", "v_accvgpr_write_b32 a255, 1")
    t = vT
    S(f"v_lshrrev_b32 {v(t)}, 3, {v(vL)}", f"v_mul_u32_u24 {v(t)}, 1280, {v(t)}",
      f"v_lshrrev_b32 {v(t+1)}, 4, {v(vL)}", f"v_and_b32 {v(t+2)}, 7, {v(vL)}", f"v_xor_b32 {v(t+1)}, {v(t+1)}, {v(t+2)}",
      f"v_lshl_add_u32 {v(vXO)}, {v(t+1)}, 4, {v(t)}", f"v_xor_b32 {v(t+1)}, 4, {v(t+1)}", f"v_lshl_add_u32 {v(vXO+1)}, {v(t+1)}, 4, {v(t)}",
      f"v_add_u32 {v(XO[1])}, 9216, {v(XO[1])}", f"v_add_u32 {v(XO[2])}, {2*9216}, {v(XO[0])}", f"v_add_u32 {v(XO[3])}, {2*9216}, {v(XO[1])}")
    S("s_mov_b32 s4, s32", "s_mov_b32 s5, s33", "s_mov_b32 s6, 2621440", "s_mov_b32 s7, 0x20000")
    S(f"s_mov_b32 s14, {WS_SIZE}", "s_mov_b32 s15, 0x20000")
    S("s_mov_b32 s16, s50", "s_mov_b32 s17, s51", "s_mov_b32 s18, 256", "s_mov_b32 s19, 0x20000")
    S("s_mov_b32 s20, s48", "s_mov_b32 s21, s49", "s_mov_b32 s22, 2621440", "s_mov_b32 s23, 0x20000")
    S("s_mov_b32 s11, 0x20000", "s_mov_b32 s27, 0x20000")
    S(f"s_lshl_b32 s{sXB}, s{sMT}, 2", f"s_add_u32 s{sXB}, s{sXB}, s{sW}", f"s_mul_i32 s{sAPB}, s{sXB}, {136*1024}", f"s_add_u32 s{sAPB}, s{sAPB}, {WS_AP}",
      f"s_mul_i32 s{sXB}, s{sXB}, {32*1280}", f"s_lshl_b32 s{sXM0}, s{sW}, 14")
    S(f"s_lshl_b32 s{sKX}, s{sROT}, 7", f"s_add_u32 s{sKX}, s{sKX}, s{sXB}", f"s_add_u32 s90, s{sXB}, 1280")
    stamp(S, -1)
    S += x_dma(0)
    S(f"s_cmp_eq_u32 s{sT3}, 1", "s_cbranch_scc1 L_qkv")
    return S

XO = [3, 4, 112, 113]
def x_dma(i):
    S = Stream()
    S(f"s_add_u32 m0, s{sXM0}, {L_XS + (i % 4) * 4096}")
    for j in range(4):
        S.I(f"buffer_load_dwordx4 {v(XO[j])}, {SX}, s{sKX} offen offset:{j*1024} lds", tok=f"x{i}" if j == 3 else None)
    if i < 9: S(f"s_add_u32 s{sKX}, s{sKX}, 128", f"s_cmp_eq_u32 s{sKX}, s90", f"s_cselect_b32 s{sKX}, s{sXB}, s{sKX}")
    return S
sKT = 80
def ktable(S, mult, base_s):
    S(f"s_mul_i32 s{sKT}, s{sROT}, {mult}", f"s_add_u32 s{sKT}, s{sKT}, s{base_s}", f"s_add_u32 s91, s{base_s}, {10*mult}")
def ktable_rest(S, mult, base_s):
    for i in range(1, 10):
        S(f"s_add_u32 s{sKT+i}, s{sKT+i-1}, {mult}")
        if i % 2 == 0 or ROLE[0] == 'g': S(f"s_cmp_eq_u32 s{sKT+i}, s91", f"s_cselect_b32 s{sKT+i}, s{base_s}, s{sKT+i}")

def x_reads(i):
    S = Stream()
    for p in range(4):
        S.I(f"ds_read_b128 {a_(16*i+4*p,4)}, {v(vXA+p)} offset:{(i % 4)*4096}", tok=f"xr{i}" if p == 3 else None)
    return S

def code_pf(tag):
    S = Stream(); t = vT
    if CODEPF:
        S("s_getpc_b64 s[48:49]", f"L_pc{tag}:", f"s_sub_u32 s48, s48, (L_pc{tag}-{KN})", "s_subb_u32 s49, s49, 0")
        S("s_lshr_b32 s50, s2, 3", "s_lshl_b32 s50, s50, 2", f"s_add_u32 s50, s50, s{sW}", "s_lshl_b32 s50, s50, 10",
          f"v_and_b32 {v(t)}, 7, {v(vL)}", f"v_lshl_add_u32 {v(t)}, {v(t)}, 7, s50", f"v_min_u32 {v(t)}, (L_end-{KN}), {v(t)}", f"global_load_dword a254, {v(t)}, s[48:49]")
    return S
def xaddr_setup(S, wave_xor):
    t = vT
    S(f"v_and_b32 {v(t)}, 31, {v(vL)}", f"v_bfe_u32 {v(t+1)}, {v(vL)}, 1, 3", f"v_lshrrev_b32 {v(t+2)}, 5, {v(vL)}", f"v_xor_b32 {v(t+1)}, {v(t+1)}, {v(t+2)}")
    if wave_xor:
        S(f"s_lshl_b32 s{sT0}, s{sW}, 1", f"v_xor_b32 {v(t+1)}, s{sT0}, {v(t+1)}")
    S(f"v_lshlrev_b32 {v(t)}, 7, {v(t)}", f"v_add_u32 {v(t)}, s{sXM0}, {v(t)}")
    for p in range(4):
        S(f"v_xor_b32 {v(t+2)}, {2*p}, {v(t+1)}", f"v_lshl_add_u32 {v(vXA+p)}, {v(t+2)}, 4, {v(t)}")

def sel_setup(S):
    t = vT
    S(f"v_lshrrev_b32 {v(t)}, 4, {v(vL)}", f"v_xor_b32 {v(t)}, {v(t)}, {v(vL)}", f"v_and_b32 {v(t)}, 1, {v(t)}", f"v_cmp_eq_u32 vcc, 0, {v(t)}",
      f"v_mov_b32 {v(t+1)}, 0x3f803f80")
    for i in range(4): S(f"v_cndmask_b32 {v(vSEL+i)}, 0, {v(t+1)}, vcc")
    S("s_mov_b32 s96, 0x0000ffff", "s_mov_b32 s97, 0x0000ffff")

vPK = vT + 40
def pack_vec(S):
    t = vT
    S(f"v_lshrrev_b32 {v(t)}, 3, {v(vL)}", f"v_mul_u32_u24 {v(t)}, 1280, {v(t)}", f"v_and_b32 {v(t+1)}, 7, {v(vL)}", f"v_lshl_add_u32 {v(vPK)}, {v(t+1)}, 4, {v(t)}")
    S(f"v_lshrrev_b32 {v(t)}, 4, {v(vL)}", f"v_bfe_u32 {v(t+1)}, {v(vL)}, 2, 2", f"v_lshl_add_u32 {v(t)}, {v(t)}, 3, {v(t+1)}", f"v_lshlrev_b32 {v(t)}, 7, {v(t)}",
      f"v_and_b32 {v(t+1)}, 3, {v(vL)}", f"v_lshl_add_u32 {v(t)}, {v(t+1)}, 3, {v(t)}", f"s_lshl_b32 s{sT0}, s{sW}, 12", f"s_add_u32 s{sT0}, s{sT0}, {LG_MISC}", f"v_add_u32 {v(vPK+1)}, s{sT0}, {v(t)}")
PKV = 192
def pack_pre(u, unit_s):
    S = Stream(); A, B, C = 48, 49, 50; R = PKV + 8 * u
    S(f"s_mul_i32 s51, s{unit_s}, 6554", "s_lshr_b32 s51, s51, 16", "s_mul_i32 s43, s51, 10", f"s_sub_u32 s43, s{unit_s}, s43")
    if u == 0: S("s_cmp_lt_u32 s51, 48", "s_cselect_b32 s40, s46, s38", "s_cselect_b32 s41, s47, s39", "s_mov_b32 s42, 819200", "s_cselect_b32 s42, 1966080, s42")
    for j in range(4):
        if j % 2 == 0:
            S(f"s_lshl_b32 s{C}, s51, 1")
            if j: S(f"s_add_u32 s{C}, s{C}, 1")
            S(f"s_bfe_u32 s{A}, s{C}, 0x30002", f"s_mul_i32 s{A}, s{A}, 3", f"s_lshr_b32 s3, s{C}, 5", f"s_add_u32 s{A}, s{A}, s3", f"s_lshl_b32 s{A}, s{A}, 2", f"s_and_b32 s3, s{C}, 3", f"s_add_u32 s{A}, s{A}, s3",
              f"s_lshl_b32 s{A}, s{A}, 4", f"s_sub_u32 s{C}, s{C}, 96", f"s_max_i32 s{C}, s{C}, 0", f"s_mul_i32 s3, s{C}, 52", "s_lshr_b32 s3, s3, 8", "s_mul_i32 s3, s3, 40",
              f"s_lshl_b32 s{C}, s{C}, 3", f"s_add_u32 s{C}, s{C}, s3", "s_cmp_lt_u32 s51, 48", f"s_cselect_b32 s{A}, s{A}, s{C}", f"s_cselect_b32 s{B}, {8*1280}, s{B}",
              f"s_mov_b32 s3, {40*1280}", f"s_cselect_b32 s{B}, s{B}, s3", f"s_mul_i32 s{A}, s{A}, 1280", "s_lshl_b32 s3, s43, 7", f"s_add_u32 s{A}, s{A}, s3")
        else: S(f"s_add_u32 s{A}, s{A}, s{B}")
        S(f"s_sub_u32 s3, s{A}, {1024*j}")
        if u: S(f"s_cmp_lt_u32 s{unit_s}, 680", f"s_cselect_b32 s3, s3, {hex(HUGE)}")
        S(f"v_add_u32 {v(R+j)}, s3, {v(vPK)}")
    for t in range(4):
        S(f"s_lshl_b32 s{A}, s43, 2")
        if t: S(f"s_add_u32 s{A}, s{A}, {t}")
        S(f"s_mul_i32 s{B}, s{A}, 52", f"s_lshr_b32 s{B}, s{B}, 8", f"s_mul_i32 s{B}, s{B}, 335", f"s_add_u32 s{A}, s{A}, s{B}", f"s_mul_i32 s{B}, s51, 5", f"s_add_u32 s{A}, s{A}, s{B}",
          f"s_lshl_b32 s{A}, s{A}, 10", f"s_add_u32 s{A}, s{A}, {WS_WP}")
        if u: S(f"s_cmp_lt_u32 s{unit_s}, 680", f"s_cselect_b32 s{A}, s{A}, {hex(HUGE)}")
        S(f"v_add_u32 {v(R+4+t)}, s{A}, {v(vL16)}")
    return S
def pack_dma(u, unit_s=None):
    S = Stream(); R = PKV + 8 * u
    if u == 0: S("s_mov_b32 s24, s40", "s_mov_b32 s25, s41", "s_mov_b32 s26, s42")
    else: S("s_mov_b32 s24, s38", "s_mov_b32 s25, s39", "s_mov_b32 s26, 819200")
    S(f"s_add_u32 m0, s{sWM0}, {LG_MISC}")
    for j in range(4): S.I(f"buffer_load_dwordx4 {v(R+j)}, {SAUX}, 0 offen offset:{1024*j} lds", tok=f"packdma{u}" if j == 3 else None)
    if u: S("s_mov_b32 s24, s12", "s_mov_b32 s25, s13")
    return S
def pack_finish(u):
    S = Stream(); d = vT + 20; R = PKV + 8 * u
    S.wait(f"packdma{u}")
    for t in range(4):
        for r2 in range(2): S(f"ds_read_b64_tr_b16 {v(d+4*t+2*r2,2)}, {v(vPK+1)} offset:{r2*512+32*t}")
    for t in range(4): S.I(f"buffer_store_dwordx4 {v(d+4*t,4)}, {v(R+4+t)}, {SWS}, 0 offen sc1", tok=f"chores{u}" if t == 3 else None)
    return S

def poll1_issue():
    S = Stream()
    S(f"v_and_b32 {v(vT+18)}, 15, {v(vL)}", f"v_lshlrev_b32 {v(vT+18)}, 2, {v(vT+18)}", f"buffer_load_dword {v(vT+16)}, {v(vT+18)}, {SDBG}, 0 offen sc1")
    return S
def poll1_check(tag):
    S = Stream()
    poll_check(S, "i" + tag, vT+16, 1, f"buffer_load_dword {v(vT+16)}, {v(vT+18)}, {SDBG}, 0 offen sc1", 0xFFFF)
    return S
def poll2_issue():
    S = Stream()
    S(f"v_lshrrev_b32 {v(vT+18)}, 2, {v(vL)}", f"v_lshlrev_b32 {v(vT+18)}, 7, {v(vT+18)}", f"v_and_b32 {v(vT+16)}, 3, {v(vL)}", f"v_lshl_add_u32 {v(vT+18)}, {v(vT+16)}, 3, {v(vT+18)}",
      f"s_mov_b32 s{sPKF}, {WS_PFLAG}",
      f"buffer_load_dwordx2 {v(vT+16,2)}, {v(vT+18)}, {SWS}, s{sPKF} offen sc1")
    return S
def poll2_check(tag):
    S = Stream()
    poll_check(S, "k" + tag, vT+16, 2, f"buffer_load_dwordx2 {v(vT+16,2)}, {v(vT+18)}, {SWS}, s{sPKF} offen sc1", (1 << 64) - 1)
    return S

vRS, vSQ = 116, 120
def stat_mfma(which, xr, zero):
    if which == 0: return f"v_mfma_f32_16x16x32_bf16 {v(vRS,4)}, {v(vSEL,4)}, {a_(xr,4)}, {'0' if zero else v(vRS,4)}"
    h = which - 1
    return f"v_mfma_f32_4x4x4_16b_bf16 {v(vSQ+4*h,4)}, {a_(xr+2*h,2)}, {a_(xr+2*h,2)}, {'0' if zero else v(vSQ+4*h,4)}"

def split3(S, d, x, t, side):
    S(f"v_cvt_pk_bf16_f32 {v(t)}, {v(x)}, {v(x)}", f"v_lshlrev_b32 {v(t+2)}, 16, {v(t)}", f"v_sub_f32 {v(t+1)}, {v(x)}, {v(t+2)}")
    if side == "A":
        S(f"v_mov_b32 {v(d)}, {v(t)}", f"v_cvt_pk_bf16_f32 {v(d+1)}, {v(x)}, {v(t+1)}", f"v_and_b32 {v(t+2)}, 0xffff0000, {v(d+1)}",
          f"v_sub_f32 {v(t+2)}, {v(t+1)}, {v(t+2)}", f"v_cvt_pk_bf16_f32 {v(d+2)}, {v(t+1)}, {v(t+2)}", f"v_mov_b32 {v(d+3)}, 0")
    else:
        S(f"v_cvt_pk_bf16_f32 {v(d)}, {v(x)}, {v(t+1)}", f"v_and_b32 {v(t+2)}, 0xffff0000, {v(d)}", f"v_sub_f32 {v(t+2)}, {v(t+1)}, {v(t+2)}",
          f"v_cvt_pk_bf16_f32 {v(d+1)}, {v(t+2)}, {v(x)}", f"v_cvt_pk_bf16_f32 {v(d+2)}, {v(t+1)}, {v(x)}", f"v_mov_b32 {v(d+3)}, 0")

def stats_consume(cmul):
    S = Stream(); t = vT + 12
    S(f"v_cndmask_b32 {v(vST)}, {v(vRS+1)}, {v(vRS)}, s[96:97]")
    for i in range(4): S(f"v_add_f32 {v(vSQ+i)}, {v(vSQ+i)}, {v(vSQ+4+i)}")
    S("s_mov_b32 s98, 0xaaaaaaaa", "s_mov_b32 s99, 0xaaaaaaaa")
    S(f"v_cndmask_b32 {v(vSQ)}, {v(vSQ)}, {v(vSQ+1)}, s[98:99]", f"v_cndmask_b32 {v(vSQ+2)}, {v(vSQ+2)}, {v(vSQ+3)}, s[98:99]")
    S("s_mov_b32 s98, 0xcccccccc", "s_mov_b32 s99, 0xcccccccc")
    S(f"v_cndmask_b32 {v(vSQ)}, {v(vSQ)}, {v(vSQ+2)}, s[98:99]", f"v_mul_f32 {v(vST)}, {hex(0x3acccccd)}, {v(vST)}", f"v_mov_b32 {v(vSQ+1)}, {v(vSQ)}")
    S(f"v_permlane32_swap_b32 {v(vSQ)}, {v(vSQ+1)}", f"v_add_f32 {v(vSQ)}, {v(vSQ)}, {v(vSQ+1)}", f"v_mul_f32 {v(vSQ)}, {hex(0x3acccccd)}, {v(vSQ)}")
    S(f"v_fma_f32 {v(vSQ)}, -{v(vST)}, {v(vST)}, {v(vSQ)}", f"v_max_f32 {v(vSQ)}, 0, {v(vSQ)}", f"v_add_f32 {v(vSQ)}, {hex(0x3727c5ac)}, {v(vSQ)}")
    S(f"v_rsq_f32 {v(vST+1)}, {v(vSQ)}", f"v_sqrt_f32 {v(vSD)}, {v(vSQ)}")
    S("s_mov_b32 s98, -1", "s_mov_b32 s99, 0", f"v_sub_f32 {v(t)}, 0, {v(vST)}", f"v_cndmask_b32 {v(t)}, 0, {v(t)}, s[98:99]")
    split3(S, vMB, t, t+1, "B")
    S(f"v_mul_f32 {v(vC)}, {cmul}, {v(vST+1)}")
    return S

class Core:
    def __init__(self, stages, R, tokbase):
        self.stages = stages; self.R = R; self.tb = tokbase
    def build(self, pre_issued, hooks_bar=None, hooks_after=None, first_wait=()):
        hooks_bar = hooks_bar or {}; hooks_after = hooks_after or {}
        st = self.stages
        seq = [(i, m) for i, s in enumerate(st) for m in s["mf"]]
        first = {}
        for n, (i, m) in enumerate(seq): first.setdefault(i, n)
        N = len(seq)
        def reads(n):
            (acc, r0, r1, xr, cs, zero, ex) = seq[n][1]
            f = aWF + 4 * (n % NF)
            return [Ins(f"ds_read_b64_tr_b16 {a_(f,2)}, {r0}"), Ins(f"ds_read_b64_tr_b16 {a_(f+2,2)}, {r1}", tok=f"fr{self.tb}{n}")]
        def open_stage(S, i):
            toks = [f"{self.tb}{i}"] + list(hooks_bar.get(i, []))
            if st[i]["xs"] is not None: toks.append(f"x{st[i]['xs']}")
            if 'nowait' not in ABL: S.wait(*toks)
            if 'nobar' not in ABL: S("s_barrier")
        head = Stream()
        open_stage(head, 0)
        if st[0]["xs"] is not None: head += x_reads(st[0]["xs"])
        for n in range(DPF): head += reads(n)
        slots = [Stream() for _ in range(N)]
        tails = [Stream() for _ in range(N)]
        extras = [[] for _ in range(N)]
        def spread(n0, stream, dscost=0.5, pace=1):
            grp = Stream(); cnt = 0; n = n0; last = n0
            for ins in stream:
                grp.append(ins)
                vm = ins.kind in ("vm_dma", "vm_ld", "vm_st")
                if vm or ins.kind == "mfma": cnt += 1
                elif ins.kind in ("ds_rd", "ds_wr"): cnt += dscost
                if cnt >= 1:
                    extras[min(int(n), N-1)].append(grp); grp = Stream(); cnt = 0; last = n; n += (pace if vm else 1)
            if grp: extras[min(int(last), N-1)].append(grp)
            return n
        qptr = [0]
        if 0 in hooks_after: qptr[0] = spread(0, hooks_after[0], pace=st[0].get("pace", 1))
        for n in range(N):
            i, (acc, r0, r1, xr, cs, zero, ex) = seq[n]
            S = slots[n]; f = aWF + 4 * (n % NF)
            if PAIRWAIT and n % 2 == 0 and n + 1 < N: S.wait(f"fr{self.tb}{n+1}")
            S(f"v_mfma_f32_32x32x16_bf16 {v(acc,16)}, {a_(f,4)}, {a_(xr,4)}, {'0' if zero else v(acc,16)}")
            if cs is not None and 'nocs' not in ABL:
                tails[n](f"v_mfma_f32_16x16x32_bf16 {v(cs[0],4)}, {v(vSEL,4)}, {a_(f,4)}, {'0' if cs[1] else v(cs[0],4)}")
            if ex and 'nostat' not in ABL: tails[n](ex)
            m = n + DPF
            if m < N:
                j = seq[m][0]
                if first[j] == m:
                    open_stage(S, j)
                    k = n
                    if st[j]["xs"] is not None: k = spread(k, x_reads(st[j]["xs"]), dscost=1) - 3
                    k = max(k, qptr[0])
                    d = Stream()
                    if st[j]["xs"] is not None and st[j]["xs"] + 3 < 10 and st[j]["xs"] >= 1:
                        d.wait(f"xr{st[j]['xs']-1}"); d += x_dma(st[j]["xs"] + 3)
                    w = j - 2 + self.R
                    if w >= pre_issued and w < len(st): d += st[w]["dma"]
                    if j in hooks_after: d += hooks_after[j]
                    qptr[0] = spread(k, d, pace=st[j].get("pace", 1))
                S += reads(m)
            for g in extras[n]: S += g
        self.tails = tails
        return head, slots, first

ST0 = 7
def w2_slot(k):
    if ST0 <= k < ST0 + 7: k -= 7
    if ROLE[0] == "g":
        H = {0: ("v", 88), 1: ("v", 108), 2: ("a", 200), 3: ("a", 220), 4: ("a", 0), 5: ("a", 20), 6: ("a", 40), 14: ("a", 60), 15: ("v", 168), 16: ("v", 48)}
        return H[k]
    if k < 5: return ("a", 20 * k)
    if k >= 14: return ("a", 20 * (k - 9))
    return ("v", 208 + 20 * (k - 5))
def acc2(m4, tt):
    if ROLE[0] == "q": return v(128 + 20 * m4 + 4 * tt, 4)
    return a_(160 + 20 * (m4 - 2) + 4 * tt, 4) if m4 >= 2 else v(128 + 20 * m4 + 4 * tt, 4)
def act_base(i):
    n = parts()[i][1]
    if ROLE[0] == "g":
        if i & 1: return [("a", b) for b in (96, 112, 128, 144, 80)][:n]
        return [("v", 192), ("v", 208), ("v", 224), ("v", 240), ("a", 80)][:n]
    if i & 1: return [("v", b) for b in (64, 80, 96, 112, 48)][:n]
    return [("a", 160 + 16 * s) for s in range(n)]
def xs_home(f):
    homes = {}; free = list(range(16))
    for x in range(16):
        imm = (w2_off(ST0 + x // 5, x % 5)[1] & 4095) >> 10
        c = [h for h in free if h % 4 == imm] or [h for h in free if h >= imm]
        homes[x] = c[0]; free.remove(c[0])
    return homes[f]
def w2_lds_addr(role, f):
    if role == "g":
        if f < 16: return (16384, xs_home(f) * 1024)
        if f < 19: return (1024, LG_MISC + (f - 16) * 4096)
        return (4096, LG_WR + ((f - 19) // 4) * 16384 + ((f - 19) % 4) * 1024)
    return (10240, 3072 + f * 1024) if f < 10 else (25600, 45056 + (f - 10) * 1024)
def w2_off(k, t):
    for (k0, n, lp) in parts():
        if k0 <= k < k0 + n: return sW2P + lp, ((k - k0) * 5 + t) * 1024
def w2_stage(role, f0, f1):
    S = Stream(); run = None
    for f in range(f0, f1):
        ws_, base = w2_lds_addr(role, f); sp, off = w2_off(ST0 + f // 5, f % 5)
        imm = off & 4095
        if run != (ws_, base - imm, sp, off >> 12) :
            run = (ws_, base - imm, sp, off >> 12)
            assert base >= imm
            S(f"s_add_u32 m0, s{sWS[ws_]}, {base - imm}")
        S.I(f"buffer_load_dwordx4 {v(VW[off >> 12])}, {SWS}, s{sp} offen offset:{imm} sc1 lds", tok=f"w2s{f}")
    return S
vLA = 43
def w2_lds_regs(role):
    keys = []
    for f in range(35):
        ws_, base = w2_lds_addr(role, f); k = (ws_, base >> 16)
        if k not in keys: keys.append(k)
    return keys
def w2_lds_setup(role):
    S = Stream()
    for n, (ws_, hi) in enumerate(w2_lds_regs(role)):
        S(f"s_add_u32 s47, s{sWS[ws_]}, {hi << 16}", f"v_add_u32 {v(vLA+n)}, s47, {v(vL16)}")
    return S
def w2_copy(role, k):
    S = Stream(); b = w2_slot(k)
    for t in range(5):
        f = (k - ST0) * 5 + t; ws_, base = w2_lds_addr(role, f)
        r = vLA + w2_lds_regs(role).index((ws_, base >> 16))
        S.I(f"ds_read_b128 {rg(b,4*t,4)}, {v(r)} offset:{base & 0xFFFF}", waits=[f"w2s{f}"])
    return S
def rg(b, off, n): return (a_ if b[0] == "a" else v)(b[1] + off, n)

ORDER = [0, 1, 2, 3]
def parts():
    P = []; k = 0
    for lp in ORDER:
        n = 5 if lp == 3 else 4
        P.append((k, n, lp)); k += n
    return P
sW2P, sACP = 66, 36
sWS = {16384: sXM0, 4096: sWM0, 1024: 92, 10240: 92, 25600: 93}
VW = [2, 16, 17, 18, 19, 13, 14]
def p2_setup():
    S = Stream()
    S(f"s_add_u32 s{sT2}, s{sW}, s{sNT}", f"s_and_b32 s{sR2}, s{sT2}, 3")
    S(f"s_mul_i32 s{sT2}, s{sNT}, {68*5120}", f"s_add_u32 s{sT2}, s{sT2}, {WS_WP}", f"s_mul_i32 s{sW2P}, s{sR2}, {4*5120}", f"s_add_u32 s{sW2P}, s{sW2P}, s{sT2}",
      f"s_add_u32 s{sW2P+1}, s{sW2P}, {16*5120}", f"s_add_u32 s{sW2P+2}, s{sW2P}, {32*5120}", f"s_mul_i32 s{sW2P+3}, s{sR2}, {5*5120}", f"s_add_u32 s{sW2P+3}, s{sW2P+3}, s{sT2}",
      f"s_add_u32 s{sW2P+3}, s{sW2P+3}, {48*5120}")
    if ROLE[0] == "g": S(f"s_lshl_b32 s92, s{sW}, 10")
    else: S(f"s_mul_i32 s92, s{sW}, 10240", f"s_mul_i32 s93, s{sW}, 25600")
    return S
def vw_setup():
    S = Stream()
    for j in range(1, 7): S(f"v_add_u32 {v(VW[j])}, {4096*j}, {v(vL16)}")
    return S
sR2 = 65
def w2_load(k):
    S = Stream(); b = w2_slot(k)
    for t in range(5):
        sp, off = w2_off(k, t)
        S(f"buffer_load_dwordx4 {rg(b,4*t,4)}, {v(VW[off >> 12])}, {SWS}, s{sp} offen offset:{off & 4095} sc1")
    return S
vPF, vPV, vOO, vXR, vRA = 6, 7, 9, 24, 36
VA = [29, 30, 31, 32]
sPF, sOB = 57, 76
def XRA(): return 240 if ROLE[0] == 'g' else 244
def p2_pre():
    S = Stream(); t = vT + 8
    S(f"v_lshrrev_b32 {v(t)}, 4, {v(vL)}", f"v_and_b32 {v(t+1)}, 15, {v(vL)}", f"v_lshlrev_b32 {v(t+3)}, 9, {v(t)}", f"v_lshl_add_u32 {v(t+3)}, {v(t+1)}, 4, {v(t+3)}")
    for j in range(4):
        S(f"s_add_u32 s{sT2}, s{sW}, {j}", f"s_and_b32 s3, s{sT2}, 1", "s_lshl_b32 s3, s3, 8", f"s_bfe_u32 s{sT2}, s{sT2}, 0x10001", f"s_mul_i32 s{sT2}, s{sT2}, {136*1024}", f"s_add_u32 s{sT2}, s{sT2}, s3",
          f"v_add_u32 {v(VA[j])}, s{sT2}, {v(t+3)}")
    S(f"v_and_b32 {v(vPF)}, 7, {v(vL)}", f"v_lshlrev_b32 {v(vPF)}, 2, {v(vPF)}", f"v_bfe_u32 {v(t+2)}, {v(vL)}, 3, 1", f"v_lshl_add_u32 {v(vPF)}, {v(t+2)}, 7, {v(vPF)}", f"s_lshr_b32 s{sPF}, s{sRT}, 1", f"s_lshl_b32 s{sPF}, s{sPF}, 9")
    S(f"v_mul_u32_u24 {v(vOO)}, 1280, {v(t+1)}", f"v_lshl_add_u32 {v(vOO)}, {v(t)}, 3, {v(vOO)}",
      f"s_lshl_b32 s{sOB}, s{sRT}, 2", f"s_add_u32 s{sOB}, s{sOB}, s{sW}", f"s_mul_i32 s{sOB}, s{sOB}, {16*1280}", f"s_mul_i32 s{sT2}, s{sNT}, 160", f"s_add_u32 s{sOB}, s{sOB}, s{sT2}")
    S(f"s_mul_i32 s{sT2}, s{sRT}, {2*136*1024}", f"s_add_u32 s{sT2}, s{sT2}, {WS_AP}", f"s_lshl_b32 s44, s{sR2}, 13", f"s_add_u32 s44, s44, s{sT2}",
      f"s_mul_i32 s45, s{sR2}, {5*2048}", f"s_add_u32 s45, s45, s{sT2}", f"s_add_u32 s45, s45, {48*2048}")
    return S
def xre_load():
    S = Stream()
    for tt in range(5): S(f"buffer_load_dwordx2 {a_(XRA()+2*tt,2)}, {v(vOO)}, {SX}, s{sOB} offen offset:{32*tt}")
    return S
def wp_touch(r):
    S = Stream()
    S(f"s_and_b32 s48, s{sRT}, 3", "s_lshl_b32 s48, s48, 2", f"s_add_u32 s48, s48, s{sW}", f"s_mul_i32 s48, s48, {170*128}", f"s_mul_i32 s49, s{sNT}, {68*5120}", "s_add_u32 s48, s48, s49", f"s_add_u32 s48, s48, {WS_WP}",
      f"v_lshlrev_b32 {v(r)}, 7, {v(vL)}", f"buffer_load_dword a250, {v(r)}, {SWS}, s48 offen sc1", "s_add_u32 s48, s48, 8192", f"buffer_load_dword a251, {v(r)}, {SWS}, s48 offen sc1",
      f"s_add_u32 s48, s48, {42*128}", f"buffer_load_dword a253, {v(r)}, {SWS}, s48 offen sc1")
    return S
def p2_poll_txt(r, late=0): return f"buffer_load_dword {v(vPV+r)}, {v(vPF)}, {SWS}, s{sPF} offen offset:{256*late} sc1"
def p2_poll(r): return Stream([Ins(p2_poll_txt(r))])
def pmask(i): return 0xFF << (8 * (parts()[i][2] & 1))
def p2_L(i, srd):
    S = Stream(); k0, n, lp = parts()[i]; r0 = act_base(i)
    if lp < 3: S(f"s_add_u32 s46, s44, {lp*16*2048}")
    else: S("s_mov_b32 s46, s45")
    for s in range(n):
        for m4 in range(4):
            S(f"buffer_load_dwordx4 {rg(r0[s],4*m4,4)}, {v(VA[m4])}, {srd}, s46 offen offset:{(s&1)*2048} sc1")
        if s & 1 and s + 1 < n: S(f"s_add_u32 s46, s46, 4096")
    return S
def p2_try(i, r):
    S = Stream()
    S(*cmp_mask(vPV + r, 1, pmask(i))); S(f"s_cselect_b32 s26, 0, {WS_SIZE}")
    return S
class Fork:
    kind = "fork"
    def __init__(self, label, stream): self.label = label; self.stream = stream
class Reset:
    kind = "reset"
def phase2(tag, rest, store_tok, flag, l1_done):
    S = Stream(); t = vRA
    vXR = 68 if tag == "g" else 26
    stamp(S)
    stamp(S, 3)
    S += w2_lds_setup(tag)
    P = parts()
    def step(i, s):
        k0, n, _ = P[i]; r0 = act_base(i); k = k0 + s; b = w2_slot(k); M = Stream()
        if i > 0: M(f"s_nop {s} ; WAITX")
        if i == 0 and s == FLAG_AFTER:
            M.wait(store_tok); M("s_barrier"); M += flag
        if k == 13:
            M.drain(vm=False); M("s_barrier")
            for j in range(1, 4):
                M(f"s_add_u32 s{sT0}, s{sW}, {j}", f"s_and_b32 s{sT0}, s{sT0}, 3", f"s_mul_i32 s{sT0}, s{sT0}, 15360", f"s_add_u32 s{sT0}, s{sT0}, {(j-1)*5120}", f"v_add_u32 {v(t+j)}, s{sT0}, {v(vL16)}")
            M(f"s_mul_i32 s{sT0}, s{sW}, 15360", f"v_add_u32 {v(t)}, s{sT0}, {v(vL16)}")
        for m4 in ([0, 1, 2, 3] if k < 16 else [1, 2, 3, 0]):
            for tt in range(5):
                acc = acc2(m4, tt)
                M(f"v_mfma_f32_16x16x32_bf16 {acc}, {rg(b,4*tt,4)}, {rg(r0[s],4*m4,4)}, {'0' if k == 0 else acc}")
                if 5 <= k < 12 and m4 == 1: M.append(w2_copy(tag, k + 2)[tt])
                if k == 13 and m4 < 2: M(f"v_accvgpr_read_b32 {v(vXR+5*m4+tt)}, {a_(XRA()+5*m4+tt)}")
                if k == 14 and m4 < 2: M(f"v_lshlrev_b32 {v(XU+10*m4+2*tt)}, 16, {v(vXR+5*m4+tt)}")
                if k == 15 and m4 < 2: M(f"v_and_b32 {v(XU+10*m4+2*tt+1)}, 0xffff0000, {v(vXR+5*m4+tt)}")
                if k == 16 and m4 != 1:
                    pm = (m4 - 1) & 3
                    M(f"ds_write_b128 {v(t+pm)}, {acc2(pm,tt)} offset:{tt*1024}")
        return M
    def fix(M, n, cnt):
        O = Stream()
        for x in M:
            if x.kind in ("vm_ld", "vm_st", "vm_dma"): cnt += 1
            if x.kind not in ("fork", "reset") and "WAITX" in x.text:
                s = int(x.text.split()[1]); O(f"s_waitcnt vmcnt({min(63, 4*(n-1-s)+cnt)})")
            else: O.append(x)
        return O, cnt
    bg = Stream()
    if not l1_done:
        S += p2_try(1, 1); bg += p2_L(1, SAUX)
    bg += rest
    M = Stream()
    for s in range(4):
        if s == PP0_STEP: M.I(p2_poll_txt(0, 1), tok="pp0")
        M += step(0, s)
    S += sprinkle(M, bg, P2_PERIOD0)
    stamp(S, 3)
    S.wait("pp0")
    nm = f"p1{tag}"
    S("s_cmp_eq_u32 s26, 0", f"s_cbranch_scc1 L_slow_{nm}", f"L_back_{nm}:")
    slow_paths.append([f"L_slow_{nm}:"] + spin_lines(nm, vPV + 1, 1, p2_poll_txt(1) + "\n    " + p2_poll_txt(0, 1), pmask(1), sleep=3) + ["    " + x.text for x in p2_L(1, SWS)] + [f"    s_branch L_back_{nm}"])
    stamp(S); stamp(S, 3)
    for i in (1, 2):
        n = P[i][1]; cnt = 0
        for s in range(n):
            if s in DYN:
                S(*cmp_mask(vPV, 1, pmask(i + 1)))
                S(f"s_cbranch_scc0 L_var_{tag}{i}_{s}")
                V = Stream()
                for s2 in range(s, n): V += step(i, s2)
                V, _ = fix(sprinkle(V, p2_L(i + 1, SWS), P2_PERIOD), n, cnt)
                V.drain(vm=False); V(f"s_branch L_join_{tag}{i}")
                S.append(Fork(f"L_var_{tag}{i}_{s}", V))
            M = step(i, s)
            if s in DYN or s == n - 2: M.insert(1, Ins(p2_poll_txt(0, 1)))
            M, cnt = fix(M, n, cnt)
            S += M
        nm = f"q{i+1}{tag}"
        S.drain()
        S(*cmp_mask(vPV, 1, pmask(i + 1)))
        S(f"s_cbranch_scc1 L_slow_{nm}", f"L_back_{nm}:")
        slow_paths.append([f"L_slow_{nm}:"] + spin_lines(nm, vPV, 1, p2_poll_txt(0, 1), pmask(i + 1), sleep=SPIN_SLEEP) + [f"    s_branch L_back_{nm}"])
        S += p2_L(i + 1, SWS)
        S(f"L_join_{tag}{i}:", "s_nop 7")
        S.append(Reset())
        stamp(S); stamp(S, 3)
    M = Stream()
    for s in range(P[3][1]): M += step(3, s)
    M, _ = fix(M, P[3][1], 0)
    S += M
    stamp(S); stamp(S, 3)
    S.drain(vm=False); S("s_barrier")
    R0 = 68 if tag == 'g' else 48
    for s in range(3):
        for tt in range(5): S(f"ds_read_b128 {v(R0+20*s+4*tt,4)}, {v(t)} offset:{s*5120+tt*1024}")
    for i in range(10): S(f"v_pk_add_f32 {v(XU+2*i,2)}, {v(XU+2*i,2)}, {v(128+2*i,2)}")
    for s in range(3):
        for i in range(10): S(f"v_pk_add_f32 {v(XU+2*i,2)}, {v(XU+2*i,2)}, {v(R0+20*s+2*i,2)}")
    for tt in range(5):
        S(f"v_cvt_pk_bf16_f32 {v(vXR+2*tt)}, {v(XU+4*tt)}, {v(XU+4*tt+1)}", f"v_cvt_pk_bf16_f32 {v(vXR+2*tt+1)}, {v(XU+4*tt+2)}, {v(XU+4*tt+3)}")
        S(f"buffer_store_dwordx2 {v(vXR+2*tt,2)}, {v(vOO)}, {SOUT}, s{sOB} offen offset:{32*tt} {OUTFLAGS}")
    stamp(S)
    if STAMPS:
        S(f"s_lshl_b32 s{sT0}, s2, 8", f"s_add_u32 s{sT0}, s{sT0}, {WS_STAMP}", f"s_cmp_eq_u32 s{sW}, 0", f"s_cselect_b32 s{sT1}, 0, {hex(HUGE)}",
          f"v_lshlrev_b32 {v(48)}, 2, {v(vL)}", f"v_or_b32 {v(48)}, s{sT1}, {v(48)}", f"buffer_store_dword v0, {v(48)}, {SWS}, s{sT0} offen")
    S("s_endpgm")
    return S
FLAG_AFTER = 0
P2_PERIOD = 48
H1FLAG_AT = 27
XU = 208
OUTFLAGS = ''
POLL_STEP = 2
POLL2_AT = 15
PK_AT = 3
ROT2MASK = 3
EPI_RATE = 2.0
EPI_RATE2 = 3.1
W2CAP17 = 5
EPI_LAG = 1
PAIRWAIT = 1

P2_PERIOD = 32
P2_PERIOD0 = 40
PP0_STEP = 3
DYN = (0,)
SPIN_SLEEP = 3

def flag_store(off_s, imm):
    S = Stream()
    S(f"buffer_store_dword a255, {v(vFL)}, {SWS}, s{off_s} offen offset:{imm} sc1")
    return S

def glu_path():
    S = Stream(); t = vT
    ACC = [128, 192, 128]
    if PREF:
        S(f"v_and_b32 {v(t)}, 15, {v(vL)}", f"v_mul_u32_u24 {v(t)}, 1280, {v(t)}", f"v_lshrrev_b32 {v(t+1)}, 4, {v(vL)}", f"v_lshl_add_u32 {v(t)}, {v(t+1)}, 7, {v(t)}",
          f"s_lshl_b32 s48, s{sMT}, 1", f"s_and_b32 s49, s{sSL}, 1", "s_add_u32 s48, s48, s49", "s_lshl_b32 s48, s48, 2", f"s_add_u32 s48, s48, s{sW}", f"s_mul_i32 s50, s48, {16*1280}",
          f"buffer_load_dword {v(128)}, {v(t)}, {SX}, s50 offen")
        divmod_v(S, t+2, t+3, vL, 6)
        S(f"v_min_u32 {v(t+2)}, 9, {v(t+2)}", f"v_mul_u32_u24 {v(t+2)}, {64*3840}, {v(t+2)}", f"v_lshl_add_u32 {v(t+2)}, {v(t+3)}, 7, {v(t+2)}", f"v_cmp_lt_u32 vcc, 2, {v(t+3)}",
          f"v_mov_b32 {v(t+4)}, {1280-384}", f"v_cndmask_b32 {v(t+4)}, 0, {v(t+4)}, vcc", f"v_add_u32 {v(t+2)}, {v(t+2)}, {v(t+4)}",
          "s_and_b32 s48, s48, 63", "s_mul_i32 s51, s48, 3840", f"s_lshr_b32 s49, s{sSL}, 1", "s_mul_i32 s49, s49, 320", "s_and_b32 s49, s49, 0xffffff80", "s_add_u32 s51, s51, s49", "s_add_u32 s51, s51, 1280",
          "s_mov_b32 s24, s34", "s_mov_b32 s25, s35", "s_mov_b32 s26, 2457600", f"buffer_load_dword {v(129)}, {v(t+2)}, {SAUX}, s51 offen")
        S(f"buffer_load_dword {v(130)}, {v(t)}, {SX}, s50 offen offset:512")
        S(f"v_and_b32 {v(t+1)}, 1, {v(t+1)}", f"v_and_b32 {v(t+5)}, 15, {v(vL)}", f"v_mul_u32_u24 {v(t+5)}, 1280, {v(t+5)}", f"v_lshl_add_u32 {v(t+5)}, {v(t+1)}, 7, {v(t+5)}",
          f"buffer_load_dword {v(131)}, {v(t+5)}, {SX}, s50 offen offset:1024")
    S(f"s_cmp_lt_u32 s{sW}, 2", "s_cselect_b32 s8, s42, s44", "s_cselect_b32 s9, s43, s45", "s_mov_b32 s10, 1966080")
    S(f"v_lshrrev_b32 {v(t)}, 3, {v(vL)}", f"v_mul_u32_u24 {v(t)}, 3072, {v(t)}", f"v_bfe_u32 {v(t+1)}, {v(vL)}, 4, 1", f"s_and_b32 s{sT0}, s{sW}, 2", f"v_or_b32 {v(t+1)}, s{sT0}, {v(t+1)}",
      f"v_lshlrev_b32 {v(t+1)}, 1, {v(t+1)}", f"v_and_b32 {v(t+2)}, 7, {v(vL)}", f"v_xor_b32 {v(t+1)}, {v(t+1)}, {v(t+2)}", f"v_lshl_add_u32 {v(vWO)}, {v(t+1)}, 4, {v(t)}")
    S(f"s_and_b32 s{sWB}, s{sW}, 1", f"s_mul_i32 s{sWB}, s{sWB}, {32*3072}", f"s_mul_i32 s{sT0}, s{sSL}, 384", f"s_add_u32 s{sWB}, s{sWB}, s{sT0}",
      f"s_lshl_b32 s{sWM0}, s{sW}, 12")
    WO = [5, 10, 11, 12]
    for j in range(1, 4): S(f"v_add_u32 {v(WO[j])}, {j*(8*3072-1024)}, {v(vWO)}")
    ktable(S, 64 * 3072, sWB)
    def w_dma(g):
        c, i = divmod(g, 10); D = Stream()
        if c and i == 0: D("s_add_u32 s8, s8, 128", "s_addc_u32 s9, s9, 0", "s_sub_u32 s10, s10, 128")
        D(f"s_add_u32 m0, s{sWM0}, {LG_WR + (g % 5) * 16384}")
        for j in range(4):
            D.I(f"buffer_load_dwordx4 {v(WO[j])}, {SW}, s{sKT+i} offen offset:{j*1024} lds", tok=f"w{g}" if j == 3 else None)
        return D
    if PREF:
        S(f"v_lshrrev_b32 {v(t)}, 2, {v(vL)}", f"v_min_u32 {v(t)}, 9, {v(t)}", f"v_lshlrev_b32 {v(t)}, 6, {v(t)}", f"v_and_b32 {v(t+1)}, 1, {v(vL)}", f"v_add_u32 {v(t)}, {v(t)}, {v(t+1)}",
          f"v_mul_u32_u24 {v(t)}, 3072, {v(t)}", f"v_bfe_u32 {v(t+1)}, {v(vL)}, 1, 1", f"v_lshl_add_u32 {v(t)}, {v(t+1)}, 7, {v(t)}",
          "s_lshr_b32 s49, s48, 2", "s_lshl_b32 s49, s49, 1", f"s_and_b32 s50, s{sW}, 1", "s_add_u32 s49, s49, s50", f"s_mul_i32 s49, s49, {2*3072}", f"s_lshr_b32 s50, s{sSL}, 1", "s_lshl_b32 s50, s50, 8",
          "s_add_u32 s49, s49, s50", f"buffer_load_dword {v(132)}, {v(t)}, {SW}, s49 offen")
        S += x_dma(0)
    S += w_dma(0)
    ktable_rest(S, 64 * 3072, sWB)
    S(f"s_lshl_b32 s32, s{sMT}, 3", f"s_add_u32 s32, s32, s{sSL}", "s_lshl_b32 s32, s32, 2", f"s_add_u32 s32, s32, s{sW}", "s_add_u32 s33, s32, 512",
      f"s_lshl_b32 s34, s{sMT}, 7", f"s_lshl_b32 s35, s{sSL}, 2", "s_add_u32 s34, s34, s35", f"s_add_u32 s34, s34, {WS_PFLAG}")
    S += x_dma(1); S += w_dma(1)
    S += code_pf('g')
    pack_vec(S); S += pack_pre(0, 32); S += pack_pre(1, 33)
    xaddr_setup(S, False); sel_setup(S)
    S(f"v_bfe_u32 {v(t)}, {v(vL)}, 4, 1", f"v_lshrrev_b32 {v(t+1)}, 5, {v(vL)}", f"v_bfe_u32 {v(t+2)}, {v(vL)}, 2, 2",
      f"v_lshl_add_u32 {v(t+1)}, {v(t+1)}, 3, {v(t+2)}", f"v_lshlrev_b32 {v(t+1)}, 7, {v(t+1)}", f"v_lshl_add_u32 {v(t+1)}, {v(t)}, 13, {v(t+1)}",
      f"v_and_b32 {v(t+3)}, 1, {v(vL)}", f"v_bfe_u32 {v(t+4)}, {v(vL)}, 1, 1", f"v_lshl_add_u32 {v(t+3)}, {v(t+3)}, 1, {v(t+4)}", f"v_lshl_add_u32 {v(t+1)}, {v(t+3)}, 3, {v(t+1)}",
      f"v_add_u32 {v(t+1)}, {LG_WR}, {v(t+1)}",
      f"v_lshrrev_b32 {v(t+2)}, 1, {v(t+2)}", f"v_lshl_add_u32 {v(t+2)}, {v(t)}, 1, {v(t+2)}", f"v_xor_b32 {v(t+2)}, s{sW}, {v(t+2)}")
    for p in range(4):
        S(f"v_xor_b32 {v(t+3)}, {p}, {v(t+2)}", f"v_lshl_add_u32 {v(vWA+p)}, {v(t+3)}, 5, {v(t+1)}", f"v_add_u32 {v(vWB_+p)}, 0x10000, {v(vWA+p)}")
    S(f"s_lshl_b32 s{sT0}, s{sSL}, 12", f"s_add_u32 s{sAPB}, s{sAPB}, s{sT0}")
    for p in range(4):
        S(f"s_xor_b32 s{sST+p}, s{sW}, {p}", f"s_lshl_b32 s{sST+p}, s{sST+p}, 10", f"s_add_u32 s{sST+p}, s{sST+p}, s{sAPB}")
    S(f"s_lshl_b32 s{sT0}, s{sW}, 10", f"s_add_u32 s{sT0}, s{sT0}, {L_CSF}", f"v_add_u32 {v(vQA)}, s{sT0}, {v(vL16)}")
    for p in range(1, 4): S(f"v_xor_b32 {v(vQB+p)}, {p*1024}, {v(vQA)}")
    assert L_CSF % 4096 == 0
    S(f"s_lshl_b32 s{sPKS+2}, s{sMT}, 9", f"s_lshl_b32 s{sT0}, s{sSL}, 2", f"s_add_u32 s{sPKS+2}, s{sPKS+2}, s{sT0}")
    sFLG = sPKS + 2
    S += p2_setup(); S += p2_pre()
    stages = []
    for g in range(30):
        c, i = divmod(g, 10); mf = []
        order = [(s, p) for s in range(4) for p in range(4)] if g < 29 else [(s, p) for p in range(4) for s in range(4)]
        for (s, p) in order:
            if True:
                off = (g % 5) * 16384 + s * 2048
                ar = vWA + p
                if off >= 65536 - 1024: ar = vWB_ + p; off -= 65536
                mf.append((ACC[c] + 16 * p, f"{v(ar)} offset:{off}", f"{v(ar)} offset:{off+512}", 16 * i + 4 * s,
                           (vCS + 4 * (c & 1), i == 0 and s == 0) if p == 0 else None, i == 0 and s == 0,
                           stat_mfma(p - 1, 16 * i + 4 * s, i == 0 and s == 0) if (c == 0 and p > 0) else None))
        stages.append(dict(mf=mf, dma=w_dma(g), xs=i if c == 0 else None))
    def cs_publish(c):
        E = Stream(); cs = vCS + 4 * (c & 1); q = vT
        E(f"v_cndmask_b32 {v(q)}, {v(cs+1)}, {v(cs)}, s[96:97]")
        split3(E, vT + 4, q, q + 1, "A")
        E.I(f"ds_write_b128 {v(vQA)}, {v(vT+4,4)}", tok=f"csw{c}")
        return E
    def corr(c):
        E = Stream()
        for p in range(1, 4): E(f"ds_read_b128 {v(vCS+4+4*p,4)}, {v(vQB+p)}")
        for p in range(4):
            E(f"v_mfma_f32_32x32x16_bf16 {v(ACC[c]+16*p,16)}, {v(vT+4 if p == 0 else vCS+4+4*p,4)}, {v(vMB,4)}, {v(ACC[c]+16*p,16)}")
        return E
    def epi(c, packed):
        E = epi_(c, packed)
        if 'noepi' in ABL and not packed: E = Stream([x for x in E if x.kind in ("vm_st", "salu")])
        return E
    def epi_(c, packed):
        E = Stream()
        def store(p):
            A = ACC[c] + 16 * p
            E(f"s_add_u32 s36, s{sST+p}, {c*32*1024}")
            E.I(f"buffer_store_dwordx4 {v(A,4)}, {v(vL16)}, {SWS}, s36 offen sc1", tok=f"h{c}" if p == 3 else None)
        if packed:
            for p in range(4):
                A = ACC[c] + 16 * p
                for i in range(0, 8, 2): E(f"v_pk_mul_f32 {v(A+i,2)}, {v(A+i,2)}, {v(vC,2)} op_sel_hi:[1,0]")
                for i in range(8): E(f"v_exp_f32 {v(A+i)}, {v(A+i)}")
                for i in range(0, 8, 2): E(f"v_pk_fma_f32 {v(A+i,2)}, {v(A+i,2)}, {v(vC,2)}, {v(vC,2)} op_sel:[0,1,1] op_sel_hi:[1,1,1]")
                for i in range(8): E(f"v_rcp_f32 {v(A+i)}, {v(A+i)}")
                for i in range(0, 8, 2): E(f"v_pk_mul_f32 {v(A+8+i,2)}, {v(A+8+i,2)}, {v(A+i,2)}")
                for i in range(4): E(f"v_cvt_pk_bf16_f32 {v(A+i)}, {v(A+8+2*i)}, {v(A+9+2*i)}")
                store(p)
            return E
        LAG = EPI_LAG
        ev = []
        for e in range(32):
            p, i = divmod(e, 8); A = ACC[c] + 16 * p
            ops = [f"v_mul_f32 {v(A+i)}, {v(A+i)}, {v(vC)}", f"v_exp_f32 {v(A+i)}, {v(A+i)}", f"v_fma_f32 {v(A+i)}, {v(A+i)}, {v(vSD)}, {v(vSD)}",
                   f"v_rcp_f32 {v(A+i)}, {v(A+i)}", f"v_mul_f32 {v(A+8+i)}, {v(A+8+i)}, {v(A+i)}"]
            for s, o in enumerate(ops): ev.append((e + LAG * s, s, o, None))
            if i & 1: ev.append((p * 8 + 7 + LAG * 5, 5 + i, f"v_cvt_pk_bf16_f32 {v(A+i//2)}, {v(A+8+i-1)}, {v(A+8+i)}", None))
            if i == 7: ev.append((p * 8 + 7 + LAG * 6, 20, None, p))
        for (_, _, o, p) in sorted(ev, key=lambda x: (x[0], x[1])):
            if o: E(o)
            else: store(p)
        return E
    hb = {11: ["csw0"], PK_AT + 7: ["chores1"], 21: ["csw1"]}
    hb[H0AT] = hb.get(H0AT, []) + ["h0"]
    if PK_AT + 7 == 11: hb[11] = ["csw0", "chores1"]
    ha = {0: Stream(x_dma(2) + w_dma(2) + x_dma(3) + w_dma(3)),
          PK_AT: pack_dma(0, 32), PK_AT + 3: Stream(pack_finish(0) + pack_dma(1, 33) + poll1_issue()), PK_AT + 5: pack_finish(1), PK_AT + 6: poll1_check("g"), PK_AT + 7: flag_store(34, 0),
          POLL2_AT - 2: Stream(vw_setup() + poll2_issue()), POLL2_AT: poll2_check("g")}
    core = Core(stages, 5, "w")
    for i in range(10, 30): stages[i]["pace"] = PACE
    def add(j, st_): ha[j] = Stream(ha.get(j, Stream()) + st_)
    S(f"v_min_u32 {v(87)}, 39, {v(vL)}", f"v_mul_u32_u24 {v(87)}, 3072, {v(87)}", f"s_and_b32 s48, s{sMT}, 7", "s_lshl_b32 s48, s48, 1", f"s_and_b32 s49, s{sW}, 1", "s_add_u32 s48, s48, s49",
      f"s_mul_i32 s48, s48, {40*3072}", f"s_mul_i32 s49, s{sSL}, 384", "s_add_u32 s48, s48, s49", f"v_add_u32 {v(87)}, s48, {v(87)}")
    add(XRAT, xre_load())
    if WPT: add(POLL2_AT, wp_touch(111))
    if T2AT: add(T2AT, Stream([Ins(f"buffer_load_dword a253, {v(87)}, {SW}, 0 offen offset:128")]))
    if T3AT: add(T3AT, Stream([Ins(f"buffer_load_dword a252, {v(87)}, {SW}, 0 offen offset:{128 if T3AT >= 7 else 256}")]))
    add(H0AT, flag_store(sFLG, 0))
    items = []
    for f in range(0, 19, 4): items.append((POLL2_AT + WPD, w2_stage("g", f, min(f + 4, 19)), min(4, 19 - f)))
    for k in range(4): items.append((POLL2_AT, w2_load(k), 5))
    for n_, k in enumerate((4, 5, 6, 14)): items.append((20 + (20 * n_ + 19) // 16 + 2, w2_load(k), 5))
    for f in range(19, 27, 4): items.append((27 + (f - 19) // 4, w2_stage("g", f, f + 4), 4))
    add(H1FLAG_AT - 2, p2_poll(0))
    chk = Stream(); poll_check(chk, "p0g", vPV, 1, p2_poll_txt(0), pmask(0))
    hb[H1FLAG_AT] = ["h1"]; add(H1FLAG_AT, flag_store(sFLG, 128)); add(H1FLAG_AT, chk)
    G0 = vm_groups(p2_L(0, SWS))
    for q_ in range(0, 16, 4): items.append((max(H1FLAG_AT, 27) + 0.5, Stream([x for gg_ in G0[q_:q_+4] for x in gg_]), 4))
    for j in range(POLL2_AT, 30):
        cap = (CAPA if j < 22 else CAPB) if j <= 26 else 13
        if j in (17, 18): cap = W2CAP17
        for it in sorted(items, key=lambda x: x[0] if x[0] > 21 else 100):
            if it[0] <= j + 0.5 and it[2] <= cap:
                add(j, it[1]); cap -= it[2]; items.remove(it)
    assert not items, [(it[0], it[2]) for it in items]
    rest = Stream(w2_stage("g", 27, 35) + w2_load(15) + w2_load(16))
    head, slots, first = core.build(4, hb, ha)
    side = Stream(cs_publish(0) + stats_consume("0xbfb8aa3b") + corr(0) + epi(0, False))
    left = interleave(slots[:first[20]], side, EPI_RATE, start=first[10]); assert not left, len(left)
    left = interleave(slots, cs_publish(1), 2, start=first[20]); assert not left
    left = interleave(slots[:first[H1FLAG_AT - 1]], Stream(corr(1) + epi(1, False)), EPI_RATE2, start=first[21] - DPF + 1); assert not left, len(left)
    fin = cs_publish(2); fin.wait("csw2"); fin("s_barrier"); fin += p2_poll(1); c2 = corr(2)
    fin += c2[:-1]
    left = interleave(slots, fin, 2.5, start=first[29] + 5); assert not left, len(left)
    slots[-1].append(c2[-1])
    stamp(S, 1)
    S += head
    stamp(S, 1)
    for n, sl in enumerate(slots):
        S += sl; S += core.tails[n]
        if n + 1 in (first[10], first[20]): stamp(S)
        if n + 1 in [first[i] for i in range(1, 11)]: stamp(S, 1)
        if n + 1 in [first[i] for i in range(1, 30)] + [len(slots)]: stamp(S, 2)
    stamp(S)
    e2 = epi(2, True); cut = len(e2) // E3CUT
    S += e2[:cut]; S += p2_try(1, 1)
    S += sprinkle(Stream(e2[cut:]), p2_L(1, SAUX), E3P)
    S += phase2("g", rest, "h2", flag_store(sFLG, 256), True)
    return S

def softmax_pair(E, P, O, T, qmode):
    mx, mn = T + 40, T + 41
    E(f"v_max3_f32 {v(mx)}, {v(P)}, {v(P+1)}, {v(P+2)}", f"v_min3_f32 {v(mn)}, {v(P)}, {v(P+1)}, {v(P+2)}")
    for i in range(3, 19, 2):
        E(f"v_max3_f32 {v(mx)}, {v(mx)}, {v(P+i)}, {v(P+i+1)}", f"v_min3_f32 {v(mn)}, {v(mn)}, {v(P+i)}, {v(P+i+1)}")
    E(f"v_max_f32 {v(mx)}, {v(mx)}, {v(P+19)}", f"v_min_f32 {v(mn)}, {v(mn)}, {v(P+19)}")
    E(f"v_mul_f32 {v(mx)}, {v(mx)}, {v(vC)}", f"v_mul_f32 {v(mn)}, {v(mn)}, {v(vC)}")
    for i in range(0, 20, 2):
        E(f"v_pk_fma_f32 {v(T+i,2)}, {v(P+i,2)}, {v(vC,2)}, {v(mx,2)} op_sel:[0,0,0] op_sel_hi:[1,0,0] neg_lo:[0,0,1] neg_hi:[0,0,1]")
    for i in range(0, 20, 2):
        E(f"v_pk_fma_f32 {v(T+20+i,2)}, {v(P+i,2)}, {v(vC,2)}, {v(mx,2)} op_sel:[0,0,1] op_sel_hi:[1,0,1] neg_lo:[1,0,0] neg_hi:[1,0,0]")
    for i in range(40): E(f"v_exp_f32 {v(T+i)}, {v(T+i)}")
    for h in range(2):
        B = T + 20 * h; A = P + 10 * h
        for i in range(5): E(f"v_pk_add_f32 {v(A+2*i,2)}, {v(B+4*i,2)}, {v(B+4*i+2,2)}")
    for h in range(2):
        A = P + 10 * h
        E(f"v_pk_add_f32 {v(A,2)}, {v(A,2)}, {v(A+2,2)}", f"v_pk_add_f32 {v(A+4,2)}, {v(A+4,2)}, {v(A+6,2)}")
    for h in range(2):
        A = P + 10 * h
        E(f"v_pk_add_f32 {v(A,2)}, {v(A,2)}, {v(A+4,2)}")
    for h in range(2):
        A = P + 10 * h
        E(f"v_pk_add_f32 {v(A,2)}, {v(A,2)}, {v(A+8,2)}")
    E(f"v_add_f32 {v(T+44)}, {v(P)}, {v(P+1)}", f"v_add_f32 {v(T+45)}, {v(P+10)}, {v(P+11)}")
    if qmode:
        E(f"v_rcp_f32 {v(T+42)}, {v(T+45)}", f"v_mul_f32 {v(T+42)}, {v(T+42)}, {v(T+44)}")
        for i in range(0, 20, 2): E(f"v_pk_mul_f32 {v(T+20+i,2)}, {v(T+20+i,2)}, {v(T+42,2)} op_sel_hi:[1,0]")
    else:
        E(f"v_rcp_f32 {v(T+42)}, {v(T+44)}", f"v_rcp_f32 {v(T+43)}, {v(T+45)}")
        for i in range(0, 20, 2): E(f"v_pk_mul_f32 {v(T+i,2)}, {v(T+i,2)}, {v(T+42,2)} op_sel_hi:[1,0]")
        for i in range(0, 20, 2): E(f"v_pk_mul_f32 {v(T+20+i,2)}, {v(T+20+i,2)}, {v(T+42,2)} op_sel:[0,1] op_sel_hi:[1,1]")
    for i in range(20): E(f"v_cvt_pk_bf16_f32 {v(O+i)}, {v(T+2*i)}, {v(T+2*i+1)}")

PROJ = [(0, 0), (0, 1), (0, 2), (1, 0), (1, 1), (1, 2), (1, 3), (1, 4), (2, 2), (2, 3), (2, 4)]
aPH = 200
def project(E, SRC, PK, OUT):
    for i in range(20): E(f"v_cvt_pk_bf16_f32 {v(PK+i)}, {v(SRC+2*i)}, {v(SRC+2*i+1)}")
    seen = set()
    for n, (T, sl) in enumerate(PROJ):
        E(f"v_mfma_f32_32x32x16_bf16 {v(OUT+16*T,16)}, {a_(aPH+4*n,4)}, {v(PK+4*sl,4)}, {v(OUT+16*T,16) if T in seen else '0'}")
        seen.add(T)

def qkv_path():
    ROLE[0] = "q"; VA[:] = [3, 4, 5, 20]
    S = Stream(); t = vT
    S("L_qkv:")
    if PREF: S += x_dma(0)
    AKV, AQ = 128, 208
    S("s_mov_b32 s8, s34", "s_mov_b32 s9, s35", "s_mov_b32 s10, 2457600")
    ZI = Stream(); QV = Stream()
    ZI("s_mov_b32 s24, s12", "s_mov_b32 s25, s13", f"s_cmp_eq_u32 s{sSL}, 7", f"s_cselect_b32 s26, {WS_SIZE}, 0", f"s_cselect_b32 s{sST+3}, 0, {hex(HUGE)}")
    for i in range(4): ZI(f"v_mov_b32 {v(100+i)}, 0")
    ZI(f"s_lshl_b32 s{sT1}, s{sMT}, 2", f"s_add_u32 s{sT1}, s{sT1}, s{sW}", f"s_mul_i32 s{sT1}, s{sT1}, 3072")
    for i in range(3): ZI.I(f"buffer_store_dwordx4 {v(100,4)}, {v(vL16)}, {SAUX}, s{sT1} offen offset:{1024*i} sc1", tok="zst" if i == 2 else None)
    ZI(f"v_or_b32 {v(114)}, s{sST+3}, {v(vFL)}", f"s_lshl_b32 s{sST+3}, s{sMT}, 2")
    sQB = 78
    S(f"s_mul_i32 s{sWB}, s{sSL}, 160", f"s_mul_i32 s{sWM0}, s{sW}, 5120")
    ktable(S, 64 * 3840, sWB)
    S(f"s_mul_i32 s{sT1}, s{sW}, {16*3840}", f"s_add_u32 s{sT2}, s{sT1}, 1280", f"s_sub_u32 s{sT3}, s{sT1}, 1280", f"s_add_u32 m0, s{sWM0}, {L_WR}")
    for j in range(5):
        S(f"v_add_u32 {v(t)}, {64*j}, {v(vL)}")
        divmod_v(S, t+1, t+2, t, 20)
        divmod_v(S, t+3, t+4, t+2, 5)
        S(f"v_and_b32 {v(t+5)}, 1, {v(t+3)}", f"v_lshrrev_b32 {v(t+3)}, 1, {v(t+3)}", f"v_mul_u32_u24 {v(t+3)}, 80, {v(t+3)}", f"v_lshl_add_u32 {v(t+3)}, {v(t+4)}, 4, {v(t+3)}")
        if 0 < j < 4: S(f"v_subrev_u32 {v(t+3)}, {1024*j}, {v(t+3)}")
        S(f"v_mul_u32_u24 {v(t+6)}, 3840, {v(t+1)}", f"v_mul_u32_u24 {v(t+7)}, 1280, {v(t+5)}", f"v_add3_u32 {v(vWO+j)}, {v(t+6)}, {v(t+7)}, {v(t+3)}", f"v_add_u32 {v(vWO+j)}, s{sT2}, {v(vWO+j)}")
        if j == 4: S(f"s_add_u32 m0, s{sWM0}, {L_WR + 4096}")
        S.I(f"buffer_load_dwordx4 {v(vWO+j)}, {SW}, s{sKT} offen offset:{j*1024 if j < 4 else 0} lds", tok="w0" if j == 4 else None)
        S(f"v_lshrrev_b32 {v(t+6)}, 2, {v(t+1)}", f"v_lshl_add_u32 {v(vQO+j)}, {v(t+6)}, 1, {v(t+5)}")
        QV(f"v_lshrrev_b32 {v(t+6)}, 1, {v(vQO+j)}", f"v_and_b32 {v(t+5)}, 1, {v(vQO+j)}", f"v_mul_u32_u24 {v(t+6)}, {4*3840}, {v(t+6)}", f"v_mul_u32_u24 {v(t+5)}, {4*3840-1280}, {v(t+5)}",
           f"v_add3_u32 {v(vQO+j)}, {v(t+6)}, {v(t+5)}, {v(vWO+j)}", f"v_add_u32 {v(vQO+j)}, s{sT3}, {v(vQO+j)}")
    def w_dma(g):
        D = Stream(); q = g >= 10
        lb = L_WR + (g % 4) * 20480 if g < 14 else L_WR - 20480
        D(f"s_add_u32 m0, s{sWM0}, {lb}")
        vo = vQO if q else vWO; so = sKT + (2 * (g - 10) if q else g)
        for j in range(4): D(f"buffer_load_dwordx4 {v(vo+j)}, {SW}, s{so} offen offset:{j*1024} lds")
        D(f"s_add_u32 m0, s{sWM0}, {lb + 4096}")
        D.I(f"buffer_load_dwordx4 {v(vo+4)}, {SW}, s{so} offen lds", tok=(f"q{g-10}" if q else f"w{g}"))
        return D
    ktable_rest(S, 64 * 3840, sWB); S += QV
    if QS1: S += x_dma(1); S += w_dma(1)
    S += code_pf('q')
    LATE = Stream(ZI); S0 = S; S = LATE
    S("s_mov_b32 s24, s36", "s_mov_b32 s25, s37", "s_mov_b32 s26, 25600", f"s_mul_i32 s{sT0}, s{sSL}, 3200", f"s_lshl_b32 s{sT1}, s{sW}, 10", f"s_add_u32 s{sT0}, s{sT0}, s{sT1}",
      f"s_add_u32 m0, s{sT1}, {L_PHI}")
    S.I(f"buffer_load_dwordx4 {v(vL16)}, {SAUX}, s{sT0} offen lds", tok="phid")
    S("s_mov_b32 s24, s12", "s_mov_b32 s25, s13")
    S = S0
    S(f"v_mov_b32 {v(t+2)}, 0", f"v_mov_b32 {v(t+3)}, 0", f"s_lshl_b32 s{sT0}, s{sW}, 9", f"s_add_u32 s{sT0}, s{sT0}, {L_ZERO}", f"v_lshl_add_u32 {v(t+4)}, {v(vL)}, 3, s{sT0}")
    S.I(f"ds_write_b64 {v(t+4)}, {v(t+2,2)}", tok="ldsz")
    xaddr_setup(S, True); sel_setup(S)
    S(f"v_lshrrev_b32 {v(t)}, 5, {v(vL)}", f"v_bfe_u32 {v(t+1)}, {v(vL)}, 2, 2", f"v_lshl_add_u32 {v(t+2)}, {v(t)}, 3, {v(t+1)}", f"v_lshl_add_u32 {v(t+3)}, {v(t)}, 2, {v(t+1)}",
      f"v_mul_u32_u24 {v(t+2)}, 320, {v(t+2)}", f"v_mul_u32_u24 {v(t+3)}, 320, {v(t+3)}",
      f"v_and_b32 {v(t+4)}, 1, {v(vL)}", f"v_mul_u32_u24 {v(t+4)}, 160, {v(t+4)}", f"v_bfe_u32 {v(t+5)}, {v(vL)}, 4, 1", f"v_bfe_u32 {v(t+6)}, {v(vL)}, 1, 1",
      f"v_lshl_add_u32 {v(t+5)}, {v(t+5)}, 1, {v(t+6)}", f"v_lshl_add_u32 {v(t+4)}, {v(t+5)}, 3, {v(t+4)}", f"v_add_u32 {v(t+4)}, {L_WR}, {v(t+4)}",
      f"v_add_u32 {v(t+2)}, {v(t+2)}, {v(t+4)}", f"v_add_u32 {v(t+3)}, {v(t+3)}, {v(t+4)}")
    for p in range(4):
        S(f"s_xor_b32 s{sT0}, s{sW}, {p}", f"s_mul_i32 s{sT1}, s{sT0}, 5120", f"s_mul_i32 s{sT0}, s{sT0}, 2560",
          f"v_add_u32 {v(vWA+p)}, s{sT1}, {v(t+2)}", f"v_add_u32 {v(vQA+p)}, s{sT0}, {v(t+3)}",
          f"v_add_u32 {v(vWB_+p)}, {3*20480}, {v(vWA+p)}", f"v_add_u32 {v(vQB+p)}, {2*20480}, {v(vQA+p)}", f"v_subrev_u32 {v(vQA+p)}, 20480, {v(vQA+p)}")
    S += p2_setup()
    stages = []
    for g in range(10):
        mf = []
        for p in range(4):
            for T in range(5):
                ar, off = (vWA + p, (g % 4) * 20480) if g % 4 < 3 else (vWB_ + p, 0)
                off += 32 * T
                mf.append((AKV + 16 * T, f"{v(ar)} offset:{off}", f"{v(ar)} offset:{off+1280}", 16 * g + 4 * p, (vCS + 4 * T, g == 0) if p == 0 else None, g == 0 and p == 0,
                           stat_mfma(T - 1, 16 * g + 4 * p, g == 0 and p == 0) if 1 <= T <= 3 else None))
        stages.append(dict(mf=mf, dma=w_dma(g), xs=g))
    PHF = Stream(); u = vT
    PHF(f"v_bfe_u32 {v(u)}, {v(vL)}, 4, 1", f"v_bfe_u32 {v(u+1)}, {v(vL)}, 1, 1", f"v_lshl_add_u32 {v(u)}, {v(u)}, 1, {v(u+1)}",
        f"v_lshrrev_b32 {v(u+1)}, 5, {v(vL)}", f"v_and_b32 {v(u+2)}, 1, {v(vL)}", f"v_cmp_eq_u32 s[{sPKS+4}:{sPKS+5}], {v(u+1)}, {v(u+2)}".replace(f"s[{sPKS+4}:{sPKS+5}]", "s[98:99]"),
        f"v_mul_u32_u24 {v(u+1)}, 1600, {v(u+1)}", f"v_bfe_u32 {v(u+2)}, {v(vL)}, 2, 2", f"v_mul_u32_u24 {v(u+2)}, 40, {v(u+2)}", f"v_add3_u32 {v(u+1)}, {v(u+1)}, {v(u+2)}, {L_PHI & 63}".replace(f", {L_PHI & 63}", ", 0"),
        f"v_add_u32 {v(u+1)}, {L_PHI}, {v(u+1)}", f"v_lshl_add_u32 {v(u+1)}, {v(u)}, 3, {v(u+1)}", f"v_mov_b32 {v(u+3)}, {L_ZERO}")
    amap = {}
    k = 4
    for (T, s) in [(0, 0), (1, 0), (1, 1), (2, 1)]:
        lo, hi = 5 * s - 4 * T, 5 * s + 5 - 4 * T
        PHF(f"v_add_u32 {v(u+k)}, {s*800+(4*T-5*s)*8}, {v(u+1)}", f"v_cndmask_b32 {v(u+k)}, {v(u+3)}, {v(u+k)}, s[98:99]")
        if lo > 0: PHF(f"v_cmp_le_u32 vcc, {lo}, {v(u)}", f"v_cndmask_b32 {v(u+k)}, {v(u+3)}, {v(u+k)}, vcc")
        if hi < 4: PHF(f"v_cmp_gt_u32 vcc, {hi}, {v(u)}", f"v_cndmask_b32 {v(u+k)}, {v(u+3)}, {v(u+k)}, vcc")
        amap[(T, s)] = u + k; k += 1
    for n, (T, sl) in enumerate(PROJ):
        for r2 in range(2):
            rho = 2 * sl + r2; s = rho // 5
            if (T, s) in amap: PHF(f"ds_read_b64_tr_b16 {a_(aPH+4*n+2*r2,2)}, {v(amap[(T,s)])} offset:{(rho%5)*160}")
            else: PHF(f"ds_read_b64_tr_b16 {a_(aPH+4*n+2*r2,2)}, {v(u+3)}")
    core = Core(stages, 4, "w")
    hb = {3: ["zst", "phid", "ldsz"]}
    if not QS1: S += x_dma(1); S += w_dma(1)
    ha = {0: Stream(x_dma(2) + w_dma(2) + LATE + x_dma(3)), 3: Stream([Ins(f"buffer_store_dword a255, {v(114)}, {SDBG}, s{sST+3} offen sc1")]), 4: PHF, 6: poll1_issue(), 9: poll1_check("q")}
    if QTAT:
        TCH = Stream(); q = vT + 8
        TCH(f"v_lshrrev_b32 {v(q)}, 1, {v(vL)}", f"v_min_u32 {v(q)}, 19, {v(q)}", f"v_mul_u32_u24 {v(q)}, 3840, {v(q)}", f"v_and_b32 {v(q+1)}, 1, {v(vL)}", f"v_mul_u32_u24 {v(q+1)}, 156, {v(q+1)}",
            f"v_add_u32 {v(q)}, {v(q)}, {v(q+1)}", f"s_and_b32 s48, s{sMT}, 7", "s_lshl_b32 s48, s48, 2", f"s_add_u32 s48, s48, s{sW}", f"s_mul_i32 s48, s48, {20*3840}", f"s_mul_i32 s49, s{sSL}, 160",
            "s_add_u32 s48, s48, s49", f"buffer_load_dword {v(115)}, {v(q)}, {SW}, s48 offen")
        ha[QTAT] = Stream(ha.get(QTAT, Stream()) + TCH)
    ha[8] = w_dma(10)
    ha[9] = Stream(w_dma(11) + ha[9])
    head, slots, first = core.build(3, hb, ha)
    stamp(S, 1)
    S += head
    stamp(S, 1)
    for n, sl in enumerate(slots):
        S += sl; S += core.tails[n]
        if n + 1 in [first[i] for i in range(1, 10)] + [len(slots)]: stamp(S, 1)
        if n + 1 in [first[i] for i in range(1, 10)]: stamp(S, 2)
    stamp(S)
    def cs_finish(ntile, acc, lcs, tag, extra_after_bar, mid=None):
        E = Stream(); q = vT
        E(f"v_and_b32 {v(q+1)}, 31, {v(vL)}", f"v_lshlrev_b32 {v(q+1)}, 4, {v(q+1)}", f"v_add_u32 {v(q+1)}, {lcs}, {v(q+1)}", f"s_lshl_b32 s{sT0}, s{sW}, 2", f"v_add_u32 {v(q)}, s{sT0}, {v(q+1)}")
        for T in range(ntile): E(f"v_cndmask_b32 {v(vCS+4*T)}, {v(vCS+4*T+1)}, {v(vCS+4*T)}, s[96:97]")
        for T in range(ntile): E(f"ds_write_b32 {v(q)}, {v(vCS+4*T)} offset:{512*T}")
        if mid: E += mid
        E.drain(vm=False)
        if tag == "q": E.wait("kvat")
        E("s_barrier")
        E += extra_after_bar
        R = q + 20
        for T in range(ntile): E(f"ds_read_b128 {v(R+4*T,4)}, {v(q+1)} offset:{512*T}")
        for T in range(ntile):
            E(f"v_add_f32 {v(R+4*T)}, {v(R+4*T)}, {v(R+4*T+1)}", f"v_add_f32 {v(R+4*T+2)}, {v(R+4*T+2)}, {v(R+4*T+3)}")
            E(f"v_add_f32 {v(R+4*T)}, {v(R+4*T)}, {v(R+4*T+2)}")
            split3(E, vCS + 4 * T, R + 4 * T, R + 4 * T + 1, "A")
            E(f"v_mfma_f32_32x32x16_bf16 {v(acc+16*T,16)}, {v(vCS+4*T,4)}, {v(vMB,4)}, {v(acc+16*T,16)}")
        return E
    stamp(S, 2)
    PK = vCS; TT = vT; ta = 120; kr = 21
    A1 = Stream()
    A1(f"v_and_b32 {v(ta)}, 31, {v(vL)}", f"s_lshl_b32 s{sT0}, s{sW}, 5", f"v_add_u32 {v(ta)}, s{sT0}, {v(ta)}", f"v_mul_u32_u24 {v(ta)}, {RS}, {v(ta)}",
      f"v_lshrrev_b32 {v(ta+1)}, 5, {v(vL)}", f"v_mul_u32_u24 {v(ta+2)}, 96, {v(ta+1)}", f"v_add_u32 {v(ta+2)}, {v(ta+2)}, {v(ta)}",
      f"v_mul_u32_u24 {v(ta+1)}, 160, {v(ta+1)}", f"v_add_u32 {v(ta+1)}, {v(ta+1)}, {v(ta)}")
    A1(f"v_lshrrev_b32 {v(kr+2)}, 4, {v(vL)}", f"v_bfe_u32 {v(kr+1)}, {v(vL)}, 2, 2", f"v_lshl_add_u32 {v(kr+1)}, {v(kr+2)}, 3, {v(kr+1)}", f"v_mul_u32_u24 {v(kr+1)}, {RS}, {v(kr+1)}",
      f"v_and_b32 {v(kr)}, 3, {v(vL)}", f"v_lshl_add_u32 {v(kr+1)}, {v(kr)}, 3, {v(kr+1)}",
      f"s_mul_i32 s{sT0}, s{sW}, 80", f"s_mul_i32 s{sT1}, s{sW}, 48", f"s_add_u32 s{sT1}, s{sT1}, 320", f"v_add_u32 {v(kr)}, s{sT0}, {v(kr+1)}", f"v_add_u32 {v(kr+1)}, s{sT1}, {v(kr+1)}")
    A2 = Stream()
    A2(f"v_lshrrev_b32 {v(ta)}, 4, {v(vL)}", f"v_mul_u32_u24 {v(ta+4)}, 768, {v(ta)}", f"v_and_b32 {v(ta+5)}, 15, {v(vL)}", f"v_lshl_add_u32 {v(ta+4)}, {v(ta+5)}, 2, {v(ta+4)}", f"v_lshlrev_b32 {v(ta+6)}, 2, {v(ta+5)}",
      f"s_lshl_b32 s42, s{sSL}, 2", f"s_add_u32 s42, s42, s{sW}", f"s_mul_i32 s42, s42, 4032", f"s_add_u32 s42, s42, {WS_KV}")
    AV = [ta + 4, 116, 117, 118, 119, ta + 5]
    A2(f"v_mov_b32 {v(ta)}, {hex(HUGE)}")
    for n, m in enumerate([None, 0xFFFFFFFF, 0xFFFF, 0x00FF00FF00FF00FF, 0x00FF00FF, 0x00FF]):
        if m is None: continue
        A2(f"s_mov_b32 s98, {hex(m & 0xFFFFFFFF)}", f"s_mov_b32 s99, {hex(m >> 32)}", f"v_cndmask_b32 {v(AV[n])}, {v(ta)}, {v(ta+4)}, s[98:99]")
    st_ = Stream(); stamp(st_, 2)
    S += cs_finish(5, AKV, L_CS, "kv", st_, mid=Stream(stats_consume("0x3fb8aa3b") + A1))
    stamp(S, 2)
    stamp(S)
    S0 = S; S = Stream()
    PJ = Stream(); project(PJ, AKV, PK, AQ)
    VW_ = Stream()
    for i in range(40): VW_(f"v_mul_f32 {v(AKV+40+i)}, {v(AKV+40+i)}, {v(vST+1)}")
    for s in range(2):
        for i in range(10): VW_(f"v_cvt_pk_bf16_f32 {v(AKV+12*s+i)}, {v(AKV+40+20*s+2*i)}, {v(AKV+41+20*s+2*i)}")
        VW_(f"v_mov_b32 {v(AKV+12*s+10)}, 0x3f80", f"v_mov_b32 {v(AKV+12*s+11)}, 0")
    S += PJ[:20]
    for n_, x in enumerate(PJ[20:]): S.append(x); S += VW_[6*n_:6*n_+6]
    for i in range(6): S(f"ds_write_b128 {v(ta+2)}, {v(AKV+4*i,4)} offset:{L_TB+320+16*i}")
    for s in range(2):
        O = AKV + 40 + 20 * s
        softmax_pair(S, AQ + 20 * s, O, TT, False)
        for i in range(5): S(f"ds_write_b128 {v(ta+1)}, {v(O+4*i,4)} offset:{L_TB+80*s+16*i}")
    S0 += sprinkle(S, Stream(w_dma(12) + w_dma(13)), KP)
    S = S0
    S.drain(vm=False); S("s_barrier")
    stamp(S)
    FR = AKV; KA = TT + 24
    for ks in range(4):
        for x in range(5):
            for r2 in range(2):
                ar, co = (kr + 1, 32 * x) if x < 2 else (kr, 32 * (x - 2))
                S(f"ds_read_b64_tr_b16 {v(FR+20*ks+4*x+2*r2,2)}, {v(ar)} offset:{L_TB+(32*ks+4*r2)*RS+co}")
    S += A2
    for ks in range(4):
        for a in range(2):
            for b in range(3):
                acc = v(KA + 12 * a + 4 * b, 4)
                S(f"v_mfma_f32_16x16x32_bf16 {acc}, {v(FR+20*ks+4*a,4)}, {v(FR+20*ks+8+4*b,4)}, {'0' if ks == 0 else acc}")
    AT = Stream()
    todo = [(a, r, b) for a in range(2) for r in range(4) for b in range(3)]
    for n, (a, r, b) in enumerate(todo):
        av = AV[(0 if a == 0 else (1 if r == 0 else 2)) + (3 if b == 2 else 0)]
        AT.I(f"buffer_atomic_add_f32 {v(KA+12*a+4*b+r)}, {v(av)}, {SWS}, s42 offen offset:{(16*a+r)*192+64*b}", tok="kvat" if n == len(todo) - 1 else None)
    if 'noat' in ABL: AT = Stream(AT[-1:])
    stamp(S)
    S += poll2_issue()
    stages = []
    for g in range(5):
        gg = 10 + g; mf = []
        for p8 in range(8):
            p = p8 & 3
            for T in range(3):
                sl_ = gg % 4 if gg < 14 else -1
                ar, off = (vQA + p, (sl_ + 1) * 20480) if sl_ < 2 else (vQB + p, (sl_ - 2) * 20480)
                off += 32 * T + (p8 >> 2) * 10240
                mf.append((AQ + 16 * T, f"{v(ar)} offset:{off}", f"{v(ar)} offset:{off+80}", 32 * g + 4 * p8, (vCS + 4 * T, g == 0 and p8 == 0) if p == 0 else None, g == 0 and p8 == 0, None))
        stages.append(dict(mf=mf, dma=Stream(), xs=None))
    sKF = 79
    S(f"s_lshl_b32 s{sKF}, s{sSL}, 7", f"s_add_u32 s{sKF}, s{sKF}, {WS_KVFLAG}", f"s_lshl_b32 s{sT0}, s{sMT}, 2", f"s_add_u32 s{sQB+22}, s{sKF}, s{sT0}")
    hb = {}
    ha = {0: Stream(w_dma(14) + vw_setup() + p2_pre() + xre_load() + AT), 2: poll2_check("q")}
    for s_ in stages: s_["pace"] = QPACE
    ha[2] += w2_stage("q", 0, 10)
    for k in range(4):
        j = max(3, (20 * k + 19) // 32 + 2)
        ha[j] = Stream(ha.get(j, Stream()) + w2_load(k))
    u = 88; oa = 21; A3 = Stream()
    A3(f"v_bfe_u32 {v(u)}, {v(vL)}, 3, 2", f"v_bfe_u32 {v(u+1)}, {v(vL)}, 2, 1", f"v_lshrrev_b32 {v(u+2)}, 5, {v(vL)}", f"v_cmp_eq_u32 s[98:99], {v(u+1)}, {v(u+2)}",
      f"v_and_b32 {v(u+2)}, 3, {v(vL)}", f"v_lshl_add_u32 {v(u+2)}, {v(u)}, 2, {v(u+2)}", f"v_mul_u32_u24 {v(u+1)}, 42, {v(u+1)}", f"v_add_u32 {v(u+2)}, {v(u+2)}, {v(u+1)}",
      f"v_mul_u32_u24 {v(u+2)}, 96, {v(u+2)}", f"v_mov_b32 {v(u+3)}, {L_ZERO}", f"v_cmp_gt_u32 s[50:51], 2, {v(u)}")
    A3(f"v_add_u32 {v(oa)}, {L_KB}, {v(u+2)}", f"v_add_u32 {v(oa+1)}, {L_KB+21*96}, {v(u+2)}", f"v_add_u32 {v(oa+2)}, {L_KB+16*96}, {v(u+2)}", f"v_add_u32 {v(oa+3)}, {L_KB+(21+16-8)*96}, {v(u+2)}",
      f"v_cndmask_b32 {v(oa+2)}, {v(u+3)}, {v(oa+2)}, s[50:51]", f"v_cndmask_b32 {v(oa+3)}, {v(oa+3)}, {v(u+3)}, s[50:51]")
    for k in range(4): A3(f"v_cndmask_b32 {v(oa+k)}, {v(u+3)}, {v(oa+k)}, s[98:99]")
    A3(f"s_lshl_b32 s48, s{sW}, 9", f"s_add_u32 s48, s48, {L_KB}", f"v_lshl_add_u32 {v(oa+4)}, {v(vL)}, 3, s48")
    core = Core(stages, 4, "q")
    head, slots, first = core.build(4, hb, ha)
    left = interleave(slots, A3, 1, start=first[3]); assert not left
    S += head
    for n, sl in enumerate(slots):
        S += sl; S += core.tails[n]
        if n + 1 in [first[i] for i in range(1, 5)]: stamp(S, 2)
    stamp(S)
    W2rest = Stream(w2_load(4) + w2_load(14) + w2_load(15) + w2_load(16))
    E = cs_finish(3, AQ, L_CS, "q", flag_store(sQB + 22, 0))
    project(E, AQ, PK, AKV)
    PQ = AQ
    softmax_pair(E, AKV, PQ, TT, True)
    E(f"v_mul_f32 {v(ta)}, {hex(0x358637bd)}, {v(TT+44)}")
    bgA = W2rest; bgA += w2_stage("q", 10, 16); bgA += p2_poll(0)
    bgA(f"buffer_load_dword {v(ta+7)}, {v(ta+6)}, {SWS}, s{sKF} offen sc1")
    S += sprinkle(E, bgA, QP1)
    W2rest = p2_L(0, SWS)
    W2rest += w2_stage("q", 16, 22)
    W2r2 = w2_stage("q", 22, 35)
    W2r3 = Stream(w2_load(5) + w2_load(6))
    poll_check(S, "p0q", vPV, 1, p2_poll_txt(0), pmask(0))
    poll_check(S, "kv", ta + 7, 1, f"buffer_load_dword {v(ta+7)}, {v(ta+6)}, {SWS}, s{sKF} offen sc1", 0xFFFF)
    stamp(S)
    KL = AKV + 48
    S(f"s_mul_i32 s{sT2}, s{sSL}, {4*4032}", f"s_add_u32 s{sT2}, s{sT2}, {WS_KV}", f"s_lshl_b32 s{sT0}, s{sW}, 10", f"s_add_u32 s{sT2}, s{sT2}, s{sT0}")
    for i in range(4):
        S(f"buffer_load_dwordx4 {v(KL+4*i,4)}, {v(vL16)}, {SWS}, s{sT2} offen sc1")
        if i < 3: S(f"s_add_u32 s{sT2}, s{sT2}, 4096")
    E = Stream(); softmax_pair(E, AKV + 20, PQ + 20, TT, True)
    S += sprinkle(E, W2rest, QP2)
    S(f"v_mul_f32 {v(ta+1)}, {hex(0x358637bd)}, {v(TT+44)}")
    for i in range(4):
        S(f"v_cvt_pk_bf16_f32 {v(KL+4*i)}, {v(KL+4*i)}, {v(KL+4*i+1)}", f"v_cvt_pk_bf16_f32 {v(KL+4*i+1)}, {v(KL+4*i+2)}, {v(KL+4*i+3)}",
          f"ds_write_b64 {v(oa+4)}, {v(KL+4*i,2)} offset:{2048*i}")
    S.drain(vm=False); S("s_barrier")
    W2r2 += p2_poll(1)
    S0 = S; S = Stream()
    FRO = AKV
    ON = TT + 8
    ON = vCS
    for k in range(4):
        for s in range(5): S(f"ds_read_b128 {v(FRO+20*k+4*s,4)}, {v(oa+k)} offset:{16*s}")
    for k in range(4):
        T = min(k, 2); slot = k & 1
        for s in range(5):
            acc = v(ON + 16 * T, 16)
            S(f"v_mfma_f32_32x32x16_bf16 {acc}, {v(FRO+20*k+4*s,4)}, {v(PQ+20*slot+4*s,4)}, {'0' if (s == 0 and k < 3) else acc}")
    S(f"v_add_f32 {v(ta)}, {v(ON+36)}, {v(ta)}", f"v_add_f32 {v(ta+1)}, {v(ON+44)}, {v(ta+1)}", f"v_rcp_f32 {v(ta+2)}, {v(ta)}", f"v_rcp_f32 {v(ta+3)}, {v(ta+1)}")
    OP = AKV
    for s in range(2):
        src = [ON + 16 * s + i for i in range(16)] + [ON + 32 + 8 * s + i for i in range(4)]
        sel = "op_sel_hi:[1,0]" if s == 0 else "op_sel:[0,1] op_sel_hi:[1,1]"
        for i in range(0, 20, 2): S(f"v_pk_mul_f32 {v(src[i],2)}, {v(src[i],2)}, {v(ta+2,2)} {sel}")
        for i in range(10): S(f"v_cvt_pk_bf16_f32 {v(OP+10*s+i)}, {v(src[2*i])}, {v(src[2*i+1])}")
    S0 += sprinkle(S, W2r2, QP3); S = S0
    S(f"s_mul_i32 s{sT0}, s{sSL}, 5120", f"s_add_u32 s{sT0}, s{sT0}, s{sAPB}", f"s_add_u32 s{sT0}, s{sT0}, {96*1024}", f"s_add_u32 s{sT1}, s{sT0}, 4096")
    for i in range(4): S(f"buffer_store_dwordx4 {v(OP+4*i,4)}, {v(vL16)}, {SWS}, s{sT0} offen offset:{1024*i} sc1")
    S.I(f"buffer_store_dwordx4 {v(OP+16,4)}, {v(vL16)}, {SWS}, s{sT1} offen sc1", tok="ost")
    S(f"s_lshl_b32 s{sKF}, s{sMT}, 9", f"s_lshl_b32 s{sT0}, s{sSL}, 2", f"s_add_u32 s{sKF}, s{sKF}, s{sT0}")
    S += phase2("q", W2r3, "ost", flag_store(sKF, 384), False)
    return S

def fin2(stream, st, out):
    cur = Stream()
    for x in stream:
        if x.kind == "fork":
            finalize(cur, st, out); cur = Stream()
            o2 = [x.label + ":"]; finalize(x.stream, st.copy(), o2); slow_paths.append(o2)
        elif x.kind == "reset":
            finalize(cur, st, out); cur = Stream()
            st.pend = {}; st.vm_done = st.vm_issued; st.lg_done = st.lg_issued; st.hist = []
        else: cur.append(x)
    finalize(cur, st, out)

def main(outpath):
    hdr = open("parallel_sum__linear_kernel_hedgehog__glu_gated_glu__prompt.s.ref").read().split("; Override launch")[0]
    out = []
    st = State()
    finalize(prologue(), st, out)
    n0 = nstamp[0]
    fin2(glu_path(), st.copy(), out)
    nstamp[0] = n0
    st2 = st.copy(); st2.hist = []
    out.append("    s_nop 7")
    fin2(qkv_path(), st2, out)
    for L in slow_paths: out += L
    out.append("L_end:")
    txt = hdr + "; @launch grid=(256,1,1) block=(256,1,1) lds=163840\n" + f""".amdgcn_target "amdgcn-amd-amdhsa--gfx950"
.text
.globl {KN}
.p2align 8
.type {KN},@function
{KN}:
""" + "\n".join(out) + f"""
    s_endpgm
.section .rodata,"a"
.p2align 6
.amdhsa_kernel {KN}
  .amdhsa_next_free_vgpr 512
  .amdhsa_next_free_sgpr 102
  .amdhsa_accum_offset 256
  .amdhsa_group_segment_fixed_size 0
  .amdhsa_kernarg_size 88
  .amdhsa_user_sgpr_count 2
  .amdhsa_user_sgpr_kernarg_segment_ptr 1
  .amdhsa_system_sgpr_workgroup_id_x 1
.end_amdhsa_kernel
"""
    open(outpath, "w").write(txt)
    print("lines", len(out))

if __name__ == "__main__":
    for a in sys.argv:
        if a.startswith("--abl="): ABL.update(a[6:].split(","))
    if "--c1" in sys.argv: STGRP = 1
    if "--c2" in sys.argv: STGRP = 2
    if "--c3" in sys.argv: STGRP = 3
    for a in sys.argv:
        if a.startswith("--set="):
            k_, v_ = a[6:].split("="); globals()[k_] = eval(v_)
    if "--stamps" in sys.argv: STAMPS = True
    if "--cyc" in sys.argv: STAMPS = True; STAMPOP = "s_memtime"
    main([a for a in sys.argv[1:] if not a.startswith("--")][0])
```

```python
import sys
from emit import Stream, State, Ins, finalize, interleave, sprinkle, vm_groups

KN = "parallel_sum__linear_kernel_hedgehog__glu_gated_glu__prompt_kernel"
WS_HFLAG = 0
WS_KVFLAG = 8192
WS_PFLAG = 9216
WS_KV = 12288
WS_STAT = 262144
WS_STAMP = 524288
WS_AP = 1 << 20
WS_WP = 12 << 20
WS_SIZE = 16 << 20
HUGE = 0x7F000000
L_XS = 0
L_TB = 0; RS = 528
L_WR = 67584
L_MISC = 149504
L_PACK = 0
LG_WR = 65536
LG_MISC = 147456
L_CSF = LG_MISC + 12288
L_PHI = L_MISC + 4096
L_ZERO = L_MISC
L_CS = L_MISC + 10240
L_KB = L_MISC + 2048
SX, SW, SWS, SDBG, SOUT, SAUX = "s[4:7]", "s[8:11]", "s[12:15]", "s[16:19]", "s[20:23]", "s[24:27]"
sW, sMT, sSL, sRT, sNT, sROT = 28, 29, 30, 31, 52, 53
sXB, sWB, sKX, sKW, sT0, sT1, sT2, sT3 = 54, 55, 56, 57, 58, 59, 60, 61
sXM0, sWM0, sAPB, sONE, sWPB, sACB, sWP4, sWP5 = 62, 63, 64, 65, 66, 67, 68, 69
sST = 70
sSPIN = 74
sPKS, sPKD = 75, 76
sPKF = 101
sSTAMP = 80
vL, vL16, vXO, vWO, vQO = 1, 2, 3, 5, 10
vXA, vWA, vWB_, vQA, vQB = 16, 20, 24, 28, 32
vSEL, vMB, vC, vSD, vST = 36, 40, 44, 45, 46
vCS = 48
vT = 68
vONE = 115
vFL = 15
NF, DPF = 10, 7
aWF = 160

STAMPS = False
GROT = 1
PREF = 0
CODEPF = 1
T2AT = 0
T3AT = 11
XRAT = 11
H0AT = 22
QS1 = 0
WPT = 0
WPD = 0
QTAT = 0
QWPT = 0
XRE = 1
PACE = 1.33
QPACE = 2
QP1 = 80
QP2 = 55
QP3 = 80
E3P = 40
E3CUT = 4
KP = 250
CAPA = 5
CAPB = 8
ROLE = ['g']
STGRP = 0
ABL = set()
STAMPOP = 's_memrealtime'
nstamp = [0]
def stamp(S, grp=0):
    if STAMPS and (grp == STGRP or grp < 0 or (grp == 0 and STGRP == 2 and ROLE[0] == "q")):
        i = nstamp[0]; nstamp[0] += 1
        S(f"{STAMPOP} s[94:95]")
        S.drain(vm=False)
        S(f"v_writelane_b32 v0, s94, {i}")

def v(a, n=1): return f"v{a}" if n == 1 else f"v[{a}:{a+n-1}]"
def a_(a, n=1): return f"a{a}" if n == 1 else f"a[{a}:{a+n-1}]"

slow_paths = []
def cmp_mask(vreg, n, mask):
    lo, hi = mask & 0xFFFFFFFF, mask >> 32
    L = []
    if n == 2: L.append(f"v_and_b32 {v(vreg)}, {v(vreg)}, {v(vreg+1)}")
    L.append(f"v_cmp_ne_u32 vcc, 1, {v(vreg)}")
    if hi:
        L += [f"s_and_b32 s{sT0}, vcc_lo, {hex(lo)}", f"s_and_b32 s{sT1}, vcc_hi, {hex(hi)}", f"s_or_b32 s{sT0}, s{sT0}, s{sT1}"]
    else:
        L += [f"s_and_b32 s{sT0}, vcc_lo, {hex(lo)}"]
    return L
def spin_lines(name, vreg, n, load, mask, sleep=6):
    C = cmp_mask(vreg, n, mask)
    k = 2 if n == 2 else 1
    return [f"    s_mov_b32 s{sSPIN}, 0x8000", f"L_spin_{name}:", f"    s_sleep {sleep}", "    " + load, "    s_waitcnt vmcnt(0)",
            f"    s_sub_u32 s{sSPIN}, s{sSPIN}, 1", f"    s_cbranch_scc1 L_out_{name}"] + ["    " + c for c in C[:k]] + ["    s_nop 1"] + ["    " + c for c in C[k:]] + \
           [f"    s_cbranch_scc1 L_spin_{name}", f"L_out_{name}:"]
def poll_check(S, name, vreg, n, load, mask):
    S(*cmp_mask(vreg, n, mask))
    S(f"s_cbranch_scc1 L_slow_{name}", f"L_back_{name}:")
    slow_paths.append([f"L_slow_{name}:"] + spin_lines(name, vreg, n, load, mask) + [f"    s_branch L_back_{name}"])

def divmod_v(S, q, r, x, d, tmp_s=sT0):
    m = (1 << 16) // d + 1
    S(f"v_mul_u32_u24 {v(q)}, {m}, {v(x)}", f"v_lshrrev_b32 {v(q)}, 16, {v(q)}",
      f"v_mul_u32_u24 {v(r)}, {d}, {v(q)}", f"v_sub_u32 {v(r)}, {v(x)}, {v(r)}")

def prologue():
    S = Stream()
    S("s_cmp_ge_u32 s2, 256", "s_cbranch_scc1 L_end")
    S("s_load_dwordx16 s[32:47], s[0:1], 0", "s_load_dwordx4 s[48:51], s[0:1], 64", "s_load_dwordx2 s[12:13], s[0:1], 80")
    S(f"v_lshrrev_b32 {v(vT)}, 6, v0", f"v_and_b32 {v(vL)}, 63, v0", f"v_readfirstlane_b32 s{sW}, {v(vT)}")
    S(f"v_lshlrev_b32 {v(vL16)}, 4, {v(vL)}")
    S("s_and_b32 s3, s2, 7", f"s_lshr_b32 s{sT0}, s2, 3")
    S(f"s_and_b32 s{sMT}, s3, 1", f"s_lshl_b32 s{sMT}, s{sMT}, 3", f"s_and_b32 s{sT1}, s{sT0}, 7", f"s_add_u32 s{sMT}, s{sMT}, s{sT1}")
    S(f"s_lshr_b32 s{sT1}, s{sT0}, 3")
    S(f"s_and_b32 s{sSL}, s3, 6", f"s_and_b32 s{sT2}, s{sT1}, 1", f"s_add_u32 s{sSL}, s{sSL}, s{sT2}")
    S(f"s_lshl_b32 s{sRT}, s3, 2", f"s_and_b32 s{sT2}, s{sT0}, 3", f"s_add_u32 s{sRT}, s{sRT}, s{sT2}", f"s_lshr_b32 s{sNT}, s{sT0}, 2")
    S(f"s_lshr_b32 s{sT3}, s{sT1}, 1")
    S(f"s_add_u32 s{sROT}, s{sMT}, s{sSL}", f"s_mul_i32 s{sT2}, s{sROT}, 52", f"s_lshr_b32 s{sT2}, s{sT2}, 8", f"s_mul_i32 s{sT2}, s{sT2}, 5",
      f"s_sub_u32 s{sROT}, s{sROT}, s{sT2}", f"s_lshl_b32 s{sROT}, s{sROT}, 1")
    if PREF: S(f"s_mov_b32 s{sROT}, 0")
    if GROT:
        S(f"s_and_b32 s{sT2}, s{sSL}, 1", f"s_mul_i32 s{sT2}, s{sT2}, 5", f"s_and_b32 s{sT1}, s{sMT}, 7", f"s_add_u32 s{sT2}, s{sT2}, s{sT1}", f"s_sub_u32 s{sT1}, s{sT2}, 10",
          f"s_cmp_ge_u32 s{sT2}, 10", f"s_cselect_b32 s{sT2}, s{sT1}, s{sT2}", f"s_cmp_eq_u32 s{sT3}, 0", f"s_cselect_b32 s{sROT}, s{sT2}, s{sROT}")
    S(f"v_mov_b32 {v(vFL)}, {hex(HUGE)}", "v_cmp_eq_u32 vcc, 0, v0", f"v_cndmask_b32 {v(vFL)}, {v(vFL)}, 0, vcc")
    S(f"s_mov_b32 s{sONE}, 1", "v_accvgpr_write_b32 a255, 1")
    t = vT
    S(f"v_lshrrev_b32 {v(t)}, 3, {v(vL)}", f"v_mul_u32_u24 {v(t)}, 1280, {v(t)}",
      f"v_lshrrev_b32 {v(t+1)}, 4, {v(vL)}", f"v_and_b32 {v(t+2)}, 7, {v(vL)}", f"v_xor_b32 {v(t+1)}, {v(t+1)}, {v(t+2)}",
      f"v_lshl_add_u32 {v(vXO)}, {v(t+1)}, 4, {v(t)}", f"v_xor_b32 {v(t+1)}, 4, {v(t+1)}", f"v_lshl_add_u32 {v(vXO+1)}, {v(t+1)}, 4, {v(t)}",
      f"v_add_u32 {v(XO[1])}, 9216, {v(XO[1])}", f"v_add_u32 {v(XO[2])}, {2*9216}, {v(XO[0])}", f"v_add_u32 {v(XO[3])}, {2*9216}, {v(XO[1])}")
    S("s_mov_b32 s4, s32", "s_mov_b32 s5, s33", "s_mov_b32 s6, 2621440", "s_mov_b32 s7, 0x20000")
    S(f"s_mov_b32 s14, {WS_SIZE}", "s_mov_b32 s15, 0x20000")
    S("s_mov_b32 s16, s50", "s_mov_b32 s17, s51", "s_mov_b32 s18, 256", "s_mov_b32 s19, 0x20000")
    S("s_mov_b32 s20, s48", "s_mov_b32 s21, s49", "s_mov_b32 s22, 2621440", "s_mov_b32 s23, 0x20000")
    S("s_mov_b32 s11, 0x20000", "s_mov_b32 s27, 0x20000")
    S(f"s_lshl_b32 s{sXB}, s{sMT}, 2", f"s_add_u32 s{sXB}, s{sXB}, s{sW}", f"s_mul_i32 s{sAPB}, s{sXB}, {136*1024}", f"s_add_u32 s{sAPB}, s{sAPB}, {WS_AP}",
      f"s_mul_i32 s{sXB}, s{sXB}, {32*1280}", f"s_lshl_b32 s{sXM0}, s{sW}, 14")
    S(f"s_lshl_b32 s{sKX}, s{sROT}, 7", f"s_add_u32 s{sKX}, s{sKX}, s{sXB}", f"s_add_u32 s90, s{sXB}, 1280")
    stamp(S, -1)
    S += x_dma(0)
    S(f"s_cmp_eq_u32 s{sT3}, 1", "s_cbranch_scc1 L_qkv")
    return S

XO = [3, 4, 112, 113]
def x_dma(i):
    S = Stream()
    S(f"s_add_u32 m0, s{sXM0}, {L_XS + (i % 4) * 4096}")
    for j in range(4):
        S.I(f"buffer_load_dwordx4 {v(XO[j])}, {SX}, s{sKX} offen offset:{j*1024} lds", tok=f"x{i}" if j == 3 else None)
    if i < 9: S(f"s_add_u32 s{sKX}, s{sKX}, 128", f"s_cmp_eq_u32 s{sKX}, s90", f"s_cselect_b32 s{sKX}, s{sXB}, s{sKX}")
    return S
sKT = 80
def ktable(S, mult, base_s):
    S(f"s_mul_i32 s{sKT}, s{sROT}, {mult}", f"s_add_u32 s{sKT}, s{sKT}, s{base_s}", f"s_add_u32 s91, s{base_s}, {10*mult}")
def ktable_rest(S, mult, base_s):
    for i in range(1, 10):
        S(f"s_add_u32 s{sKT+i}, s{sKT+i-1}, {mult}")
        if i % 2 == 0 or ROLE[0] == 'g': S(f"s_cmp_eq_u32 s{sKT+i}, s91", f"s_cselect_b32 s{sKT+i}, s{base_s}, s{sKT+i}")

def x_reads(i):
    S = Stream()
    for p in range(4):
        S.I(f"ds_read_b128 {a_(16*i+4*p,4)}, {v(vXA+p)} offset:{(i % 4)*4096}", tok=f"xr{i}" if p == 3 else None)
    return S

def code_pf(tag):
    S = Stream(); t = vT
    if CODEPF:
        S("s_getpc_b64 s[48:49]", f"L_pc{tag}:", f"s_sub_u32 s48, s48, (L_pc{tag}-{KN})", "s_subb_u32 s49, s49, 0")
        S("s_lshr_b32 s50, s2, 3", "s_lshl_b32 s50, s50, 2", f"s_add_u32 s50, s50, s{sW}", "s_lshl_b32 s50, s50, 10",
          f"v_and_b32 {v(t)}, 7, {v(vL)}", f"v_lshl_add_u32 {v(t)}, {v(t)}, 7, s50", f"v_min_u32 {v(t)}, (L_end-{KN}), {v(t)}", f"global_load_dword a254, {v(t)}, s[48:49]")
    return S
def xaddr_setup(S, wave_xor):
    t = vT
    S(f"v_and_b32 {v(t)}, 31, {v(vL)}", f"v_bfe_u32 {v(t+1)}, {v(vL)}, 1, 3", f"v_lshrrev_b32 {v(t+2)}, 5, {v(vL)}", f"v_xor_b32 {v(t+1)}, {v(t+1)}, {v(t+2)}")
    if wave_xor:
        S(f"s_lshl_b32 s{sT0}, s{sW}, 1", f"v_xor_b32 {v(t+1)}, s{sT0}, {v(t+1)}")
    S(f"v_lshlrev_b32 {v(t)}, 7, {v(t)}", f"v_add_u32 {v(t)}, s{sXM0}, {v(t)}")
    for p in range(4):
        S(f"v_xor_b32 {v(t+2)}, {2*p}, {v(t+1)}", f"v_lshl_add_u32 {v(vXA+p)}, {v(t+2)}, 4, {v(t)}")

def sel_setup(S):
    t = vT
    S(f"v_lshrrev_b32 {v(t)}, 4, {v(vL)}", f"v_xor_b32 {v(t)}, {v(t)}, {v(vL)}", f"v_and_b32 {v(t)}, 1, {v(t)}", f"v_cmp_eq_u32 vcc, 0, {v(t)}",
      f"v_mov_b32 {v(t+1)}, 0x3f803f80")
    for i in range(4): S(f"v_cndmask_b32 {v(vSEL+i)}, 0, {v(t+1)}, vcc")
    S("s_mov_b32 s96, 0x0000ffff", "s_mov_b32 s97, 0x0000ffff")

vPK = vT + 40
def pack_vec(S):
    t = vT
    S(f"v_lshrrev_b32 {v(t)}, 3, {v(vL)}", f"v_mul_u32_u24 {v(t)}, 1280, {v(t)}", f"v_and_b32 {v(t+1)}, 7, {v(vL)}", f"v_lshl_add_u32 {v(vPK)}, {v(t+1)}, 4, {v(t)}")
    S(f"v_lshrrev_b32 {v(t)}, 4, {v(vL)}", f"v_bfe_u32 {v(t+1)}, {v(vL)}, 2, 2", f"v_lshl_add_u32 {v(t)}, {v(t)}, 3, {v(t+1)}", f"v_lshlrev_b32 {v(t)}, 7, {v(t)}",
      f"v_and_b32 {v(t+1)}, 3, {v(vL)}", f"v_lshl_add_u32 {v(t)}, {v(t+1)}, 3, {v(t)}", f"s_lshl_b32 s{sT0}, s{sW}, 12", f"s_add_u32 s{sT0}, s{sT0}, {LG_MISC}", f"v_add_u32 {v(vPK+1)}, s{sT0}, {v(t)}")
PKV = 192
def pack_pre(u, unit_s):
    S = Stream(); A, B, C = 48, 49, 50; R = PKV + 8 * u
    S(f"s_mul_i32 s51, s{unit_s}, 6554", "s_lshr_b32 s51, s51, 16", "s_mul_i32 s43, s51, 10", f"s_sub_u32 s43, s{unit_s}, s43")
    if u == 0: S("s_cmp_lt_u32 s51, 48", "s_cselect_b32 s40, s46, s38", "s_cselect_b32 s41, s47, s39", "s_mov_b32 s42, 819200", "s_cselect_b32 s42, 1966080, s42")
    for j in range(4):
        if j % 2 == 0:
            S(f"s_lshl_b32 s{C}, s51, 1")
            if j: S(f"s_add_u32 s{C}, s{C}, 1")
            S(f"s_bfe_u32 s{A}, s{C}, 0x30002", f"s_mul_i32 s{A}, s{A}, 3", f"s_lshr_b32 s3, s{C}, 5", f"s_add_u32 s{A}, s{A}, s3", f"s_lshl_b32 s{A}, s{A}, 2", f"s_and_b32 s3, s{C}, 3", f"s_add_u32 s{A}, s{A}, s3",
              f"s_lshl_b32 s{A}, s{A}, 4", f"s_sub_u32 s{C}, s{C}, 96", f"s_max_i32 s{C}, s{C}, 0", f"s_mul_i32 s3, s{C}, 52", "s_lshr_b32 s3, s3, 8", "s_mul_i32 s3, s3, 40",
              f"s_lshl_b32 s{C}, s{C}, 3", f"s_add_u32 s{C}, s{C}, s3", "s_cmp_lt_u32 s51, 48", f"s_cselect_b32 s{A}, s{A}, s{C}", f"s_cselect_b32 s{B}, {8*1280}, s{B}",
              f"s_mov_b32 s3, {40*1280}", f"s_cselect_b32 s{B}, s{B}, s3", f"s_mul_i32 s{A}, s{A}, 1280", "s_lshl_b32 s3, s43, 7", f"s_add_u32 s{A}, s{A}, s3")
        else: S(f"s_add_u32 s{A}, s{A}, s{B}")
        S(f"s_sub_u32 s3, s{A}, {1024*j}")
        if u: S(f"s_cmp_lt_u32 s{unit_s}, 680", f"s_cselect_b32 s3, s3, {hex(HUGE)}")
        S(f"v_add_u32 {v(R+j)}, s3, {v(vPK)}")
    for t in range(4):
        S(f"s_lshl_b32 s{A}, s43, 2")
        if t: S(f"s_add_u32 s{A}, s{A}, {t}")
        S(f"s_mul_i32 s{B}, s{A}, 52", f"s_lshr_b32 s{B}, s{B}, 8", f"s_mul_i32 s{B}, s{B}, 335", f"s_add_u32 s{A}, s{A}, s{B}", f"s_mul_i32 s{B}, s51, 5", f"s_add_u32 s{A}, s{A}, s{B}",
          f"s_lshl_b32 s{A}, s{A}, 10", f"s_add_u32 s{A}, s{A}, {WS_WP}")
        if u: S(f"s_cmp_lt_u32 s{unit_s}, 680", f"s_cselect_b32 s{A}, s{A}, {hex(HUGE)}")
        S(f"v_add_u32 {v(R+4+t)}, s{A}, {v(vL16)}")
    return S
def pack_dma(u, unit_s=None):
    S = Stream(); R = PKV + 8 * u
    if u == 0: S("s_mov_b32 s24, s40", "s_mov_b32 s25, s41", "s_mov_b32 s26, s42")
    else: S("s_mov_b32 s24, s38", "s_mov_b32 s25, s39", "s_mov_b32 s26, 819200")
    S(f"s_add_u32 m0, s{sWM0}, {LG_MISC}")
    for j in range(4): S.I(f"buffer_load_dwordx4 {v(R+j)}, {SAUX}, 0 offen offset:{1024*j} lds", tok=f"packdma{u}" if j == 3 else None)
    if u: S("s_mov_b32 s24, s12", "s_mov_b32 s25, s13")
    return S
def pack_finish(u):
    S = Stream(); d = vT + 20; R = PKV + 8 * u
    S.wait(f"packdma{u}")
    for t in range(4):
        for r2 in range(2): S(f"ds_read_b64_tr_b16 {v(d+4*t+2*r2,2)}, {v(vPK+1)} offset:{r2*512+32*t}")
    for t in range(4): S.I(f"buffer_store_dwordx4 {v(d+4*t,4)}, {v(R+4+t)}, {SWS}, 0 offen sc1", tok=f"chores{u}" if t == 3 else None)
    return S

def poll1_issue():
    S = Stream()
    S(f"v_and_b32 {v(vT+18)}, 15, {v(vL)}", f"v_lshlrev_b32 {v(vT+18)}, 2, {v(vT+18)}", f"buffer_load_dword {v(vT+16)}, {v(vT+18)}, {SDBG}, 0 offen sc1")
    return S
def poll1_check(tag):
    S = Stream()
    poll_check(S, "i" + tag, vT+16, 1, f"buffer_load_dword {v(vT+16)}, {v(vT+18)}, {SDBG}, 0 offen sc1", 0xFFFF)
    return S
def poll2_issue():
    S = Stream()
    S(f"v_lshrrev_b32 {v(vT+18)}, 2, {v(vL)}", f"v_lshlrev_b32 {v(vT+18)}, 7, {v(vT+18)}", f"v_and_b32 {v(vT+16)}, 3, {v(vL)}", f"v_lshl_add_u32 {v(vT+18)}, {v(vT+16)}, 3, {v(vT+18)}",
      f"s_mov_b32 s{sPKF}, {WS_PFLAG}",
      f"buffer_load_dwordx2 {v(vT+16,2)}, {v(vT+18)}, {SWS}, s{sPKF} offen sc1")
    return S
def poll2_check(tag):
    S = Stream()
    poll_check(S, "k" + tag, vT+16, 2, f"buffer_load_dwordx2 {v(vT+16,2)}, {v(vT+18)}, {SWS}, s{sPKF} offen sc1", (1 << 64) - 1)
    return S

vRS, vSQ = 116, 120
def stat_mfma(which, xr, zero):
    if which == 0: return f"v_mfma_f32_16x16x32_bf16 {v(vRS,4)}, {v(vSEL,4)}, {a_(xr,4)}, {'0' if zero else v(vRS,4)}"
    h = which - 1
    return f"v_mfma_f32_4x4x4_16b_bf16 {v(vSQ+4*h,4)}, {a_(xr+2*h,2)}, {a_(xr+2*h,2)}, {'0' if zero else v(vSQ+4*h,4)}"

def split3(S, d, x, t, side):
    S(f"v_cvt_pk_bf16_f32 {v(t)}, {v(x)}, {v(x)}", f"v_lshlrev_b32 {v(t+2)}, 16, {v(t)}", f"v_sub_f32 {v(t+1)}, {v(x)}, {v(t+2)}")
    if side == "A":
        S(f"v_mov_b32 {v(d)}, {v(t)}", f"v_cvt_pk_bf16_f32 {v(d+1)}, {v(x)}, {v(t+1)}", f"v_and_b32 {v(t+2)}, 0xffff0000, {v(d+1)}",
          f"v_sub_f32 {v(t+2)}, {v(t+1)}, {v(t+2)}", f"v_cvt_pk_bf16_f32 {v(d+2)}, {v(t+1)}, {v(t+2)}", f"v_mov_b32 {v(d+3)}, 0")
    else:
        S(f"v_cvt_pk_bf16_f32 {v(d)}, {v(x)}, {v(t+1)}", f"v_and_b32 {v(t+2)}, 0xffff0000, {v(d)}", f"v_sub_f32 {v(t+2)}, {v(t+1)}, {v(t+2)}",
          f"v_cvt_pk_bf16_f32 {v(d+1)}, {v(t+2)}, {v(x)}", f"v_cvt_pk_bf16_f32 {v(d+2)}, {v(t+1)}, {v(x)}", f"v_mov_b32 {v(d+3)}, 0")

def stats_consume(cmul):
    S = Stream(); t = vT + 12
    S(f"v_cndmask_b32 {v(vST)}, {v(vRS+1)}, {v(vRS)}, s[96:97]")
    for i in range(4): S(f"v_add_f32 {v(vSQ+i)}, {v(vSQ+i)}, {v(vSQ+4+i)}")
    S("s_mov_b32 s98, 0xaaaaaaaa", "s_mov_b32 s99, 0xaaaaaaaa")
    S(f"v_cndmask_b32 {v(vSQ)}, {v(vSQ)}, {v(vSQ+1)}, s[98:99]", f"v_cndmask_b32 {v(vSQ+2)}, {v(vSQ+2)}, {v(vSQ+3)}, s[98:99]")
    S("s_mov_b32 s98, 0xcccccccc", "s_mov_b32 s99, 0xcccccccc")
    S(f"v_cndmask_b32 {v(vSQ)}, {v(vSQ)}, {v(vSQ+2)}, s[98:99]", f"v_mul_f32 {v(vST)}, {hex(0x3acccccd)}, {v(vST)}", f"v_mov_b32 {v(vSQ+1)}, {v(vSQ)}")
    S(f"v_permlane32_swap_b32 {v(vSQ)}, {v(vSQ+1)}", f"v_add_f32 {v(vSQ)}, {v(vSQ)}, {v(vSQ+1)}", f"v_mul_f32 {v(vSQ)}, {hex(0x3acccccd)}, {v(vSQ)}")
    S(f"v_fma_f32 {v(vSQ)}, -{v(vST)}, {v(vST)}, {v(vSQ)}", f"v_max_f32 {v(vSQ)}, 0, {v(vSQ)}", f"v_add_f32 {v(vSQ)}, {hex(0x3727c5ac)}, {v(vSQ)}")
    S(f"v_rsq_f32 {v(vST+1)}, {v(vSQ)}", f"v_sqrt_f32 {v(vSD)}, {v(vSQ)}")
    S("s_mov_b32 s98, -1", "s_mov_b32 s99, 0", f"v_sub_f32 {v(t)}, 0, {v(vST)}", f"v_cndmask_b32 {v(t)}, 0, {v(t)}, s[98:99]")
    split3(S, vMB, t, t+1, "B")
    S(f"v_mul_f32 {v(vC)}, {cmul}, {v(vST+1)}")
    return S

class Core:
    def __init__(self, stages, R, tokbase):
        self.stages = stages; self.R = R; self.tb = tokbase
    def build(self, pre_issued, hooks_bar=None, hooks_after=None, first_wait=()):
        hooks_bar = hooks_bar or {}; hooks_after = hooks_after or {}
        st = self.stages
        seq = [(i, m) for i, s in enumerate(st) for m in s["mf"]]
        first = {}
        for n, (i, m) in enumerate(seq): first.setdefault(i, n)
        N = len(seq)
        def reads(n):
            (acc, r0, r1, xr, cs, zero, ex) = seq[n][1]
            f = aWF + 4 * (n % NF)
            return [Ins(f"ds_read_b64_tr_b16 {a_(f,2)}, {r0}"), Ins(f"ds_read_b64_tr_b16 {a_(f+2,2)}, {r1}", tok=f"fr{self.tb}{n}")]
        def open_stage(S, i):
            toks = [f"{self.tb}{i}"] + list(hooks_bar.get(i, []))
            if st[i]["xs"] is not None: toks.append(f"x{st[i]['xs']}")
            if 'nowait' not in ABL: S.wait(*toks)
            if 'nobar' not in ABL: S("s_barrier")
        head = Stream()
        open_stage(head, 0)
        if st[0]["xs"] is not None: head += x_reads(st[0]["xs"])
        for n in range(DPF): head += reads(n)
        slots = [Stream() for _ in range(N)]
        tails = [Stream() for _ in range(N)]
        extras = [[] for _ in range(N)]
        def spread(n0, stream, dscost=0.5, pace=1):
            grp = Stream(); cnt = 0; n = n0; last = n0
            for ins in stream:
                grp.append(ins)
                vm = ins.kind in ("vm_dma", "vm_ld", "vm_st")
                if vm or ins.kind == "mfma": cnt += 1
                elif ins.kind in ("ds_rd", "ds_wr"): cnt += dscost
                if cnt >= 1:
                    extras[min(int(n), N-1)].append(grp); grp = Stream(); cnt = 0; last = n; n += (pace if vm else 1)
            if grp: extras[min(int(last), N-1)].append(grp)
            return n
        qptr = [0]
        if 0 in hooks_after: qptr[0] = spread(0, hooks_after[0], pace=st[0].get("pace", 1))
        for n in range(N):
            i, (acc, r0, r1, xr, cs, zero, ex) = seq[n]
            S = slots[n]; f = aWF + 4 * (n % NF)
            if PAIRWAIT and n % 2 == 0 and n + 1 < N: S.wait(f"fr{self.tb}{n+1}")
            S(f"v_mfma_f32_32x32x16_bf16 {v(acc,16)}, {a_(f,4)}, {a_(xr,4)}, {'0' if zero else v(acc,16)}")
            if cs is not None and 'nocs' not in ABL:
                tails[n](f"v_mfma_f32_16x16x32_bf16 {v(cs[0],4)}, {v(vSEL,4)}, {a_(f,4)}, {'0' if cs[1] else v(cs[0],4)}")
            if ex and 'nostat' not in ABL: tails[n](ex)
            m = n + DPF
            if m < N:
                j = seq[m][0]
                if first[j] == m:
                    open_stage(S, j)
                    k = n
                    if st[j]["xs"] is not None: k = spread(k, x_reads(st[j]["xs"]), dscost=1) - 3
                    k = max(k, qptr[0])
                    d = Stream()
                    if st[j]["xs"] is not None and st[j]["xs"] + 3 < 10 and st[j]["xs"] >= 1:
                        d.wait(f"xr{st[j]['xs']-1}"); d += x_dma(st[j]["xs"] + 3)
                    w = j - 2 + self.R
                    if w >= pre_issued and w < len(st): d += st[w]["dma"]
                    if j in hooks_after: d += hooks_after[j]
                    qptr[0] = spread(k, d, pace=st[j].get("pace", 1))
                S += reads(m)
            for g in extras[n]: S += g
        self.tails = tails
        return head, slots, first

ST0 = 7
def w2_slot(k):
    if ST0 <= k < ST0 + 7: k -= 7
    if k < 5: return ("a", 20 * k)
    if k >= 14: return ("a", 20 * (k - 9))
    return ("a", 200 + 20 * (k - 5)) if ROLE[0] == "g" else ("v", 208 + 20 * (k - 5))
def acc2(m4, tt):
    if ROLE[0] == "q": return v(128 + 20 * m4 + 4 * tt, 4)
    return a_(160 + 20 * (m4 - 2) + 4 * tt, 4) if m4 >= 2 else v(128 + 20 * m4 + 4 * tt, 4)
def act_base(i):
    if i & 1: return ("v", 64 if i == 1 else 48)
    return ("v", 192) if ROLE[0] == "g" else ("a", 160)
def w2_lds_addr(role, f):
    if role == "g":
        if f < 16: return (16384, ((f + 3) % 16) * 1024)
        if f < 19: return (1024, LG_MISC + (f - 16) * 4096)
        return (4096, LG_WR + ((f - 19) // 4) * 16384 + ((f - 19) % 4) * 1024)
    return (10240, 3072 + f * 1024) if f < 10 else (25600, 45056 + (f - 10) * 1024)
def w2_off(k, t):
    part = min(k // 4, 3); return sW2P + part, ((k - 4 * part) * 5 + t) * 1024
def w2_stage(role, f0, f1):
    S = Stream(); run = None
    for f in range(f0, f1):
        ws_, base = w2_lds_addr(role, f); sp, off = w2_off(ST0 + f // 5, f % 5)
        imm = off & 4095
        if run != (ws_, base - imm, sp, off >> 12) :
            run = (ws_, base - imm, sp, off >> 12)
            assert base >= imm
            S(f"s_add_u32 m0, s{sWS[ws_]}, {base - imm}")
        S.I(f"buffer_load_dwordx4 {v(VW[off >> 12])}, {SWS}, s{sp} offen offset:{imm} sc1 lds", tok=f"w2s{f}")
    return S
vLA = 43
def w2_lds_regs(role):
    keys = []
    for f in range(35):
        ws_, base = w2_lds_addr(role, f); k = (ws_, base >> 16)
        if k not in keys: keys.append(k)
    return keys
def w2_lds_setup(role):
    S = Stream()
    for n, (ws_, hi) in enumerate(w2_lds_regs(role)):
        S(f"s_add_u32 s47, s{sWS[ws_]}, {hi << 16}", f"v_add_u32 {v(vLA+n)}, s47, {v(vL16)}")
    return S
def w2_copy(role, k):
    S = Stream(); b = w2_slot(k)
    for t in range(5):
        f = (k - ST0) * 5 + t; ws_, base = w2_lds_addr(role, f)
        r = vLA + w2_lds_regs(role).index((ws_, base >> 16))
        S.I(f"ds_read_b128 {rg(b,4*t,4)}, {v(r)} offset:{base & 0xFFFF}", waits=[f"w2s{f}"])
    return S
def rg(b, off, n): return (a_ if b[0] == "a" else v)(b[1] + off, n)

P2_STEPS = [("h", 0, i) for i in range(4)] + [("h", 1, i) for i in range(4)] + [("h", 2, i) for i in range(4)] + [("o", 0, i) for i in range(5)]
PARTS = [(0, 4, 0, 192), (4, 4, 1, 64), (8, 4, 2, 192), (12, 5, 3, 48)]
sW2P, sACP = 66, 36
sWS = {16384: sXM0, 4096: sWM0, 1024: 92, 10240: 92, 25600: 93}
VW = [2, 16, 17, 18, 19, 13, 14]
def p2_setup():
    S = Stream()
    S(f"s_add_u32 s{sT2}, s{sW}, s{sNT}", f"s_and_b32 s{sR2}, s{sT2}, 3")
    S(f"s_mul_i32 s{sT2}, s{sNT}, {68*5120}", f"s_add_u32 s{sT2}, s{sT2}, {WS_WP}", f"s_mul_i32 s{sW2P}, s{sR2}, {4*5120}", f"s_add_u32 s{sW2P}, s{sW2P}, s{sT2}",
      f"s_add_u32 s{sW2P+1}, s{sW2P}, {16*5120}", f"s_add_u32 s{sW2P+2}, s{sW2P}, {32*5120}", f"s_mul_i32 s{sW2P+3}, s{sR2}, {5*5120}", f"s_add_u32 s{sW2P+3}, s{sW2P+3}, s{sT2}",
      f"s_add_u32 s{sW2P+3}, s{sW2P+3}, {48*5120}")
    if ROLE[0] == "g": S(f"s_lshl_b32 s92, s{sW}, 10")
    else: S(f"s_mul_i32 s92, s{sW}, 10240", f"s_mul_i32 s93, s{sW}, 25600")
    return S
def vw_setup():
    S = Stream()
    for j in range(1, 7): S(f"v_add_u32 {v(VW[j])}, {4096*j}, {v(vL16)}")
    return S
sR2 = 65
def w2_load(k):
    S = Stream(); b = w2_slot(k)
    for t in range(5):
        sp, off = w2_off(k, t)
        S(f"buffer_load_dwordx4 {rg(b,4*t,4)}, {v(VW[off >> 12])}, {SWS}, s{sp} offen offset:{off & 4095} sc1")
    return S
vPF, vPV, vOO, vXR, vRA = 6, 7, 9, 24, 36
VA = [29, 30, 31, 32]
sPF, sOB = 57, 76
def XRA(): return 240 if ROLE[0] == 'g' else 244
def p2_pre():
    S = Stream(); t = vT + 8
    S(f"v_lshrrev_b32 {v(t)}, 4, {v(vL)}", f"v_and_b32 {v(t+1)}, 15, {v(vL)}", f"v_lshlrev_b32 {v(t+3)}, 9, {v(t)}", f"v_lshl_add_u32 {v(t+3)}, {v(t+1)}, 4, {v(t+3)}")
    for j in range(4):
        S(f"s_add_u32 s{sT2}, s{sW}, {j}", f"s_and_b32 s3, s{sT2}, 1", "s_lshl_b32 s3, s3, 8", f"s_bfe_u32 s{sT2}, s{sT2}, 0x10001", f"s_mul_i32 s{sT2}, s{sT2}, {136*1024}", f"s_add_u32 s{sT2}, s{sT2}, s3",
          f"v_add_u32 {v(VA[j])}, s{sT2}, {v(t+3)}")
    S(f"v_and_b32 {v(vPF)}, 7, {v(vL)}", f"v_lshlrev_b32 {v(vPF)}, 2, {v(vPF)}", f"s_lshr_b32 s{sPF}, s{sRT}, 1", f"s_lshl_b32 s{sPF}, s{sPF}, 9")
    S(f"v_mul_u32_u24 {v(vOO)}, 1280, {v(t+1)}", f"v_lshl_add_u32 {v(vOO)}, {v(t)}, 3, {v(vOO)}",
      f"s_lshl_b32 s{sOB}, s{sRT}, 2", f"s_add_u32 s{sOB}, s{sOB}, s{sW}", f"s_mul_i32 s{sOB}, s{sOB}, {16*1280}", f"s_mul_i32 s{sT2}, s{sNT}, 160", f"s_add_u32 s{sOB}, s{sOB}, s{sT2}")
    S(f"s_mul_i32 s{sT2}, s{sRT}, {2*136*1024}", f"s_add_u32 s{sT2}, s{sT2}, {WS_AP}", f"s_lshl_b32 s44, s{sR2}, 13", f"s_add_u32 s44, s44, s{sT2}",
      f"s_mul_i32 s45, s{sR2}, {5*2048}", f"s_add_u32 s45, s45, s{sT2}", f"s_add_u32 s45, s45, {48*2048}")
    return S
def xre_load():
    S = Stream()
    for tt in range(5): S(f"buffer_load_dwordx2 {a_(XRA()+2*tt,2)}, {v(vOO)}, {SX}, s{sOB} offen offset:{32*tt}")
    return S
def wp_touch(r):
    S = Stream()
    S(f"s_and_b32 s48, s{sRT}, 3", "s_lshl_b32 s48, s48, 2", f"s_add_u32 s48, s48, s{sW}", f"s_mul_i32 s48, s48, {170*128}", f"s_mul_i32 s49, s{sNT}, {68*5120}", "s_add_u32 s48, s48, s49", f"s_add_u32 s48, s48, {WS_WP}",
      f"v_lshlrev_b32 {v(r)}, 7, {v(vL)}", f"buffer_load_dword a250, {v(r)}, {SWS}, s48 offen sc1", "s_add_u32 s48, s48, 8192", f"buffer_load_dword a251, {v(r)}, {SWS}, s48 offen sc1",
      f"s_add_u32 s48, s48, {42*128}", f"buffer_load_dword a253, {v(r)}, {SWS}, s48 offen sc1")
    return S
def p2_poll_txt(i): return f"buffer_load_dword {v(vPV+(i&1))}, {v(vPF)}, {SWS}, s{sPF} offen offset:{PARTS[i][2]*128} sc1"
def p2_poll(i): return Stream([Ins(p2_poll_txt(i), tok=f"pp{i}")])
def p2_L(i, srd):
    S = Stream(); k0, n, _, _ = PARTS[i]; r0 = act_base(i)
    if i < 3: S(f"s_add_u32 s46, s44, {i*16*2048}")
    else: S("s_mov_b32 s46, s45")
    for s in range(n):
        for m4 in range(4):
            S(f"buffer_load_dwordx4 {rg(r0,16*s+4*m4,4)}, {v(VA[m4])}, {srd}, s46 offen offset:{(s&1)*2048} sc1")
        if s & 1 and s + 1 < n: S(f"s_add_u32 s46, s46, 4096")
    return S
def p2_try(i):
    S = Stream()
    S(*cmp_mask(vPV + (i & 1), 1, 0xFF)); S(f"s_cselect_b32 s26, 0, {WS_SIZE}")
    return S
def phase2(tag, rest, store_tok, flag, l1_done):
    S = Stream(); t = vRA
    vXR = 168 if tag == "g" else 24
    stamp(S)
    stamp(S, 3)
    S += w2_lds_setup(tag)
    for i in range(4):
        k0, n, _, _ = PARTS[i]; r0 = act_base(i)
        bg = Stream()
        if i < 3 and not (i == 0 and l1_done):
            S += p2_try(i + 1)
            bg += p2_L(i + 1, SAUX)
        if i < len(rest): bg += rest[i]
        if i == 2 and not XRE:
            for tt in range(5): bg(f"buffer_load_dwordx2 {v(vXR+2*tt,2)}, {v(vOO)}, {SX}, s{sOB} offen offset:{32*tt}")
        M = Stream()
        for s in range(n):
            k = k0 + s; b = w2_slot(k)
            if i > 0: M(f"s_nop {s} ; WAITX")
            if i == 0 and s == FLAG_AFTER:
                M.wait(store_tok); M("s_barrier"); M += flag
            if s == POLL_STEP and i + 2 < 4: M += p2_poll(i + 2)
            if k == 12:
                M.drain(vm=False); M("s_barrier")
                for j in range(1, 4):
                    M(f"s_add_u32 s{sT0}, s{sW}, {j}", f"s_and_b32 s{sT0}, s{sT0}, 3", f"s_mul_i32 s{sT0}, s{sT0}, 15360", f"s_add_u32 s{sT0}, s{sT0}, {(j-1)*5120}", f"v_add_u32 {v(t+j)}, s{sT0}, {v(vL16)}")
                M(f"s_mul_i32 s{sT0}, s{sW}, 15360", f"v_add_u32 {v(t)}, s{sT0}, {v(vL16)}")
            for m4 in ([0, 1, 2, 3] if k < 16 else [1, 2, 3, 0]):
                for tt in range(5):
                    acc = acc2(m4, tt)
                    M(f"v_mfma_f32_16x16x32_bf16 {acc}, {rg(b,4*tt,4)}, {rg(r0,16*s+4*m4,4)}, {'0' if k == 0 else acc}")
                    if 5 <= k < 12 and m4 == 1: M.append(w2_copy(tag, k + 2)[tt])
                    if k == 12 and m4 < 2 and XRE: M(f"v_accvgpr_read_b32 {v(vXR+5*m4+tt)}, {a_(XRA()+5*m4+tt)}")
                    if k == 13 and m4 < 2: M(f"v_lshlrev_b32 {v(XU+10*m4+2*tt)}, 16, {v(vXR+5*m4+tt)}")
                    if k == 14 and m4 < 2: M(f"v_and_b32 {v(XU+10*m4+2*tt+1)}, 0xffff0000, {v(vXR+5*m4+tt)}")
                    if k == 16 and m4 != 1:
                        pm = (m4 - 1) & 3
                        M(f"ds_write_b128 {v(t+pm)}, {acc2(pm,tt)} offset:{tt*1024}")
            if s == 0 or s == n - 1: stamp(M, 3)
        M = sprinkle(M, bg, P2_PERIOD)
        cnt = 0
        for x in M:
            if x.kind in ("vm_ld", "vm_st", "vm_dma"): cnt += 1
            if "WAITX" in x.text:
                s = int(x.text.split()[1]); S(f"s_waitcnt vmcnt({min(63, 4*(n-1-s)+cnt)})")
            else: S.append(x)
        if i < 3:
            nm = f"p{i+1}{tag}"
            if i + 2 < 4: S.wait(f"pp{i+2}")
            S("s_cmp_eq_u32 s26, 0", f"s_cbranch_scc1 L_slow_{nm}", f"L_back_{nm}:")
            ld = p2_poll_txt(i + 1) + (("\n    " + p2_poll_txt(i + 2)) if i + 2 < 4 else "")
            L = [f"L_slow_{nm}:"] + spin_lines(nm, vPV + ((i + 1) & 1), 1, ld, 0xFF, sleep=3)
            L += ["    " + x.text for x in p2_L(i + 1, SWS)]
            L.append(f"    s_branch L_back_{nm}")
            slow_paths.append(L)
        stamp(S)
        stamp(S, 3)
    S.drain(vm=False); S("s_barrier")
    R0 = 48
    for s in range(3):
        for tt in range(5): S(f"ds_read_b128 {v(R0+20*s+4*tt,4)}, {v(t)} offset:{s*5120+tt*1024}")
    for i in range(10): S(f"v_pk_add_f32 {v(XU+2*i,2)}, {v(XU+2*i,2)}, {v(128+2*i,2)}")
    for s in range(3):
        for i in range(10): S(f"v_pk_add_f32 {v(XU+2*i,2)}, {v(XU+2*i,2)}, {v(R0+20*s+2*i,2)}")
    for tt in range(5):
        S(f"v_cvt_pk_bf16_f32 {v(vXR+2*tt)}, {v(XU+4*tt)}, {v(XU+4*tt+1)}", f"v_cvt_pk_bf16_f32 {v(vXR+2*tt+1)}, {v(XU+4*tt+2)}, {v(XU+4*tt+3)}")
        S(f"buffer_store_dwordx2 {v(vXR+2*tt,2)}, {v(vOO)}, {SOUT}, s{sOB} offen offset:{32*tt} {OUTFLAGS}")
    stamp(S)
    if STAMPS:
        S(f"s_lshl_b32 s{sT0}, s2, 8", f"s_add_u32 s{sT0}, s{sT0}, {WS_STAMP}", f"s_cmp_eq_u32 s{sW}, 0", f"s_cselect_b32 s{sT1}, 0, {hex(HUGE)}",
          f"v_lshlrev_b32 {v(48)}, 2, {v(vL)}", f"v_or_b32 {v(48)}, s{sT1}, {v(48)}", f"buffer_store_dword v0, {v(48)}, {SWS}, s{sT0} offen")
    S("s_endpgm")
    return S
FLAG_AFTER = 1
P2_PERIOD = 48
H1FLAG_AT = 27
XU = 208
OUTFLAGS = ''
POLL_STEP = 2
POLL2_AT = 15
PK_AT = 3
ROT2MASK = 3
EPI_RATE = 2.0
EPI_RATE2 = 3.1
W2CAP17 = 0
EPI_LAG = 1
PAIRWAIT = 1

def flag_store(off_s, imm):
    S = Stream()
    S(f"buffer_store_dword a255, {v(vFL)}, {SWS}, s{off_s} offen offset:{imm} sc1")
    return S

def glu_path():
    S = Stream(); t = vT
    ACC = [128, 192, 128]
    if PREF:
        S(f"v_and_b32 {v(t)}, 15, {v(vL)}", f"v_mul_u32_u24 {v(t)}, 1280, {v(t)}", f"v_lshrrev_b32 {v(t+1)}, 4, {v(vL)}", f"v_lshl_add_u32 {v(t)}, {v(t+1)}, 7, {v(t)}",
          f"s_lshl_b32 s48, s{sMT}, 1", f"s_and_b32 s49, s{sSL}, 1", "s_add_u32 s48, s48, s49", "s_lshl_b32 s48, s48, 2", f"s_add_u32 s48, s48, s{sW}", f"s_mul_i32 s50, s48, {16*1280}",
          f"buffer_load_dword {v(128)}, {v(t)}, {SX}, s50 offen")
        divmod_v(S, t+2, t+3, vL, 6)
        S(f"v_min_u32 {v(t+2)}, 9, {v(t+2)}", f"v_mul_u32_u24 {v(t+2)}, {64*3840}, {v(t+2)}", f"v_lshl_add_u32 {v(t+2)}, {v(t+3)}, 7, {v(t+2)}", f"v_cmp_lt_u32 vcc, 2, {v(t+3)}",
          f"v_mov_b32 {v(t+4)}, {1280-384}", f"v_cndmask_b32 {v(t+4)}, 0, {v(t+4)}, vcc", f"v_add_u32 {v(t+2)}, {v(t+2)}, {v(t+4)}",
          "s_and_b32 s48, s48, 63", "s_mul_i32 s51, s48, 3840", f"s_lshr_b32 s49, s{sSL}, 1", "s_mul_i32 s49, s49, 320", "s_and_b32 s49, s49, 0xffffff80", "s_add_u32 s51, s51, s49", "s_add_u32 s51, s51, 1280",
          "s_mov_b32 s24, s34", "s_mov_b32 s25, s35", "s_mov_b32 s26, 2457600", f"buffer_load_dword {v(129)}, {v(t+2)}, {SAUX}, s51 offen")
        S(f"buffer_load_dword {v(130)}, {v(t)}, {SX}, s50 offen offset:512")
        S(f"v_and_b32 {v(t+1)}, 1, {v(t+1)}", f"v_and_b32 {v(t+5)}, 15, {v(vL)}", f"v_mul_u32_u24 {v(t+5)}, 1280, {v(t+5)}", f"v_lshl_add_u32 {v(t+5)}, {v(t+1)}, 7, {v(t+5)}",
          f"buffer_load_dword {v(131)}, {v(t+5)}, {SX}, s50 offen offset:1024")
    S(f"s_cmp_lt_u32 s{sW}, 2", "s_cselect_b32 s8, s42, s44", "s_cselect_b32 s9, s43, s45", "s_mov_b32 s10, 1966080")
    S(f"v_lshrrev_b32 {v(t)}, 3, {v(vL)}", f"v_mul_u32_u24 {v(t)}, 3072, {v(t)}", f"v_bfe_u32 {v(t+1)}, {v(vL)}, 4, 1", f"s_and_b32 s{sT0}, s{sW}, 2", f"v_or_b32 {v(t+1)}, s{sT0}, {v(t+1)}",
      f"v_lshlrev_b32 {v(t+1)}, 1, {v(t+1)}", f"v_and_b32 {v(t+2)}, 7, {v(vL)}", f"v_xor_b32 {v(t+1)}, {v(t+1)}, {v(t+2)}", f"v_lshl_add_u32 {v(vWO)}, {v(t+1)}, 4, {v(t)}")
    S(f"s_and_b32 s{sWB}, s{sW}, 1", f"s_mul_i32 s{sWB}, s{sWB}, {32*3072}", f"s_mul_i32 s{sT0}, s{sSL}, 384", f"s_add_u32 s{sWB}, s{sWB}, s{sT0}",
      f"s_lshl_b32 s{sWM0}, s{sW}, 12")
    WO = [5, 10, 11, 12]
    for j in range(1, 4): S(f"v_add_u32 {v(WO[j])}, {j*(8*3072-1024)}, {v(vWO)}")
    ktable(S, 64 * 3072, sWB)
    def w_dma(g):
        c, i = divmod(g, 10); D = Stream()
        if c and i == 0: D("s_add_u32 s8, s8, 128", "s_addc_u32 s9, s9, 0", "s_sub_u32 s10, s10, 128")
        D(f"s_add_u32 m0, s{sWM0}, {LG_WR + (g % 5) * 16384}")
        for j in range(4):
            D.I(f"buffer_load_dwordx4 {v(WO[j])}, {SW}, s{sKT+i} offen offset:{j*1024} lds", tok=f"w{g}" if j == 3 else None)
        return D
    if PREF:
        S(f"v_lshrrev_b32 {v(t)}, 2, {v(vL)}", f"v_min_u32 {v(t)}, 9, {v(t)}", f"v_lshlrev_b32 {v(t)}, 6, {v(t)}", f"v_and_b32 {v(t+1)}, 1, {v(vL)}", f"v_add_u32 {v(t)}, {v(t)}, {v(t+1)}",
          f"v_mul_u32_u24 {v(t)}, 3072, {v(t)}", f"v_bfe_u32 {v(t+1)}, {v(vL)}, 1, 1", f"v_lshl_add_u32 {v(t)}, {v(t+1)}, 7, {v(t)}",
          "s_lshr_b32 s49, s48, 2", "s_lshl_b32 s49, s49, 1", f"s_and_b32 s50, s{sW}, 1", "s_add_u32 s49, s49, s50", f"s_mul_i32 s49, s49, {2*3072}", f"s_lshr_b32 s50, s{sSL}, 1", "s_lshl_b32 s50, s50, 8",
          "s_add_u32 s49, s49, s50", f"buffer_load_dword {v(132)}, {v(t)}, {SW}, s49 offen")
        S += x_dma(0)
    S += w_dma(0)
    ktable_rest(S, 64 * 3072, sWB)
    S(f"s_lshl_b32 s32, s{sMT}, 3", f"s_add_u32 s32, s32, s{sSL}", "s_lshl_b32 s32, s32, 2", f"s_add_u32 s32, s32, s{sW}", "s_add_u32 s33, s32, 512",
      f"s_lshl_b32 s34, s{sMT}, 7", f"s_lshl_b32 s35, s{sSL}, 2", "s_add_u32 s34, s34, s35", f"s_add_u32 s34, s34, {WS_PFLAG}")
    S += x_dma(1); S += w_dma(1)
    S += code_pf('g')
    pack_vec(S); S += pack_pre(0, 32); S += pack_pre(1, 33)
    xaddr_setup(S, False); sel_setup(S)
    S(f"v_bfe_u32 {v(t)}, {v(vL)}, 4, 1", f"v_lshrrev_b32 {v(t+1)}, 5, {v(vL)}", f"v_bfe_u32 {v(t+2)}, {v(vL)}, 2, 2",
      f"v_lshl_add_u32 {v(t+1)}, {v(t+1)}, 3, {v(t+2)}", f"v_lshlrev_b32 {v(t+1)}, 7, {v(t+1)}", f"v_lshl_add_u32 {v(t+1)}, {v(t)}, 13, {v(t+1)}",
      f"v_and_b32 {v(t+3)}, 1, {v(vL)}", f"v_bfe_u32 {v(t+4)}, {v(vL)}, 1, 1", f"v_lshl_add_u32 {v(t+3)}, {v(t+3)}, 1, {v(t+4)}", f"v_lshl_add_u32 {v(t+1)}, {v(t+3)}, 3, {v(t+1)}",
      f"v_add_u32 {v(t+1)}, {LG_WR}, {v(t+1)}",
      f"v_lshrrev_b32 {v(t+2)}, 1, {v(t+2)}", f"v_lshl_add_u32 {v(t+2)}, {v(t)}, 1, {v(t+2)}", f"v_xor_b32 {v(t+2)}, s{sW}, {v(t+2)}")
    for p in range(4):
        S(f"v_xor_b32 {v(t+3)}, {p}, {v(t+2)}", f"v_lshl_add_u32 {v(vWA+p)}, {v(t+3)}, 5, {v(t+1)}", f"v_add_u32 {v(vWB_+p)}, 0x10000, {v(vWA+p)}")
    S(f"s_lshl_b32 s{sT0}, s{sSL}, 12", f"s_add_u32 s{sAPB}, s{sAPB}, s{sT0}")
    for p in range(4):
        S(f"s_xor_b32 s{sST+p}, s{sW}, {p}", f"s_lshl_b32 s{sST+p}, s{sST+p}, 10", f"s_add_u32 s{sST+p}, s{sST+p}, s{sAPB}")
    S(f"s_lshl_b32 s{sT0}, s{sW}, 10", f"s_add_u32 s{sT0}, s{sT0}, {L_CSF}", f"v_add_u32 {v(vQA)}, s{sT0}, {v(vL16)}")
    for p in range(1, 4): S(f"v_xor_b32 {v(vQB+p)}, {p*1024}, {v(vQA)}")
    assert L_CSF % 4096 == 0
    S(f"s_lshl_b32 s{sPKS+2}, s{sMT}, 9", f"s_lshl_b32 s{sT0}, s{sSL}, 2", f"s_add_u32 s{sPKS+2}, s{sPKS+2}, s{sT0}")
    sFLG = sPKS + 2
    S += p2_setup(); S += p2_pre()
    stages = []
    for g in range(30):
        c, i = divmod(g, 10); mf = []
        order = [(s, p) for s in range(4) for p in range(4)] if g < 29 else [(s, p) for p in range(4) for s in range(4)]
        for (s, p) in order:
            if True:
                off = (g % 5) * 16384 + s * 2048
                ar = vWA + p
                if off >= 65536 - 1024: ar = vWB_ + p; off -= 65536
                mf.append((ACC[c] + 16 * p, f"{v(ar)} offset:{off}", f"{v(ar)} offset:{off+512}", 16 * i + 4 * s,
                           (vCS + 4 * (c & 1), i == 0 and s == 0) if p == 0 else None, i == 0 and s == 0,
                           stat_mfma(p - 1, 16 * i + 4 * s, i == 0 and s == 0) if (c == 0 and p > 0) else None))
        stages.append(dict(mf=mf, dma=w_dma(g), xs=i if c == 0 else None))
    def cs_publish(c):
        E = Stream(); cs = vCS + 4 * (c & 1); q = vT
        E(f"v_cndmask_b32 {v(q)}, {v(cs+1)}, {v(cs)}, s[96:97]")
        split3(E, vT + 4, q, q + 1, "A")
        E.I(f"ds_write_b128 {v(vQA)}, {v(vT+4,4)}", tok=f"csw{c}")
        return E
    def corr(c):
        E = Stream()
        for p in range(1, 4): E(f"ds_read_b128 {v(vCS+4+4*p,4)}, {v(vQB+p)}")
        for p in range(4):
            E(f"v_mfma_f32_32x32x16_bf16 {v(ACC[c]+16*p,16)}, {v(vT+4 if p == 0 else vCS+4+4*p,4)}, {v(vMB,4)}, {v(ACC[c]+16*p,16)}")
        return E
    def epi(c, packed):
        E = epi_(c, packed)
        if 'noepi' in ABL and not packed: E = Stream([x for x in E if x.kind in ("vm_st", "salu")])
        return E
    def epi_(c, packed):
        E = Stream()
        def store(p):
            A = ACC[c] + 16 * p
            E(f"s_add_u32 s36, s{sST+p}, {c*32*1024}")
            E.I(f"buffer_store_dwordx4 {v(A,4)}, {v(vL16)}, {SWS}, s36 offen sc1", tok=f"h{c}" if p == 3 else None)
        if packed:
            for p in range(4):
                A = ACC[c] + 16 * p
                for i in range(0, 8, 2): E(f"v_pk_mul_f32 {v(A+i,2)}, {v(A+i,2)}, {v(vC,2)} op_sel_hi:[1,0]")
                for i in range(8): E(f"v_exp_f32 {v(A+i)}, {v(A+i)}")
                for i in range(0, 8, 2): E(f"v_pk_fma_f32 {v(A+i,2)}, {v(A+i,2)}, {v(vC,2)}, {v(vC,2)} op_sel:[0,1,1] op_sel_hi:[1,1,1]")
                for i in range(8): E(f"v_rcp_f32 {v(A+i)}, {v(A+i)}")
                for i in range(0, 8, 2): E(f"v_pk_mul_f32 {v(A+8+i,2)}, {v(A+8+i,2)}, {v(A+i,2)}")
                for i in range(4): E(f"v_cvt_pk_bf16_f32 {v(A+i)}, {v(A+8+2*i)}, {v(A+9+2*i)}")
                store(p)
            return E
        LAG = EPI_LAG
        ev = []
        for e in range(32):
            p, i = divmod(e, 8); A = ACC[c] + 16 * p
            ops = [f"v_mul_f32 {v(A+i)}, {v(A+i)}, {v(vC)}", f"v_exp_f32 {v(A+i)}, {v(A+i)}", f"v_fma_f32 {v(A+i)}, {v(A+i)}, {v(vSD)}, {v(vSD)}",
                   f"v_rcp_f32 {v(A+i)}, {v(A+i)}", f"v_mul_f32 {v(A+8+i)}, {v(A+8+i)}, {v(A+i)}"]
            for s, o in enumerate(ops): ev.append((e + LAG * s, s, o, None))
            if i & 1: ev.append((p * 8 + 7 + LAG * 5, 5 + i, f"v_cvt_pk_bf16_f32 {v(A+i//2)}, {v(A+8+i-1)}, {v(A+8+i)}", None))
            if i == 7: ev.append((p * 8 + 7 + LAG * 6, 20, None, p))
        for (_, _, o, p) in sorted(ev, key=lambda x: (x[0], x[1])):
            if o: E(o)
            else: store(p)
        return E
    hb = {11: ["csw0"], PK_AT + 7: ["chores1"], 21: ["csw1"]}
    hb[H0AT] = hb.get(H0AT, []) + ["h0"]
    if PK_AT + 7 == 11: hb[11] = ["csw0", "chores1"]
    ha = {0: Stream(x_dma(2) + w_dma(2) + x_dma(3) + w_dma(3)),
          PK_AT: pack_dma(0, 32), PK_AT + 3: Stream(pack_finish(0) + pack_dma(1, 33) + poll1_issue()), PK_AT + 5: pack_finish(1), PK_AT + 6: poll1_check("g"), PK_AT + 7: flag_store(34, 0),
          POLL2_AT - 2: Stream(vw_setup() + poll2_issue()), POLL2_AT: poll2_check("g")}
    core = Core(stages, 5, "w")
    for i in range(10, 30): stages[i]["pace"] = PACE
    def add(j, st_): ha[j] = Stream(ha.get(j, Stream()) + st_)
    S(f"v_min_u32 {v(110)}, 39, {v(vL)}", f"v_mul_u32_u24 {v(110)}, 3072, {v(110)}", f"s_and_b32 s48, s{sMT}, 7", "s_lshl_b32 s48, s48, 1", f"s_and_b32 s49, s{sW}, 1", "s_add_u32 s48, s48, s49",
      f"s_mul_i32 s48, s48, {40*3072}", f"s_mul_i32 s49, s{sSL}, 384", "s_add_u32 s48, s48, s49", f"v_add_u32 {v(110)}, s48, {v(110)}")
    add(XRAT, xre_load())
    if WPT: add(POLL2_AT, wp_touch(111))
    if T2AT: add(T2AT, Stream([Ins(f"buffer_load_dword a253, {v(110)}, {SW}, 0 offen offset:128")]))
    if T3AT: add(T3AT, Stream([Ins(f"buffer_load_dword a252, {v(110)}, {SW}, 0 offen offset:{128 if T3AT >= 7 else 256}")]))
    add(H0AT, flag_store(sFLG, 0))
    items = []
    for f in range(0, 19, 4): items.append((POLL2_AT + WPD, w2_stage("g", f, min(f + 4, 19)), min(4, 19 - f)))
    for k in (5, 6): items.append((POLL2_AT + WPD, w2_load(k), 5))
    for k in range(5): items.append((20 + (20 * k + 19) // 16 + 2, w2_load(k), 5))
    for f in range(19, 27, 4): items.append((27 + (f - 19) // 4, w2_stage("g", f, f + 4), 4))
    add(H1FLAG_AT - 2, p2_poll(0))
    chk = Stream(); poll_check(chk, "p0g", vPV, 1, p2_poll_txt(0), 0xFF)
    hb[H1FLAG_AT] = ["h1"]; add(H1FLAG_AT, flag_store(sFLG, 128)); add(H1FLAG_AT, chk)
    G0 = vm_groups(p2_L(0, SWS))
    for q_ in range(0, 16, 4): items.append((max(H1FLAG_AT, 27) + 0.5, Stream([x for gg_ in G0[q_:q_+4] for x in gg_]), 4))
    for j in range(POLL2_AT, 30):
        cap = (CAPA if j < 22 else CAPB) if j <= 26 else 13
        if j in (17, 18): cap = W2CAP17
        for it in sorted(items, key=lambda x: x[0] if x[0] > 21 else 100):
            if it[0] <= j + 0.5 and it[2] <= cap:
                add(j, it[1]); cap -= it[2]; items.remove(it)
    assert not items, [(it[0], it[2]) for it in items]
    rest = [Stream(w2_stage("g", 27, 35) + w2_load(14)), w2_load(15), w2_load(16)]
    head, slots, first = core.build(4, hb, ha)
    side = Stream(cs_publish(0) + stats_consume("0xbfb8aa3b") + corr(0) + epi(0, False))
    left = interleave(slots[:first[20]], side, EPI_RATE, start=first[10]); assert not left, len(left)
    left = interleave(slots, cs_publish(1), 2, start=first[20]); assert not left
    left = interleave(slots[:first[H1FLAG_AT - 1]], Stream(corr(1) + epi(1, False)), EPI_RATE2, start=first[21] - DPF + 1); assert not left, len(left)
    fin = cs_publish(2); fin.wait("csw2"); fin("s_barrier"); fin += p2_poll(1); c2 = corr(2)
    fin += c2[:-1]
    left = interleave(slots, fin, 2.5, start=first[29] + 5); assert not left, len(left)
    slots[-1].append(c2[-1])
    stamp(S, 1)
    S += head
    stamp(S, 1)
    for n, sl in enumerate(slots):
        S += sl; S += core.tails[n]
        if n + 1 in (first[10], first[20]): stamp(S)
        if n + 1 in [first[i] for i in range(1, 11)]: stamp(S, 1)
        if n + 1 in [first[i] for i in range(1, 30)] + [len(slots)]: stamp(S, 2)
    stamp(S)
    e2 = epi(2, True); cut = len(e2) // E3CUT
    S += e2[:cut]; S += p2_try(1)
    S += sprinkle(Stream(e2[cut:]), p2_L(1, SAUX), E3P)
    S += phase2("g", rest, "h2", flag_store(sFLG, 256), True)
    return S

def softmax_pair(E, P, O, T, qmode):
    mx, mn = T + 40, T + 41
    E(f"v_max3_f32 {v(mx)}, {v(P)}, {v(P+1)}, {v(P+2)}", f"v_min3_f32 {v(mn)}, {v(P)}, {v(P+1)}, {v(P+2)}")
    for i in range(3, 19, 2):
        E(f"v_max3_f32 {v(mx)}, {v(mx)}, {v(P+i)}, {v(P+i+1)}", f"v_min3_f32 {v(mn)}, {v(mn)}, {v(P+i)}, {v(P+i+1)}")
    E(f"v_max_f32 {v(mx)}, {v(mx)}, {v(P+19)}", f"v_min_f32 {v(mn)}, {v(mn)}, {v(P+19)}")
    E(f"v_mul_f32 {v(mx)}, {v(mx)}, {v(vC)}", f"v_mul_f32 {v(mn)}, {v(mn)}, {v(vC)}")
    for i in range(0, 20, 2):
        E(f"v_pk_fma_f32 {v(T+i,2)}, {v(P+i,2)}, {v(vC,2)}, {v(mx,2)} op_sel:[0,0,0] op_sel_hi:[1,0,0] neg_lo:[0,0,1] neg_hi:[0,0,1]")
    for i in range(0, 20, 2):
        E(f"v_pk_fma_f32 {v(T+20+i,2)}, {v(P+i,2)}, {v(vC,2)}, {v(mx,2)} op_sel:[0,0,1] op_sel_hi:[1,0,1] neg_lo:[1,0,0] neg_hi:[1,0,0]")
    for i in range(40): E(f"v_exp_f32 {v(T+i)}, {v(T+i)}")
    for h in range(2):
        B = T + 20 * h; A = P + 10 * h
        for i in range(5): E(f"v_pk_add_f32 {v(A+2*i,2)}, {v(B+4*i,2)}, {v(B+4*i+2,2)}")
    for h in range(2):
        A = P + 10 * h
        E(f"v_pk_add_f32 {v(A,2)}, {v(A,2)}, {v(A+2,2)}", f"v_pk_add_f32 {v(A+4,2)}, {v(A+4,2)}, {v(A+6,2)}")
    for h in range(2):
        A = P + 10 * h
        E(f"v_pk_add_f32 {v(A,2)}, {v(A,2)}, {v(A+4,2)}")
    for h in range(2):
        A = P + 10 * h
        E(f"v_pk_add_f32 {v(A,2)}, {v(A,2)}, {v(A+8,2)}")
    E(f"v_add_f32 {v(T+44)}, {v(P)}, {v(P+1)}", f"v_add_f32 {v(T+45)}, {v(P+10)}, {v(P+11)}")
    if qmode:
        E(f"v_rcp_f32 {v(T+42)}, {v(T+45)}", f"v_mul_f32 {v(T+42)}, {v(T+42)}, {v(T+44)}")
        for i in range(0, 20, 2): E(f"v_pk_mul_f32 {v(T+20+i,2)}, {v(T+20+i,2)}, {v(T+42,2)} op_sel_hi:[1,0]")
    else:
        E(f"v_rcp_f32 {v(T+42)}, {v(T+44)}", f"v_rcp_f32 {v(T+43)}, {v(T+45)}")
        for i in range(0, 20, 2): E(f"v_pk_mul_f32 {v(T+i,2)}, {v(T+i,2)}, {v(T+42,2)} op_sel_hi:[1,0]")
        for i in range(0, 20, 2): E(f"v_pk_mul_f32 {v(T+20+i,2)}, {v(T+20+i,2)}, {v(T+42,2)} op_sel:[0,1] op_sel_hi:[1,1]")
    for i in range(20): E(f"v_cvt_pk_bf16_f32 {v(O+i)}, {v(T+2*i)}, {v(T+2*i+1)}")

PROJ = [(0, 0), (0, 1), (0, 2), (1, 0), (1, 1), (1, 2), (1, 3), (1, 4), (2, 2), (2, 3), (2, 4)]
aPH = 200
def project(E, SRC, PK, OUT):
    for i in range(20): E(f"v_cvt_pk_bf16_f32 {v(PK+i)}, {v(SRC+2*i)}, {v(SRC+2*i+1)}")
    seen = set()
    for n, (T, sl) in enumerate(PROJ):
        E(f"v_mfma_f32_32x32x16_bf16 {v(OUT+16*T,16)}, {a_(aPH+4*n,4)}, {v(PK+4*sl,4)}, {v(OUT+16*T,16) if T in seen else '0'}")
        seen.add(T)

def qkv_path():
    ROLE[0] = "q"; VA[:] = [3, 4, 5, 20]
    S = Stream(); t = vT
    S("L_qkv:")
    if PREF: S += x_dma(0)
    AKV, AQ = 128, 208
    S("s_mov_b32 s8, s34", "s_mov_b32 s9, s35", "s_mov_b32 s10, 2457600")
    ZI = Stream(); QV = Stream()
    ZI("s_mov_b32 s24, s12", "s_mov_b32 s25, s13", f"s_cmp_eq_u32 s{sSL}, 7", f"s_cselect_b32 s26, {WS_SIZE}, 0", f"s_cselect_b32 s{sST+3}, 0, {hex(HUGE)}")
    for i in range(4): ZI(f"v_mov_b32 {v(100+i)}, 0")
    ZI(f"s_lshl_b32 s{sT1}, s{sMT}, 2", f"s_add_u32 s{sT1}, s{sT1}, s{sW}", f"s_mul_i32 s{sT1}, s{sT1}, 3072")
    for i in range(3): ZI.I(f"buffer_store_dwordx4 {v(100,4)}, {v(vL16)}, {SAUX}, s{sT1} offen offset:{1024*i} sc1", tok="zst" if i == 2 else None)
    ZI(f"v_or_b32 {v(114)}, s{sST+3}, {v(vFL)}", f"s_lshl_b32 s{sST+3}, s{sMT}, 2")
    sQB = 78
    S(f"s_mul_i32 s{sWB}, s{sSL}, 160", f"s_mul_i32 s{sWM0}, s{sW}, 5120")
    ktable(S, 64 * 3840, sWB)
    S(f"s_mul_i32 s{sT1}, s{sW}, {16*3840}", f"s_add_u32 s{sT2}, s{sT1}, 1280", f"s_sub_u32 s{sT3}, s{sT1}, 1280", f"s_add_u32 m0, s{sWM0}, {L_WR}")
    for j in range(5):
        S(f"v_add_u32 {v(t)}, {64*j}, {v(vL)}")
        divmod_v(S, t+1, t+2, t, 20)
        divmod_v(S, t+3, t+4, t+2, 5)
        S(f"v_and_b32 {v(t+5)}, 1, {v(t+3)}", f"v_lshrrev_b32 {v(t+3)}, 1, {v(t+3)}", f"v_mul_u32_u24 {v(t+3)}, 80, {v(t+3)}", f"v_lshl_add_u32 {v(t+3)}, {v(t+4)}, 4, {v(t+3)}")
        if 0 < j < 4: S(f"v_subrev_u32 {v(t+3)}, {1024*j}, {v(t+3)}")
        S(f"v_mul_u32_u24 {v(t+6)}, 3840, {v(t+1)}", f"v_mul_u32_u24 {v(t+7)}, 1280, {v(t+5)}", f"v_add3_u32 {v(vWO+j)}, {v(t+6)}, {v(t+7)}, {v(t+3)}", f"v_add_u32 {v(vWO+j)}, s{sT2}, {v(vWO+j)}")
        if j == 4: S(f"s_add_u32 m0, s{sWM0}, {L_WR + 4096}")
        S.I(f"buffer_load_dwordx4 {v(vWO+j)}, {SW}, s{sKT} offen offset:{j*1024 if j < 4 else 0} lds", tok="w0" if j == 4 else None)
        S(f"v_lshrrev_b32 {v(t+6)}, 2, {v(t+1)}", f"v_lshl_add_u32 {v(vQO+j)}, {v(t+6)}, 1, {v(t+5)}")
        QV(f"v_lshrrev_b32 {v(t+6)}, 1, {v(vQO+j)}", f"v_and_b32 {v(t+5)}, 1, {v(vQO+j)}", f"v_mul_u32_u24 {v(t+6)}, {4*3840}, {v(t+6)}", f"v_mul_u32_u24 {v(t+5)}, {4*3840-1280}, {v(t+5)}",
           f"v_add3_u32 {v(vQO+j)}, {v(t+6)}, {v(t+5)}, {v(vWO+j)}", f"v_add_u32 {v(vQO+j)}, s{sT3}, {v(vQO+j)}")
    def w_dma(g):
        D = Stream(); q = g >= 10
        lb = L_WR + (g % 4) * 20480 if g < 14 else L_WR - 20480
        D(f"s_add_u32 m0, s{sWM0}, {lb}")
        vo = vQO if q else vWO; so = sKT + (2 * (g - 10) if q else g)
        for j in range(4): D(f"buffer_load_dwordx4 {v(vo+j)}, {SW}, s{so} offen offset:{j*1024} lds")
        D(f"s_add_u32 m0, s{sWM0}, {lb + 4096}")
        D.I(f"buffer_load_dwordx4 {v(vo+4)}, {SW}, s{so} offen lds", tok=(f"q{g-10}" if q else f"w{g}"))
        return D
    ktable_rest(S, 64 * 3840, sWB); S += QV
    if QS1: S += x_dma(1); S += w_dma(1)
    S += code_pf('q')
    LATE = Stream(ZI); S0 = S; S = LATE
    S("s_mov_b32 s24, s36", "s_mov_b32 s25, s37", "s_mov_b32 s26, 25600", f"s_mul_i32 s{sT0}, s{sSL}, 3200", f"s_lshl_b32 s{sT1}, s{sW}, 10", f"s_add_u32 s{sT0}, s{sT0}, s{sT1}",
      f"s_add_u32 m0, s{sT1}, {L_PHI}")
    S.I(f"buffer_load_dwordx4 {v(vL16)}, {SAUX}, s{sT0} offen lds", tok="phid")
    S("s_mov_b32 s24, s12", "s_mov_b32 s25, s13")
    S = S0
    S(f"v_mov_b32 {v(t+2)}, 0", f"v_mov_b32 {v(t+3)}, 0", f"s_lshl_b32 s{sT0}, s{sW}, 9", f"s_add_u32 s{sT0}, s{sT0}, {L_ZERO}", f"v_lshl_add_u32 {v(t+4)}, {v(vL)}, 3, s{sT0}")
    S.I(f"ds_write_b64 {v(t+4)}, {v(t+2,2)}", tok="ldsz")
    xaddr_setup(S, True); sel_setup(S)
    S(f"v_lshrrev_b32 {v(t)}, 5, {v(vL)}", f"v_bfe_u32 {v(t+1)}, {v(vL)}, 2, 2", f"v_lshl_add_u32 {v(t+2)}, {v(t)}, 3, {v(t+1)}", f"v_lshl_add_u32 {v(t+3)}, {v(t)}, 2, {v(t+1)}",
      f"v_mul_u32_u24 {v(t+2)}, 320, {v(t+2)}", f"v_mul_u32_u24 {v(t+3)}, 320, {v(t+3)}",
      f"v_and_b32 {v(t+4)}, 1, {v(vL)}", f"v_mul_u32_u24 {v(t+4)}, 160, {v(t+4)}", f"v_bfe_u32 {v(t+5)}, {v(vL)}, 4, 1", f"v_bfe_u32 {v(t+6)}, {v(vL)}, 1, 1",
      f"v_lshl_add_u32 {v(t+5)}, {v(t+5)}, 1, {v(t+6)}", f"v_lshl_add_u32 {v(t+4)}, {v(t+5)}, 3, {v(t+4)}", f"v_add_u32 {v(t+4)}, {L_WR}, {v(t+4)}",
      f"v_add_u32 {v(t+2)}, {v(t+2)}, {v(t+4)}", f"v_add_u32 {v(t+3)}, {v(t+3)}, {v(t+4)}")
    for p in range(4):
        S(f"s_xor_b32 s{sT0}, s{sW}, {p}", f"s_mul_i32 s{sT1}, s{sT0}, 5120", f"s_mul_i32 s{sT0}, s{sT0}, 2560",
          f"v_add_u32 {v(vWA+p)}, s{sT1}, {v(t+2)}", f"v_add_u32 {v(vQA+p)}, s{sT0}, {v(t+3)}",
          f"v_add_u32 {v(vWB_+p)}, {3*20480}, {v(vWA+p)}", f"v_add_u32 {v(vQB+p)}, {2*20480}, {v(vQA+p)}", f"v_subrev_u32 {v(vQA+p)}, 20480, {v(vQA+p)}")
    S += p2_setup()
    stages = []
    for g in range(10):
        mf = []
        for p in range(4):
            for T in range(5):
                ar, off = (vWA + p, (g % 4) * 20480) if g % 4 < 3 else (vWB_ + p, 0)
                off += 32 * T
                mf.append((AKV + 16 * T, f"{v(ar)} offset:{off}", f"{v(ar)} offset:{off+1280}", 16 * g + 4 * p, (vCS + 4 * T, g == 0) if p == 0 else None, g == 0 and p == 0,
                           stat_mfma(T - 1, 16 * g + 4 * p, g == 0 and p == 0) if 1 <= T <= 3 else None))
        stages.append(dict(mf=mf, dma=w_dma(g), xs=g))
    PHF = Stream(); u = vT
    PHF(f"v_bfe_u32 {v(u)}, {v(vL)}, 4, 1", f"v_bfe_u32 {v(u+1)}, {v(vL)}, 1, 1", f"v_lshl_add_u32 {v(u)}, {v(u)}, 1, {v(u+1)}",
        f"v_lshrrev_b32 {v(u+1)}, 5, {v(vL)}", f"v_and_b32 {v(u+2)}, 1, {v(vL)}", f"v_cmp_eq_u32 s[{sPKS+4}:{sPKS+5}], {v(u+1)}, {v(u+2)}".replace(f"s[{sPKS+4}:{sPKS+5}]", "s[98:99]"),
        f"v_mul_u32_u24 {v(u+1)}, 1600, {v(u+1)}", f"v_bfe_u32 {v(u+2)}, {v(vL)}, 2, 2", f"v_mul_u32_u24 {v(u+2)}, 40, {v(u+2)}", f"v_add3_u32 {v(u+1)}, {v(u+1)}, {v(u+2)}, {L_PHI & 63}".replace(f", {L_PHI & 63}", ", 0"),
        f"v_add_u32 {v(u+1)}, {L_PHI}, {v(u+1)}", f"v_lshl_add_u32 {v(u+1)}, {v(u)}, 3, {v(u+1)}", f"v_mov_b32 {v(u+3)}, {L_ZERO}")
    amap = {}
    k = 4
    for (T, s) in [(0, 0), (1, 0), (1, 1), (2, 1)]:
        lo, hi = 5 * s - 4 * T, 5 * s + 5 - 4 * T
        PHF(f"v_add_u32 {v(u+k)}, {s*800+(4*T-5*s)*8}, {v(u+1)}", f"v_cndmask_b32 {v(u+k)}, {v(u+3)}, {v(u+k)}, s[98:99]")
        if lo > 0: PHF(f"v_cmp_le_u32 vcc, {lo}, {v(u)}", f"v_cndmask_b32 {v(u+k)}, {v(u+3)}, {v(u+k)}, vcc")
        if hi < 4: PHF(f"v_cmp_gt_u32 vcc, {hi}, {v(u)}", f"v_cndmask_b32 {v(u+k)}, {v(u+3)}, {v(u+k)}, vcc")
        amap[(T, s)] = u + k; k += 1
    for n, (T, sl) in enumerate(PROJ):
        for r2 in range(2):
            rho = 2 * sl + r2; s = rho // 5
            if (T, s) in amap: PHF(f"ds_read_b64_tr_b16 {a_(aPH+4*n+2*r2,2)}, {v(amap[(T,s)])} offset:{(rho%5)*160}")
            else: PHF(f"ds_read_b64_tr_b16 {a_(aPH+4*n+2*r2,2)}, {v(u+3)}")
    core = Core(stages, 4, "w")
    hb = {3: ["zst", "phid", "ldsz"]}
    if not QS1: S += x_dma(1); S += w_dma(1)
    ha = {0: Stream(x_dma(2) + w_dma(2) + LATE + x_dma(3)), 3: Stream([Ins(f"buffer_store_dword a255, {v(114)}, {SDBG}, s{sST+3} offen sc1")]), 4: PHF, 6: poll1_issue(), 9: poll1_check("q")}
    if QTAT:
        TCH = Stream(); q = vT + 8
        TCH(f"v_lshrrev_b32 {v(q)}, 1, {v(vL)}", f"v_min_u32 {v(q)}, 19, {v(q)}", f"v_mul_u32_u24 {v(q)}, 3840, {v(q)}", f"v_and_b32 {v(q+1)}, 1, {v(vL)}", f"v_mul_u32_u24 {v(q+1)}, 156, {v(q+1)}",
            f"v_add_u32 {v(q)}, {v(q)}, {v(q+1)}", f"s_and_b32 s48, s{sMT}, 7", "s_lshl_b32 s48, s48, 2", f"s_add_u32 s48, s48, s{sW}", f"s_mul_i32 s48, s48, {20*3840}", f"s_mul_i32 s49, s{sSL}, 160",
            "s_add_u32 s48, s48, s49", f"buffer_load_dword {v(115)}, {v(q)}, {SW}, s48 offen")
        ha[QTAT] = Stream(ha.get(QTAT, Stream()) + TCH)
    ha[8] = w_dma(10)
    ha[9] = Stream(w_dma(11) + ha[9])
    head, slots, first = core.build(3, hb, ha)
    stamp(S, 1)
    S += head
    stamp(S, 1)
    for n, sl in enumerate(slots):
        S += sl; S += core.tails[n]
        if n + 1 in [first[i] for i in range(1, 10)] + [len(slots)]: stamp(S, 1)
        if n + 1 in [first[i] for i in range(1, 10)]: stamp(S, 2)
    stamp(S)
    def cs_finish(ntile, acc, lcs, tag, extra_after_bar, mid=None):
        E = Stream(); q = vT
        E(f"v_and_b32 {v(q+1)}, 31, {v(vL)}", f"v_lshlrev_b32 {v(q+1)}, 4, {v(q+1)}", f"v_add_u32 {v(q+1)}, {lcs}, {v(q+1)}", f"s_lshl_b32 s{sT0}, s{sW}, 2", f"v_add_u32 {v(q)}, s{sT0}, {v(q+1)}")
        for T in range(ntile): E(f"v_cndmask_b32 {v(vCS+4*T)}, {v(vCS+4*T+1)}, {v(vCS+4*T)}, s[96:97]")
        for T in range(ntile): E(f"ds_write_b32 {v(q)}, {v(vCS+4*T)} offset:{512*T}")
        if mid: E += mid
        E.drain(vm=False)
        if tag == "q": E.wait("kvat")
        E("s_barrier")
        E += extra_after_bar
        R = q + 20
        for T in range(ntile): E(f"ds_read_b128 {v(R+4*T,4)}, {v(q+1)} offset:{512*T}")
        for T in range(ntile):
            E(f"v_add_f32 {v(R+4*T)}, {v(R+4*T)}, {v(R+4*T+1)}", f"v_add_f32 {v(R+4*T+2)}, {v(R+4*T+2)}, {v(R+4*T+3)}")
            E(f"v_add_f32 {v(R+4*T)}, {v(R+4*T)}, {v(R+4*T+2)}")
            split3(E, vCS + 4 * T, R + 4 * T, R + 4 * T + 1, "A")
            E(f"v_mfma_f32_32x32x16_bf16 {v(acc+16*T,16)}, {v(vCS+4*T,4)}, {v(vMB,4)}, {v(acc+16*T,16)}")
        return E
    stamp(S, 2)
    PK = vCS; TT = vT; ta = 120; kr = 21
    A1 = Stream()
    A1(f"v_and_b32 {v(ta)}, 31, {v(vL)}", f"s_lshl_b32 s{sT0}, s{sW}, 5", f"v_add_u32 {v(ta)}, s{sT0}, {v(ta)}", f"v_mul_u32_u24 {v(ta)}, {RS}, {v(ta)}",
      f"v_lshrrev_b32 {v(ta+1)}, 5, {v(vL)}", f"v_mul_u32_u24 {v(ta+2)}, 96, {v(ta+1)}", f"v_add_u32 {v(ta+2)}, {v(ta+2)}, {v(ta)}",
      f"v_mul_u32_u24 {v(ta+1)}, 160, {v(ta+1)}", f"v_add_u32 {v(ta+1)}, {v(ta+1)}, {v(ta)}")
    A1(f"v_lshrrev_b32 {v(kr+2)}, 4, {v(vL)}", f"v_bfe_u32 {v(kr+1)}, {v(vL)}, 2, 2", f"v_lshl_add_u32 {v(kr+1)}, {v(kr+2)}, 3, {v(kr+1)}", f"v_mul_u32_u24 {v(kr+1)}, {RS}, {v(kr+1)}",
      f"v_and_b32 {v(kr)}, 3, {v(vL)}", f"v_lshl_add_u32 {v(kr+1)}, {v(kr)}, 3, {v(kr+1)}",
      f"s_mul_i32 s{sT0}, s{sW}, 80", f"s_mul_i32 s{sT1}, s{sW}, 48", f"s_add_u32 s{sT1}, s{sT1}, 320", f"v_add_u32 {v(kr)}, s{sT0}, {v(kr+1)}", f"v_add_u32 {v(kr+1)}, s{sT1}, {v(kr+1)}")
    A2 = Stream()
    A2(f"v_lshrrev_b32 {v(ta)}, 4, {v(vL)}", f"v_mul_u32_u24 {v(ta+4)}, 768, {v(ta)}", f"v_and_b32 {v(ta+5)}, 15, {v(vL)}", f"v_lshl_add_u32 {v(ta+4)}, {v(ta+5)}, 2, {v(ta+4)}", f"v_lshlrev_b32 {v(ta+6)}, 2, {v(ta+5)}",
      f"s_lshl_b32 s42, s{sSL}, 2", f"s_add_u32 s42, s42, s{sW}", f"s_mul_i32 s42, s42, 4032", f"s_add_u32 s42, s42, {WS_KV}")
    AV = [ta + 4, 116, 117, 118, 119, ta + 5]
    A2(f"v_mov_b32 {v(ta)}, {hex(HUGE)}")
    for n, m in enumerate([None, 0xFFFFFFFF, 0xFFFF, 0x00FF00FF00FF00FF, 0x00FF00FF, 0x00FF]):
        if m is None: continue
        A2(f"s_mov_b32 s98, {hex(m & 0xFFFFFFFF)}", f"s_mov_b32 s99, {hex(m >> 32)}", f"v_cndmask_b32 {v(AV[n])}, {v(ta)}, {v(ta+4)}, s[98:99]")
    st_ = Stream(); stamp(st_, 2)
    S += cs_finish(5, AKV, L_CS, "kv", st_, mid=Stream(stats_consume("0x3fb8aa3b") + A1))
    stamp(S, 2)
    stamp(S)
    S0 = S; S = Stream()
    PJ = Stream(); project(PJ, AKV, PK, AQ)
    VW_ = Stream()
    for i in range(40): VW_(f"v_mul_f32 {v(AKV+40+i)}, {v(AKV+40+i)}, {v(vST+1)}")
    for s in range(2):
        for i in range(10): VW_(f"v_cvt_pk_bf16_f32 {v(AKV+12*s+i)}, {v(AKV+40+20*s+2*i)}, {v(AKV+41+20*s+2*i)}")
        VW_(f"v_mov_b32 {v(AKV+12*s+10)}, 0x3f80", f"v_mov_b32 {v(AKV+12*s+11)}, 0")
    S += PJ[:20]
    for n_, x in enumerate(PJ[20:]): S.append(x); S += VW_[6*n_:6*n_+6]
    for i in range(6): S(f"ds_write_b128 {v(ta+2)}, {v(AKV+4*i,4)} offset:{L_TB+320+16*i}")
    for s in range(2):
        O = AKV + 40 + 20 * s
        softmax_pair(S, AQ + 20 * s, O, TT, False)
        for i in range(5): S(f"ds_write_b128 {v(ta+1)}, {v(O+4*i,4)} offset:{L_TB+80*s+16*i}")
    S0 += sprinkle(S, Stream(w_dma(12) + w_dma(13)), KP)
    S = S0
    S.drain(vm=False); S("s_barrier")
    stamp(S)
    FR = AKV; KA = TT + 24
    for ks in range(4):
        for x in range(5):
            for r2 in range(2):
                ar, co = (kr + 1, 32 * x) if x < 2 else (kr, 32 * (x - 2))
                S(f"ds_read_b64_tr_b16 {v(FR+20*ks+4*x+2*r2,2)}, {v(ar)} offset:{L_TB+(32*ks+4*r2)*RS+co}")
    S += A2
    for ks in range(4):
        for a in range(2):
            for b in range(3):
                acc = v(KA + 12 * a + 4 * b, 4)
                S(f"v_mfma_f32_16x16x32_bf16 {acc}, {v(FR+20*ks+4*a,4)}, {v(FR+20*ks+8+4*b,4)}, {'0' if ks == 0 else acc}")
    AT = Stream()
    todo = [(a, r, b) for a in range(2) for r in range(4) for b in range(3)]
    for n, (a, r, b) in enumerate(todo):
        av = AV[(0 if a == 0 else (1 if r == 0 else 2)) + (3 if b == 2 else 0)]
        AT.I(f"buffer_atomic_add_f32 {v(KA+12*a+4*b+r)}, {v(av)}, {SWS}, s42 offen offset:{(16*a+r)*192+64*b}", tok="kvat" if n == len(todo) - 1 else None)
    if 'noat' in ABL: AT = Stream(AT[-1:])
    stamp(S)
    S += poll2_issue()
    stages = []
    for g in range(5):
        gg = 10 + g; mf = []
        for p8 in range(8):
            p = p8 & 3
            for T in range(3):
                sl_ = gg % 4 if gg < 14 else -1
                ar, off = (vQA + p, (sl_ + 1) * 20480) if sl_ < 2 else (vQB + p, (sl_ - 2) * 20480)
                off += 32 * T + (p8 >> 2) * 10240
                mf.append((AQ + 16 * T, f"{v(ar)} offset:{off}", f"{v(ar)} offset:{off+80}", 32 * g + 4 * p8, (vCS + 4 * T, g == 0 and p8 == 0) if p == 0 else None, g == 0 and p8 == 0, None))
        stages.append(dict(mf=mf, dma=Stream(), xs=None))
    sKF = 79
    S(f"s_lshl_b32 s{sKF}, s{sSL}, 7", f"s_add_u32 s{sKF}, s{sKF}, {WS_KVFLAG}", f"s_lshl_b32 s{sT0}, s{sMT}, 2", f"s_add_u32 s{sQB+22}, s{sKF}, s{sT0}")
    hb = {}
    ha = {0: Stream(w_dma(14) + vw_setup() + p2_pre() + xre_load() + AT), 2: poll2_check("q")}
    for s_ in stages: s_["pace"] = QPACE
    ha[2] += w2_stage("q", 0, 10)
    for k in range(4):
        j = max(3, (20 * k + 19) // 32 + 2)
        ha[j] = Stream(ha.get(j, Stream()) + w2_load(k))
    u = 88; oa = 21; A3 = Stream()
    A3(f"v_bfe_u32 {v(u)}, {v(vL)}, 3, 2", f"v_bfe_u32 {v(u+1)}, {v(vL)}, 2, 1", f"v_lshrrev_b32 {v(u+2)}, 5, {v(vL)}", f"v_cmp_eq_u32 s[98:99], {v(u+1)}, {v(u+2)}",
      f"v_and_b32 {v(u+2)}, 3, {v(vL)}", f"v_lshl_add_u32 {v(u+2)}, {v(u)}, 2, {v(u+2)}", f"v_mul_u32_u24 {v(u+1)}, 42, {v(u+1)}", f"v_add_u32 {v(u+2)}, {v(u+2)}, {v(u+1)}",
      f"v_mul_u32_u24 {v(u+2)}, 96, {v(u+2)}", f"v_mov_b32 {v(u+3)}, {L_ZERO}", f"v_cmp_gt_u32 s[50:51], 2, {v(u)}")
    A3(f"v_add_u32 {v(oa)}, {L_KB}, {v(u+2)}", f"v_add_u32 {v(oa+1)}, {L_KB+21*96}, {v(u+2)}", f"v_add_u32 {v(oa+2)}, {L_KB+16*96}, {v(u+2)}", f"v_add_u32 {v(oa+3)}, {L_KB+(21+16-8)*96}, {v(u+2)}",
      f"v_cndmask_b32 {v(oa+2)}, {v(u+3)}, {v(oa+2)}, s[50:51]", f"v_cndmask_b32 {v(oa+3)}, {v(oa+3)}, {v(u+3)}, s[50:51]")
    for k in range(4): A3(f"v_cndmask_b32 {v(oa+k)}, {v(u+3)}, {v(oa+k)}, s[98:99]")
    A3(f"s_lshl_b32 s48, s{sW}, 9", f"s_add_u32 s48, s48, {L_KB}", f"v_lshl_add_u32 {v(oa+4)}, {v(vL)}, 3, s48")
    core = Core(stages, 4, "q")
    head, slots, first = core.build(4, hb, ha)
    left = interleave(slots, A3, 1, start=first[3]); assert not left
    S += head
    for n, sl in enumerate(slots):
        S += sl; S += core.tails[n]
        if n + 1 in [first[i] for i in range(1, 5)]: stamp(S, 2)
    stamp(S)
    W2rest = Stream(w2_load(4) + w2_load(14) + w2_load(15) + w2_load(16))
    E = cs_finish(3, AQ, L_CS, "q", flag_store(sQB + 22, 0))
    project(E, AQ, PK, AKV)
    PQ = AQ
    softmax_pair(E, AKV, PQ, TT, True)
    E(f"v_mul_f32 {v(ta)}, {hex(0x358637bd)}, {v(TT+44)}")
    bgA = W2rest; bgA += p2_poll(0)
    bgA(f"buffer_load_dword {v(ta+7)}, {v(ta+6)}, {SWS}, s{sKF} offen sc1")
    S += sprinkle(E, bgA, QP1)
    W2rest = p2_L(0, SWS)
    W2r2 = w2_stage("q", 10, 23)
    W2r3 = [Stream(w2_load(5) + w2_load(6)), w2_stage("q", 23, 35)]
    poll_check(S, "p0q", vPV, 1, p2_poll_txt(0), 0xFF)
    poll_check(S, "kv", ta + 7, 1, f"buffer_load_dword {v(ta+7)}, {v(ta+6)}, {SWS}, s{sKF} offen sc1", 0xFFFF)
    stamp(S)
    KL = AKV + 48
    S(f"s_mul_i32 s{sT2}, s{sSL}, {4*4032}", f"s_add_u32 s{sT2}, s{sT2}, {WS_KV}", f"s_lshl_b32 s{sT0}, s{sW}, 10", f"s_add_u32 s{sT2}, s{sT2}, s{sT0}")
    for i in range(4):
        S(f"buffer_load_dwordx4 {v(KL+4*i,4)}, {v(vL16)}, {SWS}, s{sT2} offen sc1")
        if i < 3: S(f"s_add_u32 s{sT2}, s{sT2}, 4096")
    E = Stream(); softmax_pair(E, AKV + 20, PQ + 20, TT, True)
    S += sprinkle(E, W2rest, QP2)
    S(f"v_mul_f32 {v(ta+1)}, {hex(0x358637bd)}, {v(TT+44)}")
    for i in range(4):
        S(f"v_cvt_pk_bf16_f32 {v(KL+4*i)}, {v(KL+4*i)}, {v(KL+4*i+1)}", f"v_cvt_pk_bf16_f32 {v(KL+4*i+1)}, {v(KL+4*i+2)}, {v(KL+4*i+3)}",
          f"ds_write_b64 {v(oa+4)}, {v(KL+4*i,2)} offset:{2048*i}")
    S.drain(vm=False); S("s_barrier")
    W2r2 += p2_poll(1)
    S0 = S; S = Stream()
    FRO = AKV
    ON = TT + 8
    ON = vCS
    for k in range(4):
        for s in range(5): S(f"ds_read_b128 {v(FRO+20*k+4*s,4)}, {v(oa+k)} offset:{16*s}")
    for k in range(4):
        T = min(k, 2); slot = k & 1
        for s in range(5):
            acc = v(ON + 16 * T, 16)
            S(f"v_mfma_f32_32x32x16_bf16 {acc}, {v(FRO+20*k+4*s,4)}, {v(PQ+20*slot+4*s,4)}, {'0' if (s == 0 and k < 3) else acc}")
    S(f"v_add_f32 {v(ta)}, {v(ON+36)}, {v(ta)}", f"v_add_f32 {v(ta+1)}, {v(ON+44)}, {v(ta+1)}", f"v_rcp_f32 {v(ta+2)}, {v(ta)}", f"v_rcp_f32 {v(ta+3)}, {v(ta+1)}")
    OP = AKV
    for s in range(2):
        src = [ON + 16 * s + i for i in range(16)] + [ON + 32 + 8 * s + i for i in range(4)]
        sel = "op_sel_hi:[1,0]" if s == 0 else "op_sel:[0,1] op_sel_hi:[1,1]"
        for i in range(0, 20, 2): S(f"v_pk_mul_f32 {v(src[i],2)}, {v(src[i],2)}, {v(ta+2,2)} {sel}")
        for i in range(10): S(f"v_cvt_pk_bf16_f32 {v(OP+10*s+i)}, {v(src[2*i])}, {v(src[2*i+1])}")
    S0 += sprinkle(S, W2r2, QP3); S = S0
    S(f"s_mul_i32 s{sT0}, s{sSL}, 5120", f"s_add_u32 s{sT0}, s{sT0}, s{sAPB}", f"s_add_u32 s{sT0}, s{sT0}, {96*1024}", f"s_add_u32 s{sT1}, s{sT0}, 4096")
    for i in range(4): S(f"buffer_store_dwordx4 {v(OP+4*i,4)}, {v(vL16)}, {SWS}, s{sT0} offen offset:{1024*i} sc1")
    S.I(f"buffer_store_dwordx4 {v(OP+16,4)}, {v(vL16)}, {SWS}, s{sT1} offen sc1", tok="ost")
    S(f"s_lshl_b32 s{sKF}, s{sMT}, 9", f"s_lshl_b32 s{sT0}, s{sSL}, 2", f"s_add_u32 s{sKF}, s{sKF}, s{sT0}")
    S += phase2("q", W2r3, "ost", flag_store(sKF, 384), False)
    return S

def main(outpath):
    hdr = open("parallel_sum__linear_kernel_hedgehog__glu_gated_glu__prompt.s.ref").read().split("; Override launch")[0]
    out = []
    st = State()
    finalize(prologue(), st, out)
    n0 = nstamp[0]
    finalize(glu_path(), st.copy(), out)
    nstamp[0] = n0
    st2 = st.copy(); st2.hist = []
    out.append("    s_nop 7")
    finalize(qkv_path(), st2, out)
    for L in slow_paths: out += L
    out.append("L_end:")
    txt = hdr + "; @launch grid=(256,1,1) block=(256,1,1) lds=163840\n" + f""".amdgcn_target "amdgcn-amd-amdhsa--gfx950"
.text
.globl {KN}
.p2align 8
.type {KN},@function
{KN}:
""" + "\n".join(out) + f"""
    s_endpgm
.section .rodata,"a"
.p2align 6
.amdhsa_kernel {KN}
  .amdhsa_next_free_vgpr 512
  .amdhsa_next_free_sgpr 102
  .amdhsa_accum_offset 256
  .amdhsa_group_segment_fixed_size 0
  .amdhsa_kernarg_size 88
  .amdhsa_user_sgpr_count 2
  .amdhsa_user_sgpr_kernarg_segment_ptr 1
  .amdhsa_system_sgpr_workgroup_id_x 1
.end_amdhsa_kernel
"""
    open(outpath, "w").write(txt)
    print("lines", len(out))

if __name__ == "__main__":
    for a in sys.argv:
        if a.startswith("--abl="): ABL.update(a[6:].split(","))
    if "--c1" in sys.argv: STGRP = 1
    if "--c2" in sys.argv: STGRP = 2
    if "--c3" in sys.argv: STGRP = 3
    for a in sys.argv:
        if a.startswith("--set="):
            k_, v_ = a[6:].split("="); globals()[k_] = eval(v_)
    if "--stamps" in sys.argv: STAMPS = True
    if "--cyc" in sys.argv: STAMPS = True; STAMPOP = "s_memtime"
    main([a for a in sys.argv[1:] if not a.startswith("--")][0])
```

```python
import sys
from emit import Stream, State, Ins, finalize, interleave, sprinkle, vm_groups

KN = "parallel_sum__linear_kernel_hedgehog__glu_gated_glu__prompt_kernel"
WS_HFLAG = 0
WS_KVFLAG = 8192
WS_PFLAG = 9216
WS_KV = 12288
WS_CSG = 143360; WS_CSQ = 155648; WS_RS = 163840; WS_SF = 180224
WS_STAT = 262144
WS_STAMP = 524288
WS_AP = 1 << 20
WS_WP = 12 << 20
WS_SIZE = 16 << 20
HUGE = 0x7F000000
L_XS = 0
L_TB = 0; RS = 528
L_WR = 67584
L_MISC = 149504
L_PACK = 0
LG_WR = 65536
LG_MISC = 147456
L_CSF = LG_MISC + 12288
L_PHI = L_MISC + 4096
L_ZERO = L_MISC
L_CS = L_MISC + 10240
L_KB = L_MISC + 2048
SX, SW, SWS, SDBG, SOUT, SAUX = "s[4:7]", "s[8:11]", "s[12:15]", "s[16:19]", "s[20:23]", "s[24:27]"
sW, sMT, sSL, sRT, sNT, sROT = 28, 29, 30, 31, 52, 53
sXB, sWB, sKX, sKW, sT0, sT1, sT2, sT3 = 54, 55, 56, 57, 58, 59, 60, 61
sXM0, sWM0, sAPB, sONE, sWPB, sACB, sWP4, sWP5 = 62, 63, 64, 65, 66, 67, 68, 69
sST = 70
sSPIN = 74
sPKS, sPKD = 75, 76
sPKF = 101
sSTAMP = 80
vL, vL16, vXO, vWO, vQO = 1, 2, 3, 5, 10
vXA, vWA, vWB_, vQA, vQB = 16, 20, 24, 28, 32
vSEL, vMB, vC, vSD, vST = 36, 40, 44, 45, 46
vCS = 48
vT = 68
vONE = 115
vFL = 15
NF, DPF = 10, 7
aWF = 160

STAMPS = False
GROT = 1
PREF = 0
CODEPF = 1
T2AT = 0
T3AT = 11
XRAT = 11
H0AT = 22
P1AT = 4
PBS = [(4, 7, 11), (12, 15, 19), (22, 24, 28)]
B0AT = 13
QP1AT = 3
QPB = (3, 5, 8)
QF = (60, 88)
QC0 = 1
QS1 = 0
WPT = 0
WPD = 0
QTAT = 0
QWPT = 0
XRE = 1
PACE = 1.33
QPACE = 2
QP1 = 80
QP2 = 55
QP3 = 80
E3P = 40
E3CUT = 4
KP = 250
CAPA = 5
CAPB = 8
ROLE = ['g']
STGRP = 0
ABL = set()
STAMPOP = 's_memrealtime'
nstamp = [0]
def stamp(S, grp=0):
    if STAMPS and (grp == STGRP or grp < 0 or (grp == 0 and STGRP == 2 and ROLE[0] == "q")):
        i = nstamp[0]; nstamp[0] += 1
        S(f"{STAMPOP} s[94:95]")
        S.drain(vm=False)
        S(f"v_writelane_b32 v0, s94, {i}")

def v(a, n=1): return f"v{a}" if n == 1 else f"v[{a}:{a+n-1}]"
def a_(a, n=1): return f"a{a}" if n == 1 else f"a[{a}:{a+n-1}]"

slow_paths = []
def cmp_mask(vreg, n, mask):
    lo, hi = mask & 0xFFFFFFFF, mask >> 32
    L = []
    if n == 2: L.append(f"v_and_b32 {v(vreg)}, {v(vreg)}, {v(vreg+1)}")
    L.append(f"v_cmp_ne_u32 vcc, 1, {v(vreg)}")
    if hi:
        L += [f"s_and_b32 s{sT0}, vcc_lo, {hex(lo)}", f"s_and_b32 s{sT1}, vcc_hi, {hex(hi)}", f"s_or_b32 s{sT0}, s{sT0}, s{sT1}"]
    else:
        L += [f"s_and_b32 s{sT0}, vcc_lo, {hex(lo)}"]
    return L
def spin_lines(name, vreg, n, load, mask, sleep=6):
    C = cmp_mask(vreg, n, mask)
    k = 2 if n == 2 else 1
    return [f"    s_mov_b32 s{sSPIN}, 0x8000", f"L_spin_{name}:", f"    s_sleep {sleep}", "    " + load, "    s_waitcnt vmcnt(0)",
            f"    s_sub_u32 s{sSPIN}, s{sSPIN}, 1", f"    s_cbranch_scc1 L_out_{name}"] + ["    " + c for c in C[:k]] + ["    s_nop 1"] + ["    " + c for c in C[k:]] + \
           [f"    s_cbranch_scc1 L_spin_{name}", f"L_out_{name}:"]
def poll_check(S, name, vreg, n, load, mask):
    S(*cmp_mask(vreg, n, mask))
    S(f"s_cbranch_scc1 L_slow_{name}", f"L_back_{name}:")
    slow_paths.append([f"L_slow_{name}:"] + spin_lines(name, vreg, n, load, mask) + [f"    s_branch L_back_{name}"])

def divmod_v(S, q, r, x, d, tmp_s=sT0):
    m = (1 << 16) // d + 1
    S(f"v_mul_u32_u24 {v(q)}, {m}, {v(x)}", f"v_lshrrev_b32 {v(q)}, 16, {v(q)}",
      f"v_mul_u32_u24 {v(r)}, {d}, {v(q)}", f"v_sub_u32 {v(r)}, {v(x)}, {v(r)}")

def prologue():
    S = Stream()
    S("s_cmp_ge_u32 s2, 256", "s_cbranch_scc1 L_end")
    S("s_load_dwordx16 s[32:47], s[0:1], 0", "s_load_dwordx4 s[48:51], s[0:1], 64", "s_load_dwordx2 s[12:13], s[0:1], 80")
    S(f"v_lshrrev_b32 {v(vT)}, 6, v0", f"v_and_b32 {v(vL)}, 63, v0", f"v_readfirstlane_b32 s{sW}, {v(vT)}")
    S(f"v_lshlrev_b32 {v(vL16)}, 4, {v(vL)}")
    S("s_and_b32 s3, s2, 7", f"s_lshr_b32 s{sT0}, s2, 3")
    S(f"s_and_b32 s{sMT}, s3, 1", f"s_lshl_b32 s{sMT}, s{sMT}, 3", f"s_and_b32 s{sT1}, s{sT0}, 7", f"s_add_u32 s{sMT}, s{sMT}, s{sT1}")
    S(f"s_lshr_b32 s{sT1}, s{sT0}, 3")
    S(f"s_and_b32 s{sSL}, s3, 6", f"s_and_b32 s{sT2}, s{sT1}, 1", f"s_add_u32 s{sSL}, s{sSL}, s{sT2}")
    S(f"s_lshl_b32 s{sRT}, s3, 2", f"s_and_b32 s{sT2}, s{sT0}, 3", f"s_add_u32 s{sRT}, s{sRT}, s{sT2}", f"s_lshr_b32 s{sNT}, s{sT0}, 2")
    S(f"s_lshr_b32 s{sT3}, s{sT1}, 1")
    S(f"s_add_u32 s{sROT}, s{sMT}, s{sSL}", f"s_mul_i32 s{sT2}, s{sROT}, 52", f"s_lshr_b32 s{sT2}, s{sT2}, 8", f"s_mul_i32 s{sT2}, s{sT2}, 5",
      f"s_sub_u32 s{sROT}, s{sROT}, s{sT2}", f"s_lshl_b32 s{sROT}, s{sROT}, 1")
    if PREF: S(f"s_mov_b32 s{sROT}, 0")
    S(f"s_lshl_b32 s{sT2}, s{sSL}, 1", f"s_add_u32 s{sT2}, s{sT2}, s{sMT}", f"s_mul_i32 s{sT1}, s{sT2}, 26", f"s_lshr_b32 s{sT1}, s{sT1}, 8", f"s_mul_i32 s{sT1}, s{sT1}, 10", f"s_sub_u32 s{sT2}, s{sT2}, s{sT1}",
      f"s_cmp_eq_u32 s{sT3}, 0", f"s_cselect_b32 s{sROT}, s{sT2}, s{sROT}")
    S(f"v_mov_b32 {v(vFL)}, {hex(HUGE)}", "v_cmp_eq_u32 vcc, 0, v0", f"v_cndmask_b32 {v(vFL)}, {v(vFL)}, 0, vcc")
    S(f"s_mov_b32 s{sONE}, 1", "v_accvgpr_write_b32 a255, 1")
    t = vT
    S(f"v_lshrrev_b32 {v(t)}, 3, {v(vL)}", f"v_mul_u32_u24 {v(t)}, 1280, {v(t)}",
      f"v_lshrrev_b32 {v(t+1)}, 4, {v(vL)}", f"v_and_b32 {v(t+2)}, 7, {v(vL)}", f"v_xor_b32 {v(t+1)}, {v(t+1)}, {v(t+2)}",
      f"v_lshl_add_u32 {v(vXO)}, {v(t+1)}, 4, {v(t)}", f"v_xor_b32 {v(t+1)}, 4, {v(t+1)}", f"v_lshl_add_u32 {v(vXO+1)}, {v(t+1)}, 4, {v(t)}",
      f"v_add_u32 {v(XO[1])}, 9216, {v(XO[1])}", f"v_add_u32 {v(XO[2])}, {2*9216}, {v(XO[0])}", f"v_add_u32 {v(XO[3])}, {2*9216}, {v(XO[1])}")
    S("s_mov_b32 s4, s32", "s_mov_b32 s5, s33", "s_mov_b32 s6, 2621440", "s_mov_b32 s7, 0x20000")
    S(f"s_mov_b32 s14, {WS_SIZE}", "s_mov_b32 s15, 0x20000")
    S("s_mov_b32 s16, s50", "s_mov_b32 s17, s51", "s_mov_b32 s18, 256", "s_mov_b32 s19, 0x20000")
    S("s_mov_b32 s20, s48", "s_mov_b32 s21, s49", "s_mov_b32 s22, 2621440", "s_mov_b32 s23, 0x20000")
    S("s_mov_b32 s11, 0x20000", "s_mov_b32 s27, 0x20000")
    S(f"s_lshl_b32 s{sXB}, s{sMT}, 2", f"s_add_u32 s{sXB}, s{sXB}, s{sW}", f"s_mul_i32 s{sAPB}, s{sXB}, {136*1024}", f"s_add_u32 s{sAPB}, s{sAPB}, {WS_AP}",
      f"s_mul_i32 s{sXB}, s{sXB}, {32*1280}", f"s_lshl_b32 s{sXM0}, s{sW}, 14")
    S(f"s_lshl_b32 s{sKX}, s{sROT}, 7", f"s_add_u32 s{sKX}, s{sKX}, s{sXB}", f"s_add_u32 s90, s{sXB}, 1280")
    stamp(S, -1)
    S("s_mov_b32 s24, s12", "s_mov_b32 s25, s13", f"s_lshl_b32 s{sT1}, s{sT3}, 3", f"s_add_u32 s{sT1}, s{sT1}, s{sSL}", f"s_cmp_eq_u32 s{sT1}, 15", f"s_cselect_b32 s26, {WS_SIZE}, 0", f"s_cselect_b32 s{sST+3}, 0, {hex(HUGE)}")
    for i in range(4): S(f"v_mov_b32 {v(100+i)}, 0")
    S(f"s_lshl_b32 s{sT1}, s{sMT}, 2", f"s_add_u32 s{sT1}, s{sT1}, s{sW}", f"s_mul_i32 s{sT1}, s{sT1}, 3072")
    for i in range(3): S.I(f"buffer_store_dwordx4 {v(100,4)}, {v(vL16)}, {SAUX}, s{sT1} offen offset:{1024*i} sc1", tok="zst" if i == 2 else None)
    S += x_dma(0)
    S(f"s_cmp_eq_u32 s{sT3}, 1", "s_cbranch_scc1 L_qkv")
    return S

XO = [3, 4, 112, 113]
def x_dma(i):
    S = Stream()
    S(f"s_add_u32 m0, s{sXM0}, {L_XS + (i % 4) * 4096}")
    for j in range(4):
        S.I(f"buffer_load_dwordx4 {v(XO[j])}, {SX}, s{sKX} offen offset:{j*1024} lds", tok=f"x{i}" if j == 3 else None)
    if i < 9: S(f"s_add_u32 s{sKX}, s{sKX}, 128", f"s_cmp_eq_u32 s{sKX}, s90", f"s_cselect_b32 s{sKX}, s{sXB}, s{sKX}")
    return S
sKT = 80
def ktable(S, mult, base_s):
    S(f"s_mul_i32 s{sKT}, s{sROT}, {mult}", f"s_add_u32 s{sKT}, s{sKT}, s{base_s}", f"s_add_u32 s91, s{base_s}, {10*mult}")
def ktable_rest(S, mult, base_s):
    for i in range(1, 10):
        S(f"s_add_u32 s{sKT+i}, s{sKT+i-1}, {mult}")
        if i % 2 == 0 or ROLE[0] == 'g': S(f"s_cmp_eq_u32 s{sKT+i}, s91", f"s_cselect_b32 s{sKT+i}, s{base_s}, s{sKT+i}")

def x_reads(i):
    S = Stream()
    for p in range(4):
        S.I(f"ds_read_b128 {a_(16*i+4*p,4)}, {v(vXA+p)} offset:{(i % 4)*4096}", tok=f"xr{i}" if p == 3 else None)
    return S

def code_pf(tag):
    S = Stream(); t = vT
    if CODEPF:
        S("s_getpc_b64 s[48:49]", f"L_pc{tag}:", f"s_sub_u32 s48, s48, (L_pc{tag}-{KN})", "s_subb_u32 s49, s49, 0")
        S("s_lshr_b32 s50, s2, 3", "s_lshl_b32 s50, s50, 2", f"s_add_u32 s50, s50, s{sW}", "s_lshl_b32 s50, s50, 10",
          f"v_and_b32 {v(t)}, 7, {v(vL)}", f"v_lshl_add_u32 {v(t)}, {v(t)}, 7, s50", f"v_min_u32 {v(t)}, (L_end-{KN}), {v(t)}", f"global_load_dword a254, {v(t)}, s[48:49]")
    return S
def xaddr_setup(S, wave_xor):
    t = vT
    S(f"v_and_b32 {v(t)}, 31, {v(vL)}", f"v_bfe_u32 {v(t+1)}, {v(vL)}, 1, 3", f"v_lshrrev_b32 {v(t+2)}, 5, {v(vL)}", f"v_xor_b32 {v(t+1)}, {v(t+1)}, {v(t+2)}")
    if wave_xor:
        S(f"s_lshl_b32 s{sT0}, s{sW}, 1", f"v_xor_b32 {v(t+1)}, s{sT0}, {v(t+1)}")
    S(f"v_lshlrev_b32 {v(t)}, 7, {v(t)}", f"v_add_u32 {v(t)}, s{sXM0}, {v(t)}")
    for p in range(4):
        S(f"v_xor_b32 {v(t+2)}, {2*p}, {v(t+1)}", f"v_lshl_add_u32 {v(vXA+p)}, {v(t+2)}, 4, {v(t)}")

def sel_setup(S):
    t = vT
    S(f"v_lshrrev_b32 {v(t)}, 4, {v(vL)}", f"v_xor_b32 {v(t)}, {v(t)}, {v(vL)}", f"v_and_b32 {v(t)}, 1, {v(t)}", f"v_cmp_eq_u32 vcc, 0, {v(t)}",
      f"v_mov_b32 {v(t+1)}, 0x3f803f80")
    for i in range(4): S(f"v_cndmask_b32 {v(vSEL+i)}, 0, {v(t+1)}, vcc")
    S("s_mov_b32 s96, 0x0000ffff", "s_mov_b32 s97, 0x0000ffff")

vPK = vT + 40
def pack_vec(S):
    t = vT
    S(f"v_lshrrev_b32 {v(t)}, 3, {v(vL)}", f"v_mul_u32_u24 {v(t)}, 1280, {v(t)}", f"v_and_b32 {v(t+1)}, 7, {v(vL)}", f"v_lshl_add_u32 {v(vPK)}, {v(t+1)}, 4, {v(t)}")
    S(f"v_lshrrev_b32 {v(t)}, 4, {v(vL)}", f"v_bfe_u32 {v(t+1)}, {v(vL)}, 2, 2", f"v_lshl_add_u32 {v(t)}, {v(t)}, 3, {v(t+1)}", f"v_lshlrev_b32 {v(t)}, 7, {v(t)}",
      f"v_and_b32 {v(t+1)}, 3, {v(vL)}", f"v_lshl_add_u32 {v(t)}, {v(t+1)}, 3, {v(t)}", f"s_lshl_b32 s{sT0}, s{sW}, 12", f"s_add_u32 s{sT0}, s{sT0}, {LG_MISC}", f"v_add_u32 {v(vPK+1)}, s{sT0}, {v(t)}")
PKV = 192
def pack_pre(u, unit_s):
    S = Stream(); A, B, C = 48, 49, 50; R = PKV + 8 * u
    S(f"s_mul_i32 s51, s{unit_s}, 6554", "s_lshr_b32 s51, s51, 16", "s_mul_i32 s43, s51, 10", f"s_sub_u32 s43, s{unit_s}, s43")
    if u == 0: S("s_cmp_lt_u32 s51, 48", "s_cselect_b32 s40, s46, s38", "s_cselect_b32 s41, s47, s39", "s_mov_b32 s42, 819200", "s_cselect_b32 s42, 1966080, s42")
    for j in range(4):
        if j % 2 == 0:
            S(f"s_lshl_b32 s{C}, s51, 1")
            if j: S(f"s_add_u32 s{C}, s{C}, 1")
            S(f"s_bfe_u32 s{A}, s{C}, 0x30002", f"s_mul_i32 s{A}, s{A}, 3", f"s_lshr_b32 s3, s{C}, 5", f"s_add_u32 s{A}, s{A}, s3", f"s_lshl_b32 s{A}, s{A}, 2", f"s_and_b32 s3, s{C}, 3", f"s_add_u32 s{A}, s{A}, s3",
              f"s_lshl_b32 s{A}, s{A}, 4", f"s_sub_u32 s{C}, s{C}, 96", f"s_max_i32 s{C}, s{C}, 0", f"s_mul_i32 s3, s{C}, 52", "s_lshr_b32 s3, s3, 8", "s_mul_i32 s3, s3, 40",
              f"s_lshl_b32 s{C}, s{C}, 3", f"s_add_u32 s{C}, s{C}, s3", "s_cmp_lt_u32 s51, 48", f"s_cselect_b32 s{A}, s{A}, s{C}", f"s_cselect_b32 s{B}, {8*1280}, s{B}",
              f"s_mov_b32 s3, {40*1280}", f"s_cselect_b32 s{B}, s{B}, s3", f"s_mul_i32 s{A}, s{A}, 1280", "s_lshl_b32 s3, s43, 7", f"s_add_u32 s{A}, s{A}, s3")
        else: S(f"s_add_u32 s{A}, s{A}, s{B}")
        S(f"s_sub_u32 s3, s{A}, {1024*j}")
        if u: S(f"s_cmp_lt_u32 s{unit_s}, 680", f"s_cselect_b32 s3, s3, {hex(HUGE)}")
        S(f"v_add_u32 {v(R+j)}, s3, {v(vPK)}")
    for t in range(4):
        S(f"s_lshl_b32 s{A}, s43, 2")
        if t: S(f"s_add_u32 s{A}, s{A}, {t}")
        S(f"s_mul_i32 s{B}, s{A}, 52", f"s_lshr_b32 s{B}, s{B}, 8", f"s_mul_i32 s{B}, s{B}, 335", f"s_add_u32 s{A}, s{A}, s{B}", f"s_mul_i32 s{B}, s51, 5", f"s_add_u32 s{A}, s{A}, s{B}",
          f"s_lshl_b32 s{A}, s{A}, 10", f"s_add_u32 s{A}, s{A}, {WS_WP}")
        if u: S(f"s_cmp_lt_u32 s{unit_s}, 680", f"s_cselect_b32 s{A}, s{A}, {hex(HUGE)}")
        S(f"v_add_u32 {v(R+4+t)}, s{A}, {v(vL16)}")
    return S
def pack_dma(u, unit_s=None):
    S = Stream(); R = PKV + 8 * u
    if u == 0: S("s_mov_b32 s24, s40", "s_mov_b32 s25, s41", "s_mov_b32 s26, s42")
    else: S("s_mov_b32 s24, s38", "s_mov_b32 s25, s39", "s_mov_b32 s26, 819200")
    S(f"s_add_u32 m0, s{sWM0}, {LG_MISC}")
    for j in range(4): S.I(f"buffer_load_dwordx4 {v(R+j)}, {SAUX}, 0 offen offset:{1024*j} lds", tok=f"packdma{u}" if j == 3 else None)
    if u: S("s_mov_b32 s24, s12", "s_mov_b32 s25, s13")
    return S
def pack_finish(u):
    S = Stream(); d = vT + 20; R = PKV + 8 * u
    S.wait(f"packdma{u}")
    for t in range(4):
        for r2 in range(2): S(f"ds_read_b64_tr_b16 {v(d+4*t+2*r2,2)}, {v(vPK+1)} offset:{r2*512+32*t}")
    for t in range(4): S.I(f"buffer_store_dwordx4 {v(d+4*t,4)}, {v(R+4+t)}, {SWS}, 0 offen sc1", tok=f"chores{u}" if t == 3 else None)
    return S

def poll1_issue():
    S = Stream()
    S(f"v_and_b32 {v(vT+18)}, 15, {v(vL)}", f"v_lshlrev_b32 {v(vT+18)}, 2, {v(vT+18)}", f"buffer_load_dword {v(vT+16)}, {v(vT+18)}, {SDBG}, 0 offen sc1")
    return S
def poll1_check(tag):
    S = Stream()
    poll_check(S, "i" + tag, vT+16, 1, f"buffer_load_dword {v(vT+16)}, {v(vT+18)}, {SDBG}, 0 offen sc1", 0xFFFF)
    return S
def poll2_issue():
    S = Stream()
    S(f"v_lshrrev_b32 {v(vT+18)}, 2, {v(vL)}", f"v_lshlrev_b32 {v(vT+18)}, 7, {v(vT+18)}", f"v_and_b32 {v(vT+16)}, 3, {v(vL)}", f"v_lshl_add_u32 {v(vT+18)}, {v(vT+16)}, 3, {v(vT+18)}",
      f"s_mov_b32 s{sPKF}, {WS_PFLAG}",
      f"buffer_load_dwordx2 {v(vT+16,2)}, {v(vT+18)}, {SWS}, s{sPKF} offen sc1")
    return S
def poll2_check(tag):
    S = Stream()
    poll_check(S, "k" + tag, vT+16, 2, f"buffer_load_dwordx2 {v(vT+16,2)}, {v(vT+18)}, {SWS}, s{sPKF} offen sc1", (1 << 64) - 1)
    return S

vRS, vSQ = 116, 120
def stat_mfma(which, xr, zero):
    if which == 0: return f"v_mfma_f32_16x16x32_bf16 {v(vRS,4)}, {v(vSEL,4)}, {a_(xr,4)}, {'0' if zero else v(vRS,4)}"
    h = which - 1
    return f"v_mfma_f32_4x4x4_16b_bf16 {v(vSQ+4*h,4)}, {a_(xr+2*h,2)}, {a_(xr+2*h,2)}, {'0' if zero else v(vSQ+4*h,4)}"

def split3(S, d, x, t, side):
    S(f"v_cvt_pk_bf16_f32 {v(t)}, {v(x)}, {v(x)}", f"v_lshlrev_b32 {v(t+2)}, 16, {v(t)}", f"v_sub_f32 {v(t+1)}, {v(x)}, {v(t+2)}")
    if side == "A":
        S(f"v_mov_b32 {v(d)}, {v(t)}", f"v_cvt_pk_bf16_f32 {v(d+1)}, {v(x)}, {v(t+1)}", f"v_and_b32 {v(t+2)}, 0xffff0000, {v(d+1)}",
          f"v_sub_f32 {v(t+2)}, {v(t+1)}, {v(t+2)}", f"v_cvt_pk_bf16_f32 {v(d+2)}, {v(t+1)}, {v(t+2)}", f"v_mov_b32 {v(d+3)}, 0")
    else:
        S(f"v_cvt_pk_bf16_f32 {v(d)}, {v(x)}, {v(t+1)}", f"v_and_b32 {v(t+2)}, 0xffff0000, {v(d)}", f"v_sub_f32 {v(t+2)}, {v(t+1)}, {v(t+2)}",
          f"v_cvt_pk_bf16_f32 {v(d+1)}, {v(t+2)}, {v(x)}", f"v_cvt_pk_bf16_f32 {v(d+2)}, {v(t+1)}, {v(x)}", f"v_mov_b32 {v(d+3)}, 0")

def stats_consume(cmul):
    S = Stream(); t = vT + 12
    S(f"v_cndmask_b32 {v(vST)}, {v(vRS+1)}, {v(vRS)}, s[96:97]")
    for i in range(4): S(f"v_add_f32 {v(vSQ+i)}, {v(vSQ+i)}, {v(vSQ+4+i)}")
    S("s_mov_b32 s98, 0xaaaaaaaa", "s_mov_b32 s99, 0xaaaaaaaa")
    S(f"v_cndmask_b32 {v(vSQ)}, {v(vSQ)}, {v(vSQ+1)}, s[98:99]", f"v_cndmask_b32 {v(vSQ+2)}, {v(vSQ+2)}, {v(vSQ+3)}, s[98:99]")
    S("s_mov_b32 s98, 0xcccccccc", "s_mov_b32 s99, 0xcccccccc")
    S(f"v_cndmask_b32 {v(vSQ)}, {v(vSQ)}, {v(vSQ+2)}, s[98:99]", f"v_mul_f32 {v(vST)}, {hex(0x3acccccd)}, {v(vST)}", f"v_mov_b32 {v(vSQ+1)}, {v(vSQ)}")
    S(f"v_permlane32_swap_b32 {v(vSQ)}, {v(vSQ+1)}", f"v_add_f32 {v(vSQ)}, {v(vSQ)}, {v(vSQ+1)}", f"v_mul_f32 {v(vSQ)}, {hex(0x3acccccd)}, {v(vSQ)}")
    S(f"v_fma_f32 {v(vSQ)}, -{v(vST)}, {v(vST)}, {v(vSQ)}", f"v_max_f32 {v(vSQ)}, 0, {v(vSQ)}", f"v_add_f32 {v(vSQ)}, {hex(0x3727c5ac)}, {v(vSQ)}")
    S(f"v_rsq_f32 {v(vST+1)}, {v(vSQ)}", f"v_sqrt_f32 {v(vSD)}, {v(vSQ)}")
    S("s_mov_b32 s98, -1", "s_mov_b32 s99, 0", f"v_sub_f32 {v(t)}, 0, {v(vST)}", f"v_cndmask_b32 {v(t)}, 0, {v(t)}, s[98:99]")
    split3(S, vMB, t, t+1, "B")
    S(f"v_mul_f32 {v(vC)}, {cmul}, {v(vST+1)}")
    return S

def cond_voff(S, dst, base_v, cond_s, lim, lanes_lo_only, tmp_s=sT0):
    S(f"s_cmp_lt_u32 s{cond_s}, {lim}", f"s_cselect_b32 s98, -1, 0", "s_mov_b32 s99, 0" if lanes_lo_only else "s_mov_b32 s99, s98",
      f"v_mov_b32 {v(dst)}, {hex(HUGE)}", f"v_cndmask_b32 {v(dst)}, {v(dst)}, {v(base_v)}, s[98:99]")
def poll_setup(S, dst, line_a_s, line_b_s, t):
    S(f"v_and_b32 {v(t)}, 15, {v(vL)}", f"v_lshlrev_b32 {v(t)}, 2, {v(t)}", f"v_add_u32 {v(dst)}, s{line_a_s}, {v(t)}", f"v_add_u32 {v(t)}, s{line_b_s}, {v(t)}",
      f"v_cndmask_b32 {v(dst)}, {v(t)}, {v(dst)}, s[96:97]")
def stats_from_sums(cmul, su, sq):
    S = Stream(); t = vT + 12
    S(f"v_mul_f32 {v(vST)}, {hex(0x3acccccd)}, {v(su)}", f"v_mul_f32 {v(sq)}, {hex(0x3acccccd)}, {v(sq)}")
    S(f"v_fma_f32 {v(sq)}, -{v(vST)}, {v(vST)}, {v(sq)}", f"v_max_f32 {v(sq)}, 0, {v(sq)}", f"v_add_f32 {v(sq)}, {hex(0x3727c5ac)}, {v(sq)}")
    S(f"v_rsq_f32 {v(vST+1)}, {v(sq)}", f"v_sqrt_f32 {v(vSD)}, {v(sq)}")
    S("s_mov_b32 s98, -1", "s_mov_b32 s99, 0", f"v_sub_f32 {v(t)}, 0, {v(vST)}", f"v_cndmask_b32 {v(t)}, 0, {v(t)}, s[98:99]")
    split3(S, vMB, t, t+1, "B")
    S(f"v_mul_f32 {v(vC)}, {cmul}, {v(vST+1)}")
    return S

class Core:
    def __init__(self, stages, R, tokbase):
        self.stages = stages; self.R = R; self.tb = tokbase
    def build(self, pre_issued, hooks_bar=None, hooks_after=None, first_wait=()):
        hooks_bar = hooks_bar or {}; hooks_after = hooks_after or {}
        st = self.stages
        seq = [(i, m) for i, s in enumerate(st) for m in s["mf"]]
        first = {}
        for n, (i, m) in enumerate(seq): first.setdefault(i, n)
        N = len(seq)
        def reads(n):
            (acc, r0, r1, xr, cs, zero, ex) = seq[n][1]
            f = aWF + 4 * (n % NF)
            return [Ins(f"ds_read_b64_tr_b16 {a_(f,2)}, {r0}"), Ins(f"ds_read_b64_tr_b16 {a_(f+2,2)}, {r1}", tok=f"fr{self.tb}{n}")]
        def open_stage(S, i):
            toks = [f"{self.tb}{i}"] + list(hooks_bar.get(i, []))
            if st[i]["xs"] is not None: toks.append(f"x{st[i]['xs']}")
            if 'nowait' not in ABL: S.wait(*toks)
            if 'nobar' not in ABL: S("s_barrier")
        head = Stream()
        open_stage(head, 0)
        if st[0]["xs"] is not None: head += x_reads(st[0]["xs"])
        for n in range(DPF): head += reads(n)
        slots = [Stream() for _ in range(N)]
        tails = [Stream() for _ in range(N)]
        extras = [[] for _ in range(N)]
        def spread(n0, stream, dscost=0.5, pace=1):
            grp = Stream(); cnt = 0; n = n0; last = n0
            for ins in stream:
                grp.append(ins)
                vm = ins.kind in ("vm_dma", "vm_ld", "vm_st")
                if vm or ins.kind == "mfma": cnt += 1
                elif ins.kind in ("ds_rd", "ds_wr"): cnt += dscost
                if cnt >= 1:
                    extras[min(int(n), N-1)].append(grp); grp = Stream(); cnt = 0; last = n; n += (pace if vm else 1)
            if grp: extras[min(int(last), N-1)].append(grp)
            return n
        qptr = [0]
        if 0 in hooks_after: qptr[0] = spread(0, hooks_after[0], pace=st[0].get("pace", 1))
        for n in range(N):
            i, (acc, r0, r1, xr, cs, zero, ex) = seq[n]
            S = slots[n]; f = aWF + 4 * (n % NF)
            if PAIRWAIT and n % 2 == 0 and n + 1 < N: S.wait(f"fr{self.tb}{n+1}")
            S(f"v_mfma_f32_32x32x16_bf16 {v(acc,16)}, {a_(f,4)}, {a_(xr,4)}, {'0' if zero else v(acc,16)}")
            if cs is not None and 'nocs' not in ABL:
                tails[n](f"v_mfma_f32_16x16x32_bf16 {v(cs[0],4)}, {v(vSEL,4)}, {a_(f,4)}, {'0' if cs[1] else v(cs[0],4)}")
            if ex and 'nostat' not in ABL: tails[n](ex)
            m = n + DPF
            if m < N:
                j = seq[m][0]
                if first[j] == m:
                    open_stage(S, j)
                    k = n
                    if st[j]["xs"] is not None: k = spread(k, x_reads(st[j]["xs"]), dscost=1) - 3
                    k = max(k, qptr[0])
                    d = Stream()
                    if st[j]["xs"] is not None and st[j]["xs"] + 3 < 10 and st[j]["xs"] >= 1:
                        d.wait(f"xr{st[j]['xs']-1}"); d += x_dma(st[j]["xs"] + 3)
                    w = j - 2 + self.R
                    if w >= pre_issued and w < len(st): d += st[w]["dma"]
                    if j in hooks_after: d += hooks_after[j]
                    qptr[0] = spread(k, d, pace=st[j].get("pace", 1))
                S += reads(m)
            for g in extras[n]: S += g
        self.tails = tails
        return head, slots, first

ST0 = 7
def w2_slot(k):
    if ST0 <= k < ST0 + 7: k -= 7
    if k < 5: return ("a", 20 * k)
    if k >= 14: return ("a", 20 * (k - 9))
    return ("a", 200 + 20 * (k - 5)) if ROLE[0] == "g" else ("v", 208 + 20 * (k - 5))
def acc2(m4, tt):
    if ROLE[0] == "q": return v(128 + 20 * m4 + 4 * tt, 4)
    return a_(160 + 20 * (m4 - 2) + 4 * tt, 4) if m4 >= 2 else v(128 + 20 * m4 + 4 * tt, 4)
def act_base(i):
    if i & 1: return ("v", 64 if i == 1 else 48)
    return ("v", 192) if ROLE[0] == "g" else ("a", 160)
def w2_lds_addr(role, f):
    if role == "g":
        if f < 16: return (16384, ((f + 3) % 16) * 1024)
        if f < 19: return (1024, LG_MISC + (f - 16) * 4096)
        return (4096, LG_WR + ((f - 19) // 4) * 16384 + ((f - 19) % 4) * 1024)
    return (10240, 3072 + f * 1024) if f < 10 else (25600, 45056 + (f - 10) * 1024)
def w2_off(k, t):
    part = min(k // 4, 3); return sW2P + part, ((k - 4 * part) * 5 + t) * 1024
def w2_stage(role, f0, f1):
    S = Stream(); run = None
    for f in range(f0, f1):
        ws_, base = w2_lds_addr(role, f); sp, off = w2_off(ST0 + f // 5, f % 5)
        imm = off & 4095
        if run != (ws_, base - imm, sp, off >> 12) :
            run = (ws_, base - imm, sp, off >> 12)
            assert base >= imm
            S(f"s_add_u32 m0, s{sWS[ws_]}, {base - imm}")
        S.I(f"buffer_load_dwordx4 {v(VW[off >> 12])}, {SWS}, s{sp} offen offset:{imm} sc1 lds", tok=f"w2s{f}")
    return S
vLA = 43
def w2_lds_regs(role):
    keys = []
    for f in range(35):
        ws_, base = w2_lds_addr(role, f); k = (ws_, base >> 16)
        if k not in keys: keys.append(k)
    return keys
def w2_lds_setup(role):
    S = Stream()
    for n, (ws_, hi) in enumerate(w2_lds_regs(role)):
        S(f"s_add_u32 s47, s{sWS[ws_]}, {hi << 16}", f"v_add_u32 {v(vLA+n)}, s47, {v(vL16)}")
    return S
def w2_copy(role, k):
    S = Stream(); b = w2_slot(k)
    for t in range(5):
        f = (k - ST0) * 5 + t; ws_, base = w2_lds_addr(role, f)
        r = vLA + w2_lds_regs(role).index((ws_, base >> 16))
        S.I(f"ds_read_b128 {rg(b,4*t,4)}, {v(r)} offset:{base & 0xFFFF}", waits=[f"w2s{f}"])
    return S
def rg(b, off, n): return (a_ if b[0] == "a" else v)(b[1] + off, n)

P2_STEPS = [("h", 0, i) for i in range(4)] + [("h", 1, i) for i in range(4)] + [("h", 2, i) for i in range(4)] + [("o", 0, i) for i in range(5)]
PARTS = [(0, 4, 0, 192), (4, 4, 1, 64), (8, 4, 2, 192), (12, 5, 3, 48)]
sW2P, sACP = 66, 36
sWS = {16384: sXM0, 4096: sWM0, 1024: 92, 10240: 92, 25600: 93}
VW = [2, 16, 17, 18, 19, 13, 14]
def p2_setup():
    S = Stream()
    S(f"s_add_u32 s{sT2}, s{sW}, s{sNT}", f"s_and_b32 s{sR2}, s{sT2}, 3")
    S(f"s_mul_i32 s{sT2}, s{sNT}, {68*5120}", f"s_add_u32 s{sT2}, s{sT2}, {WS_WP}", f"s_mul_i32 s{sW2P}, s{sR2}, {4*5120}", f"s_add_u32 s{sW2P}, s{sW2P}, s{sT2}",
      f"s_add_u32 s{sW2P+1}, s{sW2P}, {16*5120}", f"s_add_u32 s{sW2P+2}, s{sW2P}, {32*5120}", f"s_mul_i32 s{sW2P+3}, s{sR2}, {5*5120}", f"s_add_u32 s{sW2P+3}, s{sW2P+3}, s{sT2}",
      f"s_add_u32 s{sW2P+3}, s{sW2P+3}, {48*5120}")
    if ROLE[0] == "g": S(f"s_lshl_b32 s92, s{sW}, 10")
    else: S(f"s_mul_i32 s92, s{sW}, 10240", f"s_mul_i32 s93, s{sW}, 25600")
    return S
def vw_setup():
    S = Stream()
    for j in range(1, 7): S(f"v_add_u32 {v(VW[j])}, {4096*j}, {v(vL16)}")
    return S
sR2 = 65
def w2_load(k):
    S = Stream(); b = w2_slot(k)
    for t in range(5):
        sp, off = w2_off(k, t)
        S(f"buffer_load_dwordx4 {rg(b,4*t,4)}, {v(VW[off >> 12])}, {SWS}, s{sp} offen offset:{off & 4095} sc1")
    return S
vPF, vPV, vOO, vXR, vRA = 6, 7, 9, 24, 36
VA = [29, 30, 31, 32]
sPF, sOB = 57, 76
def XRA(): return 240 if ROLE[0] == 'g' else 244
def p2_pre():
    S = Stream(); t = vT + 8
    S(f"v_lshrrev_b32 {v(t)}, 4, {v(vL)}", f"v_and_b32 {v(t+1)}, 15, {v(vL)}", f"v_lshlrev_b32 {v(t+3)}, 9, {v(t)}", f"v_lshl_add_u32 {v(t+3)}, {v(t+1)}, 4, {v(t+3)}")
    for j in range(4):
        S(f"s_add_u32 s{sT2}, s{sW}, {j}", f"s_and_b32 s3, s{sT2}, 1", "s_lshl_b32 s3, s3, 8", f"s_bfe_u32 s{sT2}, s{sT2}, 0x10001", f"s_mul_i32 s{sT2}, s{sT2}, {136*1024}", f"s_add_u32 s{sT2}, s{sT2}, s3",
          f"v_add_u32 {v(VA[j])}, s{sT2}, {v(t+3)}")
    S(f"v_and_b32 {v(vPF)}, 7, {v(vL)}", f"v_lshlrev_b32 {v(vPF)}, 2, {v(vPF)}", f"s_lshr_b32 s{sPF}, s{sRT}, 1", f"s_lshl_b32 s{sPF}, s{sPF}, 9")
    S(f"v_mul_u32_u24 {v(vOO)}, 1280, {v(t+1)}", f"v_lshl_add_u32 {v(vOO)}, {v(t)}, 3, {v(vOO)}",
      f"s_lshl_b32 s{sOB}, s{sRT}, 2", f"s_add_u32 s{sOB}, s{sOB}, s{sW}", f"s_mul_i32 s{sOB}, s{sOB}, {16*1280}", f"s_mul_i32 s{sT2}, s{sNT}, 160", f"s_add_u32 s{sOB}, s{sOB}, s{sT2}")
    S(f"s_mul_i32 s{sT2}, s{sRT}, {2*136*1024}", f"s_add_u32 s{sT2}, s{sT2}, {WS_AP}", f"s_lshl_b32 s44, s{sR2}, 13", f"s_add_u32 s44, s44, s{sT2}",
      f"s_mul_i32 s45, s{sR2}, {5*2048}", f"s_add_u32 s45, s45, s{sT2}", f"s_add_u32 s45, s45, {48*2048}")
    return S
def xre_load():
    S = Stream()
    for tt in range(5): S(f"buffer_load_dwordx2 {a_(XRA()+2*tt,2)}, {v(vOO)}, {SX}, s{sOB} offen offset:{32*tt}")
    return S
def wp_touch(r):
    S = Stream()
    S(f"s_and_b32 s48, s{sRT}, 3", "s_lshl_b32 s48, s48, 2", f"s_add_u32 s48, s48, s{sW}", f"s_mul_i32 s48, s48, {170*128}", f"s_mul_i32 s49, s{sNT}, {68*5120}", "s_add_u32 s48, s48, s49", f"s_add_u32 s48, s48, {WS_WP}",
      f"v_lshlrev_b32 {v(r)}, 7, {v(vL)}", f"buffer_load_dword a250, {v(r)}, {SWS}, s48 offen sc1", "s_add_u32 s48, s48, 8192", f"buffer_load_dword a251, {v(r)}, {SWS}, s48 offen sc1",
      f"s_add_u32 s48, s48, {42*128}", f"buffer_load_dword a253, {v(r)}, {SWS}, s48 offen sc1")
    return S
def p2_poll_txt(i): return f"buffer_load_dword {v(vPV+(i&1))}, {v(vPF)}, {SWS}, s{sPF} offen offset:{PARTS[i][2]*128} sc1"
def p2_poll(i): return Stream([Ins(p2_poll_txt(i), tok=f"pp{i}")])
def p2_L(i, srd):
    S = Stream(); k0, n, _, _ = PARTS[i]; r0 = act_base(i)
    if i < 3: S(f"s_add_u32 s46, s44, {i*16*2048}")
    else: S("s_mov_b32 s46, s45")
    for s in range(n):
        for m4 in range(4):
            S(f"buffer_load_dwordx4 {rg(r0,16*s+4*m4,4)}, {v(VA[m4])}, {srd}, s46 offen offset:{(s&1)*2048} sc1")
        if s & 1 and s + 1 < n: S(f"s_add_u32 s46, s46, 4096")
    return S
def p2_try(i):
    S = Stream()
    S(*cmp_mask(vPV + (i & 1), 1, 0xFF)); S(f"s_cselect_b32 s26, 0, {WS_SIZE}")
    return S
def phase2(tag, rest, store_tok, flag, l1_done):
    S = Stream(); t = vRA
    vXR = 168 if tag == "g" else 24
    stamp(S)
    stamp(S, 3)
    S += w2_lds_setup(tag)
    for i in range(4):
        k0, n, _, _ = PARTS[i]; r0 = act_base(i)
        bg = Stream()
        if i < 3 and not (i == 0 and l1_done):
            S += p2_try(i + 1)
            bg += p2_L(i + 1, SAUX)
        if i < len(rest): bg += rest[i]
        if i == 2 and not XRE:
            for tt in range(5): bg(f"buffer_load_dwordx2 {v(vXR+2*tt,2)}, {v(vOO)}, {SX}, s{sOB} offen offset:{32*tt}")
        M = Stream()
        for s in range(n):
            k = k0 + s; b = w2_slot(k)
            if i > 0: M(f"s_nop {s} ; WAITX")
            if i == 0 and s == FLAG_AFTER:
                M.wait(store_tok); M("s_barrier"); M += flag
            if s == POLL_STEP and i + 2 < 4: M += p2_poll(i + 2)
            if k == 12:
                M.drain(vm=False); M("s_barrier")
                for j in range(1, 4):
                    M(f"s_add_u32 s{sT0}, s{sW}, {j}", f"s_and_b32 s{sT0}, s{sT0}, 3", f"s_mul_i32 s{sT0}, s{sT0}, 15360", f"s_add_u32 s{sT0}, s{sT0}, {(j-1)*5120}", f"v_add_u32 {v(t+j)}, s{sT0}, {v(vL16)}")
                M(f"s_mul_i32 s{sT0}, s{sW}, 15360", f"v_add_u32 {v(t)}, s{sT0}, {v(vL16)}")
            for m4 in ([0, 1, 2, 3] if k < 16 else [1, 2, 3, 0]):
                for tt in range(5):
                    acc = acc2(m4, tt)
                    M(f"v_mfma_f32_16x16x32_bf16 {acc}, {rg(b,4*tt,4)}, {rg(r0,16*s+4*m4,4)}, {'0' if k == 0 else acc}")
                    if 5 <= k < 12 and m4 == 1: M.append(w2_copy(tag, k + 2)[tt])
                    if k == 12 and m4 < 2 and XRE: M(f"v_accvgpr_read_b32 {v(vXR+5*m4+tt)}, {a_(XRA()+5*m4+tt)}")
                    if k == 13 and m4 < 2: M(f"v_lshlrev_b32 {v(XU+10*m4+2*tt)}, 16, {v(vXR+5*m4+tt)}")
                    if k == 14 and m4 < 2: M(f"v_and_b32 {v(XU+10*m4+2*tt+1)}, 0xffff0000, {v(vXR+5*m4+tt)}")
                    if k == 16 and m4 != 1:
                        pm = (m4 - 1) & 3
                        M(f"ds_write_b128 {v(t+pm)}, {acc2(pm,tt)} offset:{tt*1024}")
            if s == 0 or s == n - 1: stamp(M, 3)
        M = sprinkle(M, bg, P2_PERIOD)
        cnt = 0
        for x in M:
            if x.kind in ("vm_ld", "vm_st", "vm_dma"): cnt += 1
            if "WAITX" in x.text:
                s = int(x.text.split()[1]); S(f"s_waitcnt vmcnt({min(63, 4*(n-1-s)+cnt)})")
            else: S.append(x)
        if i < 3:
            nm = f"p{i+1}{tag}"
            if i + 2 < 4: S.wait(f"pp{i+2}")
            S("s_cmp_eq_u32 s26, 0", f"s_cbranch_scc1 L_slow_{nm}", f"L_back_{nm}:")
            ld = p2_poll_txt(i + 1) + (("\n    " + p2_poll_txt(i + 2)) if i + 2 < 4 else "")
            L = [f"L_slow_{nm}:"] + spin_lines(nm, vPV + ((i + 1) & 1), 1, ld, 0xFF, sleep=3)
            L += ["    " + x.text for x in p2_L(i + 1, SWS)]
            L.append(f"    s_branch L_back_{nm}")
            slow_paths.append(L)
        stamp(S)
        stamp(S, 3)
    S.drain(vm=False); S("s_barrier")
    R0 = 48
    for s in range(3):
        for tt in range(5): S(f"ds_read_b128 {v(R0+20*s+4*tt,4)}, {v(t)} offset:{s*5120+tt*1024}")
    for i in range(10): S(f"v_pk_add_f32 {v(XU+2*i,2)}, {v(XU+2*i,2)}, {v(128+2*i,2)}")
    for s in range(3):
        for i in range(10): S(f"v_pk_add_f32 {v(XU+2*i,2)}, {v(XU+2*i,2)}, {v(R0+20*s+2*i,2)}")
    for tt in range(5):
        S(f"v_cvt_pk_bf16_f32 {v(vXR+2*tt)}, {v(XU+4*tt)}, {v(XU+4*tt+1)}", f"v_cvt_pk_bf16_f32 {v(vXR+2*tt+1)}, {v(XU+4*tt+2)}, {v(XU+4*tt+3)}")
        S(f"buffer_store_dwordx2 {v(vXR+2*tt,2)}, {v(vOO)}, {SOUT}, s{sOB} offen offset:{32*tt} {OUTFLAGS}")
    stamp(S)
    if STAMPS:
        S(f"s_lshl_b32 s{sT0}, s2, 8", f"s_add_u32 s{sT0}, s{sT0}, {WS_STAMP}", f"s_cmp_eq_u32 s{sW}, 0", f"s_cselect_b32 s{sT1}, 0, {hex(HUGE)}",
          f"v_lshlrev_b32 {v(48)}, 2, {v(vL)}", f"v_or_b32 {v(48)}, s{sT1}, {v(48)}", f"buffer_store_dword v0, {v(48)}, {SWS}, s{sT0} offen")
    S("s_endpgm")
    return S
FLAG_AFTER = 1
P2_PERIOD = 48
H1FLAG_AT = 27
XU = 208
OUTFLAGS = ''
POLL_STEP = 2
POLL2_AT = 15
PK_AT = 3
ROT2MASK = 3
EPI_RATE = 2.75
EPI_RATE2 = 3.3
W2CAP17 = 0
EPI_LAG = 1
PAIRWAIT = 1

def flag_store(off_s, imm):
    S = Stream()
    S(f"buffer_store_dword a255, {v(vFL)}, {SWS}, s{off_s} offen offset:{imm} sc1")
    return S

def glu_path():
    S = Stream(); t = vT
    ACC = [128, 192, 128]
    if PREF:
        S(f"v_and_b32 {v(t)}, 15, {v(vL)}", f"v_mul_u32_u24 {v(t)}, 1280, {v(t)}", f"v_lshrrev_b32 {v(t+1)}, 4, {v(vL)}", f"v_lshl_add_u32 {v(t)}, {v(t+1)}, 7, {v(t)}",
          f"s_lshl_b32 s48, s{sMT}, 1", f"s_and_b32 s49, s{sSL}, 1", "s_add_u32 s48, s48, s49", "s_lshl_b32 s48, s48, 2", f"s_add_u32 s48, s48, s{sW}", f"s_mul_i32 s50, s48, {16*1280}",
          f"buffer_load_dword {v(128)}, {v(t)}, {SX}, s50 offen")
        divmod_v(S, t+2, t+3, vL, 6)
        S(f"v_min_u32 {v(t+2)}, 9, {v(t+2)}", f"v_mul_u32_u24 {v(t+2)}, {64*3840}, {v(t+2)}", f"v_lshl_add_u32 {v(t+2)}, {v(t+3)}, 7, {v(t+2)}", f"v_cmp_lt_u32 vcc, 2, {v(t+3)}",
          f"v_mov_b32 {v(t+4)}, {1280-384}", f"v_cndmask_b32 {v(t+4)}, 0, {v(t+4)}, vcc", f"v_add_u32 {v(t+2)}, {v(t+2)}, {v(t+4)}",
          "s_and_b32 s48, s48, 63", "s_mul_i32 s51, s48, 3840", f"s_lshr_b32 s49, s{sSL}, 1", "s_mul_i32 s49, s49, 320", "s_and_b32 s49, s49, 0xffffff80", "s_add_u32 s51, s51, s49", "s_add_u32 s51, s51, 1280",
          "s_mov_b32 s24, s34", "s_mov_b32 s25, s35", "s_mov_b32 s26, 2457600", f"buffer_load_dword {v(129)}, {v(t+2)}, {SAUX}, s51 offen")
        S(f"buffer_load_dword {v(130)}, {v(t)}, {SX}, s50 offen offset:512")
        S(f"v_and_b32 {v(t+1)}, 1, {v(t+1)}", f"v_and_b32 {v(t+5)}, 15, {v(vL)}", f"v_mul_u32_u24 {v(t+5)}, 1280, {v(t+5)}", f"v_lshl_add_u32 {v(t+5)}, {v(t+1)}, 7, {v(t+5)}",
          f"buffer_load_dword {v(131)}, {v(t+5)}, {SX}, s50 offen offset:1024")
    S(f"s_cmp_lt_u32 s{sW}, 2", "s_cselect_b32 s8, s42, s44", "s_cselect_b32 s9, s43, s45", "s_mov_b32 s10, 1966080")
    S(f"v_lshrrev_b32 {v(t)}, 3, {v(vL)}", f"v_mul_u32_u24 {v(t)}, 3072, {v(t)}", f"v_bfe_u32 {v(t+1)}, {v(vL)}, 4, 1", f"s_and_b32 s{sT0}, s{sW}, 2", f"v_or_b32 {v(t+1)}, s{sT0}, {v(t+1)}",
      f"v_lshlrev_b32 {v(t+1)}, 1, {v(t+1)}", f"v_and_b32 {v(t+2)}, 7, {v(vL)}", f"v_xor_b32 {v(t+1)}, {v(t+1)}, {v(t+2)}", f"v_lshl_add_u32 {v(vWO)}, {v(t+1)}, 4, {v(t)}")
    S(f"s_and_b32 s{sWB}, s{sW}, 1", f"s_mul_i32 s{sWB}, s{sWB}, {32*3072}", f"s_mul_i32 s{sT0}, s{sSL}, 384", f"s_add_u32 s{sWB}, s{sWB}, s{sT0}",
      f"s_lshl_b32 s{sWM0}, s{sW}, 12")
    WO = [5, 10, 11, 12]
    for j in range(1, 4): S(f"v_add_u32 {v(WO[j])}, {j*(8*3072-1024)}, {v(vWO)}")
    ktable(S, 64 * 3072, sWB)
    def w_dma(g):
        c, i = divmod(g, 10); D = Stream()
        if c and i == 0: D("s_add_u32 s8, s8, 128", "s_addc_u32 s9, s9, 0", "s_sub_u32 s10, s10, 128")
        D(f"s_add_u32 m0, s{sWM0}, {LG_WR + (g % 5) * 16384}")
        for j in range(4):
            D.I(f"buffer_load_dwordx4 {v(WO[j])}, {SW}, s{sKT+i} offen offset:{j*1024} lds", tok=f"w{g}" if j == 3 else None)
        return D
    if PREF:
        S(f"v_lshrrev_b32 {v(t)}, 2, {v(vL)}", f"v_min_u32 {v(t)}, 9, {v(t)}", f"v_lshlrev_b32 {v(t)}, 6, {v(t)}", f"v_and_b32 {v(t+1)}, 1, {v(vL)}", f"v_add_u32 {v(t)}, {v(t)}, {v(t+1)}",
          f"v_mul_u32_u24 {v(t)}, 3072, {v(t)}", f"v_bfe_u32 {v(t+1)}, {v(vL)}, 1, 1", f"v_lshl_add_u32 {v(t)}, {v(t+1)}, 7, {v(t)}",
          "s_lshr_b32 s49, s48, 2", "s_lshl_b32 s49, s49, 1", f"s_and_b32 s50, s{sW}, 1", "s_add_u32 s49, s49, s50", f"s_mul_i32 s49, s49, {2*3072}", f"s_lshr_b32 s50, s{sSL}, 1", "s_lshl_b32 s50, s50, 8",
          "s_add_u32 s49, s49, s50", f"buffer_load_dword {v(132)}, {v(t)}, {SW}, s49 offen")
        S += x_dma(0)
    S += w_dma(0)
    ktable_rest(S, 64 * 3072, sWB)
    S(f"s_lshl_b32 s32, s{sMT}, 3", f"s_add_u32 s32, s32, s{sSL}", "s_lshl_b32 s32, s32, 2", f"s_add_u32 s32, s32, s{sW}", "s_add_u32 s33, s32, 512",
      f"s_lshl_b32 s34, s{sMT}, 7", f"s_lshl_b32 s35, s{sSL}, 2", "s_add_u32 s34, s34, s35", f"s_add_u32 s34, s34, {WS_PFLAG}")
    S += x_dma(1); S += w_dma(1)
    S += code_pf('g')
    pack_vec(S); S += pack_pre(0, 32); S += pack_pre(1, 33)
    xaddr_setup(S, False); sel_setup(S)
    S(f"v_bfe_u32 {v(t)}, {v(vL)}, 4, 1", f"v_lshrrev_b32 {v(t+1)}, 5, {v(vL)}", f"v_bfe_u32 {v(t+2)}, {v(vL)}, 2, 2",
      f"v_lshl_add_u32 {v(t+1)}, {v(t+1)}, 3, {v(t+2)}", f"v_lshlrev_b32 {v(t+1)}, 7, {v(t+1)}", f"v_lshl_add_u32 {v(t+1)}, {v(t)}, 13, {v(t+1)}",
      f"v_and_b32 {v(t+3)}, 1, {v(vL)}", f"v_bfe_u32 {v(t+4)}, {v(vL)}, 1, 1", f"v_lshl_add_u32 {v(t+3)}, {v(t+3)}, 1, {v(t+4)}", f"v_lshl_add_u32 {v(t+1)}, {v(t+3)}, 3, {v(t+1)}",
      f"v_add_u32 {v(t+1)}, {LG_WR}, {v(t+1)}",
      f"v_lshrrev_b32 {v(t+2)}, 1, {v(t+2)}", f"v_lshl_add_u32 {v(t+2)}, {v(t)}, 1, {v(t+2)}", f"v_xor_b32 {v(t+2)}, s{sW}, {v(t+2)}")
    for p in range(4):
        S(f"v_xor_b32 {v(t+3)}, {p}, {v(t+2)}", f"v_lshl_add_u32 {v(vWA+p)}, {v(t+3)}, 5, {v(t+1)}", f"v_add_u32 {v(vWB_+p)}, 0x10000, {v(vWA+p)}")
    S(f"s_lshl_b32 s{sT0}, s{sSL}, 12", f"s_add_u32 s{sAPB}, s{sAPB}, s{sT0}")
    for p in range(4):
        S(f"s_xor_b32 s{sST+p}, s{sW}, {p}", f"s_lshl_b32 s{sST+p}, s{sST+p}, 10", f"s_add_u32 s{sST+p}, s{sST+p}, s{sAPB}")
    S(f"s_lshl_b32 s{sPKS+2}, s{sMT}, 9", f"s_lshl_b32 s{sT0}, s{sSL}, 2", f"s_add_u32 s{sPKS+2}, s{sPKS+2}, s{sT0}")
    sFLG = sPKS + 2
    S += p2_setup(); S += p2_pre()
    stages = []
    for g in range(30):
        c, i = divmod(g, 10); mf = []
        order = [(s, p) for s in range(4) for p in range(4)] if g < 29 else [(s, p) for p in range(4) for s in range(4)]
        for (s, p) in order:
            if True:
                off = (g % 5) * 16384 + s * 2048
                ar = vWA + p
                if off >= 65536 - 1024: ar = vWB_ + p; off -= 65536
                mf.append((ACC[c] + 16 * p, f"{v(ar)} offset:{off}", f"{v(ar)} offset:{off+512}", 16 * i + 4 * s,
                           (vCS, s == 0) if (p == 0 and i == 0) else None, i == 0 and s == 0,
                           stat_mfma(p - 1, 16 * i + 4 * s, i == 0 and s == 0) if (c == 0 and p > 0 and i < 2) else None))
        stages.append(dict(mf=mf, dma=w_dma(g), xs=i if c == 0 else None))
    vPA, vFLc, vPL0, vN4, vPS, vPQ, vFLs = 28, 33, 34, 35, 13, 14, 7
    PB = Stream()
    PB(f"v_and_b32 {v(vN4)}, 31, {v(vL)}", f"v_lshlrev_b32 {v(vN4)}, 2, {v(vN4)}", f"v_add_u32 {v(t)}, 8192, {v(vN4)}")
    cond_voff(PB, vPA, vN4, sMT, 10, True); cond_voff(PB, vPS, vN4, sSL, 5, True); cond_voff(PB, vPQ, t, sSL, 5, False)
    cond_voff(PB, vFLc, vFL, sMT, 10, False); cond_voff(PB, vFLs, vFL, sSL, 5, False)
    PB(f"s_mul_i32 s43, s{sSL}, 384", f"s_add_u32 s43, s43, {WS_SF}", f"s_lshl_b32 s78, s{sMT}, 7", f"s_add_u32 s78, s78, {WS_SF + 24*128}")
    poll_setup(PB, vPL0, 43, 78, t)
    PB(f"s_lshl_b32 s{sT0}, s{sMT}, 2", f"s_add_u32 s43, s43, s{sT0}", f"s_lshl_b32 s{sT1}, s{sSL}, 2", f"s_add_u32 s78, s78, s{sT1}",
       f"s_add_u32 s37, s{sT0}, s{sW}", "s_lshl_b32 s37, s37, 7", f"s_add_u32 s37, s37, {WS_RS}", f"s_mul_i32 s{sT0}, s{sSL}, 1536", f"s_add_u32 s{sT0}, s{sT0}, {WS_CSG}")
    for p in range(4): PB(f"s_xor_b32 s{48+p}, s{sW}, {p}", f"s_lshl_b32 s{48+p}, s{48+p}, 7", f"s_add_u32 s{48+p}, s{48+p}, s{sT0}")
    def cs_publish(c):
        E = Stream()
        E(f"v_cndmask_b32 {v(vCS)}, {v(vCS+1)}, {v(vCS)}, s[96:97]")
        E.I(f"buffer_atomic_add_f32 {v(vCS)}, {v(vPA)}, {SWS}, s48 offen offset:{512*c}", tok=f"csa{c}")
        if c == 0:
            E(f"v_cndmask_b32 {v(vRS)}, {v(vRS+1)}, {v(vRS)}, s[96:97]", f"buffer_atomic_add_f32 {v(vRS)}, {v(vPS)}, {SWS}, s37 offen")
            for i in range(4): E(f"v_add_f32 {v(vSQ+i)}, {v(vSQ+i)}, {v(vSQ+4+i)}")
            E("s_mov_b32 s98, 0xaaaaaaaa", "s_mov_b32 s99, 0xaaaaaaaa", f"v_cndmask_b32 {v(vSQ)}, {v(vSQ)}, {v(vSQ+1)}, s[98:99]", f"v_cndmask_b32 {v(vSQ+2)}, {v(vSQ+2)}, {v(vSQ+3)}, s[98:99]")
            E("s_mov_b32 s98, 0xcccccccc", "s_mov_b32 s99, 0xcccccccc", f"v_cndmask_b32 {v(vSQ)}, {v(vSQ)}, {v(vSQ+2)}, s[98:99]")
            E.I(f"buffer_atomic_add_f32 {v(vSQ)}, {v(vPQ)}, {SWS}, s37 offen", tok="csa0")
        return E
    def cs_flag(c):
        E = Stream(); E(f"buffer_store_dword a255, {v(vFLc)}, {SWS}, s43 offen offset:{128*c} sc1")
        if c == 0: E(f"buffer_store_dword a255, {v(vFLs)}, {SWS}, s78 offen sc1")
        return E
    def cs_ptxt(c): return f"buffer_load_dword {v(vT+7)}, {v(vPL0)}, {SWS}, 0 offen offset:{128*c} sc1"
    def cs_fetch(c):
        E = Stream()
        poll_check(E, f"cs{c}g", vT + 7, 1, cs_ptxt(c), 0x3FF | ((0x1F << 16) if c == 0 else 0))
        for p in range(4): E(f"buffer_load_dword {v(vT+p)}, {v(vN4)}, {SWS}, s{48+p} offen offset:{512*c} sc1")
        if c == 0: E(f"buffer_load_dword {v(vRS)}, {v(vN4)}, {SWS}, s37 offen sc1", f"s_add_u32 s37, s37, 8192", f"buffer_load_dword {v(vRS+1)}, {v(vN4)}, {SWS}, s37 offen sc1")
        return E
    def build(c):
        E = Stream()
        for p in range(4): split3(E, vCS + 4 + 4 * p, vT + p, vT + 4, "A")
        return E
    def corr(c):
        E = Stream()
        for p in range(4): E(f"v_mfma_f32_32x32x16_bf16 {v(ACC[c]+16*p,16)}, {v(vCS+4+4*p,4)}, {v(vMB,4)}, {v(ACC[c]+16*p,16)}")
        return E
    def epi(c, packed):
        E = epi_(c, packed)
        if 'noepi' in ABL and not packed: E = Stream([x for x in E if x.kind in ("vm_st", "salu")])
        return E
    def epi_(c, packed):
        E = Stream()
        def store(p):
            A = ACC[c] + 16 * p
            E(f"s_add_u32 s36, s{sST+p}, {c*32*1024}")
            E.I(f"buffer_store_dwordx4 {v(A,4)}, {v(vL16)}, {SWS}, s36 offen sc1", tok=f"h{c}" if p == 3 else None)
        if packed:
            for p in range(4):
                A = ACC[c] + 16 * p
                for i in range(0, 8, 2): E(f"v_pk_mul_f32 {v(A+i,2)}, {v(A+i,2)}, {v(vC,2)} op_sel_hi:[1,0]")
                for i in range(8): E(f"v_exp_f32 {v(A+i)}, {v(A+i)}")
                for i in range(0, 8, 2): E(f"v_pk_fma_f32 {v(A+i,2)}, {v(A+i,2)}, {v(vC,2)}, {v(vC,2)} op_sel:[0,1,1] op_sel_hi:[1,1,1]")
                for i in range(8): E(f"v_rcp_f32 {v(A+i)}, {v(A+i)}")
                for i in range(0, 8, 2): E(f"v_pk_mul_f32 {v(A+8+i,2)}, {v(A+8+i,2)}, {v(A+i,2)}")
                for i in range(4): E(f"v_cvt_pk_bf16_f32 {v(A+i)}, {v(A+8+2*i)}, {v(A+9+2*i)}")
                store(p)
            return E
        LAG = EPI_LAG
        ev = []
        for e in range(32):
            p, i = divmod(e, 8); A = ACC[c] + 16 * p
            ops = [f"v_mul_f32 {v(A+i)}, {v(A+i)}, {v(vC)}", f"v_exp_f32 {v(A+i)}, {v(A+i)}", f"v_fma_f32 {v(A+i)}, {v(A+i)}, {v(vSD)}, {v(vSD)}",
                   f"v_rcp_f32 {v(A+i)}, {v(A+i)}", f"v_mul_f32 {v(A+8+i)}, {v(A+8+i)}, {v(A+i)}"]
            for s, o in enumerate(ops): ev.append((e + LAG * s, s, o, None))
            if i & 1: ev.append((p * 8 + 7 + LAG * 5, 5 + i, f"v_cvt_pk_bf16_f32 {v(A+i//2)}, {v(A+8+i-1)}, {v(A+8+i)}", None))
            if i == 7: ev.append((p * 8 + 7 + LAG * 6, 20, None, p))
        for (_, _, o, p) in sorted(ev, key=lambda x: (x[0], x[1])):
            if o: E(o)
            else: store(p)
        return E
    hb = {PK_AT + 7: ["chores1"]}
    def addb(j, tk): hb[j] = hb.get(j, []) + [tk]
    addb(H0AT, "h0")
    ha = {0: Stream(x_dma(2) + w_dma(2) + x_dma(3) + w_dma(3)),
          PK_AT: pack_dma(0, 32), PK_AT + 3: Stream(pack_finish(0) + pack_dma(1, 33)), PK_AT + 5: pack_finish(1), PK_AT + 7: flag_store(34, 0),
          POLL2_AT - 2: Stream(vw_setup() + poll2_issue()), POLL2_AT: poll2_check("g")}
    core = Core(stages, 5, "w")
    for i in range(10, 30): stages[i]["pace"] = PACE
    def add(j, st_): ha[j] = Stream(ha.get(j, Stream()) + st_)
    S(f"v_min_u32 {v(110)}, 39, {v(vL)}", f"v_mul_u32_u24 {v(110)}, 3072, {v(110)}", f"s_and_b32 s48, s{sMT}, 7", "s_lshl_b32 s48, s48, 1", f"s_and_b32 s49, s{sW}, 1", "s_add_u32 s48, s48, s49",
      f"s_mul_i32 s48, s48, {40*3072}", f"s_mul_i32 s49, s{sSL}, 384", "s_add_u32 s48, s48, s49", f"v_add_u32 {v(110)}, s48, {v(110)}")
    S += PB
    add(P1AT - 2, poll1_issue()); add(P1AT, poll1_check("g"))
    for c in range(3):
        pub, fl, ck = PBS[c]
        add(pub, cs_publish(c)); addb(fl, f"csa{c}"); add(fl, cs_flag(c)); add(ck - 2, Stream([Ins(cs_ptxt(c))])); add(ck, cs_fetch(c))
    add(XRAT, xre_load())
    if WPT: add(POLL2_AT, wp_touch(111))
    if T2AT: add(T2AT, Stream([Ins(f"buffer_load_dword a253, {v(110)}, {SW}, 0 offen offset:128")]))
    if T3AT: add(T3AT, Stream([Ins(f"buffer_load_dword a252, {v(110)}, {SW}, 0 offen offset:{128 if T3AT >= 7 else 256}")]))
    add(H0AT, flag_store(sFLG, 0))
    items = []
    for f in range(0, 19, 4): items.append((POLL2_AT + WPD, w2_stage("g", f, min(f + 4, 19)), min(4, 19 - f)))
    for k in (5, 6): items.append((POLL2_AT + WPD, w2_load(k), 5))
    for k in range(5): items.append((20 + (20 * k + 19) // 16 + 2, w2_load(k), 5))
    for f in range(19, 27, 4): items.append((27 + (f - 19) // 4, w2_stage("g", f, f + 4), 4))
    add(H1FLAG_AT - 2, p2_poll(0))
    chk = Stream(); poll_check(chk, "p0g", vPV, 1, p2_poll_txt(0), 0xFF)
    hb[H1FLAG_AT] = ["h1"]; add(H1FLAG_AT, flag_store(sFLG, 128)); add(H1FLAG_AT, chk)
    G0 = vm_groups(p2_L(0, SWS))
    for q_ in range(0, 16, 4): items.append((max(H1FLAG_AT, 27) + 0.5, Stream([x for gg_ in G0[q_:q_+4] for x in gg_]), 4))
    for j in range(POLL2_AT, 30):
        cap = (CAPA if j < 22 else CAPB) if j <= 26 else 13
        if j in (17, 18): cap = W2CAP17
        for it in sorted(items, key=lambda x: x[0] if x[0] > 21 else 100):
            if it[0] <= j + 0.5 and it[2] <= cap:
                add(j, it[1]); cap -= it[2]; items.remove(it)
    assert not items, [(it[0], it[2]) for it in items]
    rest = [Stream(w2_stage("g", 27, 35) + w2_load(14)), w2_load(15), w2_load(16)]
    head, slots, first = core.build(4, hb, ha)
    side = Stream(stats_from_sums("0xbfb8aa3b", vRS, vRS + 1) + build(0) + corr(0) + epi(0, False))
    left = interleave(slots[:first[20]], side, EPI_RATE, start=first[B0AT] - 4); assert not left, len(left)
    left = interleave(slots[:first[H1FLAG_AT - 1]], Stream(build(1) + corr(1) + epi(1, False)), EPI_RATE2, start=first[20] + 4); assert not left, len(left)
    c2 = corr(2); fin = Stream(build(2) + p2_poll(1) + c2[:-1])
    left = interleave(slots, fin, 3, start=first[29]); assert not left, len(left)
    slots[-1].append(c2[-1])
    stamp(S, 1)
    S += head
    stamp(S, 1)
    for n, sl in enumerate(slots):
        S += sl; S += core.tails[n]
        if n + 1 in (first[10], first[20]): stamp(S)
        if n + 1 in [first[i] for i in range(1, 11)]: stamp(S, 1)
        if n + 1 in [first[i] for i in range(1, 30)] + [len(slots)]: stamp(S, 2)
    stamp(S)
    e2 = epi(2, True); cut = len(e2) // E3CUT
    S += e2[:cut]; S += p2_try(1)
    S += sprinkle(Stream(e2[cut:]), p2_L(1, SAUX), E3P)
    S += phase2("g", rest, "h2", flag_store(sFLG, 256), True)
    return S

def softmax_pair(E, P, O, T, qmode):
    mx, mn = T + 40, T + 41
    E(f"v_max3_f32 {v(mx)}, {v(P)}, {v(P+1)}, {v(P+2)}", f"v_min3_f32 {v(mn)}, {v(P)}, {v(P+1)}, {v(P+2)}")
    for i in range(3, 19, 2):
        E(f"v_max3_f32 {v(mx)}, {v(mx)}, {v(P+i)}, {v(P+i+1)}", f"v_min3_f32 {v(mn)}, {v(mn)}, {v(P+i)}, {v(P+i+1)}")
    E(f"v_max_f32 {v(mx)}, {v(mx)}, {v(P+19)}", f"v_min_f32 {v(mn)}, {v(mn)}, {v(P+19)}")
    E(f"v_mul_f32 {v(mx)}, {v(mx)}, {v(vC)}", f"v_mul_f32 {v(mn)}, {v(mn)}, {v(vC)}")
    for i in range(0, 20, 2):
        E(f"v_pk_fma_f32 {v(T+i,2)}, {v(P+i,2)}, {v(vC,2)}, {v(mx,2)} op_sel:[0,0,0] op_sel_hi:[1,0,0] neg_lo:[0,0,1] neg_hi:[0,0,1]")
    for i in range(0, 20, 2):
        E(f"v_pk_fma_f32 {v(T+20+i,2)}, {v(P+i,2)}, {v(vC,2)}, {v(mx,2)} op_sel:[0,0,1] op_sel_hi:[1,0,1] neg_lo:[1,0,0] neg_hi:[1,0,0]")
    for i in range(40): E(f"v_exp_f32 {v(T+i)}, {v(T+i)}")
    for h in range(2):
        B = T + 20 * h; A = P + 10 * h
        for i in range(5): E(f"v_pk_add_f32 {v(A+2*i,2)}, {v(B+4*i,2)}, {v(B+4*i+2,2)}")
    for h in range(2):
        A = P + 10 * h
        E(f"v_pk_add_f32 {v(A,2)}, {v(A,2)}, {v(A+2,2)}", f"v_pk_add_f32 {v(A+4,2)}, {v(A+4,2)}, {v(A+6,2)}")
    for h in range(2):
        A = P + 10 * h
        E(f"v_pk_add_f32 {v(A,2)}, {v(A,2)}, {v(A+4,2)}")
    for h in range(2):
        A = P + 10 * h
        E(f"v_pk_add_f32 {v(A,2)}, {v(A,2)}, {v(A+8,2)}")
    E(f"v_add_f32 {v(T+44)}, {v(P)}, {v(P+1)}", f"v_add_f32 {v(T+45)}, {v(P+10)}, {v(P+11)}")
    if qmode:
        E(f"v_rcp_f32 {v(T+42)}, {v(T+45)}", f"v_mul_f32 {v(T+42)}, {v(T+42)}, {v(T+44)}")
        for i in range(0, 20, 2): E(f"v_pk_mul_f32 {v(T+20+i,2)}, {v(T+20+i,2)}, {v(T+42,2)} op_sel_hi:[1,0]")
    else:
        E(f"v_rcp_f32 {v(T+42)}, {v(T+44)}", f"v_rcp_f32 {v(T+43)}, {v(T+45)}")
        for i in range(0, 20, 2): E(f"v_pk_mul_f32 {v(T+i,2)}, {v(T+i,2)}, {v(T+42,2)} op_sel_hi:[1,0]")
        for i in range(0, 20, 2): E(f"v_pk_mul_f32 {v(T+20+i,2)}, {v(T+20+i,2)}, {v(T+42,2)} op_sel:[0,1] op_sel_hi:[1,1]")
    for i in range(20): E(f"v_cvt_pk_bf16_f32 {v(O+i)}, {v(T+2*i)}, {v(T+2*i+1)}")

PROJ = [(0, 0), (0, 1), (0, 2), (1, 0), (1, 1), (1, 2), (1, 3), (1, 4), (2, 2), (2, 3), (2, 4)]
aPH = 200
def project(E, SRC, PK, OUT):
    for i in range(20): E(f"v_cvt_pk_bf16_f32 {v(PK+i)}, {v(SRC+2*i)}, {v(SRC+2*i+1)}")
    seen = set()
    for n, (T, sl) in enumerate(PROJ):
        E(f"v_mfma_f32_32x32x16_bf16 {v(OUT+16*T,16)}, {a_(aPH+4*n,4)}, {v(PK+4*sl,4)}, {v(OUT+16*T,16) if T in seen else '0'}")
        seen.add(T)

def qkv_path():
    ROLE[0] = "q"; VA[:] = [3, 4, 5, 20]
    S = Stream(); t = vT
    S("L_qkv:")
    if PREF: S += x_dma(0)
    AKV, AQ = 128, 208
    S("s_mov_b32 s8, s34", "s_mov_b32 s9, s35", "s_mov_b32 s10, 2457600")
    ZI = Stream(); QV = Stream()
    sQB = 78
    S(f"s_mul_i32 s{sWB}, s{sSL}, 160", f"s_mul_i32 s{sWM0}, s{sW}, 5120")
    ktable(S, 64 * 3840, sWB)
    S(f"s_mul_i32 s{sT1}, s{sW}, {16*3840}", f"s_add_u32 s{sT2}, s{sT1}, 1280", f"s_sub_u32 s{sT3}, s{sT1}, 1280", f"s_add_u32 m0, s{sWM0}, {L_WR}")
    for j in range(5):
        S(f"v_add_u32 {v(t)}, {64*j}, {v(vL)}")
        divmod_v(S, t+1, t+2, t, 20)
        divmod_v(S, t+3, t+4, t+2, 5)
        S(f"v_and_b32 {v(t+5)}, 1, {v(t+3)}", f"v_lshrrev_b32 {v(t+3)}, 1, {v(t+3)}", f"v_mul_u32_u24 {v(t+3)}, 80, {v(t+3)}", f"v_lshl_add_u32 {v(t+3)}, {v(t+4)}, 4, {v(t+3)}")
        if 0 < j < 4: S(f"v_subrev_u32 {v(t+3)}, {1024*j}, {v(t+3)}")
        S(f"v_mul_u32_u24 {v(t+6)}, 3840, {v(t+1)}", f"v_mul_u32_u24 {v(t+7)}, 1280, {v(t+5)}", f"v_add3_u32 {v(vWO+j)}, {v(t+6)}, {v(t+7)}, {v(t+3)}", f"v_add_u32 {v(vWO+j)}, s{sT2}, {v(vWO+j)}")
        if j == 4: S(f"s_add_u32 m0, s{sWM0}, {L_WR + 4096}")
        S.I(f"buffer_load_dwordx4 {v(vWO+j)}, {SW}, s{sKT} offen offset:{j*1024 if j < 4 else 0} lds", tok="w0" if j == 4 else None)
        S(f"v_lshrrev_b32 {v(t+6)}, 2, {v(t+1)}", f"v_lshl_add_u32 {v(vQO+j)}, {v(t+6)}, 1, {v(t+5)}")
        QV(f"v_lshrrev_b32 {v(t+6)}, 1, {v(vQO+j)}", f"v_and_b32 {v(t+5)}, 1, {v(vQO+j)}", f"v_mul_u32_u24 {v(t+6)}, {4*3840}, {v(t+6)}", f"v_mul_u32_u24 {v(t+5)}, {4*3840-1280}, {v(t+5)}",
           f"v_add3_u32 {v(vQO+j)}, {v(t+6)}, {v(t+5)}, {v(vWO+j)}", f"v_add_u32 {v(vQO+j)}, s{sT3}, {v(vQO+j)}")
    def w_dma(g):
        D = Stream(); q = g >= 10
        lb = L_WR + (g % 4) * 20480 if g < 14 else L_WR - 20480
        D(f"s_add_u32 m0, s{sWM0}, {lb}")
        vo = vQO if q else vWO; so = sKT + (2 * (g - 10) if q else g)
        for j in range(4): D(f"buffer_load_dwordx4 {v(vo+j)}, {SW}, s{so} offen offset:{j*1024} lds")
        D(f"s_add_u32 m0, s{sWM0}, {lb + 4096}")
        D.I(f"buffer_load_dwordx4 {v(vo+4)}, {SW}, s{so} offen lds", tok=(f"q{g-10}" if q else f"w{g}"))
        return D
    ktable_rest(S, 64 * 3840, sWB); S += QV
    if QS1: S += x_dma(1); S += w_dma(1)
    S += code_pf('q')
    LATE = Stream(); S0 = S; S = LATE
    S("s_mov_b32 s24, s36", "s_mov_b32 s25, s37", "s_mov_b32 s26, 25600", f"s_mul_i32 s{sT0}, s{sSL}, 3200", f"s_lshl_b32 s{sT1}, s{sW}, 10", f"s_add_u32 s{sT0}, s{sT0}, s{sT1}",
      f"s_add_u32 m0, s{sT1}, {L_PHI}")
    S.I(f"buffer_load_dwordx4 {v(vL16)}, {SAUX}, s{sT0} offen lds", tok="phid")
    S("s_mov_b32 s24, s12", "s_mov_b32 s25, s13")
    S = S0
    S(f"v_mov_b32 {v(t+2)}, 0", f"v_mov_b32 {v(t+3)}, 0", f"s_lshl_b32 s{sT0}, s{sW}, 9", f"s_add_u32 s{sT0}, s{sT0}, {L_ZERO}", f"v_lshl_add_u32 {v(t+4)}, {v(vL)}, 3, s{sT0}")
    S.I(f"ds_write_b64 {v(t+4)}, {v(t+2,2)}", tok="ldsz")
    xaddr_setup(S, True); sel_setup(S)
    S(f"v_lshrrev_b32 {v(t)}, 5, {v(vL)}", f"v_bfe_u32 {v(t+1)}, {v(vL)}, 2, 2", f"v_lshl_add_u32 {v(t+2)}, {v(t)}, 3, {v(t+1)}", f"v_lshl_add_u32 {v(t+3)}, {v(t)}, 2, {v(t+1)}",
      f"v_mul_u32_u24 {v(t+2)}, 320, {v(t+2)}", f"v_mul_u32_u24 {v(t+3)}, 320, {v(t+3)}",
      f"v_and_b32 {v(t+4)}, 1, {v(vL)}", f"v_mul_u32_u24 {v(t+4)}, 160, {v(t+4)}", f"v_bfe_u32 {v(t+5)}, {v(vL)}, 4, 1", f"v_bfe_u32 {v(t+6)}, {v(vL)}, 1, 1",
      f"v_lshl_add_u32 {v(t+5)}, {v(t+5)}, 1, {v(t+6)}", f"v_lshl_add_u32 {v(t+4)}, {v(t+5)}, 3, {v(t+4)}", f"v_add_u32 {v(t+4)}, {L_WR}, {v(t+4)}",
      f"v_add_u32 {v(t+2)}, {v(t+2)}, {v(t+4)}", f"v_add_u32 {v(t+3)}, {v(t+3)}, {v(t+4)}")
    for p in range(4):
        S(f"s_xor_b32 s{sT0}, s{sW}, {p}", f"s_mul_i32 s{sT1}, s{sT0}, 5120", f"s_mul_i32 s{sT0}, s{sT0}, 2560",
          f"v_add_u32 {v(vWA+p)}, s{sT1}, {v(t+2)}", f"v_add_u32 {v(vQA+p)}, s{sT0}, {v(t+3)}",
          f"v_add_u32 {v(vWB_+p)}, {3*20480}, {v(vWA+p)}", f"v_add_u32 {v(vQB+p)}, {2*20480}, {v(vQA+p)}", f"v_subrev_u32 {v(vQA+p)}, 20480, {v(vQA+p)}")
    S += p2_setup()
    stages = []
    for g in range(10):
        mf = []
        for p in range(4):
            for T in range(5):
                ar, off = (vWA + p, (g % 4) * 20480) if g % 4 < 3 else (vWB_ + p, 0)
                off += 32 * T
                mf.append((AKV + 16 * T, f"{v(ar)} offset:{off}", f"{v(ar)} offset:{off+1280}", 16 * g + 4 * p, (vCS + 4 * T, g == 0) if (p == 0 and g < 2) else None, g == 0 and p == 0, None))
        stages.append(dict(mf=mf, dma=w_dma(g), xs=g))
    PHF = Stream(); u = vT
    PHF(f"v_bfe_u32 {v(u)}, {v(vL)}, 4, 1", f"v_bfe_u32 {v(u+1)}, {v(vL)}, 1, 1", f"v_lshl_add_u32 {v(u)}, {v(u)}, 1, {v(u+1)}",
        f"v_lshrrev_b32 {v(u+1)}, 5, {v(vL)}", f"v_and_b32 {v(u+2)}, 1, {v(vL)}", f"v_cmp_eq_u32 s[{sPKS+4}:{sPKS+5}], {v(u+1)}, {v(u+2)}".replace(f"s[{sPKS+4}:{sPKS+5}]", "s[98:99]"),
        f"v_mul_u32_u24 {v(u+1)}, 1600, {v(u+1)}", f"v_bfe_u32 {v(u+2)}, {v(vL)}, 2, 2", f"v_mul_u32_u24 {v(u+2)}, 40, {v(u+2)}", f"v_add3_u32 {v(u+1)}, {v(u+1)}, {v(u+2)}, {L_PHI & 63}".replace(f", {L_PHI & 63}", ", 0"),
        f"v_add_u32 {v(u+1)}, {L_PHI}, {v(u+1)}", f"v_lshl_add_u32 {v(u+1)}, {v(u)}, 3, {v(u+1)}", f"v_mov_b32 {v(u+3)}, {L_ZERO}")
    amap = {}
    k = 4
    for (T, s) in [(0, 0), (1, 0), (1, 1), (2, 1)]:
        lo, hi = 5 * s - 4 * T, 5 * s + 5 - 4 * T
        PHF(f"v_add_u32 {v(u+k)}, {s*800+(4*T-5*s)*8}, {v(u+1)}", f"v_cndmask_b32 {v(u+k)}, {v(u+3)}, {v(u+k)}, s[98:99]")
        if lo > 0: PHF(f"v_cmp_le_u32 vcc, {lo}, {v(u)}", f"v_cndmask_b32 {v(u+k)}, {v(u+3)}, {v(u+k)}, vcc")
        if hi < 4: PHF(f"v_cmp_gt_u32 vcc, {hi}, {v(u)}", f"v_cndmask_b32 {v(u+k)}, {v(u+3)}, {v(u+k)}, vcc")
        amap[(T, s)] = u + k; k += 1
    for n, (T, sl) in enumerate(PROJ):
        for r2 in range(2):
            rho = 2 * sl + r2; s = rho // 5
            if (T, s) in amap: PHF(f"ds_read_b64_tr_b16 {a_(aPH+4*n+2*r2,2)}, {v(amap[(T,s)])} offset:{(rho%5)*160}")
            else: PHF(f"ds_read_b64_tr_b16 {a_(aPH+4*n+2*r2,2)}, {v(u+3)}")
    core = Core(stages, 4, "w")
    QR = 68
    def pb_regs(r):
        P = Stream()
        P(f"v_and_b32 {v(r+3)}, 31, {v(vL)}", f"v_lshlrev_b32 {v(r+3)}, 2, {v(r+3)}")
        cond_voff(P, r, r + 3, sMT, 5, True); cond_voff(P, r + 1, vFL, sMT, 5, False)
        poll_setup(P, r + 2, 40, 41, r + 4)
        return P
    S(f"s_lshl_b32 s40, s{sSL}, 8", f"s_add_u32 s40, s40, {WS_SF + 40*128}", f"s_lshl_b32 s41, s{sMT}, 7", f"s_add_u32 s41, s41, {WS_SF + 24*128}", f"s_lshl_b32 s{sT0}, s{sMT}, 2", f"s_add_u32 s43, s40, s{sT0}",
      f"s_add_u32 s38, s{sT0}, s{sW}", "s_lshl_b32 s38, s38, 7", f"s_add_u32 s38, s38, {WS_RS}", f"s_lshl_b32 s39, s{sSL}, 10", f"s_add_u32 s39, s39, {WS_CSQ}")
    S += pb_regs(116)
    def q_pub(r, n, o, tok, vCS=vCS):
        E = Stream()
        for T in range(n):
            E(f"v_cndmask_b32 {v(vCS+4*T)}, {v(vCS+4*T+1)}, {v(vCS+4*T)}, s[96:97]")
            E.I(f"buffer_atomic_add_f32 {v(vCS+4*T)}, {v(r)}, {SWS}, s39 offen offset:{128*(o+T)}", tok=tok if T == n - 1 else None)
        return E
    def q_flag(r, k): return Stream([Ins(f"buffer_store_dword a255, {v(r+1)}, {SWS}, s43 offen offset:{128*k} sc1")])
    def q_ptxt(r, k): return f"buffer_load_dword {v(r+4)}, {v(r+2)}, {SWS}, 0 offen offset:{128*k} sc1"
    def q_fetch(r, k, n, o, d):
        E = Stream()
        poll_check(E, f"cs{k}q", r + 4, 1, q_ptxt(r, k), 0x1F | ((0x1F << 16) if k == 0 else 0))
        for T in range(n): E(f"buffer_load_dword {v(d+T)}, {v(r+3)}, {SWS}, s39 offen offset:{128*(o+T)} sc1")
        if k == 0: E(f"buffer_load_dword {v(d+5)}, {v(r+3)}, {SWS}, s38 offen sc1", "s_add_u32 s38, s38, 8192", f"buffer_load_dword {v(d+6)}, {v(r+3)}, {SWS}, s38 offen sc1")
        return E
    def q_corr(n, d, acc, tt_):
        E = Stream()
        for T in range(n): split3(E, vCS + 4 * T, d + T, tt_, "A")
        for T in range(n): E(f"v_mfma_f32_32x32x16_bf16 {v(acc+16*T,16)}, {v(vCS+4*T,4)}, {v(vMB,4)}, {v(acc+16*T,16)}")
        return E
    hb = {3: ["phid", "ldsz"]}
    S(f"v_or_b32 {v(114)}, s{sST+3}, {v(vFL)}", f"s_lshl_b32 s{sST+3}, s{sMT}, 2")
    S.wait("zst"); S("s_barrier", f"buffer_store_dword a255, {v(114)}, {SDBG}, s{sST+3} offen sc1")
    if not QS1: S += x_dma(1); S += w_dma(1)
    ha = {0: Stream(x_dma(2) + w_dma(2) + LATE + x_dma(3)), 4: PHF, 9: Stream()}
    def addq(j, st_): ha[j] = Stream(ha.get(j, Stream()) + st_)
    addq(QP1AT - 1, poll1_issue()); addq(QP1AT, poll1_check("q")); addq(QPB[0], q_pub(116, 5, 0, "qa0"))
    hb[QPB[1]] = hb.get(QPB[1], []) + ["qa0"]; addq(QPB[1], q_flag(116, 0)); addq(QPB[2] - 1, Stream([Ins(q_ptxt(116, 0))]))
    FE = q_fetch(116, 0, 5, 0, 88)
    if QTAT:
        TCH = Stream(); q = vT + 8
        TCH(f"v_lshrrev_b32 {v(q)}, 1, {v(vL)}", f"v_min_u32 {v(q)}, 19, {v(q)}", f"v_mul_u32_u24 {v(q)}, 3840, {v(q)}", f"v_and_b32 {v(q+1)}, 1, {v(vL)}", f"v_mul_u32_u24 {v(q+1)}, 156, {v(q+1)}",
            f"v_add_u32 {v(q)}, {v(q)}, {v(q+1)}", f"s_and_b32 s48, s{sMT}, 7", "s_lshl_b32 s48, s48, 2", f"s_add_u32 s48, s48, s{sW}", f"s_mul_i32 s48, s48, {20*3840}", f"s_mul_i32 s49, s{sSL}, 160",
            "s_add_u32 s48, s48, s49", f"buffer_load_dword {v(115)}, {v(q)}, {SW}, s48 offen")
        ha[QTAT] = Stream(ha.get(QTAT, Stream()) + TCH)
    ha[8] = Stream(ha.get(8, Stream()) + w_dma(10))
    ha[QPB[2]] = Stream(FE + ha.get(QPB[2], Stream()))
    ha[9] = Stream(w_dma(11) + ha[9])
    head, slots, first = core.build(3, hb, ha)
    left = interleave(slots, Stream(stats_from_sums("0x3fb8aa3b", 93, 94) + q_corr(5, 88, AKV, 96)), 4, start=first[9] + QC0)
    KL_ = Stream(left)
    stamp(S, 1)
    S += head
    stamp(S, 1)
    for n, sl in enumerate(slots):
        S += sl; S += core.tails[n]
        if n + 1 in [first[i] for i in range(1, 10)] + [len(slots)]: stamp(S, 1)
        if n + 1 in [first[i] for i in range(1, 10)]: stamp(S, 2)
    stamp(S)
    stamp(S, 2)
    PK = vCS; TT = vT; ta = 120; kr = 21
    A1 = Stream()
    A1(f"v_and_b32 {v(ta)}, 31, {v(vL)}", f"s_lshl_b32 s{sT0}, s{sW}, 5", f"v_add_u32 {v(ta)}, s{sT0}, {v(ta)}", f"v_mul_u32_u24 {v(ta)}, {RS}, {v(ta)}",
      f"v_lshrrev_b32 {v(ta+1)}, 5, {v(vL)}", f"v_mul_u32_u24 {v(ta+2)}, 96, {v(ta+1)}", f"v_add_u32 {v(ta+2)}, {v(ta+2)}, {v(ta)}",
      f"v_mul_u32_u24 {v(ta+1)}, 160, {v(ta+1)}", f"v_add_u32 {v(ta+1)}, {v(ta+1)}, {v(ta)}")
    A1(f"v_lshrrev_b32 {v(kr+2)}, 4, {v(vL)}", f"v_bfe_u32 {v(kr+1)}, {v(vL)}, 2, 2", f"v_lshl_add_u32 {v(kr+1)}, {v(kr+2)}, 3, {v(kr+1)}", f"v_mul_u32_u24 {v(kr+1)}, {RS}, {v(kr+1)}",
      f"v_and_b32 {v(kr)}, 3, {v(vL)}", f"v_lshl_add_u32 {v(kr+1)}, {v(kr)}, 3, {v(kr+1)}",
      f"s_mul_i32 s{sT0}, s{sW}, 80", f"s_mul_i32 s{sT1}, s{sW}, 48", f"s_add_u32 s{sT1}, s{sT1}, 320", f"v_add_u32 {v(kr)}, s{sT0}, {v(kr+1)}", f"v_add_u32 {v(kr+1)}, s{sT1}, {v(kr+1)}")
    A2 = Stream()
    A2(f"v_lshrrev_b32 {v(ta)}, 4, {v(vL)}", f"v_mul_u32_u24 {v(ta+4)}, 768, {v(ta)}", f"v_and_b32 {v(ta+5)}, 15, {v(vL)}", f"v_lshl_add_u32 {v(ta+4)}, {v(ta+5)}, 2, {v(ta+4)}", f"v_lshlrev_b32 {v(ta+6)}, 2, {v(ta+5)}",
      f"s_lshl_b32 s42, s{sSL}, 2", f"s_add_u32 s42, s42, s{sW}", f"s_mul_i32 s42, s42, 4032", f"s_add_u32 s42, s42, {WS_KV}")
    AV = [ta + 4, 116, 117, 118, 119, ta + 5]
    A2(f"v_mov_b32 {v(ta)}, {hex(HUGE)}")
    for n, m in enumerate([None, 0xFFFFFFFF, 0xFFFF, 0x00FF00FF00FF00FF, 0x00FF00FF, 0x00FF]):
        if m is None: continue
        A2(f"s_mov_b32 s98, {hex(m & 0xFFFFFFFF)}", f"s_mov_b32 s99, {hex(m >> 32)}", f"v_cndmask_b32 {v(AV[n])}, {v(ta)}, {v(ta+4)}, s[98:99]")
    st_ = Stream(); stamp(st_, 2)
    S += KL_; S += A1; S.wait("q0"); S("s_barrier"); S += st_
    for h_ in range(2):
        for T in range(3):
            f_ = aWF + 4 * (3 * h_ + T); o_ = 32 * T + h_ * 10240
            S(f"ds_read_b64_tr_b16 {a_(f_,2)}, {v(vQB)} offset:{o_}", f"ds_read_b64_tr_b16 {a_(f_+2,2)}, {v(vQB)} offset:{o_+80}")
    stamp(S, 2)
    stamp(S)
    S0 = S; S = Stream()
    PJ = Stream(); project(PJ, AKV, PK, AQ)
    VW_ = Stream()
    for i in range(40): VW_(f"v_mul_f32 {v(AKV+40+i)}, {v(AKV+40+i)}, {v(vST+1)}")
    for s in range(2):
        for i in range(10): VW_(f"v_cvt_pk_bf16_f32 {v(AKV+12*s+i)}, {v(AKV+40+20*s+2*i)}, {v(AKV+41+20*s+2*i)}")
        VW_(f"v_mov_b32 {v(AKV+12*s+10)}, 0x3f80", f"v_mov_b32 {v(AKV+12*s+11)}, 0")
    S += PJ[:20]
    for h_ in range(2):
        for T in range(3): S(f"v_mfma_f32_16x16x32_bf16 {v(96+4*T,4)}, {v(vSEL,4)}, {a_(aWF+4*(3*h_+T),4)}, {'0' if h_ == 0 else v(96+4*T,4)}")
    for n_, x in enumerate(PJ[20:]): S.append(x); S += VW_[6*n_:6*n_+6]
    S += q_pub(116, 3, 5, "qa1", 96)
    for i in range(6): S(f"ds_write_b128 {v(ta+2)}, {v(AKV+4*i,4)} offset:{L_TB+320+16*i}")
    for s in range(2):
        O = AKV + 40 + 20 * s
        softmax_pair(S, AQ + 20 * s, O, TT, False)
        for i in range(5): S(f"ds_write_b128 {v(ta+1)}, {v(O+4*i,4)} offset:{L_TB+80*s+16*i}")
    S0 += sprinkle(S, Stream(w_dma(12) + w_dma(13)), KP)
    S = S0
    S.drain(vm=False); S.wait("qa1"); S("s_barrier"); S += q_flag(116, 1)
    stamp(S)
    FR = AKV; KA = TT + 24
    for ks in range(4):
        for x in range(5):
            for r2 in range(2):
                ar, co = (kr + 1, 32 * x) if x < 2 else (kr, 32 * (x - 2))
                S(f"ds_read_b64_tr_b16 {v(FR+20*ks+4*x+2*r2,2)}, {v(ar)} offset:{L_TB+(32*ks+4*r2)*RS+co}")
    S += A2
    for ks in range(4):
        for a in range(2):
            for b in range(3):
                acc = v(KA + 12 * a + 4 * b, 4)
                S(f"v_mfma_f32_16x16x32_bf16 {acc}, {v(FR+20*ks+4*a,4)}, {v(FR+20*ks+8+4*b,4)}, {'0' if ks == 0 else acc}")
    AT = Stream()
    todo = [(a, r, b) for a in range(2) for r in range(4) for b in range(3)]
    for n, (a, r, b) in enumerate(todo):
        av = AV[(0 if a == 0 else (1 if r == 0 else 2)) + (3 if b == 2 else 0)]
        AT.I(f"buffer_atomic_add_f32 {v(KA+12*a+4*b+r)}, {v(av)}, {SWS}, s42 offen offset:{(16*a+r)*192+64*b}", tok="kvat" if n == len(todo) - 1 else None)
    if 'noat' in ABL: AT = Stream(AT[-1:])
    stamp(S)
    S += poll2_issue()
    stages = []
    for g in range(5):
        gg = 10 + g; mf = []
        for p8 in range(8):
            p = p8 & 3
            for T in range(3):
                sl_ = gg % 4 if gg < 14 else -1
                ar, off = (vQA + p, (sl_ + 1) * 20480) if sl_ < 2 else (vQB + p, (sl_ - 2) * 20480)
                off += 32 * T + (p8 >> 2) * 10240
                mf.append((AQ + 16 * T, f"{v(ar)} offset:{off}", f"{v(ar)} offset:{off+80}", 32 * g + 4 * p8, None, g == 0 and p8 == 0, None))
        stages.append(dict(mf=mf, dma=Stream(), xs=None))
    sKF = 79
    S(f"s_lshl_b32 s{sKF}, s{sSL}, 7", f"s_add_u32 s{sKF}, s{sKF}, {WS_KVFLAG}", f"s_lshl_b32 s{sT0}, s{sMT}, 2", f"s_add_u32 s{sQB+22}, s{sKF}, s{sT0}")
    hb = {}
    ha = {0: Stream(w_dma(14) + vw_setup() + p2_pre() + xre_load() + AT), 2: poll2_check("q")}
    for s_ in stages: s_["pace"] = QPACE
    ha[0] = Stream(pb_regs(QR) + ha[0])
    ha[2] += w2_stage("q", 0, 10)
    for k in range(4):
        j = max(3, (20 * k + 19) // 32 + 2)
        ha[j] = Stream(ha.get(j, Stream()) + w2_load(k))
    u = 88; oa = 21; A3 = Stream()
    A3(f"v_bfe_u32 {v(u)}, {v(vL)}, 3, 2", f"v_bfe_u32 {v(u+1)}, {v(vL)}, 2, 1", f"v_lshrrev_b32 {v(u+2)}, 5, {v(vL)}", f"v_cmp_eq_u32 s[98:99], {v(u+1)}, {v(u+2)}",
      f"v_and_b32 {v(u+2)}, 3, {v(vL)}", f"v_lshl_add_u32 {v(u+2)}, {v(u)}, 2, {v(u+2)}", f"v_mul_u32_u24 {v(u+1)}, 42, {v(u+1)}", f"v_add_u32 {v(u+2)}, {v(u+2)}, {v(u+1)}",
      f"v_mul_u32_u24 {v(u+2)}, 96, {v(u+2)}", f"v_mov_b32 {v(u+3)}, {L_ZERO}", f"v_cmp_gt_u32 s[50:51], 2, {v(u)}")
    A3(f"v_add_u32 {v(oa)}, {L_KB}, {v(u+2)}", f"v_add_u32 {v(oa+1)}, {L_KB+21*96}, {v(u+2)}", f"v_add_u32 {v(oa+2)}, {L_KB+16*96}, {v(u+2)}", f"v_add_u32 {v(oa+3)}, {L_KB+(21+16-8)*96}, {v(u+2)}",
      f"v_cndmask_b32 {v(oa+2)}, {v(u+3)}, {v(oa+2)}, s[50:51]", f"v_cndmask_b32 {v(oa+3)}, {v(oa+3)}, {v(u+3)}, s[50:51]")
    for k in range(4): A3(f"v_cndmask_b32 {v(oa+k)}, {v(u+3)}, {v(oa+k)}, s[98:99]")
    A3(f"s_lshl_b32 s48, s{sW}, 9", f"s_add_u32 s48, s48, {L_KB}", f"v_lshl_add_u32 {v(oa+4)}, {v(vL)}, 3, s48")
    core = Core(stages, 4, "q")
    head, slots, first = core.build(4, hb, ha)
    left = interleave(slots, A3, 1, start=first[2]); assert not left
    slots[QF[0]](q_ptxt(QR, 1)); slots[QF[1]] += q_fetch(QR, 1, 3, 5, 80)
    left = interleave(slots, q_corr(3, 80, AQ, 73), 3, start=first[4] + 12); assert not left
    S += head
    for n, sl in enumerate(slots):
        S += sl; S += core.tails[n]
        if n + 1 in [first[i] for i in range(1, 5)]: stamp(S, 2)
    stamp(S)
    W2rest = Stream(w2_load(4) + w2_load(14) + w2_load(15) + w2_load(16))
    S.wait("kvat"); S("s_barrier"); S += flag_store(sQB + 22, 0)
    E = Stream()
    project(E, AQ, PK, AKV)
    PQ = AQ
    softmax_pair(E, AKV, PQ, TT, True)
    E(f"v_mul_f32 {v(ta)}, {hex(0x358637bd)}, {v(TT+44)}")
    bgA = W2rest; bgA += p2_poll(0)
    bgA(f"buffer_load_dword {v(ta+7)}, {v(ta+6)}, {SWS}, s{sKF} offen sc1")
    S += sprinkle(E, bgA, QP1)
    W2rest = p2_L(0, SWS)
    W2r2 = w2_stage("q", 10, 23)
    W2r3 = [Stream(w2_load(5) + w2_load(6)), w2_stage("q", 23, 35)]
    poll_check(S, "p0q", vPV, 1, p2_poll_txt(0), 0xFF)
    poll_check(S, "kv", ta + 7, 1, f"buffer_load_dword {v(ta+7)}, {v(ta+6)}, {SWS}, s{sKF} offen sc1", 0xFFFF)
    stamp(S)
    KL = AKV + 48
    S(f"s_mul_i32 s{sT2}, s{sSL}, {4*4032}", f"s_add_u32 s{sT2}, s{sT2}, {WS_KV}", f"s_lshl_b32 s{sT0}, s{sW}, 10", f"s_add_u32 s{sT2}, s{sT2}, s{sT0}")
    for i in range(4):
        S(f"buffer_load_dwordx4 {v(KL+4*i,4)}, {v(vL16)}, {SWS}, s{sT2} offen sc1")
        if i < 3: S(f"s_add_u32 s{sT2}, s{sT2}, 4096")
    E = Stream(); softmax_pair(E, AKV + 20, PQ + 20, TT, True)
    S += sprinkle(E, W2rest, QP2)
    S(f"v_mul_f32 {v(ta+1)}, {hex(0x358637bd)}, {v(TT+44)}")
    for i in range(4):
        S(f"v_cvt_pk_bf16_f32 {v(KL+4*i)}, {v(KL+4*i)}, {v(KL+4*i+1)}", f"v_cvt_pk_bf16_f32 {v(KL+4*i+1)}, {v(KL+4*i+2)}, {v(KL+4*i+3)}",
          f"ds_write_b64 {v(oa+4)}, {v(KL+4*i,2)} offset:{2048*i}")
    S.drain(vm=False); S("s_barrier")
    W2r2 += p2_poll(1)
    S0 = S; S = Stream()
    FRO = AKV
    ON = TT + 8
    ON = vCS
    for k in range(4):
        for s in range(5): S(f"ds_read_b128 {v(FRO+20*k+4*s,4)}, {v(oa+k)} offset:{16*s}")
    for k in range(4):
        T = min(k, 2); slot = k & 1
        for s in range(5):
            acc = v(ON + 16 * T, 16)
            S(f"v_mfma_f32_32x32x16_bf16 {acc}, {v(FRO+20*k+4*s,4)}, {v(PQ+20*slot+4*s,4)}, {'0' if (s == 0 and k < 3) else acc}")
    S(f"v_add_f32 {v(ta)}, {v(ON+36)}, {v(ta)}", f"v_add_f32 {v(ta+1)}, {v(ON+44)}, {v(ta+1)}", f"v_rcp_f32 {v(ta+2)}, {v(ta)}", f"v_rcp_f32 {v(ta+3)}, {v(ta+1)}")
    OP = AKV
    for s in range(2):
        src = [ON + 16 * s + i for i in range(16)] + [ON + 32 + 8 * s + i for i in range(4)]
        sel = "op_sel_hi:[1,0]" if s == 0 else "op_sel:[0,1] op_sel_hi:[1,1]"
        for i in range(0, 20, 2): S(f"v_pk_mul_f32 {v(src[i],2)}, {v(src[i],2)}, {v(ta+2,2)} {sel}")
        for i in range(10): S(f"v_cvt_pk_bf16_f32 {v(OP+10*s+i)}, {v(src[2*i])}, {v(src[2*i+1])}")
    S0 += sprinkle(S, W2r2, QP3); S = S0
    S(f"s_mul_i32 s{sT0}, s{sSL}, 5120", f"s_add_u32 s{sT0}, s{sT0}, s{sAPB}", f"s_add_u32 s{sT0}, s{sT0}, {96*1024}", f"s_add_u32 s{sT1}, s{sT0}, 4096")
    for i in range(4): S(f"buffer_store_dwordx4 {v(OP+4*i,4)}, {v(vL16)}, {SWS}, s{sT0} offen offset:{1024*i} sc1")
    S.I(f"buffer_store_dwordx4 {v(OP+16,4)}, {v(vL16)}, {SWS}, s{sT1} offen sc1", tok="ost")
    S(f"s_lshl_b32 s{sKF}, s{sMT}, 9", f"s_lshl_b32 s{sT0}, s{sSL}, 2", f"s_add_u32 s{sKF}, s{sKF}, s{sT0}")
    S += phase2("q", W2r3, "ost", flag_store(sKF, 384), False)
    return S

def main(outpath):
    hdr = open("parallel_sum__linear_kernel_hedgehog__glu_gated_glu__prompt.s.ref").read().split("; Override launch")[0]
    out = []
    st = State()
    finalize(prologue(), st, out)
    n0 = nstamp[0]
    finalize(glu_path(), st.copy(), out)
    nstamp[0] = n0
    st2 = st.copy(); st2.hist = []
    out.append("    s_nop 7")
    finalize(qkv_path(), st2, out)
    for L in slow_paths: out += L
    out.append("L_end:")
    txt = hdr + "; @launch grid=(256,1,1) block=(256,1,1) lds=163840\n" + f""".amdgcn_target "amdgcn-amd-amdhsa--gfx950"
.text
.globl {KN}
.p2align 8
.type {KN},@function
{KN}:
""" + "\n".join(out) + f"""
    s_endpgm
.section .rodata,"a"
.p2align 6
.amdhsa_kernel {KN}
  .amdhsa_next_free_vgpr 512
  .amdhsa_next_free_sgpr 102
  .amdhsa_accum_offset 256
  .amdhsa_group_segment_fixed_size 0
  .amdhsa_kernarg_size 88
  .amdhsa_user_sgpr_count 2
  .amdhsa_user_sgpr_kernarg_segment_ptr 1
  .amdhsa_system_sgpr_workgroup_id_x 1
.end_amdhsa_kernel
"""
    open(outpath, "w").write(txt)
    print("lines", len(out))

if __name__ == "__main__":
    for a in sys.argv:
        if a.startswith("--abl="): ABL.update(a[6:].split(","))
    if "--c1" in sys.argv: STGRP = 1
    if "--c2" in sys.argv: STGRP = 2
    if "--c3" in sys.argv: STGRP = 3
    for a in sys.argv:
        if a.startswith("--set="):
            k_, v_ = a[6:].split("="); globals()[k_] = eval(v_)
    if "--stamps" in sys.argv: STAMPS = True
    if "--cyc" in sys.argv: STAMPS = True; STAMPOP = "s_memtime"
    main([a for a in sys.argv[1:] if not a.startswith("--")][0])
```

```python
import sys
KN = "parallel_sum__linear_kernel_hedgehog__glu_gated_glu__prompt"
def kern(name, body, vgpr=8, sgpr=32):
    return f""".text
.globl {name}
.p2align 8
.type {name},@function
{name}:
{body}
s_endpgm
.section .rodata,"a"
.p2align 6
.amdhsa_kernel {name}
  .amdhsa_next_free_vgpr {vgpr}
  .amdhsa_next_free_sgpr {sgpr}
  .amdhsa_accum_offset {vgpr}
  .amdhsa_group_segment_fixed_size 0
  .amdhsa_kernarg_size 88
  .amdhsa_user_sgpr_count 2
  .amdhsa_user_sgpr_kernarg_segment_ptr 1
  .amdhsa_system_sgpr_workgroup_id_x 1
.end_amdhsa_kernel
"""
hdr = '.amdgcn_target "amdgcn-amd-amdhsa--gfx950"\n'
open("t_triv1.s","w").write("; @launch grid=(256,1,1) block=(256,1,1) lds=0\n"+hdr+kern(KN+"_kernel","v_mov_b32 v1, 0"))
for n in (2,3,4):
    s = "".join(f"; @launch kernel=k{i}_kernel grid=(256,1,1) block=(256,1,1) lds=0\n" for i in range(n)) + hdr
    for i in range(n): s += kern(f"k{i}_kernel", "v_mov_b32 v1, 0")
    open(f"t_triv{n}.s","w").write(s)
for kb in (4,16,64):
    body = "\n".join("v_add3_u32 v1, v1, v2, v3" for _ in range(kb*1024//8))
    open(f"t_line{kb}.s","w").write("; @launch grid=(256,1,1) block=(256,1,1) lds=0\n"+hdr+kern(KN+"_kernel",body))
    body = f"s_mov_b32 s4, {kb*1024//8//64}\nL0:\n" + "\n".join("v_add3_u32 v1, v1, v2, v3" for _ in range(64)) + "\ns_sub_u32 s4, s4, 1\ns_cmp_lg_u32 s4, 0\ns_cbranch_scc1 L0"
    open(f"t_loop{kb}.s","w").write("; @launch grid=(256,1,1) block=(256,1,1) lds=0\n"+hdr+kern(KN+"_kernel",body))
```

```python
from mk_nop import kern, hdr, KN
def gen(name, segB, offB, reps=4, depth=16, direct=False, lanerow=False, flags='', nwg=256, rot=False, x2=False):
    L = []; e = L.append
    e(f"s_cmp_ge_u32 s2, {nwg}"); e("s_cbranch_scc1 L_end")
    e("s_load_dwordx2 s[6:7], s[0:1], 8"); e("s_load_dwordx2 s[44:45], s[0:1], 80")
    e("s_memtime s[30:31]"); e("s_memrealtime s[50:51]")
    e("s_and_b32 s16, s2, 7"); e("s_lshl_b32 s16, s16, 1"); e("s_lshr_b32 s17, s2, 3"); e("s_and_b32 s17, s17, 1"); e("s_add_u32 s16, s16, s17")
    nslot = (3840 - segB)//offB + 1
    e(f"s_min_u32 s16, s16, {nslot-1}")
    e("s_waitcnt lgkmcnt(0)")
    e("s_mov_b32 s12, s6"); e("s_mov_b32 s13, s7"); e("s_mov_b32 s14, 2457600"); e("s_mov_b32 s15, 0x20000")
    e("s_movk_i32 s19, 3840")
    e(f"s_mul_i32 s26, s16, {offB}")
    e("v_lshrrev_b32 v1, 6, v0"); e("s_nop 0"); e("v_readfirstlane_b32 s28, v1"); e("v_and_b32 v2, 63, v0")
    cpr = segB//16
    magic = (1<<32)//cpr + 1
    e(f"s_mov_b32 s33, {magic}"); e(f"s_mov_b32 s34, {cpr}")
    for j in range(cpr):
        if lanerow:
            e("v_mul_lo_u32 v6, v2, s19"); e(f"v_add_u32 v{30+j}, {16*j}, v6")
        else:
            e(f"v_add_u32 v5, {j*64}, v2")
            e("v_mul_hi_u32 v6, v5, s33"); e("v_mul_lo_u32 v7, v6, s34"); e("v_sub_u32 v7, v5, v7")
            e("v_mul_lo_u32 v6, v6, s19"); e("v_lshlrev_b32 v7, 4, v7"); e(f"v_add_u32 v{30+j}, v6, v7")
    ring = 40
    e(f"s_mul_i32 s35, s28, {ring*1024}")
    if rot:
        e("s_lshr_b32 s36, s2, 4"); e("s_add_u32 s36, s36, s28"); e("s_and_b32 s36, s36, 3"); e(f"s_mul_i32 s36, s36, {128*3840}"); e("s_add_u32 s26, s26, s36")
        e("s_lshr_b32 s36, s2, 6"); e(f"s_mul_i32 s36, s36, {32*3840}"); e("s_add_u32 s26, s26, s36")
    else:
        e(f"s_mul_i32 s36, s28, {128*3840}"); e("s_add_u32 s26, s26, s36")
    cnt = 0
    for rep in range(reps):
      if rep == 1: e("s_waitcnt vmcnt(0)"); e("s_barrier"); e("s_memrealtime s[52:53]"); e("s_memtime s[30:31]")
      for st in range(2):
        e(f"s_add_u32 s38, s26, {st*64*3840}")
        for j in range(cpr):
            if not direct: e(f"s_add_u32 m0, s35, {(cnt % ring)*1024}")
            if cnt >= depth: e(f"s_waitcnt vmcnt({depth-1})")
            else: e("s_nop 0")
            if direct: e(f"buffer_load_dwordx4 v[{100+4*(cnt%depth)}:{103+4*(cnt%depth)}], v{30+j}, s[12:15], s38 offen {flags}")
            else: e(f"buffer_load_dwordx4 v{30+j}, s[12:15], s38 offen {flags} lds")
            cnt += 1
    e("s_waitcnt vmcnt(0)")
    e("s_memtime s[40:41]"); e("s_memrealtime s[54:55]"); e("s_waitcnt lgkmcnt(0)")
    e("s_sub_u32 s40, s40, s30")
    e("s_cmp_lg_u32 s28, 0"); e("s_cbranch_scc1 L_end")
    e("s_mov_b32 s46, 65536"); e("s_mov_b32 s47, 0x20000"); e("s_lshl_b32 s3, s2, 4"); e("v_mov_b32 v1, s3"); e("v_mov_b32 v4, s50"); e("v_mov_b32 v5, s52"); e("v_mov_b32 v6, s54"); e("v_mov_b32 v7, s40")
    e("buffer_store_dwordx4 v[4:7], v1, s[44:47], 0 offen")
    e("L_end:")
    open(name, "w").write(f"; @launch grid=(256,1,1) block=(256,1,1) lds=163840\n" + hdr + kern(KN+"_kernel", "\n".join(L), vgpr=256, sgpr=64))
    print(name, "bytes per CU in timed reps", (reps-1)*512*segB)


for fl, nm in (("", "plain"), ("nt", "nt"), ("sc1", "sc1"), ("sc0 sc1", "sc01"), ("sc0 sc1 nt", "all")):
    gen(f"v1_160_{nm}.s", 160, 160, reps=9, flags=fl, rot=True)
    gen(f"v2_64_{nm}.s", 64, 64, reps=21, flags=fl, rot=True)
gen("v3_128.s", 128, 128, reps=11, rot=True)
```

```python
import sys
from emit import Stream, State, Ins, finalize, interleave, sprinkle, vm_groups

KN = "parallel_sum__linear_kernel_hedgehog__glu_gated_glu__prompt_kernel"
WS_HFLAG = 0
WS_KVFLAG = 8192
WS_PFLAG = 9216
WS_KV = 12288
WS_CSG = 143360; WS_CSQ = 155648; WS_RS = 163840; WS_SF = 180224
WS_STAT = 262144
WS_STAMP = 524288
WS_AP = 1 << 20
WS_WP = 12 << 20
WS_SIZE = 16 << 20
HUGE = 0x7F000000
L_XS = 0
L_TB = 0; RS = 528
L_WR = 67584
L_MISC = 149504
L_PACK = 0
LG_WR = 65536
LG_MISC = 147456
L_CSF = LG_MISC + 12288
L_PHI = L_MISC + 4096
L_ZERO = L_MISC
L_CS = L_MISC + 10240
L_KB = L_MISC + 2048
SX, SW, SWS, SDBG, SOUT, SAUX = "s[4:7]", "s[8:11]", "s[12:15]", "s[16:19]", "s[20:23]", "s[24:27]"
sW, sMT, sSL, sRT, sNT, sROT = 28, 29, 30, 31, 52, 53
sXB, sWB, sKX, sKW, sT0, sT1, sT2, sT3 = 54, 55, 56, 57, 58, 59, 60, 61
sXM0, sWM0, sAPB, sONE, sWPB, sACB, sWP4, sWP5 = 62, 63, 64, 65, 66, 67, 68, 69
sST = 70
sSPIN = 74
sPKS, sPKD = 75, 76
sPKF = 101
sSTAMP = 80
vL, vL16, vXO, vWO, vQO = 1, 2, 3, 5, 10
vXA, vWA, vWB_, vQA, vQB = 16, 20, 24, 28, 32
vSEL, vMB, vC, vSD, vST = 36, 40, 44, 45, 46
vCS = 48
vT = 68
vONE = 115
vFL = 15
NF, DPF = 10, 7
aWF = 160

STAMPS = False
GROT = 1
PREF = 0
CODEPF = 1
T2AT = 0
T3AT = 11
XRAT = 11
H0AT = 22
P1AT = 3
PBS = [(3, 5, 10), (12, 15, 19), (22, 24, 28)]
B0AT = 12
QP1AT = 3
QPB = (3, 5, 8)
QF = (0, 16)
QC0 = 1
QS1 = 0
WPT = 0
WPD = 0
QTAT = 0
QWPT = 0
XRE = 1
PACE = 1.33
QPACE = 2
QP1 = 80
QP2 = 55
QP3 = 80
E3P = 40
E3CUT = 4
KP = 250
CAPA = 5
CAPB = 8
ROLE = ['g']
STGRP = 0
ABL = set()
STAMPOP = 's_memrealtime'
nstamp = [0]
def stamp(S, grp=0):
    if STAMPS and (grp == STGRP or grp < 0 or (grp == 0 and STGRP == 2 and ROLE[0] == "q")):
        i = nstamp[0]; nstamp[0] += 1
        S(f"{STAMPOP} s[94:95]")
        S.drain(vm=False)
        S(f"v_writelane_b32 v0, s94, {i}")

def v(a, n=1): return f"v{a}" if n == 1 else f"v[{a}:{a+n-1}]"
def a_(a, n=1): return f"a{a}" if n == 1 else f"a[{a}:{a+n-1}]"

slow_paths = []
def cmp_mask(vreg, n, mask):
    lo, hi = mask & 0xFFFFFFFF, mask >> 32
    L = []
    if n == 2: L.append(f"v_and_b32 {v(vreg)}, {v(vreg)}, {v(vreg+1)}")
    L.append(f"v_cmp_ne_u32 vcc, 1, {v(vreg)}")
    if hi:
        L += [f"s_and_b32 s{sT0}, vcc_lo, {hex(lo)}", f"s_and_b32 s{sT1}, vcc_hi, {hex(hi)}", f"s_or_b32 s{sT0}, s{sT0}, s{sT1}"]
    else:
        L += [f"s_and_b32 s{sT0}, vcc_lo, {hex(lo)}"]
    return L
def spin_lines(name, vreg, n, load, mask, sleep=6):
    C = cmp_mask(vreg, n, mask)
    k = 2 if n == 2 else 1
    return [f"    s_mov_b32 s{sSPIN}, 0x8000", f"L_spin_{name}:", f"    s_sleep {sleep}", "    " + load, "    s_waitcnt vmcnt(0)",
            f"    s_sub_u32 s{sSPIN}, s{sSPIN}, 1", f"    s_cbranch_scc1 L_out_{name}"] + ["    " + c for c in C[:k]] + ["    s_nop 1"] + ["    " + c for c in C[k:]] + \
           [f"    s_cbranch_scc1 L_spin_{name}", f"L_out_{name}:"]
def poll_check(S, name, vreg, n, load, mask):
    S(*cmp_mask(vreg, n, mask))
    S(f"s_cbranch_scc1 L_slow_{name}", f"L_back_{name}:")
    slow_paths.append([f"L_slow_{name}:"] + spin_lines(name, vreg, n, load, mask) + [f"    s_branch L_back_{name}"])

def divmod_v(S, q, r, x, d, tmp_s=sT0):
    m = (1 << 16) // d + 1
    S(f"v_mul_u32_u24 {v(q)}, {m}, {v(x)}", f"v_lshrrev_b32 {v(q)}, 16, {v(q)}",
      f"v_mul_u32_u24 {v(r)}, {d}, {v(q)}", f"v_sub_u32 {v(r)}, {v(x)}, {v(r)}")

def prologue():
    S = Stream()
    S("s_cmp_ge_u32 s2, 256", "s_cbranch_scc1 L_end")
    S("s_load_dwordx16 s[32:47], s[0:1], 0", "s_load_dwordx4 s[48:51], s[0:1], 64", "s_load_dwordx2 s[12:13], s[0:1], 80")
    S("s_bitcmp1_b32 s2, 7", "s_cbranch_scc1 L_qkv")
    return S
def common_a(role):
    S = Stream(); t = vT
    S(f"v_lshrrev_b32 {v(vT)}, 6, v0", f"v_and_b32 {v(vL)}, 63, v0", f"v_readfirstlane_b32 s{sW}, {v(vT)}")
    S(f"v_lshlrev_b32 {v(vL16)}, 4, {v(vL)}")
    S("s_and_b32 s3, s2, 7", f"s_lshr_b32 s{sT0}, s2, 3")
    S(f"s_and_b32 s{sMT}, s3, 1", f"s_lshl_b32 s{sMT}, s{sMT}, 3", f"s_and_b32 s{sT1}, s{sT0}, 7", f"s_add_u32 s{sMT}, s{sMT}, s{sT1}")
    S(f"s_and_b32 s{sSL}, s3, 6", f"s_bfe_u32 s{sT2}, s2, 0x10006", f"s_add_u32 s{sSL}, s{sSL}, s{sT2}")
    S(f"s_lshl_b32 s{sRT}, s3, 2", f"s_and_b32 s{sT2}, s{sT0}, 3", f"s_add_u32 s{sRT}, s{sRT}, s{sT2}", f"s_lshr_b32 s{sNT}, s{sT0}, 2")
    if role == "q":
        S(f"s_add_u32 s{sROT}, s{sMT}, s{sSL}", f"s_mul_i32 s{sT2}, s{sROT}, 52", f"s_lshr_b32 s{sT2}, s{sT2}, 8", f"s_mul_i32 s{sT2}, s{sT2}, 5",
          f"s_sub_u32 s{sROT}, s{sROT}, s{sT2}", f"s_lshl_b32 s{sROT}, s{sROT}, 1")
    else:
        S(f"s_lshl_b32 s{sT2}, s{sSL}, 1", f"s_add_u32 s{sT2}, s{sT2}, s{sMT}", f"s_mul_i32 s{sT1}, s{sT2}, 26", f"s_lshr_b32 s{sT1}, s{sT1}, 8", f"s_mul_i32 s{sT1}, s{sT1}, 10", f"s_sub_u32 s{sROT}, s{sT2}, s{sT1}")
    S(f"v_mov_b32 {v(vFL)}, {hex(HUGE)}", "v_cmp_eq_u32 vcc, 0, v0", "v_accvgpr_write_b32 a255, 1")
    S(f"v_lshrrev_b32 {v(t)}, 3, {v(vL)}", f"v_cndmask_b32 {v(vFL)}, {v(vFL)}, 0, vcc", f"v_mul_u32_u24 {v(t)}, 1280, {v(t)}",
      f"v_lshrrev_b32 {v(t+1)}, 4, {v(vL)}", f"v_and_b32 {v(t+2)}, 7, {v(vL)}", f"v_xor_b32 {v(t+1)}, {v(t+1)}, {v(t+2)}",
      f"v_lshl_add_u32 {v(vXO)}, {v(t+1)}, 4, {v(t)}", f"v_xor_b32 {v(t+1)}, 4, {v(t+1)}", f"v_lshl_add_u32 {v(vXO+1)}, {v(t+1)}, 4, {v(t)}",
      f"v_add_u32 {v(XO[1])}, 9216, {v(XO[1])}", f"v_add_u32 {v(XO[2])}, {2*9216}, {v(XO[0])}", f"v_add_u32 {v(XO[3])}, {2*9216}, {v(XO[1])}")
    S("s_mov_b32 s6, 2621440", "s_mov_b32 s7, 0x20000", f"s_mov_b32 s14, {WS_SIZE}", "s_mov_b32 s15, 0x20000", "s_mov_b32 s18, 256", "s_mov_b32 s19, 0x20000",
      "s_mov_b32 s22, 2621440", "s_mov_b32 s23, 0x20000", "s_mov_b32 s11, 0x20000", "s_mov_b32 s27, 0x20000")
    S(f"s_lshl_b32 s{sXB}, s{sMT}, 2", f"s_add_u32 s{sXB}, s{sXB}, s{sW}", f"s_mul_i32 s{sAPB}, s{sXB}, {136*1024}", f"s_add_u32 s{sAPB}, s{sAPB}, {WS_AP}")
    if role == "q":
        S(f"s_mul_i32 s{sST+2}, s{sXB}, 3072", f"s_cmp_eq_u32 s{sSL}, 7", f"s_cselect_b32 s26, {WS_SIZE}, 0", f"s_cselect_b32 s{sST+3}, 0, {hex(HUGE)}")
        for i in range(4): S(f"v_mov_b32 {v(100+i)}, 0")
    S(f"s_mul_i32 s{sXB}, s{sXB}, {32*1280}", f"s_lshl_b32 s{sXM0}, s{sW}, 14")
    S(f"s_lshl_b32 s{sKX}, s{sROT}, 7", f"s_add_u32 s{sKX}, s{sKX}, s{sXB}", f"s_add_u32 s90, s{sXB}, 1280")
    return S
def common_b(role):
    S = Stream()
    S("s_mov_b32 s4, s32", "s_mov_b32 s5, s33")
    stamp(S, -1)
    if role == "q":
        S("s_mov_b32 s24, s12", "s_mov_b32 s25, s13")
        for i in range(3): S.I(f"buffer_store_dwordx4 {v(100,4)}, {v(vL16)}, {SAUX}, s{sST+2} offen offset:{1024*i} sc1", tok="zst" if i == 2 else None)
    S += x_dma(0)
    return S
def common_c():
    return Stream()("s_mov_b32 s16, s50", "s_mov_b32 s17, s51", "s_mov_b32 s20, s48", "s_mov_b32 s21, s49")

XO = [3, 4, 112, 113]
def x_dma(i):
    S = Stream()
    S(f"s_add_u32 m0, s{sXM0}, {L_XS + (i % 4) * 4096}")
    for j in range(4):
        S.I(f"buffer_load_dwordx4 {v(XO[j])}, {SX}, s{sKX} offen offset:{j*1024} lds", tok=f"x{i}" if j == 3 else None)
    if i < 9: S(f"s_add_u32 s{sKX}, s{sKX}, 128", f"s_cmp_eq_u32 s{sKX}, s90", f"s_cselect_b32 s{sKX}, s{sXB}, s{sKX}")
    return S
sKT = 80
def ktable(S, mult, base_s):
    S(f"s_mul_i32 s{sKT}, s{sROT}, {mult}", f"s_add_u32 s{sKT}, s{sKT}, s{base_s}", f"s_add_u32 s91, s{base_s}, {10*mult}")
def ktable_rest(S, mult, base_s):
    for i in range(1, 10):
        S(f"s_add_u32 s{sKT+i}, s{sKT+i-1}, {mult}")
        if i % 2 == 0 or ROLE[0] == 'g': S(f"s_cmp_eq_u32 s{sKT+i}, s91", f"s_cselect_b32 s{sKT+i}, s{base_s}, s{sKT+i}")

def x_reads(i):
    S = Stream()
    for p in range(4):
        S.I(f"ds_read_b128 {a_(16*i+4*p,4)}, {v(vXA+p)} offset:{(i % 4)*4096}", tok=f"xr{i}" if p == 3 else None)
    return S

def code_pf(tag):
    S = Stream(); t = vT
    if CODEPF:
        S("s_getpc_b64 s[48:49]", f"L_pc{tag}:", f"s_sub_u32 s48, s48, (L_pc{tag}-{KN})", "s_subb_u32 s49, s49, 0")
        S("s_lshr_b32 s50, s2, 3", "s_lshl_b32 s50, s50, 2", f"s_add_u32 s50, s50, s{sW}", "s_lshl_b32 s50, s50, 10",
          f"v_and_b32 {v(t)}, 7, {v(vL)}", f"v_lshl_add_u32 {v(t)}, {v(t)}, 7, s50", f"v_min_u32 {v(t)}, (L_end-{KN}), {v(t)}", f"global_load_dword a254, {v(t)}, s[48:49]")
    return S
def xaddr_setup(S, wave_xor):
    t = vT
    S(f"v_and_b32 {v(t)}, 31, {v(vL)}", f"v_bfe_u32 {v(t+1)}, {v(vL)}, 1, 3", f"v_lshrrev_b32 {v(t+2)}, 5, {v(vL)}", f"v_xor_b32 {v(t+1)}, {v(t+1)}, {v(t+2)}")
    if wave_xor:
        S(f"s_lshl_b32 s{sT0}, s{sW}, 1", f"v_xor_b32 {v(t+1)}, s{sT0}, {v(t+1)}")
    S(f"v_lshlrev_b32 {v(t)}, 7, {v(t)}", f"v_add_u32 {v(t)}, s{sXM0}, {v(t)}")
    for p in range(4):
        S(f"v_xor_b32 {v(t+2)}, {2*p}, {v(t+1)}", f"v_lshl_add_u32 {v(vXA+p)}, {v(t+2)}, 4, {v(t)}")

def sel_setup(S):
    t = vT
    S(f"v_lshrrev_b32 {v(t)}, 4, {v(vL)}", f"v_xor_b32 {v(t)}, {v(t)}, {v(vL)}", f"v_and_b32 {v(t)}, 1, {v(t)}", f"v_cmp_eq_u32 vcc, 0, {v(t)}",
      f"v_mov_b32 {v(t+1)}, 0x3f803f80")
    for i in range(4): S(f"v_cndmask_b32 {v(vSEL+i)}, 0, {v(t+1)}, vcc")
    S("s_mov_b32 s96, 0x0000ffff", "s_mov_b32 s97, 0x0000ffff")

vPK = vT + 40
def pack_vec(S):
    t = vT
    S(f"v_lshrrev_b32 {v(t)}, 3, {v(vL)}", f"v_mul_u32_u24 {v(t)}, 1280, {v(t)}", f"v_and_b32 {v(t+1)}, 7, {v(vL)}", f"v_lshl_add_u32 {v(vPK)}, {v(t+1)}, 4, {v(t)}")
    S(f"v_lshrrev_b32 {v(t)}, 4, {v(vL)}", f"v_bfe_u32 {v(t+1)}, {v(vL)}, 2, 2", f"v_lshl_add_u32 {v(t)}, {v(t)}, 3, {v(t+1)}", f"v_lshlrev_b32 {v(t)}, 7, {v(t)}",
      f"v_and_b32 {v(t+1)}, 3, {v(vL)}", f"v_lshl_add_u32 {v(t)}, {v(t+1)}, 3, {v(t)}", f"s_lshl_b32 s{sT0}, s{sW}, 12", f"s_add_u32 s{sT0}, s{sT0}, {LG_MISC}", f"v_add_u32 {v(vPK+1)}, s{sT0}, {v(t)}")
PKV = 192
def pack_pre(u, unit_s):
    S = Stream(); A, B, C = 48, 49, 50; R = PKV + 8 * u
    S(f"s_mul_i32 s51, s{unit_s}, 6554", "s_lshr_b32 s51, s51, 16", "s_mul_i32 s43, s51, 10", f"s_sub_u32 s43, s{unit_s}, s43")
    if u == 0: S("s_cmp_lt_u32 s51, 48", "s_cselect_b32 s40, s46, s38", "s_cselect_b32 s41, s47, s39", "s_mov_b32 s42, 819200", "s_cselect_b32 s42, 1966080, s42")
    for j in range(4):
        if j % 2 == 0:
            S(f"s_lshl_b32 s{C}, s51, 1")
            if j: S(f"s_add_u32 s{C}, s{C}, 1")
            S(f"s_bfe_u32 s{A}, s{C}, 0x30002", f"s_mul_i32 s{A}, s{A}, 3", f"s_lshr_b32 s3, s{C}, 5", f"s_add_u32 s{A}, s{A}, s3", f"s_lshl_b32 s{A}, s{A}, 2", f"s_and_b32 s3, s{C}, 3", f"s_add_u32 s{A}, s{A}, s3",
              f"s_lshl_b32 s{A}, s{A}, 4", f"s_sub_u32 s{C}, s{C}, 96", f"s_max_i32 s{C}, s{C}, 0", f"s_mul_i32 s3, s{C}, 52", "s_lshr_b32 s3, s3, 8", "s_mul_i32 s3, s3, 40",
              f"s_lshl_b32 s{C}, s{C}, 3", f"s_add_u32 s{C}, s{C}, s3", "s_cmp_lt_u32 s51, 48", f"s_cselect_b32 s{A}, s{A}, s{C}", f"s_cselect_b32 s{B}, {8*1280}, s{B}",
              f"s_mov_b32 s3, {40*1280}", f"s_cselect_b32 s{B}, s{B}, s3", f"s_mul_i32 s{A}, s{A}, 1280", "s_lshl_b32 s3, s43, 7", f"s_add_u32 s{A}, s{A}, s3")
        else: S(f"s_add_u32 s{A}, s{A}, s{B}")
        S(f"s_sub_u32 s3, s{A}, {1024*j}")
        if u: S(f"s_cmp_lt_u32 s{unit_s}, 680", f"s_cselect_b32 s3, s3, {hex(HUGE)}")
        S(f"v_add_u32 {v(R+j)}, s3, {v(vPK)}")
    for t in range(4):
        S(f"s_lshl_b32 s{A}, s43, 2")
        if t: S(f"s_add_u32 s{A}, s{A}, {t}")
        S(f"s_mul_i32 s{B}, s{A}, 52", f"s_lshr_b32 s{B}, s{B}, 8", f"s_mul_i32 s{B}, s{B}, 335", f"s_add_u32 s{A}, s{A}, s{B}", f"s_mul_i32 s{B}, s51, 5", f"s_add_u32 s{A}, s{A}, s{B}",
          f"s_lshl_b32 s{A}, s{A}, 10", f"s_add_u32 s{A}, s{A}, {WS_WP}")
        if u: S(f"s_cmp_lt_u32 s{unit_s}, 680", f"s_cselect_b32 s{A}, s{A}, {hex(HUGE)}")
        S(f"v_add_u32 {v(R+4+t)}, s{A}, {v(vL16)}")
    return S
def pack_dma(u, unit_s=None):
    S = Stream(); R = PKV + 8 * u
    if u == 0: S("s_mov_b32 s24, s40", "s_mov_b32 s25, s41", "s_mov_b32 s26, s42")
    else: S("s_mov_b32 s24, s38", "s_mov_b32 s25, s39", "s_mov_b32 s26, 819200")
    S(f"s_add_u32 m0, s{sWM0}, {LG_MISC}")
    for j in range(4): S.I(f"buffer_load_dwordx4 {v(R+j)}, {SAUX}, 0 offen offset:{1024*j} lds", tok=f"packdma{u}" if j == 3 else None)
    if u: S("s_mov_b32 s24, s12", "s_mov_b32 s25, s13")
    return S
def pack_finish(u):
    S = Stream(); d = vT + 20; R = PKV + 8 * u
    S.wait(f"packdma{u}")
    for t in range(4):
        for r2 in range(2): S(f"ds_read_b64_tr_b16 {v(d+4*t+2*r2,2)}, {v(vPK+1)} offset:{r2*512+32*t}")
    for t in range(4): S.I(f"buffer_store_dwordx4 {v(d+4*t,4)}, {v(R+4+t)}, {SWS}, 0 offen sc1", tok=f"chores{u}" if t == 3 else None)
    return S

def poll1_issue():
    S = Stream()
    S(f"v_and_b32 {v(vT+18)}, 15, {v(vL)}", f"v_lshlrev_b32 {v(vT+18)}, 2, {v(vT+18)}", f"buffer_load_dword {v(vT+16)}, {v(vT+18)}, {SDBG}, 0 offen sc1")
    return S
def poll1_check(tag):
    S = Stream()
    poll_check(S, "i" + tag, vT+16, 1, f"buffer_load_dword {v(vT+16)}, {v(vT+18)}, {SDBG}, 0 offen sc1", 0xFFFF)
    return S
def poll2_issue():
    S = Stream()
    S(f"v_lshrrev_b32 {v(vT+18)}, 2, {v(vL)}", f"v_lshlrev_b32 {v(vT+18)}, 7, {v(vT+18)}", f"v_and_b32 {v(vT+16)}, 3, {v(vL)}", f"v_lshl_add_u32 {v(vT+18)}, {v(vT+16)}, 3, {v(vT+18)}",
      f"s_mov_b32 s{sPKF}, {WS_PFLAG}",
      f"buffer_load_dwordx2 {v(vT+16,2)}, {v(vT+18)}, {SWS}, s{sPKF} offen sc1")
    return S
def poll2_check(tag):
    S = Stream()
    poll_check(S, "k" + tag, vT+16, 2, f"buffer_load_dwordx2 {v(vT+16,2)}, {v(vT+18)}, {SWS}, s{sPKF} offen sc1", (1 << 64) - 1)
    return S

vRS, vSQ = 116, 120
def stat_mfma(which, xr, zero):
    if which == 0: return f"v_mfma_f32_16x16x32_bf16 {v(vRS,4)}, {v(vSEL,4)}, {a_(xr,4)}, {'0' if zero else v(vRS,4)}"
    h = which - 1
    return f"v_mfma_f32_4x4x4_16b_bf16 {v(vSQ+4*h,4)}, {a_(xr+2*h,2)}, {a_(xr+2*h,2)}, {'0' if zero else v(vSQ+4*h,4)}"

def split3(S, d, x, t, side):
    S(f"v_cvt_pk_bf16_f32 {v(t)}, {v(x)}, {v(x)}", f"v_lshlrev_b32 {v(t+2)}, 16, {v(t)}", f"v_sub_f32 {v(t+1)}, {v(x)}, {v(t+2)}")
    if side == "A":
        S(f"v_mov_b32 {v(d)}, {v(t)}", f"v_cvt_pk_bf16_f32 {v(d+1)}, {v(x)}, {v(t+1)}", f"v_and_b32 {v(t+2)}, 0xffff0000, {v(d+1)}",
          f"v_sub_f32 {v(t+2)}, {v(t+1)}, {v(t+2)}", f"v_cvt_pk_bf16_f32 {v(d+2)}, {v(t+1)}, {v(t+2)}", f"v_mov_b32 {v(d+3)}, 0")
    else:
        S(f"v_cvt_pk_bf16_f32 {v(d)}, {v(x)}, {v(t+1)}", f"v_and_b32 {v(t+2)}, 0xffff0000, {v(d)}", f"v_sub_f32 {v(t+2)}, {v(t+1)}, {v(t+2)}",
          f"v_cvt_pk_bf16_f32 {v(d+1)}, {v(t+2)}, {v(x)}", f"v_cvt_pk_bf16_f32 {v(d+2)}, {v(t+1)}, {v(x)}", f"v_mov_b32 {v(d+3)}, 0")

def stats_consume(cmul):
    S = Stream(); t = vT + 12
    S(f"v_cndmask_b32 {v(vST)}, {v(vRS+1)}, {v(vRS)}, s[96:97]")
    for i in range(4): S(f"v_add_f32 {v(vSQ+i)}, {v(vSQ+i)}, {v(vSQ+4+i)}")
    S("s_mov_b32 s98, 0xaaaaaaaa", "s_mov_b32 s99, 0xaaaaaaaa")
    S(f"v_cndmask_b32 {v(vSQ)}, {v(vSQ)}, {v(vSQ+1)}, s[98:99]", f"v_cndmask_b32 {v(vSQ+2)}, {v(vSQ+2)}, {v(vSQ+3)}, s[98:99]")
    S("s_mov_b32 s98, 0xcccccccc", "s_mov_b32 s99, 0xcccccccc")
    S(f"v_cndmask_b32 {v(vSQ)}, {v(vSQ)}, {v(vSQ+2)}, s[98:99]", f"v_mul_f32 {v(vST)}, {hex(0x3acccccd)}, {v(vST)}", f"v_mov_b32 {v(vSQ+1)}, {v(vSQ)}")
    S(f"v_permlane32_swap_b32 {v(vSQ)}, {v(vSQ+1)}", f"v_add_f32 {v(vSQ)}, {v(vSQ)}, {v(vSQ+1)}", f"v_mul_f32 {v(vSQ)}, {hex(0x3acccccd)}, {v(vSQ)}")
    S(f"v_fma_f32 {v(vSQ)}, -{v(vST)}, {v(vST)}, {v(vSQ)}", f"v_max_f32 {v(vSQ)}, 0, {v(vSQ)}", f"v_add_f32 {v(vSQ)}, {hex(0x3727c5ac)}, {v(vSQ)}")
    S(f"v_rsq_f32 {v(vST+1)}, {v(vSQ)}", f"v_sqrt_f32 {v(vSD)}, {v(vSQ)}")
    S("s_mov_b32 s98, -1", "s_mov_b32 s99, 0", f"v_sub_f32 {v(t)}, 0, {v(vST)}", f"v_cndmask_b32 {v(t)}, 0, {v(t)}, s[98:99]")
    split3(S, vMB, t, t+1, "B")
    S(f"v_mul_f32 {v(vC)}, {cmul}, {v(vST+1)}")
    return S

def cond_voff(S, dst, base_v, cond_s, lim, lanes_lo_only, tmp_s=sT0):
    S(f"s_cmp_lt_u32 s{cond_s}, {lim}", f"s_cselect_b32 s98, -1, 0", "s_mov_b32 s99, 0" if lanes_lo_only else "s_mov_b32 s99, s98",
      f"v_mov_b32 {v(dst)}, {hex(HUGE)}", f"v_cndmask_b32 {v(dst)}, {v(dst)}, {v(base_v)}, s[98:99]")
def poll_setup(S, dst, line_a_s, line_b_s, t):
    S(f"v_and_b32 {v(t)}, 15, {v(vL)}", f"v_lshlrev_b32 {v(t)}, 2, {v(t)}", f"v_add_u32 {v(dst)}, s{line_a_s}, {v(t)}", f"v_add_u32 {v(t)}, s{line_b_s}, {v(t)}",
      f"v_cndmask_b32 {v(dst)}, {v(t)}, {v(dst)}, s[96:97]")
def stats_from_sums(cmul, su, sq):
    S = Stream(); t = vT + 12
    S(f"v_mul_f32 {v(vST)}, {hex(0x3acccccd)}, {v(su)}", f"v_mul_f32 {v(sq)}, {hex(0x3acccccd)}, {v(sq)}")
    S(f"v_fma_f32 {v(sq)}, -{v(vST)}, {v(vST)}, {v(sq)}", f"v_max_f32 {v(sq)}, 0, {v(sq)}", f"v_add_f32 {v(sq)}, {hex(0x3727c5ac)}, {v(sq)}")
    S(f"v_rsq_f32 {v(vST+1)}, {v(sq)}", f"v_sqrt_f32 {v(vSD)}, {v(sq)}")
    S("s_mov_b32 s98, -1", "s_mov_b32 s99, 0", f"v_sub_f32 {v(t)}, 0, {v(vST)}", f"v_cndmask_b32 {v(t)}, 0, {v(t)}, s[98:99]")
    split3(S, vMB, t, t+1, "B")
    S(f"v_mul_f32 {v(vC)}, {cmul}, {v(vST+1)}")
    return S

class Core:
    def __init__(self, stages, R, tokbase):
        self.stages = stages; self.R = R; self.tb = tokbase
    def build(self, pre_issued, hooks_bar=None, hooks_after=None, first_wait=()):
        hooks_bar = hooks_bar or {}; hooks_after = hooks_after or {}
        st = self.stages
        seq = [(i, m) for i, s in enumerate(st) for m in s["mf"]]
        first = {}
        for n, (i, m) in enumerate(seq): first.setdefault(i, n)
        N = len(seq)
        def reads(n):
            (acc, r0, r1, xr, cs, zero, ex) = seq[n][1]
            f = aWF + 4 * (n % NF)
            return [Ins(f"ds_read_b64_tr_b16 {a_(f,2)}, {r0}"), Ins(f"ds_read_b64_tr_b16 {a_(f+2,2)}, {r1}", tok=f"fr{self.tb}{n}")]
        def open_stage(S, i):
            toks = [f"{self.tb}{i}"] + list(hooks_bar.get(i, []))
            if st[i]["xs"] is not None: toks.append(f"x{st[i]['xs']}")
            if 'nowait' not in ABL: S.wait(*toks)
            if 'nobar' not in ABL: S("s_barrier")
        head = Stream()
        open_stage(head, 0)
        if st[0]["xs"] is not None: head += x_reads(st[0]["xs"])
        for n in range(DPF): head += reads(n)
        slots = [Stream() for _ in range(N)]
        tails = [Stream() for _ in range(N)]
        extras = [[] for _ in range(N)]
        def spread(n0, stream, dscost=0.5, pace=1):
            grp = Stream(); cnt = 0; n = n0; last = n0
            for ins in stream:
                grp.append(ins)
                vm = ins.kind in ("vm_dma", "vm_ld", "vm_st")
                if vm or ins.kind == "mfma": cnt += 1
                elif ins.kind in ("ds_rd", "ds_wr"): cnt += dscost
                if cnt >= 1:
                    extras[min(int(n), N-1)].append(grp); grp = Stream(); cnt = 0; last = n; n += (pace if vm else 1)
            if grp: extras[min(int(last), N-1)].append(grp)
            return n
        qptr = [0]
        if 0 in hooks_after: qptr[0] = spread(0, hooks_after[0], pace=st[0].get("pace", 1))
        for n in range(N):
            i, (acc, r0, r1, xr, cs, zero, ex) = seq[n]
            S = slots[n]; f = aWF + 4 * (n % NF)
            if PAIRWAIT and n % 2 == 0 and n + 1 < N: S.wait(f"fr{self.tb}{n+1}")
            S(f"v_mfma_f32_32x32x16_bf16 {v(acc,16)}, {a_(f,4)}, {a_(xr,4)}, {'0' if zero else v(acc,16)}")
            if cs is not None and 'nocs' not in ABL:
                tails[n](f"v_mfma_f32_16x16x32_bf16 {v(cs[0],4)}, {v(vSEL,4)}, {a_(f,4)}, {'0' if cs[1] else v(cs[0],4)}")
            if ex and 'nostat' not in ABL: tails[n](ex)
            m = n + DPF
            if m < N:
                j = seq[m][0]
                if first[j] == m:
                    open_stage(S, j)
                    k = n
                    if st[j]["xs"] is not None: k = spread(k, x_reads(st[j]["xs"]), dscost=1) - 3
                    k = max(k, qptr[0])
                    d = Stream()
                    if st[j]["xs"] is not None and st[j]["xs"] + 3 < 10 and st[j]["xs"] >= 1:
                        d.wait(f"xr{st[j]['xs']-1}"); d += x_dma(st[j]["xs"] + 3)
                    w = j - 2 + self.R
                    if w >= pre_issued and w < len(st): d += st[w]["dma"]
                    if j in hooks_after: d += hooks_after[j]
                    qptr[0] = spread(k, d, pace=st[j].get("pace", 1))
                S += reads(m)
            for g in extras[n]: S += g
        self.tails = tails
        return head, slots, first

ST0 = 7
def w2_slot(k):
    if ST0 <= k < ST0 + 7: k -= 7
    if k < 5: return ("a", 20 * k)
    if k >= 14: return ("a", 20 * (k - 9))
    return ("a", 200 + 20 * (k - 5)) if ROLE[0] == "g" else ("v", 208 + 20 * (k - 5))
def acc2(m4, tt):
    if ROLE[0] == "q": return v(128 + 20 * m4 + 4 * tt, 4)
    return a_(160 + 20 * (m4 - 2) + 4 * tt, 4) if m4 >= 2 else v(128 + 20 * m4 + 4 * tt, 4)
def act_base(i):
    if i & 1: return ("v", 64 if i == 1 else 48)
    return ("v", 192) if ROLE[0] == "g" else ("a", 160)
def w2_lds_addr(role, f):
    if role == "g":
        if f < 16: return (16384, ((f + 3) % 16) * 1024)
        if f < 19: return (1024, LG_MISC + (f - 16) * 4096)
        return (4096, LG_WR + ((f - 19) // 4) * 16384 + ((f - 19) % 4) * 1024)
    return (10240, 3072 + f * 1024) if f < 10 else (25600, 45056 + (f - 10) * 1024)
def w2_off(k, t):
    part = min(k // 4, 3); return sW2P + part, ((k - 4 * part) * 5 + t) * 1024
def w2_stage(role, f0, f1):
    S = Stream(); run = None
    for f in range(f0, f1):
        ws_, base = w2_lds_addr(role, f); sp, off = w2_off(ST0 + f // 5, f % 5)
        imm = off & 4095
        if run != (ws_, base - imm, sp, off >> 12) :
            run = (ws_, base - imm, sp, off >> 12)
            assert base >= imm
            S(f"s_add_u32 m0, s{sWS[ws_]}, {base - imm}")
        S.I(f"buffer_load_dwordx4 {v(VW[off >> 12])}, {SWS}, s{sp} offen offset:{imm} sc1 lds", tok=f"w2s{f}")
    return S
vLA = 43
def w2_lds_regs(role):
    keys = []
    for f in range(35):
        ws_, base = w2_lds_addr(role, f); k = (ws_, base >> 16)
        if k not in keys: keys.append(k)
    return keys
def w2_lds_setup(role):
    S = Stream()
    for n, (ws_, hi) in enumerate(w2_lds_regs(role)):
        S(f"s_add_u32 s47, s{sWS[ws_]}, {hi << 16}", f"v_add_u32 {v(vLA+n)}, s47, {v(vL16)}")
    return S
def w2_copy(role, k):
    S = Stream(); b = w2_slot(k)
    for t in range(5):
        f = (k - ST0) * 5 + t; ws_, base = w2_lds_addr(role, f)
        r = vLA + w2_lds_regs(role).index((ws_, base >> 16))
        S.I(f"ds_read_b128 {rg(b,4*t,4)}, {v(r)} offset:{base & 0xFFFF}", waits=[f"w2s{f}"])
    return S
def rg(b, off, n): return (a_ if b[0] == "a" else v)(b[1] + off, n)

P2_STEPS = [("h", 0, i) for i in range(4)] + [("h", 1, i) for i in range(4)] + [("h", 2, i) for i in range(4)] + [("o", 0, i) for i in range(5)]
PARTS = [(0, 4, 0, 192), (4, 4, 1, 64), (8, 4, 2, 192), (12, 5, 3, 48)]
sW2P, sACP = 66, 36
sWS = {16384: sXM0, 4096: sWM0, 1024: 92, 10240: 92, 25600: 93}
VW = [2, 16, 17, 18, 19, 13, 14]
def p2_setup():
    S = Stream()
    S(f"s_add_u32 s{sT2}, s{sW}, s{sNT}", f"s_and_b32 s{sR2}, s{sT2}, 3")
    S(f"s_mul_i32 s{sT2}, s{sNT}, {68*5120}", f"s_add_u32 s{sT2}, s{sT2}, {WS_WP}", f"s_mul_i32 s{sW2P}, s{sR2}, {4*5120}", f"s_add_u32 s{sW2P}, s{sW2P}, s{sT2}",
      f"s_add_u32 s{sW2P+1}, s{sW2P}, {16*5120}", f"s_add_u32 s{sW2P+2}, s{sW2P}, {32*5120}", f"s_mul_i32 s{sW2P+3}, s{sR2}, {5*5120}", f"s_add_u32 s{sW2P+3}, s{sW2P+3}, s{sT2}",
      f"s_add_u32 s{sW2P+3}, s{sW2P+3}, {48*5120}")
    if ROLE[0] == "g": S(f"s_lshl_b32 s92, s{sW}, 10")
    else: S(f"s_mul_i32 s92, s{sW}, 10240", f"s_mul_i32 s93, s{sW}, 25600")
    return S
def vw_setup():
    S = Stream()
    for j in range(1, 7): S(f"v_add_u32 {v(VW[j])}, {4096*j}, {v(vL16)}")
    return S
sR2 = 65
def w2_load(k):
    S = Stream(); b = w2_slot(k)
    for t in range(5):
        sp, off = w2_off(k, t)
        S(f"buffer_load_dwordx4 {rg(b,4*t,4)}, {v(VW[off >> 12])}, {SWS}, s{sp} offen offset:{off & 4095} sc1")
    return S
vPF, vPV, vOO, vXR, vRA = 6, 7, 9, 24, 36
VA = [29, 30, 31, 32]
sPF, sOB = 57, 76
def XRA(): return 240 if ROLE[0] == 'g' else 244
def p2_pre():
    S = Stream(); t = vT + 8
    S(f"v_lshrrev_b32 {v(t)}, 4, {v(vL)}", f"v_and_b32 {v(t+1)}, 15, {v(vL)}", f"v_lshlrev_b32 {v(t+3)}, 9, {v(t)}", f"v_lshl_add_u32 {v(t+3)}, {v(t+1)}, 4, {v(t+3)}")
    for j in range(4):
        S(f"s_add_u32 s{sT2}, s{sW}, {j}", f"s_and_b32 s3, s{sT2}, 1", "s_lshl_b32 s3, s3, 8", f"s_bfe_u32 s{sT2}, s{sT2}, 0x10001", f"s_mul_i32 s{sT2}, s{sT2}, {136*1024}", f"s_add_u32 s{sT2}, s{sT2}, s3",
          f"v_add_u32 {v(VA[j])}, s{sT2}, {v(t+3)}")
    S(f"v_and_b32 {v(vPF)}, 7, {v(vL)}", f"v_lshlrev_b32 {v(vPF)}, 2, {v(vPF)}", f"s_lshr_b32 s{sPF}, s{sRT}, 1", f"s_lshl_b32 s{sPF}, s{sPF}, 9")
    S(f"v_mul_u32_u24 {v(vOO)}, 1280, {v(t+1)}", f"v_lshl_add_u32 {v(vOO)}, {v(t)}, 3, {v(vOO)}",
      f"s_lshl_b32 s{sOB}, s{sRT}, 2", f"s_add_u32 s{sOB}, s{sOB}, s{sW}", f"s_mul_i32 s{sOB}, s{sOB}, {16*1280}", f"s_mul_i32 s{sT2}, s{sNT}, 160", f"s_add_u32 s{sOB}, s{sOB}, s{sT2}")
    S(f"s_mul_i32 s{sT2}, s{sRT}, {2*136*1024}", f"s_add_u32 s{sT2}, s{sT2}, {WS_AP}", f"s_lshl_b32 s44, s{sR2}, 13", f"s_add_u32 s44, s44, s{sT2}",
      f"s_mul_i32 s45, s{sR2}, {5*2048}", f"s_add_u32 s45, s45, s{sT2}", f"s_add_u32 s45, s45, {48*2048}")
    return S
def xre_load():
    S = Stream()
    for tt in range(5): S(f"buffer_load_dwordx2 {a_(XRA()+2*tt,2)}, {v(vOO)}, {SX}, s{sOB} offen offset:{32*tt}")
    return S
def wp_touch(r):
    S = Stream()
    S(f"s_and_b32 s48, s{sRT}, 3", "s_lshl_b32 s48, s48, 2", f"s_add_u32 s48, s48, s{sW}", f"s_mul_i32 s48, s48, {170*128}", f"s_mul_i32 s49, s{sNT}, {68*5120}", "s_add_u32 s48, s48, s49", f"s_add_u32 s48, s48, {WS_WP}",
      f"v_lshlrev_b32 {v(r)}, 7, {v(vL)}", f"buffer_load_dword a250, {v(r)}, {SWS}, s48 offen sc1", "s_add_u32 s48, s48, 8192", f"buffer_load_dword a251, {v(r)}, {SWS}, s48 offen sc1",
      f"s_add_u32 s48, s48, {42*128}", f"buffer_load_dword a253, {v(r)}, {SWS}, s48 offen sc1")
    return S
def p2_poll_txt(i): return f"buffer_load_dword {v(vPV+(i&1))}, {v(vPF)}, {SWS}, s{sPF} offen offset:{PARTS[i][2]*128} sc1"
def p2_poll(i): return Stream([Ins(p2_poll_txt(i), tok=f"pp{i}")])
def p2_L(i, srd):
    S = Stream(); k0, n, _, _ = PARTS[i]; r0 = act_base(i)
    if i < 3: S(f"s_add_u32 s46, s44, {i*16*2048}")
    else: S("s_mov_b32 s46, s45")
    if i == 3 and LASTM:
        S("s_add_u32 s47, s45, 4096", "s_add_u32 s48, s45, 8192")
        for m4 in (1, 2, 3, 0):
            for s in range(n): S(f"buffer_load_dwordx4 {rg(r0,16*s+4*m4,4)}, {v(VA[m4])}, {srd}, s{46+(s>>1)} offen offset:{(s&1)*2048} sc1")
        return S
    for s in range(n):
        for m4 in range(4):
            S(f"buffer_load_dwordx4 {rg(r0,16*s+4*m4,4)}, {v(VA[m4])}, {srd}, s46 offen offset:{(s&1)*2048} sc1")
        if s & 1 and s + 1 < n: S(f"s_add_u32 s46, s46, 4096")
    return S
def p2_try(i):
    S = Stream()
    S(*cmp_mask(vPV + (i & 1), 1, 0xFF)); S(f"s_cselect_b32 s26, 0, {WS_SIZE}")
    return S
def phase2(tag, rest, store_tok, flag, l1_done):
    S = Stream(); t = vRA
    vXR = 168 if tag == "g" else 24
    XU = 148 if LASTM else 208
    stamp(S)
    stamp(S, 3)
    S += w2_lds_setup(tag)
    for i in range(4):
        k0, n, _, _ = PARTS[i]; r0 = act_base(i)
        bg = Stream()
        if i < 3 and not (i == 0 and l1_done):
            S += p2_try(i + 1)
            bg += p2_L(i + 1, SAUX)
        if i < len(rest): bg += rest[i]
        if i == 2 and not XRE:
            for tt in range(5): bg(f"buffer_load_dwordx2 {v(vXR+2*tt,2)}, {v(vOO)}, {SX}, s{sOB} offen offset:{32*tt}")
        M = Stream()
        if i == 3 and LASTM:
            S.drain(vm=False); S("s_barrier")
            QD = [48 + 16 * s + 4 * m4 for m4 in (1, 2, 3) for s in range(5)]
            side = Stream()
            for j in range(1, 4):
                side(f"s_add_u32 s{sT0}, s{sW}, {j}", f"s_and_b32 s{sT0}, s{sT0}, 3", f"s_mul_i32 s{sT0}, s{sT0}, 15360", f"s_add_u32 s{sT0}, s{sT0}, {(j-1)*5120}", f"v_add_u32 {v(t+j)}, s{sT0}, {v(vL16)}")
            side(f"s_mul_i32 s{sT0}, s{sW}, 15360", f"v_add_u32 {v(t)}, s{sT0}, {v(vL16)}")
            for q_ in range(10): side(f"v_accvgpr_read_b32 {v(vXR+q_)}, {a_(XRA()+q_)}")
            side2 = Stream()
            for q_ in range(10): side2(f"v_lshlrev_b32 {v(XU+2*q_)}, 16, {v(vXR+q_)}", f"v_and_b32 {v(XU+2*q_+1)}, 0xffff0000, {v(vXR+q_)}")
            sl_ = []
            for pos, m4 in enumerate((1, 2, 3, 0)):
                for s in range(n):
                    b = w2_slot(k0 + s)
                    for tt in range(5):
                        X = Stream(); acc = acc2(m4, tt); e = 5 * s + tt
                        if tt == 0: X(f"s_waitcnt vmcnt({19 - 5*pos - s})")
                        X(f"v_mfma_f32_16x16x32_bf16 {acc}, {rg(b,4*tt,4)}, {rg(r0,16*s+4*m4,4)}, {acc}")
                        pm = (m4 - 1) & 3
                        if pos in (1, 2) and e % 5 == 3: X(f"ds_write_b128 {v(t+pm)}, {acc2(pm,e//5)} offset:{(e//5)*1024}")
                        if pos == 3:
                            if e in (2, 4, 6, 8, 10): X(f"ds_write_b128 {v(t+pm)}, {acc2(pm,e//2-1)} offset:{(e//2-1)*1024}")
                            if e == RBAR: X.drain(vm=False); X("s_barrier")
                            if e >= RBAR:
                                per = -(-15 // (25 - RBAR))
                                for q_ in range((e - RBAR) * per, min(15, (e - RBAR + 1) * per)): X(f"ds_read_b128 {v(QD[q_],4)}, {v(t)} offset:{q_*1024}")
                        sl_.append(X)
            left = interleave(sl_, side, 0.7); assert not left
            left = interleave(sl_, side2, 0.9, start=52); assert not left
            for X in sl_: S += X
            stamp(S); stamp(S, 3)
            for s in range(3):
                for q_ in range(10): S(f"v_pk_add_f32 {v(XU+2*q_,2)}, {v(XU+2*q_,2)}, {v(QD[5*s+q_//2]+2*(q_&1),2)}")
            for q_ in range(10): S(f"v_pk_add_f32 {v(XU+2*q_,2)}, {v(XU+2*q_,2)}, {v(128+2*q_,2)}")
            break
        for s in range(n):
            k = k0 + s; b = w2_slot(k)
            if i > 0: M(f"s_nop {s} ; WAITX")
            if i == 0 and s == FLAG_AFTER:
                M.wait(store_tok); M("s_barrier"); M += flag
            if s == POLL_STEP and i + 2 < 4: M += p2_poll(i + 2)
            if k == 12:
                M.drain(vm=False); M("s_barrier")
                for j in range(1, 4):
                    M(f"s_add_u32 s{sT0}, s{sW}, {j}", f"s_and_b32 s{sT0}, s{sT0}, 3", f"s_mul_i32 s{sT0}, s{sT0}, 15360", f"s_add_u32 s{sT0}, s{sT0}, {(j-1)*5120}", f"v_add_u32 {v(t+j)}, s{sT0}, {v(vL16)}")
                M(f"s_mul_i32 s{sT0}, s{sW}, 15360", f"v_add_u32 {v(t)}, s{sT0}, {v(vL16)}")
            for m4 in ([0, 1, 2, 3] if k < 16 else [1, 2, 3, 0]):
                for tt in range(5):
                    acc = acc2(m4, tt)
                    M(f"v_mfma_f32_16x16x32_bf16 {acc}, {rg(b,4*tt,4)}, {rg(r0,16*s+4*m4,4)}, {'0' if k == 0 else acc}")
                    if 5 <= k < 12 and m4 == 1: M.append(w2_copy(tag, k + 2)[tt])
                    if k == 12 and m4 < 2 and XRE: M(f"v_accvgpr_read_b32 {v(vXR+5*m4+tt)}, {a_(XRA()+5*m4+tt)}")
                    if k == 13 and m4 < 2: M(f"v_lshlrev_b32 {v(XU+10*m4+2*tt)}, 16, {v(vXR+5*m4+tt)}")
                    if k == 14 and m4 < 2: M(f"v_and_b32 {v(XU+10*m4+2*tt+1)}, 0xffff0000, {v(vXR+5*m4+tt)}")
                    if k == 16 and m4 != 1:
                        pm = (m4 - 1) & 3
                        M(f"ds_write_b128 {v(t+pm)}, {acc2(pm,tt)} offset:{tt*1024}")
            if s == 0 or s == n - 1: stamp(M, 3)
        M = sprinkle(M, bg, P2_PERIOD)
        cnt = 0
        for x in M:
            if x.kind in ("vm_ld", "vm_st", "vm_dma"): cnt += 1
            if "WAITX" in x.text:
                s = int(x.text.split()[1]); S(f"s_waitcnt vmcnt({min(63, 4*(n-1-s)+cnt)})")
            else: S.append(x)
        if i < 3:
            nm = f"p{i+1}{tag}"
            if i + 2 < 4: S.wait(f"pp{i+2}")
            S("s_cmp_eq_u32 s26, 0", f"s_cbranch_scc1 L_slow_{nm}", f"L_back_{nm}:")
            ld = p2_poll_txt(i + 1) + (("\n    " + p2_poll_txt(i + 2)) if i + 2 < 4 else "")
            L = [f"L_slow_{nm}:"] + spin_lines(nm, vPV + ((i + 1) & 1), 1, ld, 0xFF, sleep=3)
            L += ["    " + x.text for x in p2_L(i + 1, SWS)]
            L.append(f"    s_branch L_back_{nm}")
            slow_paths.append(L)
        stamp(S)
        stamp(S, 3)
    if not LASTM:
      S.drain(vm=False); S("s_barrier")
      R0 = 48
      for s in range(3):
        for tt in range(5): S(f"ds_read_b128 {v(R0+20*s+4*tt,4)}, {v(t)} offset:{s*5120+tt*1024}")
      for i in range(10): S(f"v_pk_add_f32 {v(XU+2*i,2)}, {v(XU+2*i,2)}, {v(128+2*i,2)}")
      for s in range(3):
        for i in range(10): S(f"v_pk_add_f32 {v(XU+2*i,2)}, {v(XU+2*i,2)}, {v(R0+20*s+2*i,2)}")
    for tt in range(5):
        S(f"v_cvt_pk_bf16_f32 {v(vXR+2*tt)}, {v(XU+4*tt)}, {v(XU+4*tt+1)}", f"v_cvt_pk_bf16_f32 {v(vXR+2*tt+1)}, {v(XU+4*tt+2)}, {v(XU+4*tt+3)}")
        S(f"buffer_store_dwordx2 {v(vXR+2*tt,2)}, {v(vOO)}, {SOUT}, s{sOB} offen offset:{32*tt} {OUTFLAGS}")
    stamp(S)
    if STAMPS:
        S(f"s_lshl_b32 s{sT0}, s2, 8", f"s_add_u32 s{sT0}, s{sT0}, {WS_STAMP}", f"s_cmp_eq_u32 s{sW}, 0", f"s_cselect_b32 s{sT1}, 0, {hex(HUGE)}",
          f"v_lshlrev_b32 {v(48)}, 2, {v(vL)}", f"v_or_b32 {v(48)}, s{sT1}, {v(48)}", f"buffer_store_dword v0, {v(48)}, {SWS}, s{sT0} offen")
    S("s_endpgm")
    return S
FLAG_AFTER = 1
LASTM = 1
RBAR = 15
P2_PERIOD = 48
H1FLAG_AT = 27
XU = 208
OUTFLAGS = ''
POLL_STEP = 2
POLL2_AT = 15
PK_AT = 3
ROT2MASK = 3
EPI_RATE = 2.4
EPI_RATE2 = 3.3
W2CAP17 = 0
EPI_LAG = 1
PAIRWAIT = 1

def flag_store(off_s, imm):
    S = Stream()
    S(f"buffer_store_dword a255, {v(vFL)}, {SWS}, s{off_s} offen offset:{imm} sc1")
    return S

def glu_path():
    S = Stream(); t = vT
    ACC = [128, 192, 128]
    S += common_a("g")
    S(f"v_lshrrev_b32 {v(t)}, 3, {v(vL)}", f"v_mul_u32_u24 {v(t)}, 3072, {v(t)}", f"v_bfe_u32 {v(t+1)}, {v(vL)}, 4, 1", f"s_and_b32 s{sT0}, s{sW}, 2", f"v_or_b32 {v(t+1)}, s{sT0}, {v(t+1)}",
      f"v_lshlrev_b32 {v(t+1)}, 1, {v(t+1)}", f"v_and_b32 {v(t+2)}, 7, {v(vL)}", f"v_xor_b32 {v(t+1)}, {v(t+1)}, {v(t+2)}", f"v_lshl_add_u32 {v(vWO)}, {v(t+1)}, 4, {v(t)}")
    S(f"s_and_b32 s{sWB}, s{sW}, 1", f"s_mul_i32 s{sWB}, s{sWB}, {32*3072}", f"s_mul_i32 s{sT0}, s{sSL}, 384", f"s_add_u32 s{sWB}, s{sWB}, s{sT0}",
      f"s_lshl_b32 s{sWM0}, s{sW}, 12")
    WO = [5, 10, 11, 12]
    for j in range(1, 4): S(f"v_add_u32 {v(WO[j])}, {j*(8*3072-1024)}, {v(vWO)}")
    ktable(S, 64 * 3072, sWB)
    def w_dma(g):
        c, i = divmod(g, 10); D = Stream()
        if c and i == 0: D("s_add_u32 s8, s8, 128", "s_addc_u32 s9, s9, 0", "s_sub_u32 s10, s10, 128")
        D(f"s_add_u32 m0, s{sWM0}, {LG_WR + (g % 5) * 16384}")
        for j in range(4):
            D.I(f"buffer_load_dwordx4 {v(WO[j])}, {SW}, s{sKT+i} offen offset:{j*1024} lds", tok=f"w{g}" if j == 3 else None)
        return D
    ktable_rest(S, 64 * 3072, sWB)
    S("s_mov_b32 s10, 1966080")
    S += common_b("g")
    S(f"s_cmp_lt_u32 s{sW}, 2", "s_cselect_b32 s8, s42, s44", "s_cselect_b32 s9, s43, s45")
    S += w_dma(0)
    S += common_c()
    S(f"s_lshl_b32 s32, s{sMT}, 3", f"s_add_u32 s32, s32, s{sSL}", "s_lshl_b32 s32, s32, 2", f"s_add_u32 s32, s32, s{sW}", "s_add_u32 s33, s32, 512",
      f"s_lshl_b32 s34, s{sMT}, 7", f"s_lshl_b32 s35, s{sSL}, 2", "s_add_u32 s34, s34, s35", f"s_add_u32 s34, s34, {WS_PFLAG}")
    S += x_dma(1); S += w_dma(1)
    S += code_pf('g')
    pack_vec(S); S += pack_pre(0, 32); S += pack_pre(1, 33)
    xaddr_setup(S, False); sel_setup(S)
    S(f"v_bfe_u32 {v(t)}, {v(vL)}, 4, 1", f"v_lshrrev_b32 {v(t+1)}, 5, {v(vL)}", f"v_bfe_u32 {v(t+2)}, {v(vL)}, 2, 2",
      f"v_lshl_add_u32 {v(t+1)}, {v(t+1)}, 3, {v(t+2)}", f"v_lshlrev_b32 {v(t+1)}, 7, {v(t+1)}", f"v_lshl_add_u32 {v(t+1)}, {v(t)}, 13, {v(t+1)}",
      f"v_and_b32 {v(t+3)}, 1, {v(vL)}", f"v_bfe_u32 {v(t+4)}, {v(vL)}, 1, 1", f"v_lshl_add_u32 {v(t+3)}, {v(t+3)}, 1, {v(t+4)}", f"v_lshl_add_u32 {v(t+1)}, {v(t+3)}, 3, {v(t+1)}",
      f"v_add_u32 {v(t+1)}, {LG_WR}, {v(t+1)}",
      f"v_lshrrev_b32 {v(t+2)}, 1, {v(t+2)}", f"v_lshl_add_u32 {v(t+2)}, {v(t)}, 1, {v(t+2)}", f"v_xor_b32 {v(t+2)}, s{sW}, {v(t+2)}")
    for p in range(4):
        S(f"v_xor_b32 {v(t+3)}, {p}, {v(t+2)}", f"v_lshl_add_u32 {v(vWA+p)}, {v(t+3)}, 5, {v(t+1)}", f"v_add_u32 {v(vWB_+p)}, 0x10000, {v(vWA+p)}")
    S(f"s_lshl_b32 s{sT0}, s{sSL}, 12", f"s_add_u32 s{sAPB}, s{sAPB}, s{sT0}")
    for p in range(4):
        S(f"s_xor_b32 s{sST+p}, s{sW}, {p}", f"s_lshl_b32 s{sST+p}, s{sST+p}, 10", f"s_add_u32 s{sST+p}, s{sST+p}, s{sAPB}")
    S(f"s_lshl_b32 s{sPKS+2}, s{sMT}, 9", f"s_lshl_b32 s{sT0}, s{sSL}, 2", f"s_add_u32 s{sPKS+2}, s{sPKS+2}, s{sT0}")
    sFLG = sPKS + 2
    S += p2_setup(); S += p2_pre()
    stages = []
    for g in range(30):
        c, i = divmod(g, 10); mf = []
        order = [(s, p) for s in range(4) for p in range(4)] if g < 29 else [(s, p) for p in range(4) for s in range(4)]
        for (s, p) in order:
            if True:
                off = (g % 5) * 16384 + s * 2048
                ar = vWA + p
                if off >= 65536 - 1024: ar = vWB_ + p; off -= 65536
                mf.append((ACC[c] + 16 * p, f"{v(ar)} offset:{off}", f"{v(ar)} offset:{off+512}", 16 * i + 4 * s,
                           (vCS, s == 0) if (p == 0 and i == 0) else None, i == 0 and s == 0,
                           stat_mfma(p - 1, 16 * i + 4 * s, i == 0 and s == 0) if (c == 0 and p > 0 and i < 2) else None))
        stages.append(dict(mf=mf, dma=w_dma(g), xs=i if c == 0 else None))
    vPA, vFLc, vPL0, vN4, vPS, vPQ, vFLs = 28, 33, 34, 35, 13, 14, 7
    PB = Stream()
    PB(f"v_and_b32 {v(vN4)}, 31, {v(vL)}", f"v_lshlrev_b32 {v(vN4)}, 2, {v(vN4)}", f"v_add_u32 {v(t)}, 8192, {v(vN4)}")
    cond_voff(PB, vPA, vN4, sMT, 10, True); cond_voff(PB, vPS, vN4, sSL, 5, True); cond_voff(PB, vPQ, t, sSL, 5, False)
    cond_voff(PB, vFLc, vFL, sMT, 10, False); cond_voff(PB, vFLs, vFL, sSL, 5, False)
    PB(f"s_mul_i32 s43, s{sSL}, 384", f"s_add_u32 s43, s43, {WS_SF}", f"s_lshl_b32 s78, s{sMT}, 7", f"s_add_u32 s78, s78, {WS_SF + 24*128}")
    poll_setup(PB, vPL0, 43, 78, t)
    PB(f"s_lshl_b32 s{sT0}, s{sMT}, 2", f"s_add_u32 s43, s43, s{sT0}", f"s_lshl_b32 s{sT1}, s{sSL}, 2", f"s_add_u32 s78, s78, s{sT1}",
       f"s_add_u32 s37, s{sT0}, s{sW}", "s_lshl_b32 s37, s37, 7", f"s_add_u32 s37, s37, {WS_RS}", f"s_mul_i32 s{sT0}, s{sSL}, 1536", f"s_add_u32 s{sT0}, s{sT0}, {WS_CSG}")
    for p in range(4): PB(f"s_xor_b32 s{48+p}, s{sW}, {p}", f"s_lshl_b32 s{48+p}, s{48+p}, 7", f"s_add_u32 s{48+p}, s{48+p}, s{sT0}")
    def cs_publish(c):
        E = Stream()
        E(f"v_cndmask_b32 {v(vCS)}, {v(vCS+1)}, {v(vCS)}, s[96:97]")
        E.I(f"buffer_atomic_add_f32 {v(vCS)}, {v(vPA)}, {SWS}, s48 offen offset:{512*c}", tok=f"csa{c}")
        if c == 0:
            E(f"v_cndmask_b32 {v(vRS)}, {v(vRS+1)}, {v(vRS)}, s[96:97]", f"buffer_atomic_add_f32 {v(vRS)}, {v(vPS)}, {SWS}, s37 offen")
            for i in range(4): E(f"v_add_f32 {v(vSQ+i)}, {v(vSQ+i)}, {v(vSQ+4+i)}")
            E("s_mov_b32 s98, 0xaaaaaaaa", "s_mov_b32 s99, 0xaaaaaaaa", f"v_cndmask_b32 {v(vSQ)}, {v(vSQ)}, {v(vSQ+1)}, s[98:99]", f"v_cndmask_b32 {v(vSQ+2)}, {v(vSQ+2)}, {v(vSQ+3)}, s[98:99]")
            E("s_mov_b32 s98, 0xcccccccc", "s_mov_b32 s99, 0xcccccccc", f"v_cndmask_b32 {v(vSQ)}, {v(vSQ)}, {v(vSQ+2)}, s[98:99]")
            E.I(f"buffer_atomic_add_f32 {v(vSQ)}, {v(vPQ)}, {SWS}, s37 offen", tok="csa0")
        return E
    def cs_flag(c):
        E = Stream(); E(f"buffer_store_dword a255, {v(vFLc)}, {SWS}, s43 offen offset:{128*c} sc1")
        if c == 0: E(f"buffer_store_dword a255, {v(vFLs)}, {SWS}, s78 offen sc1")
        return E
    def cs_ptxt(c): return f"buffer_load_dword {v(vT+7)}, {v(vPL0)}, {SWS}, 0 offen offset:{128*c} sc1"
    def cs_fetch(c):
        E = Stream()
        poll_check(E, f"cs{c}g", vT + 7, 1, cs_ptxt(c), 0x3FF | ((0x1F << 16) if c == 0 else 0))
        for p in range(4): E(f"buffer_load_dword {v(vT+p)}, {v(vN4)}, {SWS}, s{48+p} offen offset:{512*c} sc1")
        if c == 0: E(f"buffer_load_dword {v(vRS)}, {v(vN4)}, {SWS}, s37 offen sc1", f"s_add_u32 s37, s37, 8192", f"buffer_load_dword {v(vRS+1)}, {v(vN4)}, {SWS}, s37 offen sc1")
        return E
    def build(c):
        E = Stream()
        for p in range(4): split3(E, vCS + 4 + 4 * p, vT + p, vT + 4, "A")
        return E
    def corr(c):
        E = Stream()
        for p in range(4): E(f"v_mfma_f32_32x32x16_bf16 {v(ACC[c]+16*p,16)}, {v(vCS+4+4*p,4)}, {v(vMB,4)}, {v(ACC[c]+16*p,16)}")
        return E
    def epi(c, packed):
        E = epi_(c, packed)
        if 'noepi' in ABL and not packed: E = Stream([x for x in E if x.kind in ("vm_st", "salu")])
        return E
    def epi_(c, packed):
        E = Stream()
        def store(p):
            A = ACC[c] + 16 * p
            E(f"s_add_u32 s36, s{sST+p}, {c*32*1024}")
            E.I(f"buffer_store_dwordx4 {v(A,4)}, {v(vL16)}, {SWS}, s36 offen sc1", tok=f"h{c}" if p == 3 else None)
        if packed:
            for p in range(4):
                A = ACC[c] + 16 * p
                for i in range(0, 8, 2): E(f"v_pk_mul_f32 {v(A+i,2)}, {v(A+i,2)}, {v(vC,2)} op_sel_hi:[1,0]")
                for i in range(8): E(f"v_exp_f32 {v(A+i)}, {v(A+i)}")
                for i in range(0, 8, 2): E(f"v_pk_fma_f32 {v(A+i,2)}, {v(A+i,2)}, {v(vC,2)}, {v(vC,2)} op_sel:[0,1,1] op_sel_hi:[1,1,1]")
                for i in range(8): E(f"v_rcp_f32 {v(A+i)}, {v(A+i)}")
                for i in range(0, 8, 2): E(f"v_pk_mul_f32 {v(A+8+i,2)}, {v(A+8+i,2)}, {v(A+i,2)}")
                for i in range(4): E(f"v_cvt_pk_bf16_f32 {v(A+i)}, {v(A+8+2*i)}, {v(A+9+2*i)}")
                store(p)
            return E
        LAG = EPI_LAG
        ev = []
        for e in range(32):
            p, i = divmod(e, 8); A = ACC[c] + 16 * p
            ops = [f"v_mul_f32 {v(A+i)}, {v(A+i)}, {v(vC)}", f"v_exp_f32 {v(A+i)}, {v(A+i)}", f"v_fma_f32 {v(A+i)}, {v(A+i)}, {v(vSD)}, {v(vSD)}",
                   f"v_rcp_f32 {v(A+i)}, {v(A+i)}", f"v_mul_f32 {v(A+8+i)}, {v(A+8+i)}, {v(A+i)}"]
            for s, o in enumerate(ops): ev.append((e + LAG * s, s, o, None))
            if i & 1: ev.append((p * 8 + 7 + LAG * 5, 5 + i, f"v_cvt_pk_bf16_f32 {v(A+i//2)}, {v(A+8+i-1)}, {v(A+8+i)}", None))
            if i == 7: ev.append((p * 8 + 7 + LAG * 6, 20, None, p))
        for (_, _, o, p) in sorted(ev, key=lambda x: (x[0], x[1])):
            if o: E(o)
            else: store(p)
        return E
    hb = {PK_AT + 7: ["chores1"]}
    def addb(j, tk): hb[j] = hb.get(j, []) + [tk]
    addb(H0AT, "h0")
    ha = {0: Stream(x_dma(2) + w_dma(2) + x_dma(3) + w_dma(3)),
          PK_AT: pack_dma(0, 32), PK_AT + 3: Stream(pack_finish(0) + pack_dma(1, 33)), PK_AT + 5: pack_finish(1), PK_AT + 7: flag_store(34, 0),
          POLL2_AT - 2: Stream(vw_setup() + poll2_issue()), POLL2_AT: poll2_check("g")}
    core = Core(stages, 5, "w")
    for i in range(10, 30): stages[i]["pace"] = PACE
    def add(j, st_): ha[j] = Stream(ha.get(j, Stream()) + st_)
    S(f"v_min_u32 {v(110)}, 39, {v(vL)}", f"v_mul_u32_u24 {v(110)}, 3072, {v(110)}", f"s_and_b32 s48, s{sMT}, 7", "s_lshl_b32 s48, s48, 1", f"s_and_b32 s49, s{sW}, 1", "s_add_u32 s48, s48, s49",
      f"s_mul_i32 s48, s48, {40*3072}", f"s_mul_i32 s49, s{sSL}, 384", "s_add_u32 s48, s48, s49", f"v_add_u32 {v(110)}, s48, {v(110)}")
    S += PB
    add(P1AT - 2, poll1_issue()); add(P1AT, poll1_check("g"))
    for c in range(3):
        pub, fl, ck = PBS[c]
        add(pub, cs_publish(c)); addb(fl, f"csa{c}"); add(fl, cs_flag(c)); add(ck - 2, Stream([Ins(cs_ptxt(c))])); add(ck, cs_fetch(c))
    add(XRAT, xre_load())
    if WPT: add(POLL2_AT, wp_touch(111))
    if T2AT: add(T2AT, Stream([Ins(f"buffer_load_dword a253, {v(110)}, {SW}, 0 offen offset:128")]))
    if T3AT: add(T3AT, Stream([Ins(f"buffer_load_dword a252, {v(110)}, {SW}, 0 offen offset:{128 if T3AT >= 7 else 256}")]))
    add(H0AT, flag_store(sFLG, 0))
    items = []
    for f in range(0, 19, 4): items.append((POLL2_AT + WPD, w2_stage("g", f, min(f + 4, 19)), min(4, 19 - f)))
    for k in (5, 6): items.append((POLL2_AT + WPD, w2_load(k), 5))
    for k in range(5): items.append((20 + (20 * k + 19) // 16 + 2, w2_load(k), 5))
    for f in range(19, 27, 4): items.append((27 + (f - 19) // 4, w2_stage("g", f, f + 4), 4))
    add(H1FLAG_AT - 2, p2_poll(0))
    chk = Stream(); poll_check(chk, "p0g", vPV, 1, p2_poll_txt(0), 0xFF)
    hb[H1FLAG_AT] = ["h1"]; add(H1FLAG_AT, flag_store(sFLG, 128)); add(H1FLAG_AT, chk)
    G0 = vm_groups(p2_L(0, SWS))
    for q_ in range(0, 16, 4): items.append((max(H1FLAG_AT, 27) + 0.5, Stream([x for gg_ in G0[q_:q_+4] for x in gg_]), 4))
    for j in range(POLL2_AT, 30):
        cap = (CAPA if j < 22 else CAPB) if j <= 26 else 13
        if j in (17, 18): cap = W2CAP17
        for it in sorted(items, key=lambda x: x[0] if x[0] > 21 else 100):
            if it[0] <= j + 0.5 and it[2] <= cap:
                add(j, it[1]); cap -= it[2]; items.remove(it)
    assert not items, [(it[0], it[2]) for it in items]
    rest = [Stream(w2_stage("g", 27, 35) + w2_load(14)), w2_load(15), w2_load(16)]
    head, slots, first = core.build(4, hb, ha)
    side = Stream(stats_from_sums("0xbfb8aa3b", vRS, vRS + 1) + build(0) + corr(0) + epi(0, False))
    left = interleave(slots[:first[20]], side, EPI_RATE, start=first[B0AT] - 4); assert not left, len(left)
    left = interleave(slots[:first[H1FLAG_AT - 1]], Stream(build(1) + corr(1) + epi(1, False)), EPI_RATE2, start=first[20] + 4); assert not left, len(left)
    c2 = corr(2); fin = Stream(build(2) + p2_poll(1) + c2[:-1])
    left = interleave(slots, fin, 3, start=first[29]); assert not left, len(left)
    slots[-1].append(c2[-1])
    stamp(S, 1)
    S += head
    stamp(S, 1)
    for n, sl in enumerate(slots):
        S += sl; S += core.tails[n]
        if n + 1 in (first[10], first[20]): stamp(S)
        if n + 1 in [first[i] for i in range(1, 11)]: stamp(S, 1)
        if n + 1 in [first[i] for i in range(1, 30)] + [len(slots)]: stamp(S, 2)
    stamp(S)
    e2 = epi(2, True); cut = len(e2) // E3CUT
    S += e2[:cut]; S += p2_try(1)
    S += sprinkle(Stream(e2[cut:]), p2_L(1, SAUX), E3P)
    S += phase2("g", rest, "h2", flag_store(sFLG, 256), True)
    return S

def softmax_pair(E, P, O, T, qmode):
    mx, mn = T + 40, T + 41
    E(f"v_max3_f32 {v(mx)}, {v(P)}, {v(P+1)}, {v(P+2)}", f"v_min3_f32 {v(mn)}, {v(P)}, {v(P+1)}, {v(P+2)}")
    for i in range(3, 19, 2):
        E(f"v_max3_f32 {v(mx)}, {v(mx)}, {v(P+i)}, {v(P+i+1)}", f"v_min3_f32 {v(mn)}, {v(mn)}, {v(P+i)}, {v(P+i+1)}")
    E(f"v_max_f32 {v(mx)}, {v(mx)}, {v(P+19)}", f"v_min_f32 {v(mn)}, {v(mn)}, {v(P+19)}")
    E(f"v_mul_f32 {v(mx)}, {v(mx)}, {v(vC)}", f"v_mul_f32 {v(mn)}, {v(mn)}, {v(vC)}")
    for i in range(0, 20, 2):
        E(f"v_pk_fma_f32 {v(T+i,2)}, {v(P+i,2)}, {v(vC,2)}, {v(mx,2)} op_sel:[0,0,0] op_sel_hi:[1,0,0] neg_lo:[0,0,1] neg_hi:[0,0,1]")
    for i in range(0, 20, 2):
        E(f"v_pk_fma_f32 {v(T+20+i,2)}, {v(P+i,2)}, {v(vC,2)}, {v(mx,2)} op_sel:[0,0,1] op_sel_hi:[1,0,1] neg_lo:[1,0,0] neg_hi:[1,0,0]")
    for i in range(40): E(f"v_exp_f32 {v(T+i)}, {v(T+i)}")
    for h in range(2):
        B = T + 20 * h; A = P + 10 * h
        for i in range(5): E(f"v_pk_add_f32 {v(A+2*i,2)}, {v(B+4*i,2)}, {v(B+4*i+2,2)}")
    for h in range(2):
        A = P + 10 * h
        E(f"v_pk_add_f32 {v(A,2)}, {v(A,2)}, {v(A+2,2)}", f"v_pk_add_f32 {v(A+4,2)}, {v(A+4,2)}, {v(A+6,2)}")
    for h in range(2):
        A = P + 10 * h
        E(f"v_pk_add_f32 {v(A,2)}, {v(A,2)}, {v(A+4,2)}")
    for h in range(2):
        A = P + 10 * h
        E(f"v_pk_add_f32 {v(A,2)}, {v(A,2)}, {v(A+8,2)}")
    E(f"v_add_f32 {v(T+44)}, {v(P)}, {v(P+1)}", f"v_add_f32 {v(T+45)}, {v(P+10)}, {v(P+11)}")
    if qmode:
        E(f"v_rcp_f32 {v(T+42)}, {v(T+45)}", f"v_mul_f32 {v(T+42)}, {v(T+42)}, {v(T+44)}")
        for i in range(0, 20, 2): E(f"v_pk_mul_f32 {v(T+20+i,2)}, {v(T+20+i,2)}, {v(T+42,2)} op_sel_hi:[1,0]")
    else:
        E(f"v_rcp_f32 {v(T+42)}, {v(T+44)}", f"v_rcp_f32 {v(T+43)}, {v(T+45)}")
        for i in range(0, 20, 2): E(f"v_pk_mul_f32 {v(T+i,2)}, {v(T+i,2)}, {v(T+42,2)} op_sel_hi:[1,0]")
        for i in range(0, 20, 2): E(f"v_pk_mul_f32 {v(T+20+i,2)}, {v(T+20+i,2)}, {v(T+42,2)} op_sel:[0,1] op_sel_hi:[1,1]")
    for i in range(20): E(f"v_cvt_pk_bf16_f32 {v(O+i)}, {v(T+2*i)}, {v(T+2*i+1)}")

PROJ = [(0, 0), (0, 1), (0, 2), (1, 0), (1, 1), (1, 2), (1, 3), (1, 4), (2, 2), (2, 3), (2, 4)]
aPH = 200
def project(E, SRC, PK, OUT):
    for i in range(20): E(f"v_cvt_pk_bf16_f32 {v(PK+i)}, {v(SRC+2*i)}, {v(SRC+2*i+1)}")
    seen = set()
    for n, (T, sl) in enumerate(PROJ):
        E(f"v_mfma_f32_32x32x16_bf16 {v(OUT+16*T,16)}, {a_(aPH+4*n,4)}, {v(PK+4*sl,4)}, {v(OUT+16*T,16) if T in seen else '0'}")
        seen.add(T)

def qkv_path():
    ROLE[0] = "q"; VA[:] = [3, 4, 5, 20]
    S = Stream(); t = vT
    S("L_qkv:")
    AKV, AQ = 128, 208
    S += common_a("q")
    S("s_mov_b32 s10, 2457600")
    ZI = Stream(); QV = Stream()
    sQB = 78
    S(f"s_mul_i32 s{sWB}, s{sSL}, 160", f"s_mul_i32 s{sWM0}, s{sW}, 5120")
    ktable(S, 64 * 3840, sWB)
    S(f"s_mul_i32 s{sT1}, s{sW}, {16*3840}", f"s_add_u32 s{sT2}, s{sT1}, 1280", f"s_sub_u32 s{sT3}, s{sT1}, 1280")
    for j in range(5):
        S(f"v_add_u32 {v(t)}, {64*j}, {v(vL)}")
        divmod_v(S, t+1, t+2, t, 20)
        divmod_v(S, t+3, t+4, t+2, 5)
        S(f"v_and_b32 {v(t+5)}, 1, {v(t+3)}", f"v_lshrrev_b32 {v(t+3)}, 1, {v(t+3)}", f"v_mul_u32_u24 {v(t+3)}, 80, {v(t+3)}", f"v_lshl_add_u32 {v(t+3)}, {v(t+4)}, 4, {v(t+3)}")
        if 0 < j < 4: S(f"v_subrev_u32 {v(t+3)}, {1024*j}, {v(t+3)}")
        S(f"v_mul_u32_u24 {v(t+6)}, 3840, {v(t+1)}", f"v_mul_u32_u24 {v(t+7)}, 1280, {v(t+5)}", f"v_add3_u32 {v(vWO+j)}, {v(t+6)}, {v(t+7)}, {v(t+3)}", f"v_add_u32 {v(vWO+j)}, s{sT2}, {v(vWO+j)}")
        S(f"v_lshrrev_b32 {v(t+6)}, 2, {v(t+1)}", f"v_lshl_add_u32 {v(vQO+j)}, {v(t+6)}, 1, {v(t+5)}")
        QV(f"v_lshrrev_b32 {v(t+6)}, 1, {v(vQO+j)}", f"v_and_b32 {v(t+5)}, 1, {v(vQO+j)}", f"v_mul_u32_u24 {v(t+6)}, {4*3840}, {v(t+6)}", f"v_mul_u32_u24 {v(t+5)}, {4*3840-1280}, {v(t+5)}",
           f"v_add3_u32 {v(vQO+j)}, {v(t+6)}, {v(t+5)}, {v(vWO+j)}", f"v_add_u32 {v(vQO+j)}, s{sT3}, {v(vQO+j)}")
    def w_dma(g):
        D = Stream(); q = g >= 10
        lb = L_WR + (g % 4) * 20480 if g < 14 else L_WR - 20480
        D(f"s_add_u32 m0, s{sWM0}, {lb}")
        vo = vQO if q else vWO; so = sKT + (2 * (g - 10) if q else g)
        for j in range(4): D(f"buffer_load_dwordx4 {v(vo+j)}, {SW}, s{so} offen offset:{j*1024} lds")
        D(f"s_add_u32 m0, s{sWM0}, {lb + 4096}")
        D.I(f"buffer_load_dwordx4 {v(vo+4)}, {SW}, s{so} offen lds", tok=(f"q{g-10}" if q else f"w{g}"))
        return D
    S += common_b("q")
    S("s_mov_b32 s8, s34", "s_mov_b32 s9, s35")
    S += w_dma(0); S += common_c()
    ktable_rest(S, 64 * 3840, sWB); S += QV
    if QS1: S += x_dma(1); S += w_dma(1)
    S += code_pf('q')
    LATE = Stream(); S0 = S; S = LATE
    S("s_mov_b32 s24, s36", "s_mov_b32 s25, s37", "s_mov_b32 s26, 25600", f"s_mul_i32 s{sT0}, s{sSL}, 3200", f"s_lshl_b32 s{sT1}, s{sW}, 10", f"s_add_u32 s{sT0}, s{sT0}, s{sT1}",
      f"s_add_u32 m0, s{sT1}, {L_PHI}")
    S.I(f"buffer_load_dwordx4 {v(vL16)}, {SAUX}, s{sT0} offen lds", tok="phid")
    S("s_mov_b32 s24, s12", "s_mov_b32 s25, s13")
    S = S0
    S(f"v_mov_b32 {v(t+2)}, 0", f"v_mov_b32 {v(t+3)}, 0", f"s_lshl_b32 s{sT0}, s{sW}, 9", f"s_add_u32 s{sT0}, s{sT0}, {L_ZERO}", f"v_lshl_add_u32 {v(t+4)}, {v(vL)}, 3, s{sT0}")
    S.I(f"ds_write_b64 {v(t+4)}, {v(t+2,2)}", tok="ldsz")
    xaddr_setup(S, True); sel_setup(S)
    S(f"v_lshrrev_b32 {v(t)}, 5, {v(vL)}", f"v_bfe_u32 {v(t+1)}, {v(vL)}, 2, 2", f"v_lshl_add_u32 {v(t+2)}, {v(t)}, 3, {v(t+1)}", f"v_lshl_add_u32 {v(t+3)}, {v(t)}, 2, {v(t+1)}",
      f"v_mul_u32_u24 {v(t+2)}, 320, {v(t+2)}", f"v_mul_u32_u24 {v(t+3)}, 320, {v(t+3)}",
      f"v_and_b32 {v(t+4)}, 1, {v(vL)}", f"v_mul_u32_u24 {v(t+4)}, 160, {v(t+4)}", f"v_bfe_u32 {v(t+5)}, {v(vL)}, 4, 1", f"v_bfe_u32 {v(t+6)}, {v(vL)}, 1, 1",
      f"v_lshl_add_u32 {v(t+5)}, {v(t+5)}, 1, {v(t+6)}", f"v_lshl_add_u32 {v(t+4)}, {v(t+5)}, 3, {v(t+4)}", f"v_add_u32 {v(t+4)}, {L_WR}, {v(t+4)}",
      f"v_add_u32 {v(t+2)}, {v(t+2)}, {v(t+4)}", f"v_add_u32 {v(t+3)}, {v(t+3)}, {v(t+4)}")
    for p in range(4):
        S(f"s_xor_b32 s{sT0}, s{sW}, {p}", f"s_mul_i32 s{sT1}, s{sT0}, 5120", f"s_mul_i32 s{sT0}, s{sT0}, 2560",
          f"v_add_u32 {v(vWA+p)}, s{sT1}, {v(t+2)}", f"v_add_u32 {v(vQA+p)}, s{sT0}, {v(t+3)}",
          f"v_add_u32 {v(vWB_+p)}, {3*20480}, {v(vWA+p)}", f"v_add_u32 {v(vQB+p)}, {2*20480}, {v(vQA+p)}", f"v_subrev_u32 {v(vQA+p)}, 20480, {v(vQA+p)}")
    S += p2_setup()
    stages = []
    for g in range(10):
        mf = []
        for p in range(4):
            for T in range(5):
                ar, off = (vWA + p, (g % 4) * 20480) if g % 4 < 3 else (vWB_ + p, 0)
                off += 32 * T
                mf.append((AKV + 16 * T, f"{v(ar)} offset:{off}", f"{v(ar)} offset:{off+1280}", 16 * g + 4 * p, (vCS + 4 * T, g == 0) if (p == 0 and g < 2) else None, g == 0 and p == 0, None))
        stages.append(dict(mf=mf, dma=w_dma(g), xs=g))
    PHF = Stream(); u = vT
    PHF(f"v_bfe_u32 {v(u)}, {v(vL)}, 4, 1", f"v_bfe_u32 {v(u+1)}, {v(vL)}, 1, 1", f"v_lshl_add_u32 {v(u)}, {v(u)}, 1, {v(u+1)}",
        f"v_lshrrev_b32 {v(u+1)}, 5, {v(vL)}", f"v_and_b32 {v(u+2)}, 1, {v(vL)}", f"v_cmp_eq_u32 s[{sPKS+4}:{sPKS+5}], {v(u+1)}, {v(u+2)}".replace(f"s[{sPKS+4}:{sPKS+5}]", "s[98:99]"),
        f"v_mul_u32_u24 {v(u+1)}, 1600, {v(u+1)}", f"v_bfe_u32 {v(u+2)}, {v(vL)}, 2, 2", f"v_mul_u32_u24 {v(u+2)}, 40, {v(u+2)}", f"v_add3_u32 {v(u+1)}, {v(u+1)}, {v(u+2)}, {L_PHI & 63}".replace(f", {L_PHI & 63}", ", 0"),
        f"v_add_u32 {v(u+1)}, {L_PHI}, {v(u+1)}", f"v_lshl_add_u32 {v(u+1)}, {v(u)}, 3, {v(u+1)}", f"v_mov_b32 {v(u+3)}, {L_ZERO}")
    amap = {}
    k = 4
    for (T, s) in [(0, 0), (1, 0), (1, 1), (2, 1)]:
        lo, hi = 5 * s - 4 * T, 5 * s + 5 - 4 * T
        PHF(f"v_add_u32 {v(u+k)}, {s*800+(4*T-5*s)*8}, {v(u+1)}", f"v_cndmask_b32 {v(u+k)}, {v(u+3)}, {v(u+k)}, s[98:99]")
        if lo > 0: PHF(f"v_cmp_le_u32 vcc, {lo}, {v(u)}", f"v_cndmask_b32 {v(u+k)}, {v(u+3)}, {v(u+k)}, vcc")
        if hi < 4: PHF(f"v_cmp_gt_u32 vcc, {hi}, {v(u)}", f"v_cndmask_b32 {v(u+k)}, {v(u+3)}, {v(u+k)}, vcc")
        amap[(T, s)] = u + k; k += 1
    for n, (T, sl) in enumerate(PROJ):
        for r2 in range(2):
            rho = 2 * sl + r2; s = rho // 5
            if (T, s) in amap: PHF(f"ds_read_b64_tr_b16 {a_(aPH+4*n+2*r2,2)}, {v(amap[(T,s)])} offset:{(rho%5)*160}")
            else: PHF(f"ds_read_b64_tr_b16 {a_(aPH+4*n+2*r2,2)}, {v(u+3)}")
    core = Core(stages, 4, "w")
    QR = 68
    def pb_regs(r):
        P = Stream()
        P(f"v_and_b32 {v(r+3)}, 31, {v(vL)}", f"v_lshlrev_b32 {v(r+3)}, 2, {v(r+3)}")
        cond_voff(P, r, r + 3, sMT, 5, True); cond_voff(P, r + 1, vFL, sMT, 5, False)
        poll_setup(P, r + 2, 40, 41, r + 4)
        return P
    S(f"s_lshl_b32 s40, s{sSL}, 8", f"s_add_u32 s40, s40, {WS_SF + 40*128}", f"s_lshl_b32 s41, s{sMT}, 7", f"s_add_u32 s41, s41, {WS_SF + 24*128}", f"s_lshl_b32 s{sT0}, s{sMT}, 2", f"s_add_u32 s43, s40, s{sT0}",
      f"s_add_u32 s38, s{sT0}, s{sW}", "s_lshl_b32 s38, s38, 7", f"s_add_u32 s38, s38, {WS_RS}", f"s_lshl_b32 s39, s{sSL}, 10", f"s_add_u32 s39, s39, {WS_CSQ}")
    S += pb_regs(116)
    def q_pub(r, n, o, tok, vCS=vCS):
        E = Stream()
        for T in range(n):
            E(f"v_cndmask_b32 {v(vCS+4*T)}, {v(vCS+4*T+1)}, {v(vCS+4*T)}, s[96:97]")
            E.I(f"buffer_atomic_add_f32 {v(vCS+4*T)}, {v(r)}, {SWS}, s39 offen offset:{128*(o+T)}", tok=tok if T == n - 1 else None)
        return E
    def q_flag(r, k): return Stream([Ins(f"buffer_store_dword a255, {v(r+1)}, {SWS}, s43 offen offset:{128*k} sc1")])
    def q_ptxt(r, k): return f"buffer_load_dword {v(r+4)}, {v(r+2)}, {SWS}, 0 offen offset:{128*k} sc1"
    def q_fetch(r, k, n, o, d):
        E = Stream()
        poll_check(E, f"cs{k}q", r + 4, 1, q_ptxt(r, k), 0x1F | ((0x1F << 16) if k == 0 else 0))
        for T in range(n): E(f"buffer_load_dword {v(d+T)}, {v(r+3)}, {SWS}, s39 offen offset:{128*(o+T)} sc1")
        if k == 0: E(f"buffer_load_dword {v(d+5)}, {v(r+3)}, {SWS}, s38 offen sc1", "s_add_u32 s38, s38, 8192", f"buffer_load_dword {v(d+6)}, {v(r+3)}, {SWS}, s38 offen sc1")
        return E
    def q_corr(n, d, acc, tt_):
        E = Stream()
        for T in range(n): split3(E, vCS + 4 * T, d + T, tt_, "A")
        for T in range(n): E(f"v_mfma_f32_32x32x16_bf16 {v(acc+16*T,16)}, {v(vCS+4*T,4)}, {v(vMB,4)}, {v(acc+16*T,16)}")
        return E
    hb = {3: ["phid", "ldsz"]}
    S(f"v_or_b32 {v(114)}, s{sST+3}, {v(vFL)}", f"s_lshl_b32 s{sST+3}, s{sMT}, 2")
    S.wait("zst"); S("s_barrier", f"buffer_store_dword a255, {v(114)}, {SDBG}, s{sST+3} offen sc1")
    if not QS1: S += x_dma(1); S += w_dma(1)
    ha = {0: Stream(x_dma(2) + w_dma(2) + LATE + x_dma(3)), 4: PHF, 9: Stream()}
    def addq(j, st_): ha[j] = Stream(ha.get(j, Stream()) + st_)
    addq(QP1AT - 1, poll1_issue()); addq(QP1AT, poll1_check("q")); addq(QPB[0], q_pub(116, 5, 0, "qa0"))
    hb[QPB[1]] = hb.get(QPB[1], []) + ["qa0"]; addq(QPB[1], q_flag(116, 0)); addq(QPB[2] - 1, Stream([Ins(q_ptxt(116, 0))]))
    FE = q_fetch(116, 0, 5, 0, 88)
    if QTAT:
        TCH = Stream(); q = vT + 8
        TCH(f"v_lshrrev_b32 {v(q)}, 1, {v(vL)}", f"v_min_u32 {v(q)}, 19, {v(q)}", f"v_mul_u32_u24 {v(q)}, 3840, {v(q)}", f"v_and_b32 {v(q+1)}, 1, {v(vL)}", f"v_mul_u32_u24 {v(q+1)}, 156, {v(q+1)}",
            f"v_add_u32 {v(q)}, {v(q)}, {v(q+1)}", f"s_and_b32 s48, s{sMT}, 7", "s_lshl_b32 s48, s48, 2", f"s_add_u32 s48, s48, s{sW}", f"s_mul_i32 s48, s48, {20*3840}", f"s_mul_i32 s49, s{sSL}, 160",
            "s_add_u32 s48, s48, s49", f"buffer_load_dword {v(115)}, {v(q)}, {SW}, s48 offen")
        ha[QTAT] = Stream(ha.get(QTAT, Stream()) + TCH)
    ha[8] = Stream(ha.get(8, Stream()) + w_dma(10))
    ha[QPB[2]] = Stream(FE + ha.get(QPB[2], Stream()))
    ha[9] = Stream(w_dma(11) + ha[9])
    head, slots, first = core.build(3, hb, ha)
    left = interleave(slots, Stream(stats_from_sums("0x3fb8aa3b", 93, 94) + q_corr(5, 88, AKV, 96)), 4, start=first[9] + QC0)
    KL_ = Stream(left)
    stamp(S, 1)
    S += head
    stamp(S, 1)
    for n, sl in enumerate(slots):
        S += sl; S += core.tails[n]
        if n + 1 in [first[i] for i in range(1, 10)] + [len(slots)]: stamp(S, 1)
        if n + 1 in [first[i] for i in range(1, 10)]: stamp(S, 2)
    stamp(S)
    stamp(S, 2)
    PK = vCS; TT = vT; ta = 120; kr = 21
    A1 = Stream()
    A1(f"v_and_b32 {v(ta)}, 31, {v(vL)}", f"s_lshl_b32 s{sT0}, s{sW}, 5", f"v_add_u32 {v(ta)}, s{sT0}, {v(ta)}", f"v_mul_u32_u24 {v(ta)}, {RS}, {v(ta)}",
      f"v_lshrrev_b32 {v(ta+1)}, 5, {v(vL)}", f"v_mul_u32_u24 {v(ta+2)}, 96, {v(ta+1)}", f"v_add_u32 {v(ta+2)}, {v(ta+2)}, {v(ta)}",
      f"v_mul_u32_u24 {v(ta+1)}, 160, {v(ta+1)}", f"v_add_u32 {v(ta+1)}, {v(ta+1)}, {v(ta)}")
    A1(f"v_lshrrev_b32 {v(kr+2)}, 4, {v(vL)}", f"v_bfe_u32 {v(kr+1)}, {v(vL)}, 2, 2", f"v_lshl_add_u32 {v(kr+1)}, {v(kr+2)}, 3, {v(kr+1)}", f"v_mul_u32_u24 {v(kr+1)}, {RS}, {v(kr+1)}",
      f"v_and_b32 {v(kr)}, 3, {v(vL)}", f"v_lshl_add_u32 {v(kr+1)}, {v(kr)}, 3, {v(kr+1)}",
      f"s_mul_i32 s{sT0}, s{sW}, 80", f"s_mul_i32 s{sT1}, s{sW}, 48", f"s_add_u32 s{sT1}, s{sT1}, 320", f"v_add_u32 {v(kr)}, s{sT0}, {v(kr+1)}", f"v_add_u32 {v(kr+1)}, s{sT1}, {v(kr+1)}")
    A2 = Stream()
    A2(f"v_lshrrev_b32 {v(ta)}, 4, {v(vL)}", f"v_mul_u32_u24 {v(ta+4)}, 768, {v(ta)}", f"v_and_b32 {v(ta+5)}, 15, {v(vL)}", f"v_lshl_add_u32 {v(ta+4)}, {v(ta+5)}, 2, {v(ta+4)}", f"v_lshlrev_b32 {v(ta+6)}, 2, {v(ta+5)}",
      f"s_lshl_b32 s42, s{sSL}, 14", f"s_mul_i32 s98, s{sW}, 4032", "s_add_u32 s42, s42, s98", f"s_add_u32 s42, s42, {WS_KV}")
    AV = [ta + 4, 116, 117, 118, 119, ta + 5]
    A2(f"v_mov_b32 {v(ta)}, {hex(HUGE)}")
    for n, m in enumerate([None, 0xFFFFFFFF, 0xFFFF, 0x00FF00FF00FF00FF, 0x00FF00FF, 0x00FF]):
        if m is None: continue
        A2(f"s_mov_b32 s98, {hex(m & 0xFFFFFFFF)}", f"s_mov_b32 s99, {hex(m >> 32)}", f"v_cndmask_b32 {v(AV[n])}, {v(ta)}, {v(ta+4)}, s[98:99]")
    st_ = Stream(); stamp(st_, 2)
    S += KL_; S += A1; S.wait("q0"); S("s_barrier"); S += st_
    for h_ in range(2):
        for T in range(3):
            f_ = aWF + 4 * (3 * h_ + T); o_ = 32 * T + h_ * 10240
            S(f"ds_read_b64_tr_b16 {a_(f_,2)}, {v(vQB)} offset:{o_}", f"ds_read_b64_tr_b16 {a_(f_+2,2)}, {v(vQB)} offset:{o_+80}")
    stamp(S, 2)
    stamp(S)
    S0 = S; S = Stream()
    PJ = Stream(); project(PJ, AKV, PK, AQ)
    VW_ = Stream()
    for i in range(40): VW_(f"v_mul_f32 {v(AKV+40+i)}, {v(AKV+40+i)}, {v(vST+1)}")
    for s in range(2):
        for i in range(10): VW_(f"v_cvt_pk_bf16_f32 {v(AKV+12*s+i)}, {v(AKV+40+20*s+2*i)}, {v(AKV+41+20*s+2*i)}")
        VW_(f"v_mov_b32 {v(AKV+12*s+10)}, 0x3f80", f"v_mov_b32 {v(AKV+12*s+11)}, 0")
    S += PJ[:20]
    for h_ in range(2):
        for T in range(3): S(f"v_mfma_f32_16x16x32_bf16 {v(96+4*T,4)}, {v(vSEL,4)}, {a_(aWF+4*(3*h_+T),4)}, {'0' if h_ == 0 else v(96+4*T,4)}")
    for n_, x in enumerate(PJ[20:]): S.append(x); S += VW_[6*n_:6*n_+6]
    S += q_pub(116, 3, 5, "qa1", 96)
    for i in range(6): S(f"ds_write_b128 {v(ta+2)}, {v(AKV+4*i,4)} offset:{L_TB+320+16*i}")
    for s in range(2):
        O = AKV + 40 + 20 * s
        softmax_pair(S, AQ + 20 * s, O, TT, False)
        for i in range(5): S(f"ds_write_b128 {v(ta+1)}, {v(O+4*i,4)} offset:{L_TB+80*s+16*i}")
    S0 += sprinkle(S, Stream(w_dma(12) + w_dma(13)), KP)
    S = S0
    S.drain(vm=False); S.wait("qa1"); S("s_barrier"); S += q_flag(116, 1)
    stamp(S)
    FR = AKV; KA = TT + 24
    for ks in range(4):
        for x in range(5):
            for r2 in range(2):
                ar, co = (kr + 1, 32 * x) if x < 2 else (kr, 32 * (x - 2))
                S(f"ds_read_b64_tr_b16 {v(FR+20*ks+4*x+2*r2,2)}, {v(ar)} offset:{L_TB+(32*ks+4*r2)*RS+co}")
    S += A2
    for ks in range(4):
        for a in range(2):
            for b in range(3):
                acc = v(KA + 12 * a + 4 * b, 4)
                S(f"v_mfma_f32_16x16x32_bf16 {acc}, {v(FR+20*ks+4*a,4)}, {v(FR+20*ks+8+4*b,4)}, {'0' if ks == 0 else acc}")
    AT = Stream()
    todo = [(a, r, b) for a in range(2) for r in range(4) for b in range(3)]
    for n, (a, r, b) in enumerate(todo):
        av = AV[(0 if a == 0 else (1 if r == 0 else 2)) + (3 if b == 2 else 0)]
        AT.I(f"buffer_atomic_add_f32 {v(KA+12*a+4*b+r)}, {v(av)}, {SWS}, s42 offen offset:{(16*a+r)*192+64*b}", tok="kvat" if n == len(todo) - 1 else None)
    if 'noat' in ABL: AT = Stream(AT[-1:])
    stamp(S)
    S += poll2_issue()
    stages = []
    for g in range(5):
        gg = 10 + g; mf = []
        for p8 in range(8):
            p = p8 & 3
            for T in range(3):
                sl_ = gg % 4 if gg < 14 else -1
                ar, off = (vQA + p, (sl_ + 1) * 20480) if sl_ < 2 else (vQB + p, (sl_ - 2) * 20480)
                off += 32 * T + (p8 >> 2) * 10240
                mf.append((AQ + 16 * T, f"{v(ar)} offset:{off}", f"{v(ar)} offset:{off+80}", 32 * g + 4 * p8, None, g == 0 and p8 == 0, None))
        stages.append(dict(mf=mf, dma=Stream(), xs=None))
    sKF = 79
    S(f"s_lshl_b32 s{sKF}, s{sSL}, 7", f"s_add_u32 s{sKF}, s{sKF}, {WS_KVFLAG}", f"s_lshl_b32 s{sT0}, s{sMT}, 2", f"s_add_u32 s{sQB+22}, s{sKF}, s{sT0}")
    hb = {}
    ha = {0: Stream(w_dma(14) + vw_setup() + p2_pre() + xre_load() + AT), 2: poll2_check("q")}
    for s_ in stages: s_["pace"] = QPACE
    S += pb_regs(QR)
    ha[2] += w2_stage("q", 0, 10)
    for k in range(4):
        j = max(3, (20 * k + 19) // 32 + 2)
        ha[j] = Stream(ha.get(j, Stream()) + w2_load(k))
    u = 88; oa = 21; A3 = Stream()
    A3(f"v_bfe_u32 {v(u)}, {v(vL)}, 3, 2", f"v_bfe_u32 {v(u+1)}, {v(vL)}, 2, 1", f"v_lshrrev_b32 {v(u+2)}, 5, {v(vL)}", f"v_cmp_eq_u32 s[98:99], {v(u+1)}, {v(u+2)}",
      f"v_and_b32 {v(u+2)}, 3, {v(vL)}", f"v_lshl_add_u32 {v(u+2)}, {v(u)}, 2, {v(u+2)}", f"v_mul_u32_u24 {v(u+1)}, 42, {v(u+1)}", f"v_add_u32 {v(u+2)}, {v(u+2)}, {v(u+1)}",
      f"v_mul_u32_u24 {v(u+2)}, 96, {v(u+2)}", f"v_mov_b32 {v(u+3)}, {L_ZERO}", f"v_cmp_gt_u32 s[50:51], 2, {v(u)}")
    A3(f"v_add_u32 {v(oa)}, {L_KB}, {v(u+2)}", f"v_add_u32 {v(oa+1)}, {L_KB+21*96}, {v(u+2)}", f"v_add_u32 {v(oa+2)}, {L_KB+16*96}, {v(u+2)}", f"v_add_u32 {v(oa+3)}, {L_KB+(21+16-8)*96}, {v(u+2)}",
      f"v_cndmask_b32 {v(oa+2)}, {v(u+3)}, {v(oa+2)}, s[50:51]", f"v_cndmask_b32 {v(oa+3)}, {v(oa+3)}, {v(u+3)}, s[50:51]")
    for k in range(4): A3(f"v_cndmask_b32 {v(oa+k)}, {v(u+3)}, {v(oa+k)}, s[98:99]")
    A3(f"s_lshl_b32 s48, s{sW}, 9", f"s_add_u32 s48, s48, {L_KB}", f"v_lshl_add_u32 {v(oa+4)}, {v(vL)}, 3, s48")
    core = Core(stages, 4, "q")
    head, slots, first = core.build(4, hb, ha)
    left = interleave(slots, A3, 1, start=first[2]); assert not left
    slots[QF[0]](q_ptxt(QR, 1)); slots[QF[1]] += q_fetch(QR, 1, 3, 5, 80)
    left = interleave(slots, q_corr(3, 80, AQ, 73), 3, start=first[4] + 12); assert not left
    S += head
    for n, sl in enumerate(slots):
        S += sl; S += core.tails[n]
        if n + 1 in [first[i] for i in range(1, 5)]: stamp(S, 2)
    stamp(S)
    W2rest = Stream(w2_load(4) + w2_load(14) + w2_load(15) + w2_load(16))
    S.wait("kvat"); S("s_barrier"); S += flag_store(sQB + 22, 0)
    E = Stream()
    project(E, AQ, PK, AKV)
    PQ = AQ
    softmax_pair(E, AKV, PQ, TT, True)
    E(f"v_mul_f32 {v(ta)}, {hex(0x358637bd)}, {v(TT+44)}")
    bgA = W2rest; bgA += p2_poll(0)
    bgA(f"buffer_load_dword {v(ta+7)}, {v(ta+6)}, {SWS}, s{sKF} offen sc1")
    S += sprinkle(E, bgA, QP1)
    W2rest = p2_L(0, SWS)
    W2r2 = w2_stage("q", 10, 23)
    W2r3 = [Stream(w2_load(5) + w2_load(6)), w2_stage("q", 23, 35)]
    poll_check(S, "p0q", vPV, 1, p2_poll_txt(0), 0xFF)
    poll_check(S, "kv", ta + 7, 1, f"buffer_load_dword {v(ta+7)}, {v(ta+6)}, {SWS}, s{sKF} offen sc1", 0xFFFF)
    stamp(S)
    KL = AKV + 48
    S(f"s_lshl_b32 s{sT2}, s{sSL}, 14", f"s_add_u32 s{sT2}, s{sT2}, {WS_KV}", f"s_lshl_b32 s{sT0}, s{sW}, 10", f"s_add_u32 s{sT2}, s{sT2}, s{sT0}")
    for i in range(4):
        S(f"buffer_load_dwordx4 {v(KL+4*i,4)}, {v(vL16)}, {SWS}, s{sT2} offen sc1")
        if i < 3: S(f"s_add_u32 s{sT2}, s{sT2}, 4096")
    E = Stream(); softmax_pair(E, AKV + 20, PQ + 20, TT, True)
    S += sprinkle(E, W2rest, QP2)
    S(f"v_mul_f32 {v(ta+1)}, {hex(0x358637bd)}, {v(TT+44)}")
    for i in range(4):
        S(f"v_cvt_pk_bf16_f32 {v(KL+4*i)}, {v(KL+4*i)}, {v(KL+4*i+1)}", f"v_cvt_pk_bf16_f32 {v(KL+4*i+1)}, {v(KL+4*i+2)}, {v(KL+4*i+3)}",
          f"ds_write_b64 {v(oa+4)}, {v(KL+4*i,2)} offset:{2048*i}")
    S.drain(vm=False); S("s_barrier")
    W2r2 += p2_poll(1)
    S0 = S; S = Stream()
    FRO = AKV
    ON = TT + 8
    ON = vCS
    for k in range(4):
        for s in range(5): S(f"ds_read_b128 {v(FRO+20*k+4*s,4)}, {v(oa+k)} offset:{16*s}")
    for k in range(4):
        T = min(k, 2); slot = k & 1
        for s in range(5):
            acc = v(ON + 16 * T, 16)
            S(f"v_mfma_f32_32x32x16_bf16 {acc}, {v(FRO+20*k+4*s,4)}, {v(PQ+20*slot+4*s,4)}, {'0' if (s == 0 and k < 3) else acc}")
    S(f"v_add_f32 {v(ta)}, {v(ON+36)}, {v(ta)}", f"v_add_f32 {v(ta+1)}, {v(ON+44)}, {v(ta+1)}", f"v_rcp_f32 {v(ta+2)}, {v(ta)}", f"v_rcp_f32 {v(ta+3)}, {v(ta+1)}")
    OP = AKV
    for s in range(2):
        src = [ON + 16 * s + i for i in range(16)] + [ON + 32 + 8 * s + i for i in range(4)]
        sel = "op_sel_hi:[1,0]" if s == 0 else "op_sel:[0,1] op_sel_hi:[1,1]"
        for i in range(0, 20, 2): S(f"v_pk_mul_f32 {v(src[i],2)}, {v(src[i],2)}, {v(ta+2,2)} {sel}")
        for i in range(10): S(f"v_cvt_pk_bf16_f32 {v(OP+10*s+i)}, {v(src[2*i])}, {v(src[2*i+1])}")
    S0 += sprinkle(S, W2r2, QP3); S = S0
    S(f"s_mul_i32 s{sT0}, s{sSL}, 5120", f"s_add_u32 s{sT0}, s{sT0}, s{sAPB}", f"s_add_u32 s{sT0}, s{sT0}, {96*1024}", f"s_add_u32 s{sT1}, s{sT0}, 4096")
    for i in range(4): S(f"buffer_store_dwordx4 {v(OP+4*i,4)}, {v(vL16)}, {SWS}, s{sT0} offen offset:{1024*i} sc1")
    S.I(f"buffer_store_dwordx4 {v(OP+16,4)}, {v(vL16)}, {SWS}, s{sT1} offen sc1", tok="ost")
    S(f"s_lshl_b32 s{sKF}, s{sMT}, 9", f"s_lshl_b32 s{sT0}, s{sSL}, 2", f"s_add_u32 s{sKF}, s{sKF}, s{sT0}")
    S += phase2("q", W2r3, "ost", flag_store(sKF, 384), False)
    return S

def main(outpath):
    hdr = open("parallel_sum__linear_kernel_hedgehog__glu_gated_glu__prompt.s.ref").read().split("; Override launch")[0]
    out = []
    st = State()
    finalize(prologue(), st, out)
    n0 = 0
    finalize(glu_path(), st.copy(), out)
    nstamp[0] = n0
    st2 = st.copy(); st2.hist = []
    out.append(".p2align 6")
    finalize(qkv_path(), st2, out)
    for L in slow_paths: out += L
    out.append("L_end:")
    txt = hdr + "; @launch grid=(256,1,1) block=(256,1,1) lds=163840\n" + f""".amdgcn_target "amdgcn-amd-amdhsa--gfx950"
.text
.globl {KN}
.p2align 8
.type {KN},@function
{KN}:
""" + "\n".join(out) + f"""
    s_endpgm
.section .rodata,"a"
.p2align 6
.amdhsa_kernel {KN}
  .amdhsa_next_free_vgpr 512
  .amdhsa_next_free_sgpr 102
  .amdhsa_accum_offset 256
  .amdhsa_group_segment_fixed_size 0
  .amdhsa_kernarg_size 88
  .amdhsa_user_sgpr_count 2
  .amdhsa_user_sgpr_kernarg_segment_ptr 1
  .amdhsa_system_sgpr_workgroup_id_x 1
.end_amdhsa_kernel
"""
    open(outpath, "w").write(txt)
    print("lines", len(out))

if __name__ == "__main__":
    for a in sys.argv:
        if a.startswith("--abl="): ABL.update(a[6:].split(","))
    if "--c1" in sys.argv: STGRP = 1
    if "--c2" in sys.argv: STGRP = 2
    if "--c3" in sys.argv: STGRP = 3
    for a in sys.argv:
        if a.startswith("--set="):
            k_, v_ = a[6:].split("="); globals()[k_] = eval(v_)
    if "--stamps" in sys.argv: STAMPS = True
    if "--cyc" in sys.argv: STAMPS = True; STAMPOP = "s_memtime"
    main([a for a in sys.argv[1:] if not a.startswith("--")][0])
```

```python
import sys
from emit import Stream, State, Ins, finalize, interleave, sprinkle, vm_groups

KN = "parallel_sum__linear_kernel_hedgehog__glu_gated_glu__prompt_kernel"
WS_HFLAG = 0
WS_KVFLAG = 8192
WS_PFLAG = 9216
WS_KV = 12288
WS_CSG = 143360; WS_CSQ = 155648; WS_RS = 163840; WS_SF = 180224
WS_STAT = 262144
WS_STAMP = 524288
WS_AP = 1 << 20
WS_WP = 12 << 20
WS_SIZE = 16 << 20
HUGE = 0x7F000000
L_XS = 0
L_TB = 0; RS = 528
L_WR = 67584
L_MISC = 149504
L_PACK = 0
LG_WR = 65536
LG_MISC = 147456
L_CSF = LG_MISC + 12288
L_PHI = L_MISC + 4096
L_ZERO = L_MISC
L_CS = L_MISC + 10240
L_KB = L_MISC + 2048
SX, SW, SWS, SDBG, SOUT, SAUX = "s[4:7]", "s[8:11]", "s[12:15]", "s[16:19]", "s[20:23]", "s[24:27]"
sW, sMT, sSL, sRT, sNT, sROT = 28, 29, 30, 31, 52, 53
sXB, sWB, sKX, sKW, sT0, sT1, sT2, sT3 = 54, 55, 56, 57, 58, 59, 60, 61
sXM0, sWM0, sAPB, sONE, sWPB, sACB, sWP4, sWP5 = 62, 63, 64, 65, 66, 67, 68, 69
sST = 70
sSPIN = 74
sPKS, sPKD = 75, 76
sPKF = 101
sSTAMP = 80
vL, vL16, vXO, vWO, vQO = 1, 2, 3, 5, 10
vXA, vWA, vWB_, vQA, vQB = 16, 20, 24, 28, 32
vSEL, vMB, vC, vSD, vST = 36, 40, 44, 45, 46
vCS = 48
vT = 68
vONE = 115
vFL = 15
NF, DPF = 10, 7
aWF = 160

STAMPS = False
GROT = 1
PREF = 0
CODEPF = 1
PKD = (3, 5, 7)
QPRE = 8
NX = 5
VCAP = 10
WCAP = 2
W2G0 = 0
W2ORD = list(range(10))
MAP2 = 0
T2AT = 0
T3AT = 0
XRAT = 16
H0AT = 22
P1AT = 3
PBS = [(3, 5, 10), (12, 15, 19), (22, 24, 28)]
B0AT = 12
QP1AT = 3
QPB = (3, 5, 8)
QF = (0, 16)
QC0 = 1
QS1 = 0
WPT = 0
WPD = 0
QTAT = 0
QWPT = 0
XRE = 1
PACE = 1.33
QPACE = 2
QP1 = 80
QP2 = 55
QP3 = 80
E3P = 40
E3CUT = 4
KP = 250
CAPA = 5
CAPB = 8
ROLE = ['g']
STGRP = 0
ABL = set()
STAMPOP = 's_memrealtime'
nstamp = [0]
def stamp(S, grp=0):
    if STAMPS and (grp == STGRP or grp < 0 or (grp == 0 and STGRP == 2 and ROLE[0] == "q")):
        i = nstamp[0]; nstamp[0] += 1
        S(f"{STAMPOP} s[94:95]")
        S.drain(vm=False)
        S(f"v_writelane_b32 v0, s94, {i}")

def v(a, n=1): return f"v{a}" if n == 1 else f"v[{a}:{a+n-1}]"
def a_(a, n=1): return f"a{a}" if n == 1 else f"a[{a}:{a+n-1}]"

slow_paths = []
def cmp_mask(vreg, n, mask):
    lo, hi = mask & 0xFFFFFFFF, mask >> 32
    L = []
    if n == 2: L.append(f"v_and_b32 {v(vreg)}, {v(vreg)}, {v(vreg+1)}")
    L.append(f"v_cmp_ne_u32 vcc, 1, {v(vreg)}")
    if hi:
        L += [f"s_and_b32 s{sT0}, vcc_lo, {hex(lo)}", f"s_and_b32 s{sT1}, vcc_hi, {hex(hi)}", f"s_or_b32 s{sT0}, s{sT0}, s{sT1}"]
    else:
        L += [f"s_and_b32 s{sT0}, vcc_lo, {hex(lo)}"]
    return L
def spin_lines(name, vreg, n, load, mask, sleep=6):
    C = cmp_mask(vreg, n, mask)
    k = 2 if n == 2 else 1
    return [f"    s_mov_b32 s{sSPIN}, 0x8000", f"L_spin_{name}:", f"    s_sleep {sleep}", "    " + load, "    s_waitcnt vmcnt(0)",
            f"    s_sub_u32 s{sSPIN}, s{sSPIN}, 1", f"    s_cbranch_scc1 L_out_{name}"] + ["    " + c for c in C[:k]] + ["    s_nop 1"] + ["    " + c for c in C[k:]] + \
           [f"    s_cbranch_scc1 L_spin_{name}", f"L_out_{name}:"]
def poll_check(S, name, vreg, n, load, mask):
    S(*cmp_mask(vreg, n, mask))
    S(f"s_cbranch_scc1 L_slow_{name}", f"L_back_{name}:")
    slow_paths.append([f"L_slow_{name}:"] + spin_lines(name, vreg, n, load, mask) + [f"    s_branch L_back_{name}"])

def divmod_v(S, q, r, x, d, tmp_s=sT0):
    m = (1 << 16) // d + 1
    S(f"v_mul_u32_u24 {v(q)}, {m}, {v(x)}", f"v_lshrrev_b32 {v(q)}, 16, {v(q)}",
      f"v_mul_u32_u24 {v(r)}, {d}, {v(q)}", f"v_sub_u32 {v(r)}, {v(x)}, {v(r)}")

def prologue():
    S = Stream()
    S("s_cmp_ge_u32 s2, 256", "s_cbranch_scc1 L_end")
    S("s_load_dwordx16 s[32:47], s[0:1], 0", "s_load_dwordx4 s[48:51], s[0:1], 64", "s_load_dwordx2 s[12:13], s[0:1], 80")
    S("s_bitcmp1_b32 s2, 7", "s_cbranch_scc1 L_qkv")
    return S
def common_a(role):
    S = Stream(); t = vT
    S(f"v_lshrrev_b32 {v(vT)}, 6, v0", f"v_and_b32 {v(vL)}, 63, v0", f"v_readfirstlane_b32 s{sW}, {v(vT)}")
    S(f"v_lshlrev_b32 {v(vL16)}, 4, {v(vL)}")
    S("s_and_b32 s3, s2, 7", f"s_lshr_b32 s{sT0}, s2, 3")
    S(f"s_and_b32 s{sMT}, s3, 1", f"s_lshl_b32 s{sMT}, s{sMT}, 3", f"s_and_b32 s{sT1}, s{sT0}, 7", f"s_add_u32 s{sMT}, s{sMT}, s{sT1}")
    S(f"s_and_b32 s{sSL}, s3, 6", f"s_bfe_u32 s{sT2}, s2, 0x10006", f"s_add_u32 s{sSL}, s{sSL}, s{sT2}")
    if MAP2 == 0:
        S(f"s_lshl_b32 s{sRT}, s3, 2", f"s_and_b32 s{sT2}, s{sT0}, 3", f"s_add_u32 s{sRT}, s{sRT}, s{sT2}", f"s_lshr_b32 s{sNT}, s{sT0}, 2")
    elif MAP2 == 1:
        S(f"s_lshl_b32 s{sRT}, s3, 2", f"s_and_b32 s{sT2}, s{sT0}, 1", f"s_add_u32 s{sRT}, s{sRT}, s{sT2}", f"s_add_u32 s{sRT}, s{sRT}, {2 if role == 'q' else 0}", f"s_bfe_u32 s{sNT}, s{sT0}, 0x30001")
    else:
        S(f"s_lshr_b32 s{sRT}, s3, 1", f"s_lshl_b32 s{sRT}, s{sRT}, 3", f"s_and_b32 s{sT2}, s{sT0}, 3", f"s_add_u32 s{sRT}, s{sRT}, s{sT2}", f"s_add_u32 s{sRT}, s{sRT}, {4 if role == 'q' else 0}",
          f"s_and_b32 s{sNT}, s3, 1", f"s_lshl_b32 s{sNT}, s{sNT}, 2", f"s_bfe_u32 s{sT2}, s{sT0}, 0x20002", f"s_add_u32 s{sNT}, s{sNT}, s{sT2}")
    if role == "q":
        S(f"s_add_u32 s{sROT}, s{sMT}, s{sSL}", f"s_mul_i32 s{sT2}, s{sROT}, 52", f"s_lshr_b32 s{sT2}, s{sT2}, 8", f"s_mul_i32 s{sT2}, s{sT2}, 5",
          f"s_sub_u32 s{sROT}, s{sROT}, s{sT2}", f"s_lshl_b32 s{sROT}, s{sROT}, 1")
    else:
        S(f"s_lshl_b32 s{sT2}, s{sSL}, 1", f"s_add_u32 s{sT2}, s{sT2}, s{sMT}", f"s_mul_i32 s{sT1}, s{sT2}, 26", f"s_lshr_b32 s{sT1}, s{sT1}, 8", f"s_mul_i32 s{sT1}, s{sT1}, 10", f"s_sub_u32 s{sROT}, s{sT2}, s{sT1}")
    S(f"v_mov_b32 {v(vFL)}, {hex(HUGE)}", "v_cmp_eq_u32 vcc, 0, v0", "v_accvgpr_write_b32 a255, 1")
    S(f"v_lshrrev_b32 {v(t)}, 3, {v(vL)}", f"v_cndmask_b32 {v(vFL)}, {v(vFL)}, 0, vcc", f"v_mul_u32_u24 {v(t)}, 1280, {v(t)}",
      f"v_lshrrev_b32 {v(t+1)}, 4, {v(vL)}", f"v_and_b32 {v(t+2)}, 7, {v(vL)}", f"v_xor_b32 {v(t+1)}, {v(t+1)}, {v(t+2)}",
      f"v_lshl_add_u32 {v(vXO)}, {v(t+1)}, 4, {v(t)}", f"v_xor_b32 {v(t+1)}, 4, {v(t+1)}", f"v_lshl_add_u32 {v(vXO+1)}, {v(t+1)}, 4, {v(t)}",
      f"v_add_u32 {v(XO[1])}, 9216, {v(XO[1])}", f"v_add_u32 {v(XO[2])}, {2*9216}, {v(XO[0])}", f"v_add_u32 {v(XO[3])}, {2*9216}, {v(XO[1])}")
    S("s_mov_b32 s6, 2621440", "s_mov_b32 s7, 0x20000", f"s_mov_b32 s14, {WS_SIZE}", "s_mov_b32 s15, 0x20000", "s_mov_b32 s18, 256", "s_mov_b32 s19, 0x20000",
      "s_mov_b32 s22, 2621440", "s_mov_b32 s23, 0x20000", "s_mov_b32 s11, 0x20000", "s_mov_b32 s27, 0x20000")
    S(f"s_lshl_b32 s{sXB}, s{sMT}, 2", f"s_add_u32 s{sXB}, s{sXB}, s{sW}", f"s_mul_i32 s{sAPB}, s{sXB}, {136*1024}", f"s_add_u32 s{sAPB}, s{sAPB}, {WS_AP}")
    if role == "q":
        S(f"s_mul_i32 s{sST+2}, s{sXB}, 3072", f"s_cmp_eq_u32 s{sSL}, 7", f"s_cselect_b32 s26, {WS_SIZE}, 0", f"s_cselect_b32 s{sST+3}, 0, {hex(HUGE)}")
        for i in range(4): S(f"v_mov_b32 {v(100+i)}, 0")
    S(f"s_mul_i32 s{sXB}, s{sXB}, {32*1280}", f"s_lshl_b32 s{sXM0}, s{sW}, 14")
    S(f"s_lshl_b32 s{sKX}, s{sROT}, 7", f"s_add_u32 s{sKX}, s{sKX}, s{sXB}", f"s_add_u32 s90, s{sXB}, 1280")
    return S
def common_b(role):
    S = Stream()
    S("s_mov_b32 s4, s32", "s_mov_b32 s5, s33")
    stamp(S, -1)
    if role == "q":
        S("s_mov_b32 s24, s12", "s_mov_b32 s25, s13")
        for i in range(3): S.I(f"buffer_store_dwordx4 {v(100,4)}, {v(vL16)}, {SAUX}, s{sST+2} offen offset:{1024*i} sc1", tok="zst" if i == 2 else None)
    S += x_dma(0)
    return S
def common_c():
    return Stream()("s_mov_b32 s16, s50", "s_mov_b32 s17, s51", "s_mov_b32 s20, s48", "s_mov_b32 s21, s49")

XO = [3, 4, 112, 113]
def x_dma(i):
    S = Stream()
    S(f"s_add_u32 m0, s{sXM0}, {L_XS + (i % 4) * 4096}")
    for j in range(4):
        S.I(f"buffer_load_dwordx4 {v(XO[j])}, {SX}, s{sKX} offen offset:{j*1024} lds", tok=f"x{i}" if j == 3 else None)
    if i < 9: S(f"s_add_u32 s{sKX}, s{sKX}, 128", f"s_cmp_eq_u32 s{sKX}, s90", f"s_cselect_b32 s{sKX}, s{sXB}, s{sKX}")
    return S
sKT = 80
def ktable(S, mult, base_s):
    S(f"s_mul_i32 s{sKT}, s{sROT}, {mult}", f"s_add_u32 s{sKT}, s{sKT}, s{base_s}", f"s_add_u32 s91, s{base_s}, {10*mult}")
def ktable_rest(S, mult, base_s):
    for i in range(1, 10):
        S(f"s_add_u32 s{sKT+i}, s{sKT+i-1}, {mult}")
        if i % 2 == 0 or ROLE[0] == 'g': S(f"s_cmp_eq_u32 s{sKT+i}, s91", f"s_cselect_b32 s{sKT+i}, s{base_s}, s{sKT+i}")

def x_reads(i):
    S = Stream()
    for p in range(4):
        S.I(f"ds_read_b128 {a_(16*i+4*p,4)}, {v(vXA+p)} offset:{(i % 4)*4096}", tok=f"xr{i}" if p == 3 else None)
    return S

def code_pf(tag):
    S = Stream(); t = vT
    if CODEPF:
        S("s_getpc_b64 s[48:49]", f"L_pc{tag}:", f"s_sub_u32 s48, s48, (L_pc{tag}-{KN})", "s_subb_u32 s49, s49, 0")
        S("s_lshr_b32 s50, s2, 3", "s_lshl_b32 s50, s50, 2", f"s_add_u32 s50, s50, s{sW}", "s_lshl_b32 s50, s50, 10",
          f"v_and_b32 {v(t)}, 7, {v(vL)}", f"v_lshl_add_u32 {v(t)}, {v(t)}, 7, s50", f"v_min_u32 {v(t)}, (L_end-{KN}), {v(t)}", f"global_load_dword a254, {v(t)}, s[48:49]")
    return S
def xaddr_setup(S, wave_xor):
    t = vT
    S(f"v_and_b32 {v(t)}, 31, {v(vL)}", f"v_bfe_u32 {v(t+1)}, {v(vL)}, 1, 3", f"v_lshrrev_b32 {v(t+2)}, 5, {v(vL)}", f"v_xor_b32 {v(t+1)}, {v(t+1)}, {v(t+2)}")
    if wave_xor:
        S(f"s_lshl_b32 s{sT0}, s{sW}, 1", f"v_xor_b32 {v(t+1)}, s{sT0}, {v(t+1)}")
    S(f"v_lshlrev_b32 {v(t)}, 7, {v(t)}", f"v_add_u32 {v(t)}, s{sXM0}, {v(t)}")
    for p in range(4):
        S(f"v_xor_b32 {v(t+2)}, {2*p}, {v(t+1)}", f"v_lshl_add_u32 {v(vXA+p)}, {v(t+2)}, 4, {v(t)}")

def sel_setup(S):
    t = vT
    S(f"v_lshrrev_b32 {v(t)}, 4, {v(vL)}", f"v_xor_b32 {v(t)}, {v(t)}, {v(vL)}", f"v_and_b32 {v(t)}, 1, {v(t)}", f"v_cmp_eq_u32 vcc, 0, {v(t)}",
      f"v_mov_b32 {v(t+1)}, 0x3f803f80")
    for i in range(4): S(f"v_cndmask_b32 {v(vSEL+i)}, 0, {v(t+1)}, vcc")
    S("s_mov_b32 s96, 0x0000ffff", "s_mov_b32 s97, 0x0000ffff")

vPK = vT + 40
def pack_vec(S):
    t = vT
    S(f"v_lshrrev_b32 {v(t)}, 3, {v(vL)}", f"v_mul_u32_u24 {v(t)}, 1280, {v(t)}", f"v_and_b32 {v(t+1)}, 7, {v(vL)}", f"v_lshl_add_u32 {v(vPK)}, {v(t+1)}, 4, {v(t)}")
    S(f"v_lshrrev_b32 {v(t)}, 4, {v(vL)}", f"v_bfe_u32 {v(t+1)}, {v(vL)}, 2, 2", f"v_lshl_add_u32 {v(t)}, {v(t)}, 3, {v(t+1)}", f"v_lshlrev_b32 {v(t)}, 7, {v(t)}",
      f"v_and_b32 {v(t+1)}, 3, {v(vL)}", f"v_lshl_add_u32 {v(t)}, {v(t+1)}, 3, {v(t)}", f"s_lshl_b32 s{sT0}, s{sW}, 12", f"s_add_u32 s{sT0}, s{sT0}, {LG_MISC}", f"v_add_u32 {v(vPK+1)}, s{sT0}, {v(t)}")
PKV = 88
def pack_pre(u, unit_s):
    S = Stream(); A, B, C = 48, 49, 50; R = PKV + 8 * u
    S(f"s_mul_i32 s51, s{unit_s}, 6554", "s_lshr_b32 s51, s51, 16", "s_mul_i32 s43, s51, 10", f"s_sub_u32 s43, s{unit_s}, s43")
    if u == 0: S("s_cmp_lt_u32 s51, 48", "s_cselect_b32 s40, s46, s38", "s_cselect_b32 s41, s47, s39", "s_mov_b32 s42, 819200", "s_cselect_b32 s42, 1966080, s42")
    for j in range(4):
        if j % 2 == 0:
            S(f"s_lshl_b32 s{C}, s51, 1")
            if j: S(f"s_add_u32 s{C}, s{C}, 1")
            S(f"s_bfe_u32 s{A}, s{C}, 0x30002", f"s_mul_i32 s{A}, s{A}, 3", f"s_lshr_b32 s3, s{C}, 5", f"s_add_u32 s{A}, s{A}, s3", f"s_lshl_b32 s{A}, s{A}, 2", f"s_and_b32 s3, s{C}, 3", f"s_add_u32 s{A}, s{A}, s3",
              f"s_lshl_b32 s{A}, s{A}, 4", f"s_sub_u32 s{C}, s{C}, 96", f"s_max_i32 s{C}, s{C}, 0", f"s_mul_i32 s3, s{C}, 52", "s_lshr_b32 s3, s3, 8", "s_mul_i32 s3, s3, 40",
              f"s_lshl_b32 s{C}, s{C}, 3", f"s_add_u32 s{C}, s{C}, s3", "s_cmp_lt_u32 s51, 48", f"s_cselect_b32 s{A}, s{A}, s{C}", f"s_cselect_b32 s{B}, {8*1280}, s{B}",
              f"s_mov_b32 s3, {40*1280}", f"s_cselect_b32 s{B}, s{B}, s3", f"s_mul_i32 s{A}, s{A}, 1280", "s_lshl_b32 s3, s43, 7", f"s_add_u32 s{A}, s{A}, s3")
        else: S(f"s_add_u32 s{A}, s{A}, s{B}")
        S(f"s_sub_u32 s3, s{A}, {1024*j}")
        if u: S(f"s_cmp_lt_u32 s{unit_s}, 680", f"s_cselect_b32 s3, s3, {hex(HUGE)}")
        S(f"v_add_u32 {v(R+j)}, s3, {v(vPK)}")
    for t in range(4):
        S(f"s_lshl_b32 s{A}, s43, 2")
        if t: S(f"s_add_u32 s{A}, s{A}, {t}")
        S(f"s_mul_i32 s{B}, s{A}, 52", f"s_lshr_b32 s{B}, s{B}, 8", f"s_mul_i32 s{B}, s{B}, 335", f"s_add_u32 s{A}, s{A}, s{B}", f"s_mul_i32 s{B}, s51, 5", f"s_add_u32 s{A}, s{A}, s{B}",
          f"s_lshl_b32 s{A}, s{A}, 10", f"s_add_u32 s{A}, s{A}, {WS_WP}")
        if u: S(f"s_cmp_lt_u32 s{unit_s}, 680", f"s_cselect_b32 s{A}, s{A}, {hex(HUGE)}")
        S(f"v_add_u32 {v(R+4+t)}, s{A}, {v(vL16)}")
    return S
def pack_dma(u, unit_s=None):
    S = Stream(); R = PKV + 8 * u
    if u == 0: S("s_mov_b32 s24, s40", "s_mov_b32 s25, s41", "s_mov_b32 s26, s42")
    else: S("s_mov_b32 s24, s38", "s_mov_b32 s25, s39", "s_mov_b32 s26, 819200")
    S(f"s_add_u32 m0, s{sWM0}, {LG_MISC}")
    for j in range(4): S.I(f"buffer_load_dwordx4 {v(R+j)}, {SAUX}, 0 offen offset:{1024*j} lds", tok=f"packdma{u}" if j == 3 else None)
    if u: S("s_mov_b32 s24, s12", "s_mov_b32 s25, s13")
    return S
def pack_finish(u):
    S = Stream(); d = vT + 20; R = PKV + 8 * u
    S.wait(f"packdma{u}")
    for t in range(4):
        for r2 in range(2): S(f"ds_read_b64_tr_b16 {a_(200+4*t+2*r2,2)}, {v(vPK+1)} offset:{r2*512+32*t}")
    for t in range(4): S.I(f"buffer_store_dwordx4 {a_(200+4*t,4)}, {v(R+4+t)}, {SWS}, 0 offen sc1", tok=f"chores{u}" if t == 3 else None)
    return S

def poll1_issue():
    S = Stream()
    S(f"v_and_b32 {v(vT+18)}, 15, {v(vL)}", f"v_lshlrev_b32 {v(vT+18)}, 2, {v(vT+18)}", f"buffer_load_dword {v(vT+16)}, {v(vT+18)}, {SDBG}, 0 offen sc1")
    return S
def poll1_check(tag):
    S = Stream()
    poll_check(S, "i" + tag, vT+16, 1, f"buffer_load_dword {v(vT+16)}, {v(vT+18)}, {SDBG}, 0 offen sc1", 0xFFFF)
    return S
def poll2_issue():
    S = Stream()
    S(f"v_lshrrev_b32 {v(vT+18)}, 2, {v(vL)}", f"v_lshlrev_b32 {v(vT+18)}, 7, {v(vT+18)}", f"v_and_b32 {v(vT+16)}, 3, {v(vL)}", f"v_lshl_add_u32 {v(vT+18)}, {v(vT+16)}, 3, {v(vT+18)}",
      f"s_mov_b32 s{sPKF}, {WS_PFLAG}",
      f"buffer_load_dwordx2 {v(vT+16,2)}, {v(vT+18)}, {SWS}, s{sPKF} offen sc1")
    return S
def poll2_check(tag):
    S = Stream()
    poll_check(S, "k" + tag, vT+16, 2, f"buffer_load_dwordx2 {v(vT+16,2)}, {v(vT+18)}, {SWS}, s{sPKF} offen sc1", (1 << 64) - 1)
    return S

vRS, vSQ = 116, 120
def stat_mfma(which, xr, zero):
    if which == 0: return f"v_mfma_f32_16x16x32_bf16 {v(vRS,4)}, {v(vSEL,4)}, {a_(xr,4)}, {'0' if zero else v(vRS,4)}"
    h = which - 1
    return f"v_mfma_f32_4x4x4_16b_bf16 {v(vSQ+4*h,4)}, {a_(xr+2*h,2)}, {a_(xr+2*h,2)}, {'0' if zero else v(vSQ+4*h,4)}"

def split3(S, d, x, t, side):
    S(f"v_cvt_pk_bf16_f32 {v(t)}, {v(x)}, {v(x)}", f"v_lshlrev_b32 {v(t+2)}, 16, {v(t)}", f"v_sub_f32 {v(t+1)}, {v(x)}, {v(t+2)}")
    if side == "A":
        S(f"v_mov_b32 {v(d)}, {v(t)}", f"v_cvt_pk_bf16_f32 {v(d+1)}, {v(x)}, {v(t+1)}", f"v_and_b32 {v(t+2)}, 0xffff0000, {v(d+1)}",
          f"v_sub_f32 {v(t+2)}, {v(t+1)}, {v(t+2)}", f"v_cvt_pk_bf16_f32 {v(d+2)}, {v(t+1)}, {v(t+2)}", f"v_mov_b32 {v(d+3)}, 0")
    else:
        S(f"v_cvt_pk_bf16_f32 {v(d)}, {v(x)}, {v(t+1)}", f"v_and_b32 {v(t+2)}, 0xffff0000, {v(d)}", f"v_sub_f32 {v(t+2)}, {v(t+1)}, {v(t+2)}",
          f"v_cvt_pk_bf16_f32 {v(d+1)}, {v(t+2)}, {v(x)}", f"v_cvt_pk_bf16_f32 {v(d+2)}, {v(t+1)}, {v(x)}", f"v_mov_b32 {v(d+3)}, 0")

def stats_consume(cmul):
    S = Stream(); t = vT + 12
    S(f"v_cndmask_b32 {v(vST)}, {v(vRS+1)}, {v(vRS)}, s[96:97]")
    for i in range(4): S(f"v_add_f32 {v(vSQ+i)}, {v(vSQ+i)}, {v(vSQ+4+i)}")
    S("s_mov_b32 s98, 0xaaaaaaaa", "s_mov_b32 s99, 0xaaaaaaaa")
    S(f"v_cndmask_b32 {v(vSQ)}, {v(vSQ)}, {v(vSQ+1)}, s[98:99]", f"v_cndmask_b32 {v(vSQ+2)}, {v(vSQ+2)}, {v(vSQ+3)}, s[98:99]")
    S("s_mov_b32 s98, 0xcccccccc", "s_mov_b32 s99, 0xcccccccc")
    S(f"v_cndmask_b32 {v(vSQ)}, {v(vSQ)}, {v(vSQ+2)}, s[98:99]", f"v_mul_f32 {v(vST)}, {hex(0x3acccccd)}, {v(vST)}", f"v_mov_b32 {v(vSQ+1)}, {v(vSQ)}")
    S(f"v_permlane32_swap_b32 {v(vSQ)}, {v(vSQ+1)}", f"v_add_f32 {v(vSQ)}, {v(vSQ)}, {v(vSQ+1)}", f"v_mul_f32 {v(vSQ)}, {hex(0x3acccccd)}, {v(vSQ)}")
    S(f"v_fma_f32 {v(vSQ)}, -{v(vST)}, {v(vST)}, {v(vSQ)}", f"v_max_f32 {v(vSQ)}, 0, {v(vSQ)}", f"v_add_f32 {v(vSQ)}, {hex(0x3727c5ac)}, {v(vSQ)}")
    S(f"v_rsq_f32 {v(vST+1)}, {v(vSQ)}", f"v_sqrt_f32 {v(vSD)}, {v(vSQ)}")
    S("s_mov_b32 s98, -1", "s_mov_b32 s99, 0", f"v_sub_f32 {v(t)}, 0, {v(vST)}", f"v_cndmask_b32 {v(t)}, 0, {v(t)}, s[98:99]")
    split3(S, vMB, t, t+1, "B")
    S(f"v_mul_f32 {v(vC)}, {cmul}, {v(vST+1)}")
    return S

def cond_voff(S, dst, base_v, cond_s, lim, lanes_lo_only, tmp_s=sT0):
    S(f"s_cmp_lt_u32 s{cond_s}, {lim}", f"s_cselect_b32 s98, -1, 0", "s_mov_b32 s99, 0" if lanes_lo_only else "s_mov_b32 s99, s98",
      f"v_mov_b32 {v(dst)}, {hex(HUGE)}", f"v_cndmask_b32 {v(dst)}, {v(dst)}, {v(base_v)}, s[98:99]")
def poll_setup(S, dst, line_a_s, line_b_s, t):
    S(f"v_and_b32 {v(t)}, 15, {v(vL)}", f"v_lshlrev_b32 {v(t)}, 2, {v(t)}", f"v_add_u32 {v(dst)}, s{line_a_s}, {v(t)}", f"v_add_u32 {v(t)}, s{line_b_s}, {v(t)}",
      f"v_cndmask_b32 {v(dst)}, {v(t)}, {v(dst)}, s[96:97]")
def stats_from_sums(cmul, su, sq):
    S = Stream(); t = vT + 12
    def rb(r): S(f"v_cvt_pk_bf16_f32 {v(r)}, {v(r)}, {v(r)}", f"v_lshlrev_b32 {v(r)}, 16, {v(r)}")
    S(f"v_mul_f32 {v(vST)}, {hex(0x3acccccd)}, {v(su)}", f"v_mul_f32 {v(sq)}, {hex(0x3acccccd)}, {v(sq)}")
    S(f"v_fma_f32 {v(sq)}, -{v(vST)}, {v(vST)}, {v(sq)}", f"v_max_f32 {v(sq)}, 0, {v(sq)}")
    rb(sq)
    S(f"v_add_f32 {v(sq)}, {hex(0x3727c5ac)}, {v(sq)}")
    rb(sq)
    S(f"v_sqrt_f32 {v(vSD)}, {v(sq)}")
    S("s_mov_b32 s98, -1", "s_mov_b32 s99, 0", f"v_sub_f32 {v(t)}, 0, {v(vST)}", f"v_cndmask_b32 {v(t)}, 0, {v(t)}, s[98:99]")
    rb(vSD)
    S(f"v_rcp_f32 {v(vST+1)}, {v(vSD)}")
    S(f"v_cvt_pk_bf16_f32 {v(vMB)}, {v(t)}, 0", f"v_cvt_pk_bf16_f32 {v(vMB+1)}, 0, {v(t)}", f"v_mov_b32 {v(vMB+2)}, {v(vMB+1)}", f"v_mov_b32 {v(vMB+3)}, 0")
    S(f"v_mul_f32 {v(vC)}, {cmul}, {v(vST+1)}")
    return S

class Core:
    def __init__(self, stages, R, tokbase):
        self.stages = stages; self.R = R; self.tb = tokbase
    def build(self, pre_issued, hooks_bar=None, hooks_after=None, first_wait=()):
        hooks_bar = hooks_bar or {}; hooks_after = hooks_after or {}
        st = self.stages
        seq = [(i, m) for i, s in enumerate(st) for m in s["mf"]]
        first = {}
        for n, (i, m) in enumerate(seq): first.setdefault(i, n)
        N = len(seq)
        def reads(n):
            (acc, r0, r1, xr, cs, zero, ex) = seq[n][1]
            f = aWF + 4 * (n % NF)
            return [Ins(f"ds_read_b64_tr_b16 {a_(f,2)}, {r0}"), Ins(f"ds_read_b64_tr_b16 {a_(f+2,2)}, {r1}", tok=f"fr{self.tb}{n}")]
        def open_stage(S, i):
            toks = [f"{self.tb}{i}"] + list(hooks_bar.get(i, []))
            if st[i]["xs"] is not None: toks.append(f"x{st[i]['xs']}")
            if 'nowait' not in ABL: S.wait(*toks)
            if 'nobar' not in ABL: S("s_barrier")
        head = Stream()
        open_stage(head, 0)
        if st[0]["xs"] is not None: head += x_reads(st[0]["xs"])
        for n in range(DPF): head += reads(n)
        slots = [Stream() for _ in range(N)]
        tails = [Stream() for _ in range(N)]
        extras = [[] for _ in range(N)]
        def spread(n0, stream, dscost=0.5, pace=1):
            grp = Stream(); cnt = 0; n = n0; last = n0
            for ins in stream:
                grp.append(ins)
                vm = ins.kind in ("vm_dma", "vm_ld", "vm_st")
                if vm or ins.kind == "mfma": cnt += 1
                elif ins.kind in ("ds_rd", "ds_wr"): cnt += dscost
                if cnt >= 1:
                    extras[min(int(n), N-1)].append(grp); grp = Stream(); cnt = 0; last = n; n += (pace if vm else 1)
            if grp: extras[min(int(last), N-1)].append(grp)
            return n
        qptr = [0]
        if 0 in hooks_after: qptr[0] = spread(0, hooks_after[0], pace=st[0].get("pace", 1))
        for n in range(N):
            i, (acc, r0, r1, xr, cs, zero, ex) = seq[n]
            S = slots[n]; f = aWF + 4 * (n % NF)
            if PAIRWAIT and n % 2 == 0 and n + 1 < N: S.wait(f"fr{self.tb}{n+1}")
            S(f"v_mfma_f32_32x32x16_bf16 {v(acc,16)}, {a_(f,4)}, {a_(xr,4)}, {'0' if zero else v(acc,16)}")
            if cs is not None and 'nocs' not in ABL:
                tails[n](f"v_mfma_f32_16x16x32_bf16 {v(cs[0],4)}, {v(vSEL,4)}, {a_(f,4)}, {'0' if cs[1] else v(cs[0],4)}")
            if ex and 'nostat' not in ABL: tails[n](ex)
            m = n + DPF
            if m < N:
                j = seq[m][0]
                if first[j] == m:
                    open_stage(S, j)
                    k = n
                    if st[j]["xs"] is not None: k = spread(k, x_reads(st[j]["xs"]), dscost=1) - 3
                    k = max(k, qptr[0])
                    d = Stream()
                    if st[j]["xs"] is not None and st[j]["xs"] + 3 < 10 and st[j]["xs"] >= 1:
                        d.wait(f"xr{st[j]['xs']-1}"); d += x_dma(st[j]["xs"] + 3)
                    w = j - 2 + self.R
                    if w >= pre_issued and w < len(st): d += st[w]["dma"]
                    if j in hooks_after: d += hooks_after[j]
                    qptr[0] = spread(k, d, pace=st[j].get("pace", 1))
                S += reads(m)
            for g in extras[n]: S += g
        self.tails = tails
        return head, slots, first

ST0 = 7
def w2_slot(k):
    if ST0 <= k < ST0 + 7: k -= 7
    if k < 5: return ("a", 20 * k)
    if k >= 14: return ("a", 20 * (k - 9))
    return ("a", 200 + 20 * (k - 5)) if ROLE[0] == "g" else ("v", 208 + 20 * (k - 5))
def acc2(m4, tt):
    if ROLE[0] == "q": return v(128 + 20 * m4 + 4 * tt, 4)
    return a_(160 + 20 * (m4 - 2) + 4 * tt, 4) if m4 >= 2 else v(128 + 20 * m4 + 4 * tt, 4)
def act_base(i):
    if i & 1: return ("v", 64 if i == 1 else 48)
    return ("v", 192) if ROLE[0] == "g" else ("a", 160)
def glu_sched():
    avail = {s: 0 for s in range(4, 9)}
    extra = {9: PK_AT + PKD[2], 3: 10, 2: 10, 1: 10, 0: 10}
    for s in list(extra)[:NX]: avail[s] = extra[s]
    slot = {}; iss = {}; cnt = {}
    for g in range(30):
        s = min(avail, key=lambda x: (avail[x], x))
        j = max(avail[s], iss.get(g - 1, 0), [0, 0, 0, 0, 1][g] if g < 5 else 0)
        while g >= 4 and cnt.get(j, 0) >= WCAP: j += 1
        assert g < 2 or j <= g - 1
        cnt[j] = cnt.get(j, 0) + (1 if g >= 4 else 0)
        slot[g] = s; iss[g] = j; avail[s] = g + 2
    for s in extra:
        if s not in avail: avail[s] = extra[s]
    order = sorted(avail, key=lambda x: avail[x])
    return slot, iss, [(s, avail[s]) for s in order]
def w2_lds_addr(role, f):
    if role == "g":
        grp = (f + 3) // 4; grp = 9 if grp == 0 else grp - 1
        if f == 0: return (4096, glu_sched()[2][0][0] * 16384 + 3 * 1024) if False else (4096, glu_sched()[2][W2G0][0] * 16384 + 3 * 1024)
        return (4096, glu_sched()[2][W2ORD[(f + 3) // 4]][0] * 16384 + ((f + 3) % 4) * 1024)
    return (10240, 3072 + f * 1024) if f < 10 else (25600, 45056 + (f - 10) * 1024)
def w2_off(k, t):
    part = min(k // 4, 3); return sW2P + part, ((k - 4 * part) * 5 + t) * 1024
def w2_stage(role, f0, f1):
    S = Stream(); run = None
    for f in range(f0, f1):
        ws_, base = w2_lds_addr(role, f); sp, off = w2_off(ST0 + f // 5, f % 5)
        imm = off & 4095
        if run != (ws_, base - imm, sp, off >> 12) :
            run = (ws_, base - imm, sp, off >> 12)
            assert base >= imm
            S(f"s_add_u32 m0, s{sWS[ws_]}, {base - imm}")
        S.I(f"buffer_load_dwordx4 {v(VW[off >> 12])}, {SWS}, s{sp} offen offset:{imm} sc1 lds", tok=f"w2s{f}")
    return S
vLA = 43
def w2_lds_regs(role):
    keys = []
    for f in range(35):
        ws_, base = w2_lds_addr(role, f); k = (ws_, base >> 16)
        if k not in keys: keys.append(k)
    return keys
def w2_lds_setup(role):
    S = Stream()
    for n, (ws_, hi) in enumerate(w2_lds_regs(role)):
        S(f"s_add_u32 s47, s{sWS[ws_]}, {hi << 16}", f"v_add_u32 {v(vLA+n)}, s47, {v(vL16)}")
    return S
def w2_copy(role, k):
    S = Stream(); b = w2_slot(k)
    for t in range(5):
        f = (k - ST0) * 5 + t; ws_, base = w2_lds_addr(role, f)
        r = vLA + w2_lds_regs(role).index((ws_, base >> 16))
        S.I(f"ds_read_b128 {rg(b,4*t,4)}, {v(r)} offset:{base & 0xFFFF}", waits=[f"w2s{f}"])
    return S
def rg(b, off, n): return (a_ if b[0] == "a" else v)(b[1] + off, n)

P2_STEPS = [("h", 0, i) for i in range(4)] + [("h", 1, i) for i in range(4)] + [("h", 2, i) for i in range(4)] + [("o", 0, i) for i in range(5)]
PARTS = [(0, 4, 0, 192), (4, 4, 1, 64), (8, 4, 2, 192), (12, 5, 3, 48)]
sW2P, sACP = 66, 36
sWS = {16384: sXM0, 4096: sWM0, 1024: 92, 10240: 92, 25600: 93}
VW = [2, 16, 17, 18, 19, 13, 14]
def p2_setup():
    S = Stream()
    S(f"s_add_u32 s{sT2}, s{sW}, s{sNT}", f"s_and_b32 s{sR2}, s{sT2}, 3")
    S(f"s_mul_i32 s{sT2}, s{sNT}, {68*5120}", f"s_add_u32 s{sT2}, s{sT2}, {WS_WP}", f"s_mul_i32 s{sW2P}, s{sR2}, {4*5120}", f"s_add_u32 s{sW2P}, s{sW2P}, s{sT2}",
      f"s_add_u32 s{sW2P+1}, s{sW2P}, {16*5120}", f"s_add_u32 s{sW2P+2}, s{sW2P}, {32*5120}", f"s_mul_i32 s{sW2P+3}, s{sR2}, {5*5120}", f"s_add_u32 s{sW2P+3}, s{sW2P+3}, s{sT2}",
      f"s_add_u32 s{sW2P+3}, s{sW2P+3}, {48*5120}")
    if ROLE[0] == "g": S(f"s_lshl_b32 s92, s{sW}, 10")
    else: S(f"s_mul_i32 s92, s{sW}, 10240", f"s_mul_i32 s93, s{sW}, 25600")
    return S
def vw_setup():
    S = Stream()
    for j in range(1, 7): S(f"v_add_u32 {v(VW[j])}, {4096*j}, {v(vL16)}")
    return S
sR2 = 65
def w2_load(k):
    S = Stream(); b = w2_slot(k)
    for t in range(5):
        sp, off = w2_off(k, t)
        S(f"buffer_load_dwordx4 {rg(b,4*t,4)}, {v(VW[off >> 12])}, {SWS}, s{sp} offen offset:{off & 4095} sc1")
    return S
vPF, vPV, vOO, vXR, vRA = 6, 7, 9, 24, 36
VA = [29, 30, 31, 32]
sPF, sOB = 57, 76
def XRA(): return 240 if ROLE[0] == 'g' else 244
def p2_pre():
    S = Stream(); t = vT + 8
    S(f"v_lshrrev_b32 {v(t)}, 4, {v(vL)}", f"v_and_b32 {v(t+1)}, 15, {v(vL)}", f"v_lshlrev_b32 {v(t+3)}, 9, {v(t)}", f"v_lshl_add_u32 {v(t+3)}, {v(t+1)}, 4, {v(t+3)}")
    for j in range(4):
        S(f"s_add_u32 s{sT2}, s{sW}, {j}", f"s_and_b32 s3, s{sT2}, 1", "s_lshl_b32 s3, s3, 8", f"s_bfe_u32 s{sT2}, s{sT2}, 0x10001", f"s_mul_i32 s{sT2}, s{sT2}, {136*1024}", f"s_add_u32 s{sT2}, s{sT2}, s3",
          f"v_add_u32 {v(VA[j])}, s{sT2}, {v(t+3)}")
    S(f"v_and_b32 {v(vPF)}, 7, {v(vL)}", f"v_lshlrev_b32 {v(vPF)}, 2, {v(vPF)}", f"s_lshr_b32 s{sPF}, s{sRT}, 1", f"s_lshl_b32 s{sPF}, s{sPF}, 9")
    S(f"v_mul_u32_u24 {v(vOO)}, 1280, {v(t+1)}", f"v_lshl_add_u32 {v(vOO)}, {v(t)}, 3, {v(vOO)}",
      f"s_lshl_b32 s{sOB}, s{sRT}, 2", f"s_add_u32 s{sOB}, s{sOB}, s{sW}", f"s_mul_i32 s{sOB}, s{sOB}, {16*1280}", f"s_mul_i32 s{sT2}, s{sNT}, 160", f"s_add_u32 s{sOB}, s{sOB}, s{sT2}")
    S(f"s_mul_i32 s{sT2}, s{sRT}, {2*136*1024}", f"s_add_u32 s{sT2}, s{sT2}, {WS_AP}", f"s_lshl_b32 s44, s{sR2}, 13", f"s_add_u32 s44, s44, s{sT2}",
      f"s_mul_i32 s45, s{sR2}, {5*2048}", f"s_add_u32 s45, s45, s{sT2}", f"s_add_u32 s45, s45, {48*2048}")
    return S
def xre_load():
    S = Stream()
    for tt in range(5): S(f"buffer_load_dwordx2 {a_(XRA()+2*tt,2)}, {v(vOO)}, {SX}, s{sOB} offen offset:{32*tt}")
    return S
def wp_touch(r):
    S = Stream()
    S(f"s_and_b32 s48, s{sRT}, 3", "s_lshl_b32 s48, s48, 2", f"s_add_u32 s48, s48, s{sW}", f"s_mul_i32 s48, s48, {170*128}", f"s_mul_i32 s49, s{sNT}, {68*5120}", "s_add_u32 s48, s48, s49", f"s_add_u32 s48, s48, {WS_WP}",
      f"v_lshlrev_b32 {v(r)}, 7, {v(vL)}", f"buffer_load_dword a250, {v(r)}, {SWS}, s48 offen sc1", "s_add_u32 s48, s48, 8192", f"buffer_load_dword a251, {v(r)}, {SWS}, s48 offen sc1",
      f"s_add_u32 s48, s48, {42*128}", f"buffer_load_dword a253, {v(r)}, {SWS}, s48 offen sc1")
    return S
def p2_poll_txt(i): return f"buffer_load_dword {v(vPV+(i&1))}, {v(vPF)}, {SWS}, s{sPF} offen offset:{PARTS[i][2]*128} sc1"
def p2_poll(i): return Stream([Ins(p2_poll_txt(i), tok=f"pp{i}")])
def p2_L(i, srd):
    S = Stream(); k0, n, _, _ = PARTS[i]; r0 = act_base(i)
    if i < 3: S(f"s_add_u32 s46, s44, {i*16*2048}")
    else: S("s_mov_b32 s46, s45")
    if i == 3 and LASTM:
        S("s_add_u32 s47, s45, 4096", "s_add_u32 s48, s45, 8192")
        for m4 in (1, 2, 3, 0):
            for s in range(n): S(f"buffer_load_dwordx4 {rg(r0,16*s+4*m4,4)}, {v(VA[m4])}, {srd}, s{46+(s>>1)} offen offset:{(s&1)*2048} sc1")
        return S
    for s in range(n):
        for m4 in range(4):
            S(f"buffer_load_dwordx4 {rg(r0,16*s+4*m4,4)}, {v(VA[m4])}, {srd}, s46 offen offset:{(s&1)*2048} sc1")
        if s & 1 and s + 1 < n: S(f"s_add_u32 s46, s46, 4096")
    return S
def p2_try(i):
    S = Stream()
    S(*cmp_mask(vPV + (i & 1), 1, 0xFF)); S(f"s_cselect_b32 s26, 0, {WS_SIZE}")
    return S
def phase2(tag, rest, store_tok, flag, l1_done):
    S = Stream(); t = vRA
    vXR = 168 if tag == "g" else 24
    XU = 148 if LASTM else 208
    stamp(S)
    stamp(S, 3)
    S += w2_lds_setup(tag)
    for i in range(4):
        k0, n, _, _ = PARTS[i]; r0 = act_base(i)
        bg = Stream()
        if i < 3 and not (i == 0 and l1_done):
            S += p2_try(i + 1)
            bg += p2_L(i + 1, SAUX)
        if i < len(rest): bg += rest[i]
        if i == 2 and not XRE:
            for tt in range(5): bg(f"buffer_load_dwordx2 {v(vXR+2*tt,2)}, {v(vOO)}, {SX}, s{sOB} offen offset:{32*tt}")
        M = Stream()
        if i == 3 and LASTM:
            S.drain(vm=False); S("s_barrier")
            QD = [48 + 16 * s + 4 * m4 for m4 in (1, 2, 3) for s in range(5)]
            side = Stream()
            for j in range(1, 4):
                side(f"s_add_u32 s{sT0}, s{sW}, {j}", f"s_and_b32 s{sT0}, s{sT0}, 3", f"s_mul_i32 s{sT0}, s{sT0}, 15360", f"s_add_u32 s{sT0}, s{sT0}, {(j-1)*5120}", f"v_add_u32 {v(t+j)}, s{sT0}, {v(vL16)}")
            side(f"s_mul_i32 s{sT0}, s{sW}, 15360", f"v_add_u32 {v(t)}, s{sT0}, {v(vL16)}")
            for q_ in range(10): side(f"v_accvgpr_read_b32 {v(vXR+q_)}, {a_(XRA()+q_)}")
            side2 = Stream()
            for q_ in range(10): side2(f"v_lshlrev_b32 {v(XU+2*q_)}, 16, {v(vXR+q_)}", f"v_and_b32 {v(XU+2*q_+1)}, 0xffff0000, {v(vXR+q_)}")
            sl_ = []
            for pos, m4 in enumerate((1, 2, 3, 0)):
                for s in range(n):
                    b = w2_slot(k0 + s)
                    for tt in range(5):
                        X = Stream(); acc = acc2(m4, tt); e = 5 * s + tt
                        if tt == 0: X(f"s_waitcnt vmcnt({19 - 5*pos - s})")
                        X(f"v_mfma_f32_16x16x32_bf16 {acc}, {rg(b,4*tt,4)}, {rg(r0,16*s+4*m4,4)}, {acc}")
                        pm = (m4 - 1) & 3
                        if pos in (1, 2) and e % 5 == 3: X(f"ds_write_b128 {v(t+pm)}, {acc2(pm,e//5)} offset:{(e//5)*1024}")
                        if pos == 3:
                            if e in (2, 4, 6, 8, 10): X(f"ds_write_b128 {v(t+pm)}, {acc2(pm,e//2-1)} offset:{(e//2-1)*1024}")
                            if e == RBAR: X.drain(vm=False); X("s_barrier")
                            if e >= RBAR:
                                per = -(-15 // (25 - RBAR))
                                for q_ in range((e - RBAR) * per, min(15, (e - RBAR + 1) * per)): X(f"ds_read_b128 {v(QD[q_],4)}, {v(t)} offset:{q_*1024}")
                        sl_.append(X)
            left = interleave(sl_, side, 0.7); assert not left
            left = interleave(sl_, side2, 0.9, start=52); assert not left
            for X in sl_: S += X
            stamp(S); stamp(S, 3)
            for s in range(3):
                for q_ in range(10): S(f"v_pk_add_f32 {v(XU+2*q_,2)}, {v(XU+2*q_,2)}, {v(QD[5*s+q_//2]+2*(q_&1),2)}")
            for q_ in range(10): S(f"v_pk_add_f32 {v(XU+2*q_,2)}, {v(XU+2*q_,2)}, {v(128+2*q_,2)}")
            break
        for s in range(n):
            k = k0 + s; b = w2_slot(k)
            if i > 0: M(f"s_nop {s} ; WAITX")
            if i == 0 and s == FLAG_AFTER:
                M.wait(store_tok); M("s_barrier"); M += flag
            if s == POLL_STEP and i + 2 < 4: M += p2_poll(i + 2)
            if k == 12:
                M.drain(vm=False); M("s_barrier")
                for j in range(1, 4):
                    M(f"s_add_u32 s{sT0}, s{sW}, {j}", f"s_and_b32 s{sT0}, s{sT0}, 3", f"s_mul_i32 s{sT0}, s{sT0}, 15360", f"s_add_u32 s{sT0}, s{sT0}, {(j-1)*5120}", f"v_add_u32 {v(t+j)}, s{sT0}, {v(vL16)}")
                M(f"s_mul_i32 s{sT0}, s{sW}, 15360", f"v_add_u32 {v(t)}, s{sT0}, {v(vL16)}")
            for m4 in ([0, 1, 2, 3] if k < 16 else [1, 2, 3, 0]):
                for tt in range(5):
                    acc = acc2(m4, tt)
                    M(f"v_mfma_f32_16x16x32_bf16 {acc}, {rg(b,4*tt,4)}, {rg(r0,16*s+4*m4,4)}, {'0' if k == 0 else acc}")
                    if 5 <= k < 12 and m4 == 1: M.append(w2_copy(tag, k + 2)[tt])
                    if k == 12 and m4 < 2 and XRE: M(f"v_accvgpr_read_b32 {v(vXR+5*m4+tt)}, {a_(XRA()+5*m4+tt)}")
                    if k == 13 and m4 < 2: M(f"v_lshlrev_b32 {v(XU+10*m4+2*tt)}, 16, {v(vXR+5*m4+tt)}")
                    if k == 14 and m4 < 2: M(f"v_and_b32 {v(XU+10*m4+2*tt+1)}, 0xffff0000, {v(vXR+5*m4+tt)}")
                    if k == 16 and m4 != 1:
                        pm = (m4 - 1) & 3
                        M(f"ds_write_b128 {v(t+pm)}, {acc2(pm,tt)} offset:{tt*1024}")
            if s == 0 or s == n - 1: stamp(M, 3)
        M = sprinkle(M, bg, P2_PERIOD)
        cnt = 0
        for x in M:
            if x.kind in ("vm_ld", "vm_st", "vm_dma"): cnt += 1
            if "WAITX" in x.text:
                s = int(x.text.split()[1]); S(f"s_waitcnt vmcnt({min(63, 4*(n-1-s)+cnt)})")
            else: S.append(x)
        if i < 3:
            nm = f"p{i+1}{tag}"
            if i + 2 < 4: S.wait(f"pp{i+2}")
            S("s_cmp_eq_u32 s26, 0", f"s_cbranch_scc1 L_slow_{nm}", f"L_back_{nm}:")
            ld = p2_poll_txt(i + 1) + (("\n    " + p2_poll_txt(i + 2)) if i + 2 < 4 else "")
            L = [f"L_slow_{nm}:"] + spin_lines(nm, vPV + ((i + 1) & 1), 1, ld, 0xFF, sleep=3)
            L += ["    " + x.text for x in p2_L(i + 1, SWS)]
            L.append(f"    s_branch L_back_{nm}")
            slow_paths.append(L)
        stamp(S)
        stamp(S, 3)
    if not LASTM:
      S.drain(vm=False); S("s_barrier")
      R0 = 48
      for s in range(3):
        for tt in range(5): S(f"ds_read_b128 {v(R0+20*s+4*tt,4)}, {v(t)} offset:{s*5120+tt*1024}")
      for i in range(10): S(f"v_pk_add_f32 {v(XU+2*i,2)}, {v(XU+2*i,2)}, {v(128+2*i,2)}")
      for s in range(3):
        for i in range(10): S(f"v_pk_add_f32 {v(XU+2*i,2)}, {v(XU+2*i,2)}, {v(R0+20*s+2*i,2)}")
    for tt in range(5):
        S(f"v_cvt_pk_bf16_f32 {v(vXR+2*tt)}, {v(XU+4*tt)}, {v(XU+4*tt+1)}", f"v_cvt_pk_bf16_f32 {v(vXR+2*tt+1)}, {v(XU+4*tt+2)}, {v(XU+4*tt+3)}")
        S(f"buffer_store_dwordx2 {v(vXR+2*tt,2)}, {v(vOO)}, {SOUT}, s{sOB} offen offset:{32*tt} {OUTFLAGS}")
    stamp(S)
    if STAMPS:
        S(f"s_lshl_b32 s{sT0}, s2, 8", f"s_add_u32 s{sT0}, s{sT0}, {WS_STAMP}", f"s_cmp_eq_u32 s{sW}, 0", f"s_cselect_b32 s{sT1}, 0, {hex(HUGE)}",
          f"v_lshlrev_b32 {v(48)}, 2, {v(vL)}", f"v_or_b32 {v(48)}, s{sT1}, {v(48)}", f"buffer_store_dword v0, {v(48)}, {SWS}, s{sT0} offen")
    S("s_endpgm")
    return S
FLAG_AFTER = 0
LASTM = 1
RBAR = 15
P2_PERIOD = 48
H1FLAG_AT = 27
XU = 208
OUTFLAGS = ''
POLL_STEP = 2
POLL2_AT = 18
PK_AT = 3
ROT2MASK = 3
EPI_RATE = 2.4
EPI_RATE2 = 3.3
W2CAP17 = 0
EPI_LAG = 1
PAIRWAIT = 1

def flag_store(off_s, imm):
    S = Stream()
    S(f"buffer_store_dword a255, {v(vFL)}, {SWS}, s{off_s} offen offset:{imm} sc1")
    return S

def glu_path():
    S = Stream(); t = vT
    ACC = [128, 192, 128]
    S += common_a("g")
    S(f"v_lshrrev_b32 {v(t)}, 3, {v(vL)}", f"v_mul_u32_u24 {v(t)}, 3072, {v(t)}", f"v_bfe_u32 {v(t+1)}, {v(vL)}, 4, 1", f"s_and_b32 s{sT0}, s{sW}, 2", f"v_or_b32 {v(t+1)}, s{sT0}, {v(t+1)}",
      f"v_lshlrev_b32 {v(t+1)}, 1, {v(t+1)}", f"v_and_b32 {v(t+2)}, 7, {v(vL)}", f"v_xor_b32 {v(t+1)}, {v(t+1)}, {v(t+2)}", f"v_lshl_add_u32 {v(vWO)}, {v(t+1)}, 4, {v(t)}")
    S(f"s_and_b32 s{sWB}, s{sW}, 1", f"s_mul_i32 s{sWB}, s{sWB}, {32*3072}", f"s_mul_i32 s{sT0}, s{sSL}, 384", f"s_add_u32 s{sWB}, s{sWB}, s{sT0}",
      f"s_lshl_b32 s{sWM0}, s{sW}, 12")
    WO = [5, 10, 11, 12]
    for j in range(1, 4): S(f"v_add_u32 {v(WO[j])}, {j*(8*3072-1024)}, {v(vWO)}")
    ktable(S, 64 * 3072, sWB)
    def w_dma(g):
        c, i = divmod(g, 10); D = Stream()
        if c and i == 0: D("s_add_u32 s8, s8, 128", "s_addc_u32 s9, s9, 0", "s_sub_u32 s10, s10, 128")
        D(f"s_add_u32 m0, s{sWM0}, {glu_sched()[0][g] * 16384}")
        for j in range(4):
            D.I(f"buffer_load_dwordx4 {v(WO[j])}, {SW}, s{sKT+i} offen offset:{j*1024} lds", tok=f"w{g}" if j == 3 else None)
        return D
    ktable_rest(S, 64 * 3072, sWB)
    S("s_mov_b32 s10, 1966080")
    S += common_b("g")
    S(f"s_cmp_lt_u32 s{sW}, 2", "s_cselect_b32 s8, s42, s44", "s_cselect_b32 s9, s43, s45")
    S += w_dma(0)
    S += common_c()
    S(f"s_lshl_b32 s32, s{sMT}, 3", f"s_add_u32 s32, s32, s{sSL}", "s_lshl_b32 s32, s32, 2", f"s_add_u32 s32, s32, s{sW}", "s_add_u32 s33, s32, 512",
      f"s_lshl_b32 s34, s{sMT}, 7", f"s_lshl_b32 s35, s{sSL}, 2", "s_add_u32 s34, s34, s35", f"s_add_u32 s34, s34, {WS_PFLAG}")
    S += x_dma(1); S += w_dma(1)
    S += code_pf('g')
    pack_vec(S); S += pack_pre(0, 32); S += pack_pre(1, 33)
    xaddr_setup(S, False); sel_setup(S)
    S(f"v_bfe_u32 {v(t)}, {v(vL)}, 4, 1", f"v_lshrrev_b32 {v(t+1)}, 5, {v(vL)}", f"v_bfe_u32 {v(t+2)}, {v(vL)}, 2, 2",
      f"v_lshl_add_u32 {v(t+1)}, {v(t+1)}, 3, {v(t+2)}", f"v_lshlrev_b32 {v(t+1)}, 7, {v(t+1)}", f"v_lshl_add_u32 {v(t+1)}, {v(t)}, 13, {v(t+1)}",
      f"v_and_b32 {v(t+3)}, 1, {v(vL)}", f"v_bfe_u32 {v(t+4)}, {v(vL)}, 1, 1", f"v_lshl_add_u32 {v(t+3)}, {v(t+3)}, 1, {v(t+4)}", f"v_lshl_add_u32 {v(t+1)}, {v(t+3)}, 3, {v(t+1)}",
      f"v_add_u32 {v(t+1)}, {LG_WR}, {v(t+1)}",
      f"v_lshrrev_b32 {v(t+2)}, 1, {v(t+2)}", f"v_lshl_add_u32 {v(t+2)}, {v(t)}, 1, {v(t+2)}", f"v_xor_b32 {v(t+2)}, s{sW}, {v(t+2)}")
    for p in range(4):
        S(f"v_xor_b32 {v(t+3)}, {p}, {v(t+2)}", f"v_lshl_add_u32 {v(vWA+p)}, {v(t+3)}, 5, {v(t+1)}", f"v_add_u32 {v(vWB_+p)}, 0x10000, {v(vWA+p)}", f"v_subrev_u32 {v(104+p)}, 0x10000, {v(vWA+p)}")
    S(f"s_lshl_b32 s{sT0}, s{sSL}, 12", f"s_add_u32 s{sAPB}, s{sAPB}, s{sT0}")
    for p in range(4):
        S(f"s_xor_b32 s{sST+p}, s{sW}, {p}", f"s_lshl_b32 s{sST+p}, s{sST+p}, 10", f"s_add_u32 s{sST+p}, s{sST+p}, s{sAPB}")
    S(f"s_lshl_b32 s{sPKS+2}, s{sMT}, 9", f"s_lshl_b32 s{sT0}, s{sSL}, 2", f"s_add_u32 s{sPKS+2}, s{sPKS+2}, s{sT0}")
    sFLG = sPKS + 2
    S += p2_setup(); S += p2_pre()
    stages = []
    for g in range(30):
        c, i = divmod(g, 10); mf = []
        order = [(s, p) for s in range(4) for p in range(4)] if g < 29 else [(s, p) for p in range(4) for s in range(4)]
        for (s, p) in order:
            if True:
                sl_ = glu_sched()[0][g]
                off = (sl_ % 4) * 16384 + s * 2048
                ar = [104, vWA, vWB_][sl_ // 4] + p
                mf.append((ACC[c] + 16 * p, f"{v(ar)} offset:{off}", f"{v(ar)} offset:{off+512}", 16 * i + 4 * s,
                           (vCS, s == 0) if (p == 0 and i == 0) else None, i == 0 and s == 0,
                           stat_mfma(p - 1, 16 * i + 4 * s, i == 0 and s == 0) if (c == 0 and p > 0 and i < 2) else None))
        stages.append(dict(mf=mf, dma=Stream(), xs=i if c == 0 else None))
    vPA, vFLc, vPL0, vN4, vPS, vPQ, vFLs = 28, 33, 34, 35, 13, 14, 7
    PB = Stream()
    PB(f"v_and_b32 {v(vN4)}, 31, {v(vL)}", f"v_lshlrev_b32 {v(vN4)}, 2, {v(vN4)}", f"v_add_u32 {v(t)}, 8192, {v(vN4)}")
    cond_voff(PB, vPA, vN4, sMT, 10, True); cond_voff(PB, vPS, vN4, sSL, 5, True); cond_voff(PB, vPQ, t, sSL, 5, False)
    cond_voff(PB, vFLc, vFL, sMT, 10, False); cond_voff(PB, vFLs, vFL, sSL, 5, False)
    PB(f"s_mul_i32 s43, s{sSL}, 384", f"s_add_u32 s43, s43, {WS_SF}", f"s_lshl_b32 s78, s{sMT}, 7", f"s_add_u32 s78, s78, {WS_SF + 24*128}")
    poll_setup(PB, vPL0, 43, 78, t)
    PB(f"s_lshl_b32 s{sT0}, s{sMT}, 2", f"s_add_u32 s43, s43, s{sT0}", f"s_lshl_b32 s{sT1}, s{sSL}, 2", f"s_add_u32 s78, s78, s{sT1}",
       f"s_add_u32 s37, s{sT0}, s{sW}", "s_lshl_b32 s37, s37, 7", f"s_add_u32 s37, s37, {WS_RS}", f"s_mul_i32 s{sT0}, s{sSL}, 1536", f"s_add_u32 s{sT0}, s{sT0}, {WS_CSG}")
    for p in range(4): PB(f"s_xor_b32 s{48+p}, s{sW}, {p}", f"s_lshl_b32 s{48+p}, s{48+p}, 7", f"s_add_u32 s{48+p}, s{48+p}, s{sT0}")
    def cs_publish(c):
        E = Stream()
        E(f"v_cndmask_b32 {v(vCS)}, {v(vCS+1)}, {v(vCS)}, s[96:97]")
        E.I(f"buffer_atomic_add_f32 {v(vCS)}, {v(vPA)}, {SWS}, s48 offen offset:{512*c}", tok=f"csa{c}")
        if c == 0:
            E(f"v_cndmask_b32 {v(vRS)}, {v(vRS+1)}, {v(vRS)}, s[96:97]", f"buffer_atomic_add_f32 {v(vRS)}, {v(vPS)}, {SWS}, s37 offen")
            for i in range(4): E(f"v_add_f32 {v(vSQ+i)}, {v(vSQ+i)}, {v(vSQ+4+i)}")
            E("s_mov_b32 s98, 0xaaaaaaaa", "s_mov_b32 s99, 0xaaaaaaaa", f"v_cndmask_b32 {v(vSQ)}, {v(vSQ)}, {v(vSQ+1)}, s[98:99]", f"v_cndmask_b32 {v(vSQ+2)}, {v(vSQ+2)}, {v(vSQ+3)}, s[98:99]")
            E("s_mov_b32 s98, 0xcccccccc", "s_mov_b32 s99, 0xcccccccc", f"v_cndmask_b32 {v(vSQ)}, {v(vSQ)}, {v(vSQ+2)}, s[98:99]")
            E.I(f"buffer_atomic_add_f32 {v(vSQ)}, {v(vPQ)}, {SWS}, s37 offen", tok="csa0")
        return E
    def cs_flag(c):
        E = Stream(); E(f"buffer_store_dword a255, {v(vFLc)}, {SWS}, s43 offen offset:{128*c} sc1")
        if c == 0: E(f"buffer_store_dword a255, {v(vFLs)}, {SWS}, s78 offen sc1")
        return E
    def cs_ptxt(c): return f"buffer_load_dword {v(vT+7)}, {v(vPL0)}, {SWS}, 0 offen offset:{128*c} sc1"
    def cs_fetch(c):
        E = Stream()
        poll_check(E, f"cs{c}g", vT + 7, 1, cs_ptxt(c), 0x3FF | ((0x1F << 16) if c == 0 else 0))
        for p in range(4): E(f"buffer_load_dword {v(vT+p)}, {v(vN4)}, {SWS}, s{48+p} offen offset:{512*c} sc1")
        if c == 0: E(f"buffer_load_dword {v(vRS)}, {v(vN4)}, {SWS}, s37 offen sc1", f"s_add_u32 s37, s37, 8192", f"buffer_load_dword {v(vRS+1)}, {v(vN4)}, {SWS}, s37 offen sc1")
        return E
    def build(c):
        E = Stream()
        for p in range(4): split3(E, vCS + 4 + 4 * p, vT + p, vT + 4, "A")
        return E
    def corr(c):
        E = Stream()
        for p in range(4): E(f"v_mfma_f32_32x32x16_bf16 {v(ACC[c]+16*p,16)}, {v(vCS+4+4*p,4)}, {v(vMB,4)}, {v(ACC[c]+16*p,16)}")
        return E
    def epi(c, packed):
        E = epi_(c, packed)
        if 'noepi' in ABL and not packed: E = Stream([x for x in E if x.kind in ("vm_st", "salu")])
        return E
    def epi_(c, packed):
        E = Stream()
        def store(p):
            A = ACC[c] + 16 * p
            E(f"s_add_u32 s36, s{sST+p}, {c*32*1024}")
            E.I(f"buffer_store_dwordx4 {v(A,4)}, {v(vL16)}, {SWS}, s36 offen sc1", tok=f"h{c}" if p == 3 else None)
        if packed:
            for p in range(4):
                A = ACC[c] + 16 * p
                for i in range(0, 8, 2): E(f"v_pk_mul_f32 {v(A+i,2)}, {v(A+i,2)}, {v(vC,2)} op_sel_hi:[1,0]")
                for i in range(8): E(f"v_exp_f32 {v(A+i)}, {v(A+i)}")
                for i in range(0, 8, 2): E(f"v_pk_fma_f32 {v(A+i,2)}, {v(A+i,2)}, {v(vC,2)}, {v(vC,2)} op_sel:[0,1,1] op_sel_hi:[1,1,1]")
                for i in range(8): E(f"v_rcp_f32 {v(A+i)}, {v(A+i)}")
                for i in range(0, 8, 2): E(f"v_pk_mul_f32 {v(A+8+i,2)}, {v(A+8+i,2)}, {v(A+i,2)}")
                for i in range(4): E(f"v_cvt_pk_bf16_f32 {v(A+i)}, {v(A+8+2*i)}, {v(A+9+2*i)}")
                store(p)
            return E
        LAG = EPI_LAG
        ev = []
        for e in range(32):
            p, i = divmod(e, 8); A = ACC[c] + 16 * p
            ops = [f"v_mul_f32 {v(A+i)}, {v(A+i)}, {v(vC)}", f"v_exp_f32 {v(A+i)}, {v(A+i)}", f"v_fma_f32 {v(A+i)}, {v(A+i)}, {v(vSD)}, {v(vSD)}",
                   f"v_rcp_f32 {v(A+i)}, {v(A+i)}", f"v_mul_f32 {v(A+8+i)}, {v(A+8+i)}, {v(A+i)}"]
            for s, o in enumerate(ops): ev.append((e + LAG * s, s, o, None))
            if i & 1: ev.append((p * 8 + 7 + LAG * 5, 5 + i, f"v_cvt_pk_bf16_f32 {v(A+i//2)}, {v(A+8+i-1)}, {v(A+8+i)}", None))
            if i == 7: ev.append((p * 8 + 7 + LAG * 6, 20, None, p))
        for (_, _, o, p) in sorted(ev, key=lambda x: (x[0], x[1])):
            if o: E(o)
            else: store(p)
        return E
    hb = {PK_AT + PKD[2]: ["chores1"]}
    def addb(j, tk): hb[j] = hb.get(j, []) + [tk]
    addb(H0AT, "h0")
    ha = {0: Stream(x_dma(2) + w_dma(2) + x_dma(3) + w_dma(3))}
    for j_, st_ in ((PK_AT, pack_dma(0, 32)), (PK_AT + PKD[0], Stream(pack_finish(0) + pack_dma(1, 33))), (PK_AT + PKD[1], pack_finish(1)), (PK_AT + PKD[2], flag_store(34, 0)),
                    (POLL2_AT - 2, Stream(vw_setup() + poll2_issue())), (POLL2_AT, poll2_check("g"))):
        ha[j_] = Stream(ha.get(j_, Stream()) + st_)
    core = Core(stages, 5, "w")
    for i in range(10, 30): stages[i]["pace"] = PACE
    def add(j, st_): ha[j] = Stream(ha.get(j, Stream()) + st_)
    S(f"v_min_u32 {v(110)}, 39, {v(vL)}", f"v_mul_u32_u24 {v(110)}, 3072, {v(110)}", f"s_and_b32 s48, s{sMT}, 7", "s_lshl_b32 s48, s48, 1", f"s_and_b32 s49, s{sW}, 1", "s_add_u32 s48, s48, s49",
      f"s_mul_i32 s48, s48, {40*3072}", f"s_mul_i32 s49, s{sSL}, 384", "s_add_u32 s48, s48, s49", f"v_add_u32 {v(110)}, s48, {v(110)}")
    S += PB
    add(P1AT - 2, poll1_issue()); add(P1AT, poll1_check("g"))
    for c in range(3):
        pub, fl, ck = PBS[c]
        add(pub, cs_publish(c)); addb(fl, f"csa{c}"); add(fl, cs_flag(c)); add(ck - 2, Stream([Ins(cs_ptxt(c))])); add(ck, cs_fetch(c))
    add(XRAT, xre_load())
    if WPT: add(POLL2_AT, wp_touch(111))
    if T2AT: add(T2AT, Stream([Ins(f"buffer_load_dword a253, {v(110)}, {SW}, 0 offen offset:128")]))
    if T3AT: add(T3AT, Stream([Ins(f"buffer_load_dword a252, {v(110)}, {SW}, 0 offen offset:{128 if T3AT >= 7 else 256}")]))
    add(H0AT, flag_store(sFLG, 0))
    slot_, iss_, fin_ = glu_sched()
    nW = {}
    for g_ in range(29, 3, -1):
        ha[iss_[g_]] = Stream(w_dma(g_) + ha.get(iss_[g_], Stream())); nW[iss_[g_]] = nW.get(iss_[g_], 0) + 4
    items = []; late = Stream()
    for k in (5, 6): items.append((POLL2_AT, w2_load(k), 5))
    for k in range(5): items.append((20 + (20 * k + 19) // 16 + 2, w2_load(k), 5))
    for grp in range(10):
        f0, f1 = max(0, 4 * grp - 3), min(35, 4 * grp + 1)
        items.append((max(POLL2_AT, fin_[grp][1]) + 0.25, w2_stage("g", f0, f1), f1 - f0))
    add(H1FLAG_AT - 2, p2_poll(0))
    chk = Stream(); poll_check(chk, "p0g", vPV, 1, p2_poll_txt(0), 0xFF)
    addb(H1FLAG_AT, "h1"); add(H1FLAG_AT, flag_store(sFLG, 128)); add(H1FLAG_AT, chk)
    G0 = vm_groups(p2_L(0, SWS))
    for q_ in range(0, 16, 4): items.insert(q_ // 4, (H1FLAG_AT, Stream([x for gg_ in G0[q_:q_+4] for x in gg_]), 4))
    for j in range(POLL2_AT, 30):
        cap = VCAP - nW.get(j, 0)
        for it in list(items):
            if it[0] <= j + 0.5 and it[2] <= cap:
                add(j, it[1]); cap -= it[2]; items.remove(it)
    for it in items:
        assert "lds" in it[1][-1].text, it[1][-1].text
        late += it[1]
    print("sched", [iss_[g_] for g_ in range(30)], fin_, "late", sum(it[2] for it in items))
    rest = [Stream(late + w2_load(14)), w2_load(15), w2_load(16)]
    head, slots, first = core.build(4, hb, ha)
    side = Stream(stats_from_sums("0xbfb8aa3b", vRS, vRS + 1) + build(0) + corr(0) + epi(0, False))
    left = interleave(slots[:first[20]], side, EPI_RATE, start=first[B0AT] - 4); assert not left, len(left)
    left = interleave(slots[:first[H1FLAG_AT - 1]], Stream(build(1) + corr(1) + epi(1, False)), EPI_RATE2, start=first[20] + 4); assert not left, len(left)
    c2 = corr(2); fin = Stream(build(2) + p2_poll(1) + c2[:-1])
    left = interleave(slots, fin, 3, start=first[29]); assert not left, len(left)
    slots[-1].append(c2[-1])
    stamp(S, 1)
    S += head
    stamp(S, 1)
    for n, sl in enumerate(slots):
        S += sl; S += core.tails[n]
        if n + 1 in (first[10], first[20]): stamp(S)
        if n + 1 in [first[i] for i in range(1, 11)]: stamp(S, 1)
        if n + 1 in [first[i] for i in range(1, 30)] + [len(slots)]: stamp(S, 2)
    stamp(S)
    e2 = epi(2, True); cut = len(e2) // E3CUT
    S += e2[:cut]; S += p2_try(1)
    S += sprinkle(Stream(e2[cut:]), p2_L(1, SAUX), E3P)
    S += phase2("g", rest, "h2", flag_store(sFLG, 256), True)
    return S

def softmax_pair(E, P, O, T, qmode):
    mx, mn = T + 40, T + 41
    E(f"v_max3_f32 {v(mx)}, {v(P)}, {v(P+1)}, {v(P+2)}", f"v_min3_f32 {v(mn)}, {v(P)}, {v(P+1)}, {v(P+2)}")
    for i in range(3, 19, 2):
        E(f"v_max3_f32 {v(mx)}, {v(mx)}, {v(P+i)}, {v(P+i+1)}", f"v_min3_f32 {v(mn)}, {v(mn)}, {v(P+i)}, {v(P+i+1)}")
    E(f"v_max_f32 {v(mx)}, {v(mx)}, {v(P+19)}", f"v_min_f32 {v(mn)}, {v(mn)}, {v(P+19)}")
    E(f"v_mul_f32 {v(mx)}, {v(mx)}, {v(vC)}", f"v_mul_f32 {v(mn)}, {v(mn)}, {v(vC)}")
    for i in range(0, 20, 2):
        E(f"v_pk_fma_f32 {v(T+i,2)}, {v(P+i,2)}, {v(vC,2)}, {v(mx,2)} op_sel:[0,0,0] op_sel_hi:[1,0,0] neg_lo:[0,0,1] neg_hi:[0,0,1]")
    for i in range(0, 20, 2):
        E(f"v_pk_fma_f32 {v(T+20+i,2)}, {v(P+i,2)}, {v(vC,2)}, {v(mx,2)} op_sel:[0,0,1] op_sel_hi:[1,0,1] neg_lo:[1,0,0] neg_hi:[1,0,0]")
    for i in range(40): E(f"v_exp_f32 {v(T+i)}, {v(T+i)}")
    for h in range(2):
        B = T + 20 * h; A = P + 10 * h
        for i in range(5): E(f"v_pk_add_f32 {v(A+2*i,2)}, {v(B+4*i,2)}, {v(B+4*i+2,2)}")
    for h in range(2):
        A = P + 10 * h
        E(f"v_pk_add_f32 {v(A,2)}, {v(A,2)}, {v(A+2,2)}", f"v_pk_add_f32 {v(A+4,2)}, {v(A+4,2)}, {v(A+6,2)}")
    for h in range(2):
        A = P + 10 * h
        E(f"v_pk_add_f32 {v(A,2)}, {v(A,2)}, {v(A+4,2)}")
    for h in range(2):
        A = P + 10 * h
        E(f"v_pk_add_f32 {v(A,2)}, {v(A,2)}, {v(A+8,2)}")
    E(f"v_add_f32 {v(T+44)}, {v(P)}, {v(P+1)}", f"v_add_f32 {v(T+45)}, {v(P+10)}, {v(P+11)}")
    if qmode:
        E(f"v_rcp_f32 {v(T+42)}, {v(T+45)}", f"v_mul_f32 {v(T+42)}, {v(T+42)}, {v(T+44)}")
        for i in range(0, 20, 2): E(f"v_pk_mul_f32 {v(T+20+i,2)}, {v(T+20+i,2)}, {v(T+42,2)} op_sel_hi:[1,0]")
    else:
        E(f"v_rcp_f32 {v(T+42)}, {v(T+44)}", f"v_rcp_f32 {v(T+43)}, {v(T+45)}")
        for i in range(0, 20, 2): E(f"v_pk_mul_f32 {v(T+i,2)}, {v(T+i,2)}, {v(T+42,2)} op_sel_hi:[1,0]")
        for i in range(0, 20, 2): E(f"v_pk_mul_f32 {v(T+20+i,2)}, {v(T+20+i,2)}, {v(T+42,2)} op_sel:[0,1] op_sel_hi:[1,1]")
    for i in range(20): E(f"v_cvt_pk_bf16_f32 {v(O+i)}, {v(T+2*i)}, {v(T+2*i+1)}")

PROJ = [(0, 0), (0, 1), (0, 2), (1, 0), (1, 1), (1, 2), (1, 3), (1, 4), (2, 2), (2, 3), (2, 4)]
aPH = 200
def project(E, SRC, PK, OUT):
    for i in range(20): E(f"v_cvt_pk_bf16_f32 {v(PK+i)}, {v(SRC+2*i)}, {v(SRC+2*i+1)}")
    seen = set()
    for n, (T, sl) in enumerate(PROJ):
        E(f"v_mfma_f32_32x32x16_bf16 {v(OUT+16*T,16)}, {a_(aPH+4*n,4)}, {v(PK+4*sl,4)}, {v(OUT+16*T,16) if T in seen else '0'}")
        seen.add(T)

def qkv_path():
    ROLE[0] = "q"; VA[:] = [3, 4, 5, 20]
    S = Stream(); t = vT
    S("L_qkv:")
    AKV, AQ = 128, 208
    S += common_a("q")
    S("s_mov_b32 s10, 2457600")
    ZI = Stream(); QV = Stream()
    sQB = 78
    S(f"s_mul_i32 s{sWB}, s{sSL}, 160", f"s_mul_i32 s{sWM0}, s{sW}, 5120")
    ktable(S, 64 * 3840, sWB)
    S(f"s_mul_i32 s{sT1}, s{sW}, {16*3840}", f"s_add_u32 s{sT2}, s{sT1}, 1280", f"s_sub_u32 s{sT3}, s{sT1}, 1280")
    for j in range(5):
        S(f"v_add_u32 {v(t)}, {64*j}, {v(vL)}")
        divmod_v(S, t+1, t+2, t, 20)
        divmod_v(S, t+3, t+4, t+2, 5)
        S(f"v_and_b32 {v(t+5)}, 1, {v(t+3)}", f"v_lshrrev_b32 {v(t+3)}, 1, {v(t+3)}", f"v_mul_u32_u24 {v(t+3)}, 80, {v(t+3)}", f"v_lshl_add_u32 {v(t+3)}, {v(t+4)}, 4, {v(t+3)}")
        if 0 < j < 4: S(f"v_subrev_u32 {v(t+3)}, {1024*j}, {v(t+3)}")
        S(f"v_mul_u32_u24 {v(t+6)}, 3840, {v(t+1)}", f"v_mul_u32_u24 {v(t+7)}, 1280, {v(t+5)}", f"v_add3_u32 {v(vWO+j)}, {v(t+6)}, {v(t+7)}, {v(t+3)}", f"v_add_u32 {v(vWO+j)}, s{sT2}, {v(vWO+j)}")
        S(f"v_lshrrev_b32 {v(t+6)}, 2, {v(t+1)}", f"v_lshl_add_u32 {v(vQO+j)}, {v(t+6)}, 1, {v(t+5)}")
        QV(f"v_lshrrev_b32 {v(t+6)}, 1, {v(vQO+j)}", f"v_and_b32 {v(t+5)}, 1, {v(vQO+j)}", f"v_mul_u32_u24 {v(t+6)}, {4*3840}, {v(t+6)}", f"v_mul_u32_u24 {v(t+5)}, {4*3840-1280}, {v(t+5)}",
           f"v_add3_u32 {v(vQO+j)}, {v(t+6)}, {v(t+5)}, {v(vWO+j)}", f"v_add_u32 {v(vQO+j)}, s{sT3}, {v(vQO+j)}")
    def w_dma(g):
        D = Stream(); q = g >= 10
        lb = L_WR + (g % 4) * 20480 if g < 14 else L_WR - 20480
        D(f"s_add_u32 m0, s{sWM0}, {lb}")
        vo = vQO if q else vWO; so = sKT + (2 * (g - 10) if q else g)
        for j in range(4): D(f"buffer_load_dwordx4 {v(vo+j)}, {SW}, s{so} offen offset:{j*1024} lds")
        D(f"s_add_u32 m0, s{sWM0}, {lb + 4096}")
        D.I(f"buffer_load_dwordx4 {v(vo+4)}, {SW}, s{so} offen lds", tok=(f"q{g-10}" if q else f"w{g}"))
        return D
    S += common_b("q")
    S("s_mov_b32 s8, s34", "s_mov_b32 s9, s35")
    S += w_dma(0); S += common_c()
    ktable_rest(S, 64 * 3840, sWB); S += QV
    if QS1: S += x_dma(1); S += w_dma(1)
    S += code_pf('q')
    LATE = Stream(); S0 = S; S = LATE
    S("s_mov_b32 s24, s36", "s_mov_b32 s25, s37", "s_mov_b32 s26, 25600", f"s_mul_i32 s{sT0}, s{sSL}, 3200", f"s_lshl_b32 s{sT1}, s{sW}, 10", f"s_add_u32 s{sT0}, s{sT0}, s{sT1}",
      f"s_add_u32 m0, s{sT1}, {L_PHI}")
    S.I(f"buffer_load_dwordx4 {v(vL16)}, {SAUX}, s{sT0} offen lds", tok="phid")
    S("s_mov_b32 s24, s12", "s_mov_b32 s25, s13")
    S = S0
    S(f"v_mov_b32 {v(t+2)}, 0", f"v_mov_b32 {v(t+3)}, 0", f"s_lshl_b32 s{sT0}, s{sW}, 9", f"s_add_u32 s{sT0}, s{sT0}, {L_ZERO}", f"v_lshl_add_u32 {v(t+4)}, {v(vL)}, 3, s{sT0}")
    S.I(f"ds_write_b64 {v(t+4)}, {v(t+2,2)}", tok="ldsz")
    xaddr_setup(S, True); sel_setup(S)
    S(f"v_lshrrev_b32 {v(t)}, 5, {v(vL)}", f"v_bfe_u32 {v(t+1)}, {v(vL)}, 2, 2", f"v_lshl_add_u32 {v(t+2)}, {v(t)}, 3, {v(t+1)}", f"v_lshl_add_u32 {v(t+3)}, {v(t)}, 2, {v(t+1)}",
      f"v_mul_u32_u24 {v(t+2)}, 320, {v(t+2)}", f"v_mul_u32_u24 {v(t+3)}, 320, {v(t+3)}",
      f"v_and_b32 {v(t+4)}, 1, {v(vL)}", f"v_mul_u32_u24 {v(t+4)}, 160, {v(t+4)}", f"v_bfe_u32 {v(t+5)}, {v(vL)}, 4, 1", f"v_bfe_u32 {v(t+6)}, {v(vL)}, 1, 1",
      f"v_lshl_add_u32 {v(t+5)}, {v(t+5)}, 1, {v(t+6)}", f"v_lshl_add_u32 {v(t+4)}, {v(t+5)}, 3, {v(t+4)}", f"v_add_u32 {v(t+4)}, {L_WR}, {v(t+4)}",
      f"v_add_u32 {v(t+2)}, {v(t+2)}, {v(t+4)}", f"v_add_u32 {v(t+3)}, {v(t+3)}, {v(t+4)}")
    for p in range(4):
        S(f"s_xor_b32 s{sT0}, s{sW}, {p}", f"s_mul_i32 s{sT1}, s{sT0}, 5120", f"s_mul_i32 s{sT0}, s{sT0}, 2560",
          f"v_add_u32 {v(vWA+p)}, s{sT1}, {v(t+2)}", f"v_add_u32 {v(vQA+p)}, s{sT0}, {v(t+3)}",
          f"v_add_u32 {v(vWB_+p)}, {3*20480}, {v(vWA+p)}", f"v_add_u32 {v(vQB+p)}, {2*20480}, {v(vQA+p)}", f"v_subrev_u32 {v(vQA+p)}, 20480, {v(vQA+p)}")
    S += p2_setup()
    stages = []
    for g in range(10):
        mf = []
        for p in range(4):
            for T in range(5):
                ar, off = (vWA + p, (g % 4) * 20480) if g % 4 < 3 else (vWB_ + p, 0)
                off += 32 * T
                mf.append((AKV + 16 * T, f"{v(ar)} offset:{off}", f"{v(ar)} offset:{off+1280}", 16 * g + 4 * p, (vCS + 4 * T, g == 0) if (p == 0 and g < 2) else None, g == 0 and p == 0, None))
        stages.append(dict(mf=mf, dma=w_dma(g), xs=g))
    PHF = Stream(); u = vT
    PHF(f"v_bfe_u32 {v(u)}, {v(vL)}, 4, 1", f"v_bfe_u32 {v(u+1)}, {v(vL)}, 1, 1", f"v_lshl_add_u32 {v(u)}, {v(u)}, 1, {v(u+1)}",
        f"v_lshrrev_b32 {v(u+1)}, 5, {v(vL)}", f"v_and_b32 {v(u+2)}, 1, {v(vL)}", f"v_cmp_eq_u32 s[{sPKS+4}:{sPKS+5}], {v(u+1)}, {v(u+2)}".replace(f"s[{sPKS+4}:{sPKS+5}]", "s[98:99]"),
        f"v_mul_u32_u24 {v(u+1)}, 1600, {v(u+1)}", f"v_bfe_u32 {v(u+2)}, {v(vL)}, 2, 2", f"v_mul_u32_u24 {v(u+2)}, 40, {v(u+2)}", f"v_add3_u32 {v(u+1)}, {v(u+1)}, {v(u+2)}, {L_PHI & 63}".replace(f", {L_PHI & 63}", ", 0"),
        f"v_add_u32 {v(u+1)}, {L_PHI}, {v(u+1)}", f"v_lshl_add_u32 {v(u+1)}, {v(u)}, 3, {v(u+1)}", f"v_mov_b32 {v(u+3)}, {L_ZERO}")
    amap = {}
    k = 4
    for (T, s) in [(0, 0), (1, 0), (1, 1), (2, 1)]:
        lo, hi = 5 * s - 4 * T, 5 * s + 5 - 4 * T
        PHF(f"v_add_u32 {v(u+k)}, {s*800+(4*T-5*s)*8}, {v(u+1)}", f"v_cndmask_b32 {v(u+k)}, {v(u+3)}, {v(u+k)}, s[98:99]")
        if lo > 0: PHF(f"v_cmp_le_u32 vcc, {lo}, {v(u)}", f"v_cndmask_b32 {v(u+k)}, {v(u+3)}, {v(u+k)}, vcc")
        if hi < 4: PHF(f"v_cmp_gt_u32 vcc, {hi}, {v(u)}", f"v_cndmask_b32 {v(u+k)}, {v(u+3)}, {v(u+k)}, vcc")
        amap[(T, s)] = u + k; k += 1
    for n, (T, sl) in enumerate(PROJ):
        for r2 in range(2):
            rho = 2 * sl + r2; s = rho // 5
            if (T, s) in amap: PHF(f"ds_read_b64_tr_b16 {a_(aPH+4*n+2*r2,2)}, {v(amap[(T,s)])} offset:{(rho%5)*160}")
            else: PHF(f"ds_read_b64_tr_b16 {a_(aPH+4*n+2*r2,2)}, {v(u+3)}")
    core = Core(stages, 4, "w")
    QR = 68
    def pb_regs(r):
        P = Stream()
        P(f"v_and_b32 {v(r+3)}, 31, {v(vL)}", f"v_lshlrev_b32 {v(r+3)}, 2, {v(r+3)}")
        cond_voff(P, r, r + 3, sMT, 5, True); cond_voff(P, r + 1, vFL, sMT, 5, False)
        poll_setup(P, r + 2, 40, 41, r + 4)
        return P
    S(f"s_lshl_b32 s40, s{sSL}, 8", f"s_add_u32 s40, s40, {WS_SF + 40*128}", f"s_lshl_b32 s41, s{sMT}, 7", f"s_add_u32 s41, s41, {WS_SF + 24*128}", f"s_lshl_b32 s{sT0}, s{sMT}, 2", f"s_add_u32 s43, s40, s{sT0}",
      f"s_add_u32 s38, s{sT0}, s{sW}", "s_lshl_b32 s38, s38, 7", f"s_add_u32 s38, s38, {WS_RS}", f"s_lshl_b32 s39, s{sSL}, 10", f"s_add_u32 s39, s39, {WS_CSQ}")
    S += pb_regs(116)
    def q_pub(r, n, o, tok, vCS=vCS):
        E = Stream()
        for T in range(n):
            E(f"v_cndmask_b32 {v(vCS+4*T)}, {v(vCS+4*T+1)}, {v(vCS+4*T)}, s[96:97]")
            E.I(f"buffer_atomic_add_f32 {v(vCS+4*T)}, {v(r)}, {SWS}, s39 offen offset:{128*(o+T)}", tok=tok if T == n - 1 else None)
        return E
    def q_flag(r, k): return Stream([Ins(f"buffer_store_dword a255, {v(r+1)}, {SWS}, s43 offen offset:{128*k} sc1")])
    def q_ptxt(r, k): return f"buffer_load_dword {v(r+4)}, {v(r+2)}, {SWS}, 0 offen offset:{128*k} sc1"
    def q_fetch(r, k, n, o, d):
        E = Stream()
        poll_check(E, f"cs{k}q", r + 4, 1, q_ptxt(r, k), 0x1F | ((0x1F << 16) if k == 0 else 0))
        for T in range(n): E(f"buffer_load_dword {v(d+T)}, {v(r+3)}, {SWS}, s39 offen offset:{128*(o+T)} sc1")
        if k == 0: E(f"buffer_load_dword {v(d+5)}, {v(r+3)}, {SWS}, s38 offen sc1", "s_add_u32 s38, s38, 8192", f"buffer_load_dword {v(d+6)}, {v(r+3)}, {SWS}, s38 offen sc1")
        return E
    def q_corr(n, d, acc, tt_):
        E = Stream()
        for T in range(n): split3(E, vCS + 4 * T, d + T, tt_, "A")
        for T in range(n): E(f"v_mfma_f32_32x32x16_bf16 {v(acc+16*T,16)}, {v(vCS+4*T,4)}, {v(vMB,4)}, {v(acc+16*T,16)}")
        return E
    hb = {3: ["phid", "ldsz"]}
    S(f"v_or_b32 {v(114)}, s{sST+3}, {v(vFL)}", f"s_lshl_b32 s{sST+3}, s{sMT}, 2")
    S.wait("zst"); S("s_barrier", f"buffer_store_dword a255, {v(114)}, {SDBG}, s{sST+3} offen sc1")
    if not QS1: S += x_dma(1); S += w_dma(1)
    ha = {0: Stream(x_dma(2) + w_dma(2) + LATE + x_dma(3)), 4: PHF, 9: Stream()}
    def addq(j, st_): ha[j] = Stream(ha.get(j, Stream()) + st_)
    addq(QP1AT - 1, poll1_issue()); addq(QP1AT, poll1_check("q")); addq(QPB[0], q_pub(116, 5, 0, "qa0"))
    hb[QPB[1]] = hb.get(QPB[1], []) + ["qa0"]; addq(QPB[1], q_flag(116, 0)); addq(QPB[2] - 1, Stream([Ins(q_ptxt(116, 0))]))
    FE = q_fetch(116, 0, 5, 0, 88)
    if QTAT:
        TCH = Stream(); q = vT + 8
        TCH(f"v_lshrrev_b32 {v(q)}, 1, {v(vL)}", f"v_min_u32 {v(q)}, 19, {v(q)}", f"v_mul_u32_u24 {v(q)}, 3840, {v(q)}", f"v_and_b32 {v(q+1)}, 1, {v(vL)}", f"v_mul_u32_u24 {v(q+1)}, 156, {v(q+1)}",
            f"v_add_u32 {v(q)}, {v(q)}, {v(q+1)}", f"s_and_b32 s48, s{sMT}, 7", "s_lshl_b32 s48, s48, 2", f"s_add_u32 s48, s48, s{sW}", f"s_mul_i32 s48, s48, {20*3840}", f"s_mul_i32 s49, s{sSL}, 160",
            "s_add_u32 s48, s48, s49", f"buffer_load_dword {v(115)}, {v(q)}, {SW}, s48 offen")
        ha[QTAT] = Stream(ha.get(QTAT, Stream()) + TCH)
    ha[8] = Stream(ha.get(8, Stream()) + w_dma(10))
    if QPRE:
        VA[3] = 8; pp_ = p2_pre(); VA[3] = 20
        ha[QPRE] = Stream(ha.get(QPRE, Stream()) + pp_ + xre_load())
    ha[QPB[2]] = Stream(FE + ha.get(QPB[2], Stream()))
    ha[9] = Stream(w_dma(11) + ha[9])
    head, slots, first = core.build(3, hb, ha)
    left = interleave(slots, Stream(stats_from_sums("0x3fb8aa3b", 93, 94) + q_corr(5, 88, AKV, 96)), 4, start=first[9] + QC0)
    KL_ = Stream(left)
    stamp(S, 1)
    S += head
    stamp(S, 1)
    for n, sl in enumerate(slots):
        S += sl; S += core.tails[n]
        if n + 1 in [first[i] for i in range(1, 10)] + [len(slots)]: stamp(S, 1)
        if n + 1 in [first[i] for i in range(1, 10)]: stamp(S, 2)
    stamp(S)
    stamp(S, 2)
    PK = vCS; TT = vT; ta = 120; kr = 21
    A1 = Stream()
    A1(f"v_and_b32 {v(ta)}, 31, {v(vL)}", f"s_lshl_b32 s{sT0}, s{sW}, 5", f"v_add_u32 {v(ta)}, s{sT0}, {v(ta)}", f"v_mul_u32_u24 {v(ta)}, {RS}, {v(ta)}",
      f"v_lshrrev_b32 {v(ta+1)}, 5, {v(vL)}", f"v_mul_u32_u24 {v(ta+2)}, 96, {v(ta+1)}", f"v_add_u32 {v(ta+2)}, {v(ta+2)}, {v(ta)}",
      f"v_mul_u32_u24 {v(ta+1)}, 160, {v(ta+1)}", f"v_add_u32 {v(ta+1)}, {v(ta+1)}, {v(ta)}")
    A1(f"v_lshrrev_b32 {v(kr+2)}, 4, {v(vL)}", f"v_bfe_u32 {v(kr+1)}, {v(vL)}, 2, 2", f"v_lshl_add_u32 {v(kr+1)}, {v(kr+2)}, 3, {v(kr+1)}", f"v_mul_u32_u24 {v(kr+1)}, {RS}, {v(kr+1)}",
      f"v_and_b32 {v(kr)}, 3, {v(vL)}", f"v_lshl_add_u32 {v(kr+1)}, {v(kr)}, 3, {v(kr+1)}",
      f"s_mul_i32 s{sT0}, s{sW}, 80", f"s_mul_i32 s{sT1}, s{sW}, 48", f"s_add_u32 s{sT1}, s{sT1}, 320", f"v_add_u32 {v(kr)}, s{sT0}, {v(kr+1)}", f"v_add_u32 {v(kr+1)}, s{sT1}, {v(kr+1)}")
    A2 = Stream()
    A2(f"v_lshrrev_b32 {v(ta)}, 4, {v(vL)}", f"v_mul_u32_u24 {v(ta+4)}, 768, {v(ta)}", f"v_and_b32 {v(ta+5)}, 15, {v(vL)}", f"v_lshl_add_u32 {v(ta+4)}, {v(ta+5)}, 2, {v(ta+4)}", f"v_lshlrev_b32 {v(ta+6)}, 2, {v(ta+5)}",
      f"s_lshl_b32 s42, s{sSL}, 14", f"s_mul_i32 s98, s{sW}, 4032", "s_add_u32 s42, s42, s98", f"s_add_u32 s42, s42, {WS_KV}")
    AV = [ta + 4, 116, 117, 118, 119, ta + 5]
    A2(f"v_mov_b32 {v(ta)}, {hex(HUGE)}")
    for n, m in enumerate([None, 0xFFFFFFFF, 0xFFFF, 0x00FF00FF00FF00FF, 0x00FF00FF, 0x00FF]):
        if m is None: continue
        A2(f"s_mov_b32 s98, {hex(m & 0xFFFFFFFF)}", f"s_mov_b32 s99, {hex(m >> 32)}", f"v_cndmask_b32 {v(AV[n])}, {v(ta)}, {v(ta+4)}, s[98:99]")
    st_ = Stream(); stamp(st_, 2)
    if QPRE: S("v_mov_b32 v20, v8")
    S += KL_; S += A1; S.wait("q0"); S("s_barrier"); S += st_
    for h_ in range(2):
        for T in range(3):
            f_ = aWF + 4 * (3 * h_ + T); o_ = 32 * T + h_ * 10240
            S(f"ds_read_b64_tr_b16 {a_(f_,2)}, {v(vQB)} offset:{o_}", f"ds_read_b64_tr_b16 {a_(f_+2,2)}, {v(vQB)} offset:{o_+80}")
    stamp(S, 2)
    stamp(S)
    S0 = S; S = Stream()
    PJ = Stream(); project(PJ, AKV, PK, AQ)
    VW_ = Stream()
    for i in range(40): VW_(f"v_mul_f32 {v(AKV+40+i)}, {v(AKV+40+i)}, {v(vST+1)}")
    for s in range(2):
        for i in range(10): VW_(f"v_cvt_pk_bf16_f32 {v(AKV+12*s+i)}, {v(AKV+40+20*s+2*i)}, {v(AKV+41+20*s+2*i)}")
        VW_(f"v_mov_b32 {v(AKV+12*s+10)}, 0x3f80", f"v_mov_b32 {v(AKV+12*s+11)}, 0")
    S += PJ[:20]
    for h_ in range(2):
        for T in range(3): S(f"v_mfma_f32_16x16x32_bf16 {v(96+4*T,4)}, {v(vSEL,4)}, {a_(aWF+4*(3*h_+T),4)}, {'0' if h_ == 0 else v(96+4*T,4)}")
    for n_, x in enumerate(PJ[20:]): S.append(x); S += VW_[6*n_:6*n_+6]
    S += q_pub(116, 3, 5, "qa1", 96)
    for i in range(6): S(f"ds_write_b128 {v(ta+2)}, {v(AKV+4*i,4)} offset:{L_TB+320+16*i}")
    for s in range(2):
        O = AKV + 40 + 20 * s
        softmax_pair(S, AQ + 20 * s, O, TT, False)
        for i in range(5): S(f"ds_write_b128 {v(ta+1)}, {v(O+4*i,4)} offset:{L_TB+80*s+16*i}")
    S0 += sprinkle(S, Stream(w_dma(12) + w_dma(13)), KP)
    S = S0
    S.drain(vm=False); S.wait("qa1"); S("s_barrier"); S += q_flag(116, 1)
    stamp(S)
    FR = AKV; KA = TT + 24
    for ks in range(4):
        for x in range(5):
            for r2 in range(2):
                ar, co = (kr + 1, 32 * x) if x < 2 else (kr, 32 * (x - 2))
                S(f"ds_read_b64_tr_b16 {v(FR+20*ks+4*x+2*r2,2)}, {v(ar)} offset:{L_TB+(32*ks+4*r2)*RS+co}")
    S += A2
    for ks in range(4):
        for a in range(2):
            for b in range(3):
                acc = v(KA + 12 * a + 4 * b, 4)
                S(f"v_mfma_f32_16x16x32_bf16 {acc}, {v(FR+20*ks+4*a,4)}, {v(FR+20*ks+8+4*b,4)}, {'0' if ks == 0 else acc}")
    AT = Stream()
    todo = [(a, r, b) for a in range(2) for r in range(4) for b in range(3)]
    for n, (a, r, b) in enumerate(todo):
        av = AV[(0 if a == 0 else (1 if r == 0 else 2)) + (3 if b == 2 else 0)]
        AT.I(f"buffer_atomic_add_f32 {v(KA+12*a+4*b+r)}, {v(av)}, {SWS}, s42 offen offset:{(16*a+r)*192+64*b}", tok="kvat" if n == len(todo) - 1 else None)
    if 'noat' in ABL: AT = Stream(AT[-1:])
    stamp(S)
    S += poll2_issue()
    stages = []
    for g in range(5):
        gg = 10 + g; mf = []
        for p8 in range(8):
            p = p8 & 3
            for T in range(3):
                sl_ = gg % 4 if gg < 14 else -1
                ar, off = (vQA + p, (sl_ + 1) * 20480) if sl_ < 2 else (vQB + p, (sl_ - 2) * 20480)
                off += 32 * T + (p8 >> 2) * 10240
                mf.append((AQ + 16 * T, f"{v(ar)} offset:{off}", f"{v(ar)} offset:{off+80}", 32 * g + 4 * p8, None, g == 0 and p8 == 0, None))
        stages.append(dict(mf=mf, dma=Stream(), xs=None))
    sKF = 79
    S(f"s_lshl_b32 s{sKF}, s{sSL}, 7", f"s_add_u32 s{sKF}, s{sKF}, {WS_KVFLAG}", f"s_lshl_b32 s{sT0}, s{sMT}, 2", f"s_add_u32 s{sQB+22}, s{sKF}, s{sT0}")
    hb = {}
    ha = {0: Stream(w_dma(14) + vw_setup() + (Stream() if QPRE else Stream(p2_pre() + xre_load())) + AT), 2: poll2_check("q")}
    for s_ in stages: s_["pace"] = QPACE
    S += pb_regs(QR)
    ha[2] += w2_stage("q", 0, 10)
    for k in range(4):
        j = max(3, (20 * k + 19) // 32 + 2)
        ha[j] = Stream(ha.get(j, Stream()) + w2_load(k))
    u = 88; oa = 21; A3 = Stream()
    A3(f"v_bfe_u32 {v(u)}, {v(vL)}, 3, 2", f"v_bfe_u32 {v(u+1)}, {v(vL)}, 2, 1", f"v_lshrrev_b32 {v(u+2)}, 5, {v(vL)}", f"v_cmp_eq_u32 s[98:99], {v(u+1)}, {v(u+2)}",
      f"v_and_b32 {v(u+2)}, 3, {v(vL)}", f"v_lshl_add_u32 {v(u+2)}, {v(u)}, 2, {v(u+2)}", f"v_mul_u32_u24 {v(u+1)}, 42, {v(u+1)}", f"v_add_u32 {v(u+2)}, {v(u+2)}, {v(u+1)}",
      f"v_mul_u32_u24 {v(u+2)}, 96, {v(u+2)}", f"v_mov_b32 {v(u+3)}, {L_ZERO}", f"v_cmp_gt_u32 s[50:51], 2, {v(u)}")
    A3(f"v_add_u32 {v(oa)}, {L_KB}, {v(u+2)}", f"v_add_u32 {v(oa+1)}, {L_KB+21*96}, {v(u+2)}", f"v_add_u32 {v(oa+2)}, {L_KB+16*96}, {v(u+2)}", f"v_add_u32 {v(oa+3)}, {L_KB+(21+16-8)*96}, {v(u+2)}",
      f"v_cndmask_b32 {v(oa+2)}, {v(u+3)}, {v(oa+2)}, s[50:51]", f"v_cndmask_b32 {v(oa+3)}, {v(oa+3)}, {v(u+3)}, s[50:51]")
    for k in range(4): A3(f"v_cndmask_b32 {v(oa+k)}, {v(u+3)}, {v(oa+k)}, s[98:99]")
    A3(f"s_lshl_b32 s48, s{sW}, 9", f"s_add_u32 s48, s48, {L_KB}", f"v_lshl_add_u32 {v(oa+4)}, {v(vL)}, 3, s48")
    core = Core(stages, 4, "q")
    head, slots, first = core.build(4, hb, ha)
    left = interleave(slots, A3, 1, start=first[2]); assert not left
    slots[QF[0]](q_ptxt(QR, 1)); slots[QF[1]] += q_fetch(QR, 1, 3, 5, 80)
    left = interleave(slots, q_corr(3, 80, AQ, 73), 3, start=first[4] + 12); assert not left
    S += head
    for n, sl in enumerate(slots):
        S += sl; S += core.tails[n]
        if n + 1 in [first[i] for i in range(1, 5)]: stamp(S, 2)
    stamp(S)
    W2rest = Stream(w2_load(4) + w2_load(14) + w2_load(15) + w2_load(16))
    S.wait("kvat"); S("s_barrier"); S += flag_store(sQB + 22, 0)
    E = Stream()
    project(E, AQ, PK, AKV)
    PQ = AQ
    softmax_pair(E, AKV, PQ, TT, True)
    E(f"v_mul_f32 {v(ta)}, {hex(0x358637bd)}, {v(TT+44)}")
    bgA = W2rest; bgA += p2_poll(0)
    bgA(f"buffer_load_dword {v(ta+7)}, {v(ta+6)}, {SWS}, s{sKF} offen sc1")
    S += sprinkle(E, bgA, QP1)
    W2rest = p2_L(0, SWS)
    W2r2 = w2_stage("q", 10, 23)
    W2r3 = [Stream(w2_load(5) + w2_load(6)), w2_stage("q", 23, 35)]
    poll_check(S, "p0q", vPV, 1, p2_poll_txt(0), 0xFF)
    poll_check(S, "kv", ta + 7, 1, f"buffer_load_dword {v(ta+7)}, {v(ta+6)}, {SWS}, s{sKF} offen sc1", 0xFFFF)
    stamp(S)
    KL = AKV + 48
    S(f"s_lshl_b32 s{sT2}, s{sSL}, 14", f"s_add_u32 s{sT2}, s{sT2}, {WS_KV}", f"s_lshl_b32 s{sT0}, s{sW}, 10", f"s_add_u32 s{sT2}, s{sT2}, s{sT0}")
    for i in range(4):
        S(f"buffer_load_dwordx4 {v(KL+4*i,4)}, {v(vL16)}, {SWS}, s{sT2} offen sc1")
        if i < 3: S(f"s_add_u32 s{sT2}, s{sT2}, 4096")
    E = Stream(); softmax_pair(E, AKV + 20, PQ + 20, TT, True)
    S += sprinkle(E, W2rest, QP2)
    S(f"v_mul_f32 {v(ta+1)}, {hex(0x358637bd)}, {v(TT+44)}")
    for i in range(4):
        S(f"v_cvt_pk_bf16_f32 {v(KL+4*i)}, {v(KL+4*i)}, {v(KL+4*i+1)}", f"v_cvt_pk_bf16_f32 {v(KL+4*i+1)}, {v(KL+4*i+2)}, {v(KL+4*i+3)}",
          f"ds_write_b64 {v(oa+4)}, {v(KL+4*i,2)} offset:{2048*i}")
    S.drain(vm=False); S("s_barrier")
    W2r2 += p2_poll(1)
    S0 = S; S = Stream()
    FRO = AKV
    ON = TT + 8
    ON = vCS
    for k in range(4):
        for s in range(5): S(f"ds_read_b128 {v(FRO+20*k+4*s,4)}, {v(oa+k)} offset:{16*s}")
    for k in range(4):
        T = min(k, 2); slot = k & 1
        for s in range(5):
            acc = v(ON + 16 * T, 16)
            S(f"v_mfma_f32_32x32x16_bf16 {acc}, {v(FRO+20*k+4*s,4)}, {v(PQ+20*slot+4*s,4)}, {'0' if (s == 0 and k < 3) else acc}")
    S(f"v_add_f32 {v(ta)}, {v(ON+36)}, {v(ta)}", f"v_add_f32 {v(ta+1)}, {v(ON+44)}, {v(ta+1)}", f"v_rcp_f32 {v(ta+2)}, {v(ta)}", f"v_rcp_f32 {v(ta+3)}, {v(ta+1)}")
    OP = AKV
    for s in range(2):
        src = [ON + 16 * s + i for i in range(16)] + [ON + 32 + 8 * s + i for i in range(4)]
        sel = "op_sel_hi:[1,0]" if s == 0 else "op_sel:[0,1] op_sel_hi:[1,1]"
        for i in range(0, 20, 2): S(f"v_pk_mul_f32 {v(src[i],2)}, {v(src[i],2)}, {v(ta+2,2)} {sel}")
        for i in range(10): S(f"v_cvt_pk_bf16_f32 {v(OP+10*s+i)}, {v(src[2*i])}, {v(src[2*i+1])}")
    S0 += sprinkle(S, W2r2, QP3); S = S0
    S(f"s_mul_i32 s{sT0}, s{sSL}, 5120", f"s_add_u32 s{sT0}, s{sT0}, s{sAPB}", f"s_add_u32 s{sT0}, s{sT0}, {96*1024}", f"s_add_u32 s{sT1}, s{sT0}, 4096")
    for i in range(4): S(f"buffer_store_dwordx4 {v(OP+4*i,4)}, {v(vL16)}, {SWS}, s{sT0} offen offset:{1024*i} sc1")
    S.I(f"buffer_store_dwordx4 {v(OP+16,4)}, {v(vL16)}, {SWS}, s{sT1} offen sc1", tok="ost")
    S(f"s_lshl_b32 s{sKF}, s{sMT}, 9", f"s_lshl_b32 s{sT0}, s{sSL}, 2", f"s_add_u32 s{sKF}, s{sKF}, s{sT0}")
    S += phase2("q", W2r3, "ost", flag_store(sKF, 384), False)
    return S

def main(outpath):
    hdr = open("parallel_sum__linear_kernel_hedgehog__glu_gated_glu__prompt.s.ref").read().split("; Override launch")[0]
    out = []
    st = State()
    finalize(prologue(), st, out)
    n0 = 0
    finalize(glu_path(), st.copy(), out)
    nstamp[0] = n0
    st2 = st.copy(); st2.hist = []
    out.append(".p2align 6")
    finalize(qkv_path(), st2, out)
    for L in slow_paths: out += L
    out.append("L_end:")
    txt = hdr + "; @launch grid=(256,1,1) block=(256,1,1) lds=163840\n" + f""".amdgcn_target "amdgcn-amd-amdhsa--gfx950"
.text
.globl {KN}
.p2align 8
.type {KN},@function
{KN}:
""" + "\n".join(out) + f"""
    s_endpgm
.section .rodata,"a"
.p2align 6
.amdhsa_kernel {KN}
  .amdhsa_next_free_vgpr 512
  .amdhsa_next_free_sgpr 102
  .amdhsa_accum_offset 256
  .amdhsa_group_segment_fixed_size 0
  .amdhsa_kernarg_size 88
  .amdhsa_user_sgpr_count 2
  .amdhsa_user_sgpr_kernarg_segment_ptr 1
  .amdhsa_system_sgpr_workgroup_id_x 1
.end_amdhsa_kernel
"""
    open(outpath, "w").write(txt)
    print("lines", len(out))

if __name__ == "__main__":
    for a in sys.argv:
        if a.startswith("--abl="): ABL.update(a[6:].split(","))
    if "--c1" in sys.argv: STGRP = 1
    if "--c2" in sys.argv: STGRP = 2
    if "--c3" in sys.argv: STGRP = 3
    for a in sys.argv:
        if a.startswith("--set="):
            k_, v_ = a[6:].split("="); globals()[k_] = eval(v_)
    if "--stamps" in sys.argv: STAMPS = True
    if "--cyc" in sys.argv: STAMPS = True; STAMPOP = "s_memtime"
    main([a for a in sys.argv[1:] if not a.startswith("--")][0])
```

```python
import sys
from emit import Stream, State, Ins, finalize, interleave, sprinkle, vm_groups

KN = "parallel_sum__linear_kernel_hedgehog__glu_gated_glu__prompt_kernel"
WS_HFLAG = 0
WS_KVFLAG = 8192
WS_PFLAG = 9216
WS_KV = 12288
WS_CSG = 143360; WS_CSQ = 155648; WS_RS = 163840; WS_SF = 180224
WS_STAT = 262144
WS_STAMP = 524288
WS_AP = 1 << 20
WS_WP = 12 << 20
WS_SIZE = 16 << 20
HUGE = 0x7F000000
L_XS = 0
L_TB = 0; RS = 528
L_WR = 67584
L_MISC = 149504
L_PACK = 0
LG_WR = 65536
LG_MISC = 147456
L_CSF = LG_MISC + 12288
L_PHI = L_MISC + 4096
L_ZERO = L_MISC
L_CS = L_MISC + 10240
L_KB = L_MISC + 2048
SX, SW, SWS, SDBG, SOUT, SAUX = "s[4:7]", "s[8:11]", "s[12:15]", "s[16:19]", "s[20:23]", "s[24:27]"
sW, sMT, sSL, sRT, sNT, sROT = 28, 29, 30, 31, 52, 53
sXB, sWB, sKX, sKW, sT0, sT1, sT2, sT3 = 54, 55, 56, 57, 58, 59, 60, 61
sXM0, sWM0, sAPB, sONE, sWPB, sACB, sWP4, sWP5 = 62, 63, 64, 65, 66, 67, 68, 69
sST = 70
sSPIN = 74
sPKS, sPKD = 75, 76
sPKF = 101
sSTAMP = 80
vL, vL16, vXO, vWO, vQO = 1, 2, 3, 5, 10
vXA, vWA, vWB_, vQA, vQB = 16, 20, 24, 28, 32
vSEL, vMB, vC, vSD, vST = 36, 40, 44, 45, 46
vCS = 48
vT = 68
vONE = 115
vFL = 15
NF, DPF = 10, 7
aWF = 160

STAMPS = False
GROT = 1
PREF = 0
CODEPF = 1
MAP1 = 0
QROT = 0
PKD = (3, 6, 8)
QPRE = 8
NX = 4
VCAP = 10
WCAP = 2
W2G0 = 0
W2ORD = list(range(10))
MAP2 = 0
T2AT = 0
T3AT = 0
XRAT = 16
H0AT = 22
P1AT = 3
PBS = [(3, 5, 10), (12, 15, 19), (22, 24, 28)]
B0AT = 13
QP1AT = 3
QPB = (3, 5, 8)
QF = (0, 16)
QC0 = 1
QS1 = 0
WPT = 0
WPD = 0
QTAT = 0
QWPT = 0
XRE = 1
PACE = 1.33
QPACE = 2
QP1 = 80
QP2 = 55
QP3 = 80
E3P = 40
E3CUT = 4
KP = 250
CAPA = 5
CAPB = 8
ROLE = ['g']
STGRP = 0
ABL = set()
STAMPOP = 's_memrealtime'
nstamp = [0]
def stamp(S, grp=0):
    if STAMPS and (grp == STGRP or grp < 0 or (grp == 0 and STGRP == 2 and ROLE[0] == "q")):
        i = nstamp[0]; nstamp[0] += 1
        S(f"{STAMPOP} s[94:95]")
        S.drain(vm=False)
        S(f"v_writelane_b32 v0, s94, {i}")

def v(a, n=1): return f"v{a}" if n == 1 else f"v[{a}:{a+n-1}]"
def a_(a, n=1): return f"a{a}" if n == 1 else f"a[{a}:{a+n-1}]"

slow_paths = []
def cmp_mask(vreg, n, mask):
    lo, hi = mask & 0xFFFFFFFF, mask >> 32
    L = []
    if n == 2: L.append(f"v_and_b32 {v(vreg)}, {v(vreg)}, {v(vreg+1)}")
    L.append(f"v_cmp_ne_u32 vcc, 1, {v(vreg)}")
    if hi:
        L += [f"s_and_b32 s{sT0}, vcc_lo, {hex(lo)}", f"s_and_b32 s{sT1}, vcc_hi, {hex(hi)}", f"s_or_b32 s{sT0}, s{sT0}, s{sT1}"]
    else:
        L += [f"s_and_b32 s{sT0}, vcc_lo, {hex(lo)}"]
    return L
def spin_lines(name, vreg, n, load, mask, sleep=6):
    C = cmp_mask(vreg, n, mask)
    k = 2 if n == 2 else 1
    return [f"    s_mov_b32 s{sSPIN}, 0x8000", f"L_spin_{name}:", f"    s_sleep {sleep}", "    " + load, "    s_waitcnt vmcnt(0)",
            f"    s_sub_u32 s{sSPIN}, s{sSPIN}, 1", f"    s_cbranch_scc1 L_out_{name}"] + ["    " + c for c in C[:k]] + ["    s_nop 1"] + ["    " + c for c in C[k:]] + \
           [f"    s_cbranch_scc1 L_spin_{name}", f"L_out_{name}:"]
def poll_check(S, name, vreg, n, load, mask):
    S(*cmp_mask(vreg, n, mask))
    S(f"s_cbranch_scc1 L_slow_{name}", f"L_back_{name}:")
    slow_paths.append([f"L_slow_{name}:"] + spin_lines(name, vreg, n, load, mask) + [f"    s_branch L_back_{name}"])

def divmod_v(S, q, r, x, d, tmp_s=sT0):
    m = (1 << 16) // d + 1
    S(f"v_mul_u32_u24 {v(q)}, {m}, {v(x)}", f"v_lshrrev_b32 {v(q)}, 16, {v(q)}",
      f"v_mul_u32_u24 {v(r)}, {d}, {v(q)}", f"v_sub_u32 {v(r)}, {v(x)}, {v(r)}")

def prologue():
    S = Stream()
    S("s_cmp_ge_u32 s2, 256", "s_cbranch_scc1 L_end")
    S("s_load_dwordx16 s[32:47], s[0:1], 0", "s_load_dwordx4 s[48:51], s[0:1], 64", "s_load_dwordx2 s[12:13], s[0:1], 80")
    S("s_bitcmp1_b32 s2, 7", "s_cbranch_scc1 L_qkv")
    return S
def common_a(role):
    S = Stream(); t = vT
    S(f"v_lshrrev_b32 {v(vT)}, 6, v0", f"v_and_b32 {v(vL)}, 63, v0", f"v_readfirstlane_b32 s{sW}, {v(vT)}")
    S(f"v_lshlrev_b32 {v(vL16)}, 4, {v(vL)}")
    S("s_and_b32 s3, s2, 7", f"s_lshr_b32 s{sT0}, s2, 3")
    if MAP1 == 0:
        S(f"s_and_b32 s{sMT}, s3, 1", f"s_lshl_b32 s{sMT}, s{sMT}, 3", f"s_and_b32 s{sT1}, s{sT0}, 7", f"s_add_u32 s{sMT}, s{sMT}, s{sT1}")
        S(f"s_and_b32 s{sSL}, s3, 6", f"s_bfe_u32 s{sT2}, s2, 0x10006", f"s_add_u32 s{sSL}, s{sSL}, s{sT2}")
    elif MAP1 == 1:
        S(f"s_lshr_b32 s{sMT}, s3, 1", f"s_lshl_b32 s{sMT}, s{sMT}, 2", f"s_and_b32 s{sT1}, s{sT0}, 3", f"s_add_u32 s{sMT}, s{sMT}, s{sT1}")
        S(f"s_and_b32 s{sSL}, s3, 1", f"s_lshl_b32 s{sSL}, s{sSL}, 2", f"s_bfe_u32 s{sT2}, s2, 0x20005", f"s_add_u32 s{sSL}, s{sSL}, s{sT2}")
    elif MAP1 == 2:
        S(f"s_and_b32 s{sMT}, s{sT0}, 15", f"s_mov_b32 s{sSL}, s3")
    else:
        S(f"s_lshr_b32 s{sMT}, s3, 2", f"s_lshl_b32 s{sMT}, s{sMT}, 3", f"s_and_b32 s{sT1}, s{sT0}, 7", f"s_add_u32 s{sMT}, s{sMT}, s{sT1}")
        S(f"s_and_b32 s{sSL}, s3, 3", f"s_lshl_b32 s{sSL}, s{sSL}, 1", f"s_bfe_u32 s{sT2}, s2, 0x10006", f"s_add_u32 s{sSL}, s{sSL}, s{sT2}")
    if MAP2 == 0:
        S(f"s_lshl_b32 s{sRT}, s3, 2", f"s_and_b32 s{sT2}, s{sT0}, 3", f"s_add_u32 s{sRT}, s{sRT}, s{sT2}", f"s_lshr_b32 s{sNT}, s{sT0}, 2")
    elif MAP2 == 1:
        S(f"s_lshl_b32 s{sRT}, s3, 2", f"s_and_b32 s{sT2}, s{sT0}, 1", f"s_add_u32 s{sRT}, s{sRT}, s{sT2}", f"s_add_u32 s{sRT}, s{sRT}, {2 if role == 'q' else 0}", f"s_bfe_u32 s{sNT}, s{sT0}, 0x30001")
    else:
        S(f"s_lshr_b32 s{sRT}, s3, 1", f"s_lshl_b32 s{sRT}, s{sRT}, 3", f"s_and_b32 s{sT2}, s{sT0}, 3", f"s_add_u32 s{sRT}, s{sRT}, s{sT2}", f"s_add_u32 s{sRT}, s{sRT}, {4 if role == 'q' else 0}",
          f"s_and_b32 s{sNT}, s3, 1", f"s_lshl_b32 s{sNT}, s{sNT}, 2", f"s_bfe_u32 s{sT2}, s{sT0}, 0x20002", f"s_add_u32 s{sNT}, s{sNT}, s{sT2}")
    if role == "q" and QROT:
        S(f"s_lshl_b32 s{sT2}, s{sSL}, 1", f"s_add_u32 s{sT2}, s{sT2}, s{sMT}", f"s_add_u32 s{sT2}, s{sT2}, {QROT}", f"s_mul_i32 s{sT1}, s{sT2}, 26", f"s_lshr_b32 s{sT1}, s{sT1}, 8", f"s_mul_i32 s{sT1}, s{sT1}, 10",
          f"s_sub_u32 s{sROT}, s{sT2}, s{sT1}")
    elif role == "q":
        S(f"s_add_u32 s{sROT}, s{sMT}, s{sSL}", f"s_mul_i32 s{sT2}, s{sROT}, 52", f"s_lshr_b32 s{sT2}, s{sT2}, 8", f"s_mul_i32 s{sT2}, s{sT2}, 5",
          f"s_sub_u32 s{sROT}, s{sROT}, s{sT2}", f"s_lshl_b32 s{sROT}, s{sROT}, 1")
    else:
        S(f"s_lshl_b32 s{sT2}, s{sSL}, 1", f"s_add_u32 s{sT2}, s{sT2}, s{sMT}", f"s_mul_i32 s{sT1}, s{sT2}, 26", f"s_lshr_b32 s{sT1}, s{sT1}, 8", f"s_mul_i32 s{sT1}, s{sT1}, 10", f"s_sub_u32 s{sROT}, s{sT2}, s{sT1}")
    S(f"v_mov_b32 {v(vFL)}, {hex(HUGE)}", "v_cmp_eq_u32 vcc, 0, v0", "v_accvgpr_write_b32 a255, 1")
    S(f"v_lshrrev_b32 {v(t)}, 3, {v(vL)}", f"v_cndmask_b32 {v(vFL)}, {v(vFL)}, 0, vcc", f"v_mul_u32_u24 {v(t)}, 1280, {v(t)}",
      f"v_lshrrev_b32 {v(t+1)}, 4, {v(vL)}", f"v_and_b32 {v(t+2)}, 7, {v(vL)}", f"v_xor_b32 {v(t+1)}, {v(t+1)}, {v(t+2)}",
      f"v_lshl_add_u32 {v(vXO)}, {v(t+1)}, 4, {v(t)}", f"v_xor_b32 {v(t+1)}, 4, {v(t+1)}", f"v_lshl_add_u32 {v(vXO+1)}, {v(t+1)}, 4, {v(t)}",
      f"v_add_u32 {v(XO[1])}, 9216, {v(XO[1])}", f"v_add_u32 {v(XO[2])}, {2*9216}, {v(XO[0])}", f"v_add_u32 {v(XO[3])}, {2*9216}, {v(XO[1])}")
    S("s_mov_b32 s6, 2621440", "s_mov_b32 s7, 0x20000", f"s_mov_b32 s14, {WS_SIZE}", "s_mov_b32 s15, 0x20000", "s_mov_b32 s18, 256", "s_mov_b32 s19, 0x20000",
      "s_mov_b32 s22, 2621440", "s_mov_b32 s23, 0x20000", "s_mov_b32 s11, 0x20000", "s_mov_b32 s27, 0x20000")
    S(f"s_lshl_b32 s{sXB}, s{sMT}, 2", f"s_add_u32 s{sXB}, s{sXB}, s{sW}", f"s_mul_i32 s{sAPB}, s{sXB}, {136*1024}", f"s_add_u32 s{sAPB}, s{sAPB}, {WS_AP}")
    if role == "q":
        S(f"s_mul_i32 s{sST+2}, s{sXB}, 3072", f"s_cmp_eq_u32 s{sSL}, 7", f"s_cselect_b32 s26, {WS_SIZE}, 0", f"s_cselect_b32 s{sST+3}, 0, {hex(HUGE)}")
        for i in range(4): S(f"v_mov_b32 {v(100+i)}, 0")
    S(f"s_mul_i32 s{sXB}, s{sXB}, {32*1280}", f"s_lshl_b32 s{sXM0}, s{sW}, 14")
    S(f"s_lshl_b32 s{sKX}, s{sROT}, 7", f"s_add_u32 s{sKX}, s{sKX}, s{sXB}", f"s_add_u32 s90, s{sXB}, 1280")
    return S
def common_b(role):
    S = Stream()
    S("s_mov_b32 s4, s32", "s_mov_b32 s5, s33")
    stamp(S, -1)
    if role == "q":
        S("s_mov_b32 s24, s12", "s_mov_b32 s25, s13")
        for i in range(3): S.I(f"buffer_store_dwordx4 {v(100,4)}, {v(vL16)}, {SAUX}, s{sST+2} offen offset:{1024*i} sc1", tok="zst" if i == 2 else None)
    S += x_dma(0)
    return S
def common_c():
    return Stream()("s_mov_b32 s16, s50", "s_mov_b32 s17, s51", "s_mov_b32 s20, s48", "s_mov_b32 s21, s49")

XO = [3, 4, 112, 113]
def x_dma(i):
    S = Stream()
    S(f"s_add_u32 m0, s{sXM0}, {L_XS + (i % 4) * 4096}")
    for j in range(4):
        S.I(f"buffer_load_dwordx4 {v(XO[j])}, {SX}, s{sKX} offen offset:{j*1024} lds", tok=f"x{i}" if j == 3 else None)
    if i < 9: S(f"s_add_u32 s{sKX}, s{sKX}, 128", f"s_cmp_eq_u32 s{sKX}, s90", f"s_cselect_b32 s{sKX}, s{sXB}, s{sKX}")
    return S
sKT = 80
def ktable(S, mult, base_s):
    S(f"s_mul_i32 s{sKT}, s{sROT}, {mult}", f"s_add_u32 s{sKT}, s{sKT}, s{base_s}", f"s_add_u32 s91, s{base_s}, {10*mult}")
def ktable_rest(S, mult, base_s):
    for i in range(1, 10):
        S(f"s_add_u32 s{sKT+i}, s{sKT+i-1}, {mult}")
        if i % 2 == 0 or ROLE[0] == 'g' or QROT: S(f"s_cmp_eq_u32 s{sKT+i}, s91", f"s_cselect_b32 s{sKT+i}, s{base_s}, s{sKT+i}")

def x_reads(i):
    S = Stream()
    for p in range(4):
        S.I(f"ds_read_b128 {a_(16*i+4*p,4)}, {v(vXA+p)} offset:{(i % 4)*4096}", tok=f"xr{i}" if p == 3 else None)
    return S

def code_pf(tag):
    S = Stream(); t = vT
    if CODEPF:
        S("s_getpc_b64 s[48:49]", f"L_pc{tag}:", f"s_sub_u32 s48, s48, (L_pc{tag}-{KN})", "s_subb_u32 s49, s49, 0")
        S("s_lshr_b32 s50, s2, 3", "s_lshl_b32 s50, s50, 2", f"s_add_u32 s50, s50, s{sW}", "s_lshl_b32 s50, s50, 10",
          f"v_and_b32 {v(t)}, 7, {v(vL)}", f"v_lshl_add_u32 {v(t)}, {v(t)}, 7, s50", f"v_min_u32 {v(t)}, (L_end-{KN}), {v(t)}", f"global_load_dword a254, {v(t)}, s[48:49]")
    return S
def xaddr_setup(S, wave_xor):
    t = vT
    S(f"v_and_b32 {v(t)}, 31, {v(vL)}", f"v_bfe_u32 {v(t+1)}, {v(vL)}, 1, 3", f"v_lshrrev_b32 {v(t+2)}, 5, {v(vL)}", f"v_xor_b32 {v(t+1)}, {v(t+1)}, {v(t+2)}")
    if wave_xor:
        S(f"s_lshl_b32 s{sT0}, s{sW}, 1", f"v_xor_b32 {v(t+1)}, s{sT0}, {v(t+1)}")
    S(f"v_lshlrev_b32 {v(t)}, 7, {v(t)}", f"v_add_u32 {v(t)}, s{sXM0}, {v(t)}")
    for p in range(4):
        S(f"v_xor_b32 {v(t+2)}, {2*p}, {v(t+1)}", f"v_lshl_add_u32 {v(vXA+p)}, {v(t+2)}, 4, {v(t)}")

def sel_setup(S):
    t = vT
    S(f"v_lshrrev_b32 {v(t)}, 4, {v(vL)}", f"v_xor_b32 {v(t)}, {v(t)}, {v(vL)}", f"v_and_b32 {v(t)}, 1, {v(t)}", f"v_cmp_eq_u32 vcc, 0, {v(t)}",
      f"v_mov_b32 {v(t+1)}, 0x3f803f80")
    for i in range(4): S(f"v_cndmask_b32 {v(vSEL+i)}, 0, {v(t+1)}, vcc")
    S("s_mov_b32 s96, 0x0000ffff", "s_mov_b32 s97, 0x0000ffff")

vPK = vT + 40
def pack_vec(S):
    t = vT
    S(f"v_lshrrev_b32 {v(t)}, 3, {v(vL)}", f"v_mul_u32_u24 {v(t)}, 1280, {v(t)}", f"v_and_b32 {v(t+1)}, 7, {v(vL)}", f"v_lshl_add_u32 {v(vPK)}, {v(t+1)}, 4, {v(t)}")
    S(f"v_lshrrev_b32 {v(t)}, 4, {v(vL)}", f"v_bfe_u32 {v(t+1)}, {v(vL)}, 2, 2", f"v_lshl_add_u32 {v(t)}, {v(t)}, 3, {v(t+1)}", f"v_lshlrev_b32 {v(t)}, 7, {v(t)}",
      f"v_and_b32 {v(t+1)}, 3, {v(vL)}", f"v_lshl_add_u32 {v(t)}, {v(t+1)}, 3, {v(t)}", f"s_lshl_b32 s{sT0}, s{sW}, 12", f"s_add_u32 s{sT0}, s{sT0}, {LG_MISC}", f"v_add_u32 {v(vPK+1)}, s{sT0}, {v(t)}")
PKV = 88
def pack_pre(u, unit_s):
    S = Stream(); A, B, C = 48, 49, 50; R = PKV + 8 * u
    S(f"s_mul_i32 s51, s{unit_s}, 6554", "s_lshr_b32 s51, s51, 16", "s_mul_i32 s43, s51, 10", f"s_sub_u32 s43, s{unit_s}, s43")
    if u == 0: S("s_cmp_lt_u32 s51, 48", "s_cselect_b32 s40, s46, s38", "s_cselect_b32 s41, s47, s39", "s_mov_b32 s42, 819200", "s_cselect_b32 s42, 1966080, s42")
    for j in range(4):
        if j % 2 == 0:
            S(f"s_lshl_b32 s{C}, s51, 1")
            if j: S(f"s_add_u32 s{C}, s{C}, 1")
            S(f"s_bfe_u32 s{A}, s{C}, 0x30002", f"s_mul_i32 s{A}, s{A}, 3", f"s_lshr_b32 s3, s{C}, 5", f"s_add_u32 s{A}, s{A}, s3", f"s_lshl_b32 s{A}, s{A}, 2", f"s_and_b32 s3, s{C}, 3", f"s_add_u32 s{A}, s{A}, s3",
              f"s_lshl_b32 s{A}, s{A}, 4", f"s_sub_u32 s{C}, s{C}, 96", f"s_max_i32 s{C}, s{C}, 0", f"s_mul_i32 s3, s{C}, 52", "s_lshr_b32 s3, s3, 8", "s_mul_i32 s3, s3, 40",
              f"s_lshl_b32 s{C}, s{C}, 3", f"s_add_u32 s{C}, s{C}, s3", "s_cmp_lt_u32 s51, 48", f"s_cselect_b32 s{A}, s{A}, s{C}", f"s_cselect_b32 s{B}, {8*1280}, s{B}",
              f"s_mov_b32 s3, {40*1280}", f"s_cselect_b32 s{B}, s{B}, s3", f"s_mul_i32 s{A}, s{A}, 1280", "s_lshl_b32 s3, s43, 7", f"s_add_u32 s{A}, s{A}, s3")
        else: S(f"s_add_u32 s{A}, s{A}, s{B}")
        S(f"s_sub_u32 s3, s{A}, {1024*j}")
        if u: S(f"s_cmp_lt_u32 s{unit_s}, 680", f"s_cselect_b32 s3, s3, {hex(HUGE)}")
        S(f"v_add_u32 {v(R+j)}, s3, {v(vPK)}")
    for t in range(4):
        S(f"s_lshl_b32 s{A}, s43, 2")
        if t: S(f"s_add_u32 s{A}, s{A}, {t}")
        S(f"s_mul_i32 s{B}, s{A}, 52", f"s_lshr_b32 s{B}, s{B}, 8", f"s_mul_i32 s{B}, s{B}, 335", f"s_add_u32 s{A}, s{A}, s{B}", f"s_mul_i32 s{B}, s51, 5", f"s_add_u32 s{A}, s{A}, s{B}",
          f"s_lshl_b32 s{A}, s{A}, 10", f"s_add_u32 s{A}, s{A}, {WS_WP}")
        if u: S(f"s_cmp_lt_u32 s{unit_s}, 680", f"s_cselect_b32 s{A}, s{A}, {hex(HUGE)}")
        S(f"v_add_u32 {v(R+4+t)}, s{A}, {v(vL16)}")
    return S
def pack_dma(u, unit_s=None):
    S = Stream(); R = PKV + 8 * u
    if u == 0: S("s_mov_b32 s24, s40", "s_mov_b32 s25, s41", "s_mov_b32 s26, s42")
    else: S("s_mov_b32 s24, s38", "s_mov_b32 s25, s39", "s_mov_b32 s26, 819200")
    S(f"s_add_u32 m0, s{sWM0}, {LG_MISC}")
    for j in range(4): S.I(f"buffer_load_dwordx4 {v(R+j)}, {SAUX}, 0 offen offset:{1024*j} lds", tok=f"packdma{u}" if j == 3 else None)
    if u: S("s_mov_b32 s24, s12", "s_mov_b32 s25, s13")
    return S
def pack_finish(u):
    S = Stream(); d = vT + 20; R = PKV + 8 * u
    S.wait(f"packdma{u}")
    for t in range(4):
        for r2 in range(2): S(f"ds_read_b64_tr_b16 {a_(200+4*t+2*r2,2)}, {v(vPK+1)} offset:{r2*512+32*t}")
    for t in range(4): S.I(f"buffer_store_dwordx4 {a_(200+4*t,4)}, {v(R+4+t)}, {SWS}, 0 offen sc1", tok=f"chores{u}" if t == 3 else None)
    return S

def poll1_issue():
    S = Stream()
    S(f"v_and_b32 {v(vT+18)}, 15, {v(vL)}", f"v_lshlrev_b32 {v(vT+18)}, 2, {v(vT+18)}", f"buffer_load_dword {v(vT+16)}, {v(vT+18)}, {SDBG}, 0 offen sc1")
    return S
def poll1_check(tag):
    S = Stream()
    poll_check(S, "i" + tag, vT+16, 1, f"buffer_load_dword {v(vT+16)}, {v(vT+18)}, {SDBG}, 0 offen sc1", 0xFFFF)
    return S
def poll2_issue():
    S = Stream()
    S(f"v_lshrrev_b32 {v(vT+18)}, 2, {v(vL)}", f"v_lshlrev_b32 {v(vT+18)}, 7, {v(vT+18)}", f"v_and_b32 {v(vT+16)}, 3, {v(vL)}", f"v_lshl_add_u32 {v(vT+18)}, {v(vT+16)}, 3, {v(vT+18)}",
      f"s_mov_b32 s{sPKF}, {WS_PFLAG}",
      f"buffer_load_dwordx2 {v(vT+16,2)}, {v(vT+18)}, {SWS}, s{sPKF} offen sc1")
    return S
def poll2_check(tag):
    S = Stream()
    poll_check(S, "k" + tag, vT+16, 2, f"buffer_load_dwordx2 {v(vT+16,2)}, {v(vT+18)}, {SWS}, s{sPKF} offen sc1", (1 << 64) - 1)
    return S

vRS, vSQ = 116, 120
def stat_mfma(which, xr, zero):
    if which == 0: return f"v_mfma_f32_16x16x32_bf16 {v(vRS,4)}, {v(vSEL,4)}, {a_(xr,4)}, {'0' if zero else v(vRS,4)}"
    h = which - 1
    return f"v_mfma_f32_4x4x4_16b_bf16 {v(vSQ+4*h,4)}, {a_(xr+2*h,2)}, {a_(xr+2*h,2)}, {'0' if zero else v(vSQ+4*h,4)}"

def split3(S, d, x, t, side):
    S(f"v_cvt_pk_bf16_f32 {v(t)}, {v(x)}, {v(x)}", f"v_lshlrev_b32 {v(t+2)}, 16, {v(t)}", f"v_sub_f32 {v(t+1)}, {v(x)}, {v(t+2)}")
    if side == "A":
        S(f"v_mov_b32 {v(d)}, {v(t)}", f"v_cvt_pk_bf16_f32 {v(d+1)}, {v(x)}, {v(t+1)}", f"v_and_b32 {v(t+2)}, 0xffff0000, {v(d+1)}",
          f"v_sub_f32 {v(t+2)}, {v(t+1)}, {v(t+2)}", f"v_cvt_pk_bf16_f32 {v(d+2)}, {v(t+1)}, {v(t+2)}", f"v_mov_b32 {v(d+3)}, 0")
    else:
        S(f"v_cvt_pk_bf16_f32 {v(d)}, {v(x)}, {v(t+1)}", f"v_and_b32 {v(t+2)}, 0xffff0000, {v(d)}", f"v_sub_f32 {v(t+2)}, {v(t+1)}, {v(t+2)}",
          f"v_cvt_pk_bf16_f32 {v(d+1)}, {v(t+2)}, {v(x)}", f"v_cvt_pk_bf16_f32 {v(d+2)}, {v(t+1)}, {v(x)}", f"v_mov_b32 {v(d+3)}, 0")

def stats_consume(cmul):
    S = Stream(); t = vT + 12
    S(f"v_cndmask_b32 {v(vST)}, {v(vRS+1)}, {v(vRS)}, s[96:97]")
    for i in range(4): S(f"v_add_f32 {v(vSQ+i)}, {v(vSQ+i)}, {v(vSQ+4+i)}")
    S("s_mov_b32 s98, 0xaaaaaaaa", "s_mov_b32 s99, 0xaaaaaaaa")
    S(f"v_cndmask_b32 {v(vSQ)}, {v(vSQ)}, {v(vSQ+1)}, s[98:99]", f"v_cndmask_b32 {v(vSQ+2)}, {v(vSQ+2)}, {v(vSQ+3)}, s[98:99]")
    S("s_mov_b32 s98, 0xcccccccc", "s_mov_b32 s99, 0xcccccccc")
    S(f"v_cndmask_b32 {v(vSQ)}, {v(vSQ)}, {v(vSQ+2)}, s[98:99]", f"v_mul_f32 {v(vST)}, {hex(0x3acccccd)}, {v(vST)}", f"v_mov_b32 {v(vSQ+1)}, {v(vSQ)}")
    S(f"v_permlane32_swap_b32 {v(vSQ)}, {v(vSQ+1)}", f"v_add_f32 {v(vSQ)}, {v(vSQ)}, {v(vSQ+1)}", f"v_mul_f32 {v(vSQ)}, {hex(0x3acccccd)}, {v(vSQ)}")
    S(f"v_fma_f32 {v(vSQ)}, -{v(vST)}, {v(vST)}, {v(vSQ)}", f"v_max_f32 {v(vSQ)}, 0, {v(vSQ)}", f"v_add_f32 {v(vSQ)}, {hex(0x3727c5ac)}, {v(vSQ)}")
    S(f"v_rsq_f32 {v(vST+1)}, {v(vSQ)}", f"v_sqrt_f32 {v(vSD)}, {v(vSQ)}")
    S("s_mov_b32 s98, -1", "s_mov_b32 s99, 0", f"v_sub_f32 {v(t)}, 0, {v(vST)}", f"v_cndmask_b32 {v(t)}, 0, {v(t)}, s[98:99]")
    split3(S, vMB, t, t+1, "B")
    S(f"v_mul_f32 {v(vC)}, {cmul}, {v(vST+1)}")
    return S

def cond_voff(S, dst, base_v, cond_s, lim, lanes_lo_only, tmp_s=sT0):
    S(f"s_cmp_lt_u32 s{cond_s}, {lim}", f"s_cselect_b32 s98, -1, 0", "s_mov_b32 s99, 0" if lanes_lo_only else "s_mov_b32 s99, s98",
      f"v_mov_b32 {v(dst)}, {hex(HUGE)}", f"v_cndmask_b32 {v(dst)}, {v(dst)}, {v(base_v)}, s[98:99]")
def poll_setup(S, dst, line_a_s, line_b_s, t):
    S(f"v_and_b32 {v(t)}, 15, {v(vL)}", f"v_lshlrev_b32 {v(t)}, 2, {v(t)}", f"v_add_u32 {v(dst)}, s{line_a_s}, {v(t)}", f"v_add_u32 {v(t)}, s{line_b_s}, {v(t)}",
      f"v_cndmask_b32 {v(dst)}, {v(t)}, {v(dst)}, s[96:97]")
def stats_from_sums(cmul, su, sq):
    S = Stream(); t = vT + 12
    def rb(r): S(f"v_cvt_pk_bf16_f32 {v(r)}, {v(r)}, {v(r)}", f"v_lshlrev_b32 {v(r)}, 16, {v(r)}")
    S(f"v_mul_f32 {v(vST)}, {hex(0x3acccccd)}, {v(su)}", f"v_mul_f32 {v(sq)}, {hex(0x3acccccd)}, {v(sq)}")
    S(f"v_fma_f32 {v(sq)}, -{v(vST)}, {v(vST)}, {v(sq)}", f"v_max_f32 {v(sq)}, 0, {v(sq)}")
    rb(sq)
    S(f"v_add_f32 {v(sq)}, {hex(0x3727c5ac)}, {v(sq)}")
    rb(sq)
    S(f"v_sqrt_f32 {v(vSD)}, {v(sq)}")
    S("s_mov_b32 s98, -1", "s_mov_b32 s99, 0", f"v_sub_f32 {v(t)}, 0, {v(vST)}", f"v_cndmask_b32 {v(t)}, 0, {v(t)}, s[98:99]")
    rb(vSD)
    S(f"v_rcp_f32 {v(vST+1)}, {v(vSD)}")
    S(f"v_cvt_pk_bf16_f32 {v(vMB)}, {v(t)}, 0", f"v_cvt_pk_bf16_f32 {v(vMB+1)}, 0, {v(t)}", f"v_mov_b32 {v(vMB+2)}, {v(vMB+1)}", f"v_mov_b32 {v(vMB+3)}, 0")
    S(f"v_mul_f32 {v(vC)}, {cmul}, {v(vST+1)}")
    return S

class Core:
    def __init__(self, stages, R, tokbase):
        self.stages = stages; self.R = R; self.tb = tokbase
    def build(self, pre_issued, hooks_bar=None, hooks_after=None, first_wait=()):
        hooks_bar = hooks_bar or {}; hooks_after = hooks_after or {}
        st = self.stages
        seq = [(i, m) for i, s in enumerate(st) for m in s["mf"]]
        first = {}
        for n, (i, m) in enumerate(seq): first.setdefault(i, n)
        N = len(seq)
        def reads(n):
            (acc, r0, r1, xr, cs, zero, ex) = seq[n][1]
            f = aWF + 4 * (n % NF)
            return [Ins(f"ds_read_b64_tr_b16 {a_(f,2)}, {r0}"), Ins(f"ds_read_b64_tr_b16 {a_(f+2,2)}, {r1}", tok=f"fr{self.tb}{n}")]
        def open_stage(S, i):
            toks = [f"{self.tb}{i}"] + list(hooks_bar.get(i, []))
            if st[i]["xs"] is not None: toks.append(f"x{st[i]['xs']}")
            if 'nowait' not in ABL: S.wait(*toks)
            if 'nobar' not in ABL: S("s_barrier")
        head = Stream()
        open_stage(head, 0)
        if st[0]["xs"] is not None: head += x_reads(st[0]["xs"])
        for n in range(DPF): head += reads(n)
        slots = [Stream() for _ in range(N)]
        tails = [Stream() for _ in range(N)]
        extras = [[] for _ in range(N)]
        def spread(n0, stream, dscost=0.5, pace=1):
            grp = Stream(); cnt = 0; n = n0; last = n0
            for ins in stream:
                grp.append(ins)
                vm = ins.kind in ("vm_dma", "vm_ld", "vm_st")
                if vm or ins.kind == "mfma": cnt += 1
                elif ins.kind in ("ds_rd", "ds_wr"): cnt += dscost
                if cnt >= 1:
                    extras[min(int(n), N-1)].append(grp); grp = Stream(); cnt = 0; last = n; n += (pace if vm else 1)
            if grp: extras[min(int(last), N-1)].append(grp)
            return n
        qptr = [0]
        if 0 in hooks_after: qptr[0] = spread(0, hooks_after[0], pace=st[0].get("pace", 1))
        for n in range(N):
            i, (acc, r0, r1, xr, cs, zero, ex) = seq[n]
            S = slots[n]; f = aWF + 4 * (n % NF)
            if PAIRWAIT and n % 2 == 0 and n + 1 < N: S.wait(f"fr{self.tb}{n+1}")
            S(f"v_mfma_f32_32x32x16_bf16 {v(acc,16)}, {a_(f,4)}, {a_(xr,4)}, {'0' if zero else v(acc,16)}")
            if cs is not None and 'nocs' not in ABL:
                tails[n](f"v_mfma_f32_16x16x32_bf16 {v(cs[0],4)}, {v(vSEL,4)}, {a_(f,4)}, {'0' if cs[1] else v(cs[0],4)}")
            if ex and 'nostat' not in ABL: tails[n](ex)
            m = n + DPF
            if m < N:
                j = seq[m][0]
                if first[j] == m:
                    open_stage(S, j)
                    k = n
                    if st[j]["xs"] is not None: k = spread(k, x_reads(st[j]["xs"]), dscost=1) - 3
                    k = max(k, qptr[0])
                    d = Stream()
                    if st[j]["xs"] is not None and st[j]["xs"] + 3 < 10 and st[j]["xs"] >= 1:
                        d.wait(f"xr{st[j]['xs']-1}"); d += x_dma(st[j]["xs"] + 3)
                    w = j - 2 + self.R
                    if w >= pre_issued and w < len(st): d += st[w]["dma"]
                    if j in hooks_after: d += hooks_after[j]
                    qptr[0] = spread(k, d, pace=st[j].get("pace", 1))
                S += reads(m)
            for g in extras[n]: S += g
        self.tails = tails
        return head, slots, first

ST0 = 7
def w2_slot(k):
    if ST0 <= k < ST0 + 7: k -= 7
    if k < 5: return ("a", 20 * k)
    if k >= 14: return ("a", 20 * (k - 9))
    return ("a", 200 + 20 * (k - 5)) if ROLE[0] == "g" else ("v", 208 + 20 * (k - 5))
def acc2(m4, tt):
    if ROLE[0] == "q": return v(128 + 20 * m4 + 4 * tt, 4)
    return a_(160 + 20 * (m4 - 2) + 4 * tt, 4) if m4 >= 2 else v(128 + 20 * m4 + 4 * tt, 4)
def act_base(i):
    if i & 1: return ("v", 64 if i == 1 else 48)
    return ("v", 192) if ROLE[0] == "g" else ("a", 160)
def glu_sched():
    avail = {s: 0 for s in range(4, 9)}
    extra = {9: PK_AT + PKD[2], 3: 10, 2: 10, 1: 10, 0: 10}
    for s in list(extra)[:NX]: avail[s] = extra[s]
    slot = {}; iss = {}; cnt = {}
    for g in range(30):
        s = min(avail, key=lambda x: (avail[x], x))
        j = max(avail[s], iss.get(g - 1, 0), [0, 0, 0, 0, 1][g] if g < 5 else 0)
        while g >= 4 and cnt.get(j, 0) >= WCAP: j += 1
        assert g < 2 or j <= g - 1
        cnt[j] = cnt.get(j, 0) + (1 if g >= 4 else 0)
        slot[g] = s; iss[g] = j; avail[s] = g + 2
    for s in extra:
        if s not in avail: avail[s] = extra[s]
    order = sorted(avail, key=lambda x: avail[x])
    return slot, iss, [(s, avail[s]) for s in order]
def w2_lds_addr(role, f):
    if role == "g":
        grp = (f + 3) // 4; grp = 9 if grp == 0 else grp - 1
        if f == 0: return (4096, glu_sched()[2][0][0] * 16384 + 3 * 1024) if False else (4096, glu_sched()[2][W2G0][0] * 16384 + 3 * 1024)
        return (4096, glu_sched()[2][W2ORD[(f + 3) // 4]][0] * 16384 + ((f + 3) % 4) * 1024)
    return (10240, 3072 + f * 1024) if f < 10 else (25600, 45056 + (f - 10) * 1024)
def w2_off(k, t):
    part = min(k // 4, 3); return sW2P + part, ((k - 4 * part) * 5 + t) * 1024
def w2_stage(role, f0, f1):
    S = Stream(); run = None
    for f in range(f0, f1):
        ws_, base = w2_lds_addr(role, f); sp, off = w2_off(ST0 + f // 5, f % 5)
        imm = off & 4095
        if run != (ws_, base - imm, sp, off >> 12) :
            run = (ws_, base - imm, sp, off >> 12)
            assert base >= imm
            S(f"s_add_u32 m0, s{sWS[ws_]}, {base - imm}")
        S.I(f"buffer_load_dwordx4 {v(VW[off >> 12])}, {SWS}, s{sp} offen offset:{imm} sc1 lds", tok=f"w2s{f}")
    return S
vLA = 43
def w2_lds_regs(role):
    keys = []
    for f in range(35):
        ws_, base = w2_lds_addr(role, f); k = (ws_, base >> 16)
        if k not in keys: keys.append(k)
    return keys
def w2_lds_setup(role):
    S = Stream()
    for n, (ws_, hi) in enumerate(w2_lds_regs(role)):
        S(f"s_add_u32 s47, s{sWS[ws_]}, {hi << 16}", f"v_add_u32 {v(vLA+n)}, s47, {v(vL16)}")
    return S
def w2_copy(role, k):
    S = Stream(); b = w2_slot(k)
    for t in range(5):
        f = (k - ST0) * 5 + t; ws_, base = w2_lds_addr(role, f)
        r = vLA + w2_lds_regs(role).index((ws_, base >> 16))
        S.I(f"ds_read_b128 {rg(b,4*t,4)}, {v(r)} offset:{base & 0xFFFF}", waits=[f"w2s{f}"])
    return S
def rg(b, off, n): return (a_ if b[0] == "a" else v)(b[1] + off, n)

P2_STEPS = [("h", 0, i) for i in range(4)] + [("h", 1, i) for i in range(4)] + [("h", 2, i) for i in range(4)] + [("o", 0, i) for i in range(5)]
PARTS = [(0, 4, 0, 192), (4, 4, 1, 64), (8, 4, 2, 192), (12, 5, 3, 48)]
sW2P, sACP = 66, 36
sWS = {16384: sXM0, 4096: sWM0, 1024: 92, 10240: 92, 25600: 93}
VW = [2, 16, 17, 18, 19, 13, 14]
def p2_setup():
    S = Stream()
    S(f"s_add_u32 s{sT2}, s{sW}, s{sNT}", f"s_and_b32 s{sR2}, s{sT2}, 3")
    S(f"s_mul_i32 s{sT2}, s{sNT}, {68*5120}", f"s_add_u32 s{sT2}, s{sT2}, {WS_WP}", f"s_mul_i32 s{sW2P}, s{sR2}, {4*5120}", f"s_add_u32 s{sW2P}, s{sW2P}, s{sT2}",
      f"s_add_u32 s{sW2P+1}, s{sW2P}, {16*5120}", f"s_add_u32 s{sW2P+2}, s{sW2P}, {32*5120}", f"s_mul_i32 s{sW2P+3}, s{sR2}, {5*5120}", f"s_add_u32 s{sW2P+3}, s{sW2P+3}, s{sT2}",
      f"s_add_u32 s{sW2P+3}, s{sW2P+3}, {48*5120}")
    if ROLE[0] == "g": S(f"s_lshl_b32 s92, s{sW}, 10")
    else: S(f"s_mul_i32 s92, s{sW}, 10240", f"s_mul_i32 s93, s{sW}, 25600")
    return S
def vw_setup():
    S = Stream()
    for j in range(1, 7): S(f"v_add_u32 {v(VW[j])}, {4096*j}, {v(vL16)}")
    return S
sR2 = 65
def w2_load(k):
    S = Stream(); b = w2_slot(k)
    for t in range(5):
        sp, off = w2_off(k, t)
        S(f"buffer_load_dwordx4 {rg(b,4*t,4)}, {v(VW[off >> 12])}, {SWS}, s{sp} offen offset:{off & 4095} sc1")
    return S
vPF, vPV, vOO, vXR, vRA = 6, 7, 9, 24, 36
VA = [29, 30, 31, 32]
sPF, sOB = 57, 76
def XRA(): return 240 if ROLE[0] == 'g' else 244
def p2_pre():
    S = Stream(); t = vT + 8
    S(f"v_lshrrev_b32 {v(t)}, 4, {v(vL)}", f"v_and_b32 {v(t+1)}, 15, {v(vL)}", f"v_lshlrev_b32 {v(t+3)}, 9, {v(t)}", f"v_lshl_add_u32 {v(t+3)}, {v(t+1)}, 4, {v(t+3)}")
    for j in range(4):
        S(f"s_add_u32 s{sT2}, s{sW}, {j}", f"s_and_b32 s3, s{sT2}, 1", "s_lshl_b32 s3, s3, 8", f"s_bfe_u32 s{sT2}, s{sT2}, 0x10001", f"s_mul_i32 s{sT2}, s{sT2}, {136*1024}", f"s_add_u32 s{sT2}, s{sT2}, s3",
          f"v_add_u32 {v(VA[j])}, s{sT2}, {v(t+3)}")
    S(f"v_and_b32 {v(vPF)}, 7, {v(vL)}", f"v_lshlrev_b32 {v(vPF)}, 2, {v(vPF)}", f"s_lshr_b32 s{sPF}, s{sRT}, 1", f"s_lshl_b32 s{sPF}, s{sPF}, 9")
    S(f"v_mul_u32_u24 {v(vOO)}, 1280, {v(t+1)}", f"v_lshl_add_u32 {v(vOO)}, {v(t)}, 3, {v(vOO)}",
      f"s_lshl_b32 s{sOB}, s{sRT}, 2", f"s_add_u32 s{sOB}, s{sOB}, s{sW}", f"s_mul_i32 s{sOB}, s{sOB}, {16*1280}", f"s_mul_i32 s{sT2}, s{sNT}, 160", f"s_add_u32 s{sOB}, s{sOB}, s{sT2}")
    S(f"s_mul_i32 s{sT2}, s{sRT}, {2*136*1024}", f"s_add_u32 s{sT2}, s{sT2}, {WS_AP}", f"s_lshl_b32 s44, s{sR2}, 13", f"s_add_u32 s44, s44, s{sT2}",
      f"s_mul_i32 s45, s{sR2}, {5*2048}", f"s_add_u32 s45, s45, s{sT2}", f"s_add_u32 s45, s45, {48*2048}")
    return S
def xre_load():
    S = Stream()
    for tt in range(5): S(f"buffer_load_dwordx2 {a_(XRA()+2*tt,2)}, {v(vOO)}, {SX}, s{sOB} offen offset:{32*tt}")
    return S
def wp_touch(r):
    S = Stream()
    S(f"s_and_b32 s48, s{sRT}, 3", "s_lshl_b32 s48, s48, 2", f"s_add_u32 s48, s48, s{sW}", f"s_mul_i32 s48, s48, {170*128}", f"s_mul_i32 s49, s{sNT}, {68*5120}", "s_add_u32 s48, s48, s49", f"s_add_u32 s48, s48, {WS_WP}",
      f"v_lshlrev_b32 {v(r)}, 7, {v(vL)}", f"buffer_load_dword a250, {v(r)}, {SWS}, s48 offen sc1", "s_add_u32 s48, s48, 8192", f"buffer_load_dword a251, {v(r)}, {SWS}, s48 offen sc1",
      f"s_add_u32 s48, s48, {42*128}", f"buffer_load_dword a253, {v(r)}, {SWS}, s48 offen sc1")
    return S
def p2_poll_txt(i): return f"buffer_load_dword {v(vPV+(i&1))}, {v(vPF)}, {SWS}, s{sPF} offen offset:{PARTS[i][2]*128} sc1"
def p2_poll(i): return Stream([Ins(p2_poll_txt(i), tok=f"pp{i}")])
def p2_L(i, srd):
    S = Stream(); k0, n, _, _ = PARTS[i]; r0 = act_base(i)
    if i < 3: S(f"s_add_u32 s46, s44, {i*16*2048}")
    else: S("s_mov_b32 s46, s45")
    if i == 3 and LASTM:
        S("s_add_u32 s47, s45, 4096", "s_add_u32 s48, s45, 8192")
        for m4 in (1, 2, 3, 0):
            for s in range(n): S(f"buffer_load_dwordx4 {rg(r0,16*s+4*m4,4)}, {v(VA[m4])}, {srd}, s{46+(s>>1)} offen offset:{(s&1)*2048} sc1")
        return S
    for s in range(n):
        for m4 in range(4):
            S(f"buffer_load_dwordx4 {rg(r0,16*s+4*m4,4)}, {v(VA[m4])}, {srd}, s46 offen offset:{(s&1)*2048} sc1")
        if s & 1 and s + 1 < n: S(f"s_add_u32 s46, s46, 4096")
    return S
def p2_try(i):
    S = Stream()
    S(*cmp_mask(vPV + (i & 1), 1, 0xFF)); S(f"s_cselect_b32 s26, 0, {WS_SIZE}")
    return S
def phase2(tag, rest, store_tok, flag, l1_done):
    S = Stream(); t = vRA
    vXR = 168 if tag == "g" else 24
    XU = 148 if LASTM else 208
    stamp(S)
    stamp(S, 3)
    S += w2_lds_setup(tag)
    for i in range(4):
        k0, n, _, _ = PARTS[i]; r0 = act_base(i)
        bg = Stream()
        if i < 3 and not (i == 0 and l1_done):
            S += p2_try(i + 1)
            bg += p2_L(i + 1, SAUX)
        if i < len(rest): bg += rest[i]
        if i == 2 and not XRE:
            for tt in range(5): bg(f"buffer_load_dwordx2 {v(vXR+2*tt,2)}, {v(vOO)}, {SX}, s{sOB} offen offset:{32*tt}")
        M = Stream()
        if i == 3 and LASTM:
            S.drain(vm=False); S("s_barrier")
            QD = [48 + 16 * s + 4 * m4 for m4 in (1, 2, 3) for s in range(5)]
            side = Stream()
            for j in range(1, 4):
                side(f"s_add_u32 s{sT0}, s{sW}, {j}", f"s_and_b32 s{sT0}, s{sT0}, 3", f"s_mul_i32 s{sT0}, s{sT0}, 15360", f"s_add_u32 s{sT0}, s{sT0}, {(j-1)*5120}", f"v_add_u32 {v(t+j)}, s{sT0}, {v(vL16)}")
            side(f"s_mul_i32 s{sT0}, s{sW}, 15360", f"v_add_u32 {v(t)}, s{sT0}, {v(vL16)}")
            for q_ in range(10): side(f"v_accvgpr_read_b32 {v(vXR+q_)}, {a_(XRA()+q_)}")
            side2 = Stream()
            for q_ in range(10): side2(f"v_lshlrev_b32 {v(XU+2*q_)}, 16, {v(vXR+q_)}", f"v_and_b32 {v(XU+2*q_+1)}, 0xffff0000, {v(vXR+q_)}")
            sl_ = []
            for pos, m4 in enumerate((1, 2, 3, 0)):
                for s in range(n):
                    b = w2_slot(k0 + s)
                    for tt in range(5):
                        X = Stream(); acc = acc2(m4, tt); e = 5 * s + tt
                        if tt == 0: X(f"s_waitcnt vmcnt({19 - 5*pos - s})")
                        X(f"v_mfma_f32_16x16x32_bf16 {acc}, {rg(b,4*tt,4)}, {rg(r0,16*s+4*m4,4)}, {acc}")
                        pm = (m4 - 1) & 3
                        if pos in (1, 2) and e % 5 == 3: X(f"ds_write_b128 {v(t+pm)}, {acc2(pm,e//5)} offset:{(e//5)*1024}")
                        if pos == 3:
                            if e in (2, 4, 6, 8, 10): X(f"ds_write_b128 {v(t+pm)}, {acc2(pm,e//2-1)} offset:{(e//2-1)*1024}")
                            if e == RBAR: X.drain(vm=False); X("s_barrier")
                            if e >= RBAR:
                                per = -(-15 // (25 - RBAR))
                                for q_ in range((e - RBAR) * per, min(15, (e - RBAR + 1) * per)): X(f"ds_read_b128 {v(QD[q_],4)}, {v(t)} offset:{q_*1024}")
                        sl_.append(X)
            left = interleave(sl_, side, 0.7); assert not left
            left = interleave(sl_, side2, 0.9, start=52); assert not left
            for X in sl_: S += X
            stamp(S); stamp(S, 3)
            for s in range(3):
                for q_ in range(10): S(f"v_pk_add_f32 {v(XU+2*q_,2)}, {v(XU+2*q_,2)}, {v(QD[5*s+q_//2]+2*(q_&1),2)}")
            for q_ in range(10): S(f"v_pk_add_f32 {v(XU+2*q_,2)}, {v(XU+2*q_,2)}, {v(128+2*q_,2)}")
            break
        for s in range(n):
            k = k0 + s; b = w2_slot(k)
            if i > 0: M(f"s_nop {s} ; WAITX")
            if i == 0 and s == FLAG_AFTER:
                M.wait(store_tok); M("s_barrier"); M += flag
            if s == POLL_STEP and i + 2 < 4: M += p2_poll(i + 2)
            if k == 12:
                M.drain(vm=False); M("s_barrier")
                for j in range(1, 4):
                    M(f"s_add_u32 s{sT0}, s{sW}, {j}", f"s_and_b32 s{sT0}, s{sT0}, 3", f"s_mul_i32 s{sT0}, s{sT0}, 15360", f"s_add_u32 s{sT0}, s{sT0}, {(j-1)*5120}", f"v_add_u32 {v(t+j)}, s{sT0}, {v(vL16)}")
                M(f"s_mul_i32 s{sT0}, s{sW}, 15360", f"v_add_u32 {v(t)}, s{sT0}, {v(vL16)}")
            for m4 in ([0, 1, 2, 3] if k < 16 else [1, 2, 3, 0]):
                for tt in range(5):
                    acc = acc2(m4, tt)
                    M(f"v_mfma_f32_16x16x32_bf16 {acc}, {rg(b,4*tt,4)}, {rg(r0,16*s+4*m4,4)}, {'0' if k == 0 else acc}")
                    if 5 <= k < 12 and m4 == 1: M.append(w2_copy(tag, k + 2)[tt])
                    if k == 12 and m4 < 2 and XRE: M(f"v_accvgpr_read_b32 {v(vXR+5*m4+tt)}, {a_(XRA()+5*m4+tt)}")
                    if k == 13 and m4 < 2: M(f"v_lshlrev_b32 {v(XU+10*m4+2*tt)}, 16, {v(vXR+5*m4+tt)}")
                    if k == 14 and m4 < 2: M(f"v_and_b32 {v(XU+10*m4+2*tt+1)}, 0xffff0000, {v(vXR+5*m4+tt)}")
                    if k == 16 and m4 != 1:
                        pm = (m4 - 1) & 3
                        M(f"ds_write_b128 {v(t+pm)}, {acc2(pm,tt)} offset:{tt*1024}")
            if s == 0 or s == n - 1: stamp(M, 3)
        M = sprinkle(M, bg, P2_PERIOD)
        cnt = 0
        for x in M:
            if x.kind in ("vm_ld", "vm_st", "vm_dma"): cnt += 1
            if "WAITX" in x.text:
                s = int(x.text.split()[1]); S(f"s_waitcnt vmcnt({min(63, 4*(n-1-s)+cnt)})")
            else: S.append(x)
        if i < 3:
            nm = f"p{i+1}{tag}"
            if i + 2 < 4: S.wait(f"pp{i+2}")
            S("s_cmp_eq_u32 s26, 0", f"s_cbranch_scc1 L_slow_{nm}", f"L_back_{nm}:")
            ld = p2_poll_txt(i + 1) + (("\n    " + p2_poll_txt(i + 2)) if i + 2 < 4 else "")
            L = [f"L_slow_{nm}:"] + spin_lines(nm, vPV + ((i + 1) & 1), 1, ld, 0xFF, sleep=3)
            L += ["    " + x.text for x in p2_L(i + 1, SWS)]
            L.append(f"    s_branch L_back_{nm}")
            slow_paths.append(L)
        stamp(S)
        stamp(S, 3)
    if not LASTM:
      S.drain(vm=False); S("s_barrier")
      R0 = 48
      for s in range(3):
        for tt in range(5): S(f"ds_read_b128 {v(R0+20*s+4*tt,4)}, {v(t)} offset:{s*5120+tt*1024}")
      for i in range(10): S(f"v_pk_add_f32 {v(XU+2*i,2)}, {v(XU+2*i,2)}, {v(128+2*i,2)}")
      for s in range(3):
        for i in range(10): S(f"v_pk_add_f32 {v(XU+2*i,2)}, {v(XU+2*i,2)}, {v(R0+20*s+2*i,2)}")
    for tt in range(5):
        S(f"v_cvt_pk_bf16_f32 {v(vXR+2*tt)}, {v(XU+4*tt)}, {v(XU+4*tt+1)}", f"v_cvt_pk_bf16_f32 {v(vXR+2*tt+1)}, {v(XU+4*tt+2)}, {v(XU+4*tt+3)}")
        S(f"buffer_store_dwordx2 {v(vXR+2*tt,2)}, {v(vOO)}, {SOUT}, s{sOB} offen offset:{32*tt} {OUTFLAGS}")
    stamp(S)
    if STAMPS:
        S(f"s_lshl_b32 s{sT0}, s2, 8", f"s_add_u32 s{sT0}, s{sT0}, {WS_STAMP}", f"s_cmp_eq_u32 s{sW}, 0", f"s_cselect_b32 s{sT1}, 0, {hex(HUGE)}",
          f"v_lshlrev_b32 {v(48)}, 2, {v(vL)}", f"v_or_b32 {v(48)}, s{sT1}, {v(48)}", f"buffer_store_dword v0, {v(48)}, {SWS}, s{sT0} offen")
    S("s_endpgm")
    return S
FLAG_AFTER = 0
LASTM = 1
RBAR = 15
P2_PERIOD = 64
H1FLAG_AT = 27
XU = 208
OUTFLAGS = ''
POLL_STEP = 3
POLL2_AT = 18
PK_AT = 3
ROT2MASK = 3
EPI_RATE = 2.75
EPI_RATE2 = 3.3
W2CAP17 = 0
EPI_LAG = 1
PAIRWAIT = 1

def flag_store(off_s, imm):
    S = Stream()
    S(f"buffer_store_dword a255, {v(vFL)}, {SWS}, s{off_s} offen offset:{imm} sc1")
    return S

def glu_path():
    S = Stream(); t = vT
    ACC = [128, 192, 128]
    S += common_a("g")
    S(f"v_lshrrev_b32 {v(t)}, 3, {v(vL)}", f"v_mul_u32_u24 {v(t)}, 3072, {v(t)}", f"v_bfe_u32 {v(t+1)}, {v(vL)}, 4, 1", f"s_and_b32 s{sT0}, s{sW}, 2", f"v_or_b32 {v(t+1)}, s{sT0}, {v(t+1)}",
      f"v_lshlrev_b32 {v(t+1)}, 1, {v(t+1)}", f"v_and_b32 {v(t+2)}, 7, {v(vL)}", f"v_xor_b32 {v(t+1)}, {v(t+1)}, {v(t+2)}", f"v_lshl_add_u32 {v(vWO)}, {v(t+1)}, 4, {v(t)}")
    S(f"s_and_b32 s{sWB}, s{sW}, 1", f"s_mul_i32 s{sWB}, s{sWB}, {32*3072}", f"s_mul_i32 s{sT0}, s{sSL}, 384", f"s_add_u32 s{sWB}, s{sWB}, s{sT0}",
      f"s_lshl_b32 s{sWM0}, s{sW}, 12")
    WO = [5, 10, 11, 12]
    for j in range(1, 4): S(f"v_add_u32 {v(WO[j])}, {j*(8*3072-1024)}, {v(vWO)}")
    ktable(S, 64 * 3072, sWB)
    def w_dma(g):
        c, i = divmod(g, 10); D = Stream()
        if c and i == 0: D("s_add_u32 s8, s8, 128", "s_addc_u32 s9, s9, 0", "s_sub_u32 s10, s10, 128")
        D(f"s_add_u32 m0, s{sWM0}, {glu_sched()[0][g] * 16384}")
        for j in range(4):
            D.I(f"buffer_load_dwordx4 {v(WO[j])}, {SW}, s{sKT+i} offen offset:{j*1024} lds", tok=f"w{g}" if j == 3 else None)
        return D
    ktable_rest(S, 64 * 3072, sWB)
    S("s_mov_b32 s10, 1966080")
    S += common_b("g")
    S(f"s_cmp_lt_u32 s{sW}, 2", "s_cselect_b32 s8, s42, s44", "s_cselect_b32 s9, s43, s45")
    S += w_dma(0)
    S += common_c()
    S(f"s_lshl_b32 s32, s{sMT}, 3", f"s_add_u32 s32, s32, s{sSL}", "s_lshl_b32 s32, s32, 2", f"s_add_u32 s32, s32, s{sW}", "s_add_u32 s33, s32, 512",
      f"s_lshl_b32 s34, s{sMT}, 7", f"s_lshl_b32 s35, s{sSL}, 2", "s_add_u32 s34, s34, s35", f"s_add_u32 s34, s34, {WS_PFLAG}")
    S += x_dma(1); S += w_dma(1)
    S += code_pf('g')
    pack_vec(S); S += pack_pre(0, 32); S += pack_pre(1, 33)
    xaddr_setup(S, False); sel_setup(S)
    S(f"v_bfe_u32 {v(t)}, {v(vL)}, 4, 1", f"v_lshrrev_b32 {v(t+1)}, 5, {v(vL)}", f"v_bfe_u32 {v(t+2)}, {v(vL)}, 2, 2",
      f"v_lshl_add_u32 {v(t+1)}, {v(t+1)}, 3, {v(t+2)}", f"v_lshlrev_b32 {v(t+1)}, 7, {v(t+1)}", f"v_lshl_add_u32 {v(t+1)}, {v(t)}, 13, {v(t+1)}",
      f"v_and_b32 {v(t+3)}, 1, {v(vL)}", f"v_bfe_u32 {v(t+4)}, {v(vL)}, 1, 1", f"v_lshl_add_u32 {v(t+3)}, {v(t+3)}, 1, {v(t+4)}", f"v_lshl_add_u32 {v(t+1)}, {v(t+3)}, 3, {v(t+1)}",
      f"v_add_u32 {v(t+1)}, {LG_WR}, {v(t+1)}",
      f"v_lshrrev_b32 {v(t+2)}, 1, {v(t+2)}", f"v_lshl_add_u32 {v(t+2)}, {v(t)}, 1, {v(t+2)}", f"v_xor_b32 {v(t+2)}, s{sW}, {v(t+2)}")
    for p in range(4):
        S(f"v_xor_b32 {v(t+3)}, {p}, {v(t+2)}", f"v_lshl_add_u32 {v(vWA+p)}, {v(t+3)}, 5, {v(t+1)}", f"v_add_u32 {v(vWB_+p)}, 0x10000, {v(vWA+p)}", f"v_subrev_u32 {v(104+p)}, 0x10000, {v(vWA+p)}")
    S(f"s_lshl_b32 s{sT0}, s{sSL}, 12", f"s_add_u32 s{sAPB}, s{sAPB}, s{sT0}")
    for p in range(4):
        S(f"s_xor_b32 s{sST+p}, s{sW}, {p}", f"s_lshl_b32 s{sST+p}, s{sST+p}, 10", f"s_add_u32 s{sST+p}, s{sST+p}, s{sAPB}")
    S(f"s_lshl_b32 s{sPKS+2}, s{sMT}, 9", f"s_lshl_b32 s{sT0}, s{sSL}, 2", f"s_add_u32 s{sPKS+2}, s{sPKS+2}, s{sT0}")
    sFLG = sPKS + 2
    S += p2_setup(); S += p2_pre()
    stages = []
    for g in range(30):
        c, i = divmod(g, 10); mf = []
        order = [(s, p) for s in range(4) for p in range(4)] if g < 29 else [(s, p) for p in range(4) for s in range(4)]
        for (s, p) in order:
            if True:
                sl_ = glu_sched()[0][g]
                off = (sl_ % 4) * 16384 + s * 2048
                ar = [104, vWA, vWB_][sl_ // 4] + p
                mf.append((ACC[c] + 16 * p, f"{v(ar)} offset:{off}", f"{v(ar)} offset:{off+512}", 16 * i + 4 * s,
                           (vCS, s == 0) if (p == 0 and i == 0) else None, i == 0 and s == 0,
                           stat_mfma(p - 1, 16 * i + 4 * s, i == 0 and s == 0) if (c == 0 and p > 0 and i < 2) else None))
        stages.append(dict(mf=mf, dma=Stream(), xs=i if c == 0 else None))
    vPA, vFLc, vPL0, vN4, vPS, vPQ, vFLs = 28, 33, 34, 35, 13, 14, 7
    PB = Stream()
    PB(f"v_and_b32 {v(vN4)}, 31, {v(vL)}", f"v_lshlrev_b32 {v(vN4)}, 2, {v(vN4)}", f"v_add_u32 {v(t)}, 8192, {v(vN4)}")
    cond_voff(PB, vPA, vN4, sMT, 10, True); cond_voff(PB, vPS, vN4, sSL, 5, True); cond_voff(PB, vPQ, t, sSL, 5, False)
    cond_voff(PB, vFLc, vFL, sMT, 10, False); cond_voff(PB, vFLs, vFL, sSL, 5, False)
    PB(f"s_mul_i32 s43, s{sSL}, 384", f"s_add_u32 s43, s43, {WS_SF}", f"s_lshl_b32 s78, s{sMT}, 7", f"s_add_u32 s78, s78, {WS_SF + 24*128}")
    poll_setup(PB, vPL0, 43, 78, t)
    PB(f"s_lshl_b32 s{sT0}, s{sMT}, 2", f"s_add_u32 s43, s43, s{sT0}", f"s_lshl_b32 s{sT1}, s{sSL}, 2", f"s_add_u32 s78, s78, s{sT1}",
       f"s_add_u32 s37, s{sT0}, s{sW}", "s_lshl_b32 s37, s37, 7", f"s_add_u32 s37, s37, {WS_RS}", f"s_mul_i32 s{sT0}, s{sSL}, 1536", f"s_add_u32 s{sT0}, s{sT0}, {WS_CSG}")
    for p in range(4): PB(f"s_xor_b32 s{48+p}, s{sW}, {p}", f"s_lshl_b32 s{48+p}, s{48+p}, 7", f"s_add_u32 s{48+p}, s{48+p}, s{sT0}")
    def cs_publish(c):
        E = Stream()
        E(f"v_cndmask_b32 {v(vCS)}, {v(vCS+1)}, {v(vCS)}, s[96:97]")
        E.I(f"buffer_atomic_add_f32 {v(vCS)}, {v(vPA)}, {SWS}, s48 offen offset:{512*c}", tok=f"csa{c}")
        if c == 0:
            E(f"v_cndmask_b32 {v(vRS)}, {v(vRS+1)}, {v(vRS)}, s[96:97]", f"buffer_atomic_add_f32 {v(vRS)}, {v(vPS)}, {SWS}, s37 offen")
            for i in range(4): E(f"v_add_f32 {v(vSQ+i)}, {v(vSQ+i)}, {v(vSQ+4+i)}")
            E("s_mov_b32 s98, 0xaaaaaaaa", "s_mov_b32 s99, 0xaaaaaaaa", f"v_cndmask_b32 {v(vSQ)}, {v(vSQ)}, {v(vSQ+1)}, s[98:99]", f"v_cndmask_b32 {v(vSQ+2)}, {v(vSQ+2)}, {v(vSQ+3)}, s[98:99]")
            E("s_mov_b32 s98, 0xcccccccc", "s_mov_b32 s99, 0xcccccccc", f"v_cndmask_b32 {v(vSQ)}, {v(vSQ)}, {v(vSQ+2)}, s[98:99]")
            E.I(f"buffer_atomic_add_f32 {v(vSQ)}, {v(vPQ)}, {SWS}, s37 offen", tok="csa0")
        return E
    def cs_flag(c):
        E = Stream(); E(f"buffer_store_dword a255, {v(vFLc)}, {SWS}, s43 offen offset:{128*c} sc1")
        if c == 0: E(f"buffer_store_dword a255, {v(vFLs)}, {SWS}, s78 offen sc1")
        return E
    def cs_ptxt(c): return f"buffer_load_dword {v(vT+7)}, {v(vPL0)}, {SWS}, 0 offen offset:{128*c} sc1"
    def cs_fetch(c):
        E = Stream()
        poll_check(E, f"cs{c}g", vT + 7, 1, cs_ptxt(c), 0x3FF | ((0x1F << 16) if c == 0 else 0))
        for p in range(4): E(f"buffer_load_dword {v(vT+p)}, {v(vN4)}, {SWS}, s{48+p} offen offset:{512*c} sc1")
        if c == 0: E(f"buffer_load_dword {v(vRS)}, {v(vN4)}, {SWS}, s37 offen sc1", f"s_add_u32 s37, s37, 8192", f"buffer_load_dword {v(vRS+1)}, {v(vN4)}, {SWS}, s37 offen sc1")
        return E
    def build(c):
        E = Stream()
        for p in range(4): split3(E, vCS + 4 + 4 * p, vT + p, vT + 4, "A")
        return E
    def corr(c):
        E = Stream()
        for p in range(4): E(f"v_mfma_f32_32x32x16_bf16 {v(ACC[c]+16*p,16)}, {v(vCS+4+4*p,4)}, {v(vMB,4)}, {v(ACC[c]+16*p,16)}")
        return E
    def epi(c, packed):
        E = epi_(c, packed)
        if 'noepi' in ABL and not packed: E = Stream([x for x in E if x.kind in ("vm_st", "salu")])
        return E
    def epi_(c, packed):
        E = Stream()
        def store(p):
            A = ACC[c] + 16 * p
            E(f"s_add_u32 s36, s{sST+p}, {c*32*1024}")
            E.I(f"buffer_store_dwordx4 {v(A,4)}, {v(vL16)}, {SWS}, s36 offen sc1", tok=f"h{c}" if p == 3 else None)
        if packed:
            for p in range(4):
                A = ACC[c] + 16 * p
                for i in range(0, 8, 2): E(f"v_pk_mul_f32 {v(A+i,2)}, {v(A+i,2)}, {v(vC,2)} op_sel_hi:[1,0]")
                for i in range(8): E(f"v_exp_f32 {v(A+i)}, {v(A+i)}")
                for i in range(0, 8, 2): E(f"v_pk_fma_f32 {v(A+i,2)}, {v(A+i,2)}, {v(vC,2)}, {v(vC,2)} op_sel:[0,1,1] op_sel_hi:[1,1,1]")
                for i in range(8): E(f"v_rcp_f32 {v(A+i)}, {v(A+i)}")
                for i in range(0, 8, 2): E(f"v_pk_mul_f32 {v(A+8+i,2)}, {v(A+8+i,2)}, {v(A+i,2)}")
                for i in range(4): E(f"v_cvt_pk_bf16_f32 {v(A+i)}, {v(A+8+2*i)}, {v(A+9+2*i)}")
                store(p)
            return E
        LAG = EPI_LAG
        ev = []
        for e in range(32):
            p, i = divmod(e, 8); A = ACC[c] + 16 * p
            ops = [f"v_mul_f32 {v(A+i)}, {v(A+i)}, {v(vC)}", f"v_exp_f32 {v(A+i)}, {v(A+i)}", f"v_fma_f32 {v(A+i)}, {v(A+i)}, {v(vSD)}, {v(vSD)}",
                   f"v_rcp_f32 {v(A+i)}, {v(A+i)}", f"v_mul_f32 {v(A+8+i)}, {v(A+8+i)}, {v(A+i)}"]
            for s, o in enumerate(ops): ev.append((e + LAG * s, s, o, None))
            if i & 1: ev.append((p * 8 + 7 + LAG * 5, 5 + i, f"v_cvt_pk_bf16_f32 {v(A+i//2)}, {v(A+8+i-1)}, {v(A+8+i)}", None))
            if i == 7: ev.append((p * 8 + 7 + LAG * 6, 20, None, p))
        for (_, _, o, p) in sorted(ev, key=lambda x: (x[0], x[1])):
            if o: E(o)
            else: store(p)
        return E
    hb = {PK_AT + PKD[2]: ["chores1"]}
    def addb(j, tk): hb[j] = hb.get(j, []) + [tk]
    addb(H0AT, "h0")
    ha = {0: Stream(x_dma(2) + w_dma(2) + x_dma(3) + w_dma(3))}
    for j_, st_ in ((PK_AT, pack_dma(0, 32)), (PK_AT + PKD[0], Stream(pack_finish(0) + pack_dma(1, 33))), (PK_AT + PKD[1], pack_finish(1)), (PK_AT + PKD[2], flag_store(34, 0)),
                    (POLL2_AT - 2, Stream(vw_setup() + poll2_issue())), (POLL2_AT, poll2_check("g"))):
        ha[j_] = Stream(ha.get(j_, Stream()) + st_)
    core = Core(stages, 5, "w")
    for i in range(10, 30): stages[i]["pace"] = PACE
    def add(j, st_): ha[j] = Stream(ha.get(j, Stream()) + st_)
    S(f"v_min_u32 {v(110)}, 39, {v(vL)}", f"v_mul_u32_u24 {v(110)}, 3072, {v(110)}", f"s_and_b32 s48, s{sMT}, 7", "s_lshl_b32 s48, s48, 1", f"s_and_b32 s49, s{sW}, 1", "s_add_u32 s48, s48, s49",
      f"s_mul_i32 s48, s48, {40*3072}", f"s_mul_i32 s49, s{sSL}, 384", "s_add_u32 s48, s48, s49", f"v_add_u32 {v(110)}, s48, {v(110)}")
    S += PB
    add(P1AT - 2, poll1_issue()); add(P1AT, poll1_check("g"))
    for c in range(3):
        pub, fl, ck = PBS[c]
        add(pub, cs_publish(c)); addb(fl, f"csa{c}"); add(fl, cs_flag(c)); add(ck - 2, Stream([Ins(cs_ptxt(c))])); add(ck, cs_fetch(c))
    add(XRAT, xre_load())
    if WPT: add(POLL2_AT, wp_touch(111))
    if T2AT: add(T2AT, Stream([Ins(f"buffer_load_dword a253, {v(110)}, {SW}, 0 offen offset:128")]))
    if T3AT: add(T3AT, Stream([Ins(f"buffer_load_dword a252, {v(110)}, {SW}, 0 offen offset:{128 if T3AT >= 7 else 256}")]))
    add(H0AT, flag_store(sFLG, 0))
    slot_, iss_, fin_ = glu_sched()
    nW = {}
    for g_ in range(29, 3, -1):
        ha[iss_[g_]] = Stream(w_dma(g_) + ha.get(iss_[g_], Stream())); nW[iss_[g_]] = nW.get(iss_[g_], 0) + 4
    items = []; late = Stream()
    for k in (5, 6): items.append((POLL2_AT, w2_load(k), 5))
    for k in range(5): items.append((20 + (20 * k + 19) // 16 + 2, w2_load(k), 5))
    for grp in range(10):
        f0, f1 = max(0, 4 * grp - 3), min(35, 4 * grp + 1)
        items.append((max(POLL2_AT, fin_[grp][1]) + 0.25, w2_stage("g", f0, f1), f1 - f0))
    add(H1FLAG_AT - 2, p2_poll(0))
    chk = Stream(); poll_check(chk, "p0g", vPV, 1, p2_poll_txt(0), 0xFF)
    addb(H1FLAG_AT, "h1"); add(H1FLAG_AT, flag_store(sFLG, 128)); add(H1FLAG_AT, chk)
    G0 = vm_groups(p2_L(0, SWS))
    for q_ in range(0, 16, 4): items.insert(q_ // 4, (H1FLAG_AT, Stream([x for gg_ in G0[q_:q_+4] for x in gg_]), 4))
    for j in range(POLL2_AT, 30):
        cap = VCAP - nW.get(j, 0)
        for it in list(items):
            if it[0] <= j + 0.5 and it[2] <= cap:
                add(j, it[1]); cap -= it[2]; items.remove(it)
    for it in items:
        assert "lds" in it[1][-1].text, it[1][-1].text
        late += it[1]
    print("sched", [iss_[g_] for g_ in range(30)], fin_, "late", sum(it[2] for it in items))
    rest = [Stream(late + w2_load(14)), w2_load(15), w2_load(16)]
    head, slots, first = core.build(4, hb, ha)
    side = Stream(stats_from_sums("0xbfb8aa3b", vRS, vRS + 1) + build(0) + corr(0) + epi(0, False))
    left = interleave(slots[:first[20]], side, EPI_RATE, start=first[B0AT] - 4); assert not left, len(left)
    left = interleave(slots[:first[H1FLAG_AT - 1]], Stream(build(1) + corr(1) + epi(1, False)), EPI_RATE2, start=first[20] + 4); assert not left, len(left)
    c2 = corr(2); fin = Stream(build(2) + p2_poll(1) + c2[:-1])
    left = interleave(slots, fin, 3, start=first[29]); assert not left, len(left)
    slots[-1].append(c2[-1])
    stamp(S, 1)
    S += head
    stamp(S, 1)
    for n, sl in enumerate(slots):
        S += sl; S += core.tails[n]
        if n + 1 in (first[10], first[20]): stamp(S)
        if n + 1 in [first[i] for i in range(1, 11)]: stamp(S, 1)
        if n + 1 in [first[i] for i in range(1, 30)] + [len(slots)]: stamp(S, 2)
    stamp(S)
    e2 = epi(2, True); cut = len(e2) // E3CUT
    S += e2[:cut]; S += p2_try(1)
    S += sprinkle(Stream(e2[cut:]), p2_L(1, SAUX), E3P)
    S += phase2("g", rest, "h2", flag_store(sFLG, 256), True)
    return S

def softmax_pair(E, P, O, T, qmode):
    mx, mn = T + 40, T + 41
    E(f"v_max3_f32 {v(mx)}, {v(P)}, {v(P+1)}, {v(P+2)}", f"v_min3_f32 {v(mn)}, {v(P)}, {v(P+1)}, {v(P+2)}")
    for i in range(3, 19, 2):
        E(f"v_max3_f32 {v(mx)}, {v(mx)}, {v(P+i)}, {v(P+i+1)}", f"v_min3_f32 {v(mn)}, {v(mn)}, {v(P+i)}, {v(P+i+1)}")
    E(f"v_max_f32 {v(mx)}, {v(mx)}, {v(P+19)}", f"v_min_f32 {v(mn)}, {v(mn)}, {v(P+19)}")
    E(f"v_mul_f32 {v(mx)}, {v(mx)}, {v(vC)}", f"v_mul_f32 {v(mn)}, {v(mn)}, {v(vC)}")
    for i in range(0, 20, 2):
        E(f"v_pk_fma_f32 {v(T+i,2)}, {v(P+i,2)}, {v(vC,2)}, {v(mx,2)} op_sel:[0,0,0] op_sel_hi:[1,0,0] neg_lo:[0,0,1] neg_hi:[0,0,1]")
    for i in range(0, 20, 2):
        E(f"v_pk_fma_f32 {v(T+20+i,2)}, {v(P+i,2)}, {v(vC,2)}, {v(mx,2)} op_sel:[0,0,1] op_sel_hi:[1,0,1] neg_lo:[1,0,0] neg_hi:[1,0,0]")
    for i in range(40): E(f"v_exp_f32 {v(T+i)}, {v(T+i)}")
    for h in range(2):
        B = T + 20 * h; A = P + 10 * h
        for i in range(5): E(f"v_pk_add_f32 {v(A+2*i,2)}, {v(B+4*i,2)}, {v(B+4*i+2,2)}")
    for h in range(2):
        A = P + 10 * h
        E(f"v_pk_add_f32 {v(A,2)}, {v(A,2)}, {v(A+2,2)}", f"v_pk_add_f32 {v(A+4,2)}, {v(A+4,2)}, {v(A+6,2)}")
    for h in range(2):
        A = P + 10 * h
        E(f"v_pk_add_f32 {v(A,2)}, {v(A,2)}, {v(A+4,2)}")
    for h in range(2):
        A = P + 10 * h
        E(f"v_pk_add_f32 {v(A,2)}, {v(A,2)}, {v(A+8,2)}")
    E(f"v_add_f32 {v(T+44)}, {v(P)}, {v(P+1)}", f"v_add_f32 {v(T+45)}, {v(P+10)}, {v(P+11)}")
    if qmode:
        E(f"v_rcp_f32 {v(T+42)}, {v(T+45)}", f"v_mul_f32 {v(T+42)}, {v(T+42)}, {v(T+44)}")
        for i in range(0, 20, 2): E(f"v_pk_mul_f32 {v(T+20+i,2)}, {v(T+20+i,2)}, {v(T+42,2)} op_sel_hi:[1,0]")
    else:
        E(f"v_rcp_f32 {v(T+42)}, {v(T+44)}", f"v_rcp_f32 {v(T+43)}, {v(T+45)}")
        for i in range(0, 20, 2): E(f"v_pk_mul_f32 {v(T+i,2)}, {v(T+i,2)}, {v(T+42,2)} op_sel_hi:[1,0]")
        for i in range(0, 20, 2): E(f"v_pk_mul_f32 {v(T+20+i,2)}, {v(T+20+i,2)}, {v(T+42,2)} op_sel:[0,1] op_sel_hi:[1,1]")
    for i in range(20): E(f"v_cvt_pk_bf16_f32 {v(O+i)}, {v(T+2*i)}, {v(T+2*i+1)}")

PROJ = [(0, 0), (0, 1), (0, 2), (1, 0), (1, 1), (1, 2), (1, 3), (1, 4), (2, 2), (2, 3), (2, 4)]
aPH = 200
def project(E, SRC, PK, OUT):
    for i in range(20): E(f"v_cvt_pk_bf16_f32 {v(PK+i)}, {v(SRC+2*i)}, {v(SRC+2*i+1)}")
    seen = set()
    for n, (T, sl) in enumerate(PROJ):
        E(f"v_mfma_f32_32x32x16_bf16 {v(OUT+16*T,16)}, {a_(aPH+4*n,4)}, {v(PK+4*sl,4)}, {v(OUT+16*T,16) if T in seen else '0'}")
        seen.add(T)

def qkv_path():
    ROLE[0] = "q"; VA[:] = [3, 4, 5, 20]
    S = Stream(); t = vT
    S("L_qkv:")
    AKV, AQ = 128, 208
    S += common_a("q")
    S("s_mov_b32 s10, 2457600")
    ZI = Stream(); QV = Stream()
    sQB = 78
    S(f"s_mul_i32 s{sWB}, s{sSL}, 160", f"s_mul_i32 s{sWM0}, s{sW}, 5120")
    ktable(S, 64 * 3840, sWB)
    S(f"s_mul_i32 s{sT1}, s{sW}, {16*3840}", f"s_add_u32 s{sT2}, s{sT1}, 1280", f"s_sub_u32 s{sT3}, s{sT1}, 1280")
    if QROT: S(f"s_lshr_b32 s{sT0}, s{sW}, 1", f"s_mul_i32 s{sT0}, s{sT0}, {64*3840}", f"s_sub_u32 s{sT3}, s{sT3}, s{sT0}")
    for j in range(5):
        S(f"v_add_u32 {v(t)}, {64*j}, {v(vL)}")
        divmod_v(S, t+1, t+2, t, 20)
        divmod_v(S, t+3, t+4, t+2, 5)
        S(f"v_and_b32 {v(t+5)}, 1, {v(t+3)}", f"v_lshrrev_b32 {v(t+3)}, 1, {v(t+3)}", f"v_mul_u32_u24 {v(t+3)}, 80, {v(t+3)}", f"v_lshl_add_u32 {v(t+3)}, {v(t+4)}, 4, {v(t+3)}")
        if 0 < j < 4: S(f"v_subrev_u32 {v(t+3)}, {1024*j}, {v(t+3)}")
        S(f"v_mul_u32_u24 {v(t+6)}, 3840, {v(t+1)}", f"v_mul_u32_u24 {v(t+7)}, 1280, {v(t+5)}", f"v_add3_u32 {v(vWO+j)}, {v(t+6)}, {v(t+7)}, {v(t+3)}", f"v_add_u32 {v(vWO+j)}, s{sT2}, {v(vWO+j)}")
        S(f"v_lshrrev_b32 {v(t+6)}, 2, {v(t+1)}", f"v_lshl_add_u32 {v(vQO+j)}, {v(t+6)}, 1, {v(t+5)}")
        QV(f"v_lshrrev_b32 {v(t+6)}, 1, {v(vQO+j)}", f"v_and_b32 {v(t+5)}, 1, {v(vQO+j)}", f"v_mul_u32_u24 {v(t+6)}, {4*3840}, {v(t+6)}", f"v_mul_u32_u24 {v(t+5)}, {4*3840-1280}, {v(t+5)}",
           f"v_add3_u32 {v(vQO+j)}, {v(t+6)}, {v(t+5)}, {v(vWO+j)}", f"v_add_u32 {v(vQO+j)}, s{sT3}, {v(vQO+j)}")
    def w_dma(g):
        D = Stream(); q = g >= 10
        lb = L_WR + (g % 4) * 20480 if g < 14 else L_WR - 20480
        D(f"s_add_u32 m0, s{sWM0}, {lb}")
        vo = vQO if q else vWO; so = sKT + (2 * (g - 10) if q else g)
        if q and QROT:
            D(f"s_cmp_lt_u32 s{sW}, 2", f"s_cselect_b32 s{sST}, s{so}, s{so+1}"); so = sST
        for j in range(4): D(f"buffer_load_dwordx4 {v(vo+j)}, {SW}, s{so} offen offset:{j*1024} lds")
        D(f"s_add_u32 m0, s{sWM0}, {lb + 4096}")
        D.I(f"buffer_load_dwordx4 {v(vo+4)}, {SW}, s{so} offen lds", tok=(f"q{g-10}" if q else f"w{g}"))
        return D
    S += common_b("q")
    S("s_mov_b32 s8, s34", "s_mov_b32 s9, s35")
    S += w_dma(0); S += common_c()
    ktable_rest(S, 64 * 3840, sWB); S += QV
    if QS1: S += x_dma(1); S += w_dma(1)
    S += code_pf('q')
    LATE = Stream(); S0 = S; S = LATE
    S("s_mov_b32 s24, s36", "s_mov_b32 s25, s37", "s_mov_b32 s26, 25600", f"s_mul_i32 s{sT0}, s{sSL}, 3200", f"s_lshl_b32 s{sT1}, s{sW}, 10", f"s_add_u32 s{sT0}, s{sT0}, s{sT1}",
      f"s_add_u32 m0, s{sT1}, {L_PHI}")
    S.I(f"buffer_load_dwordx4 {v(vL16)}, {SAUX}, s{sT0} offen lds", tok="phid")
    S("s_mov_b32 s24, s12", "s_mov_b32 s25, s13")
    S = S0
    S(f"v_mov_b32 {v(t+2)}, 0", f"v_mov_b32 {v(t+3)}, 0", f"s_lshl_b32 s{sT0}, s{sW}, 9", f"s_add_u32 s{sT0}, s{sT0}, {L_ZERO}", f"v_lshl_add_u32 {v(t+4)}, {v(vL)}, 3, s{sT0}")
    S.I(f"ds_write_b64 {v(t+4)}, {v(t+2,2)}", tok="ldsz")
    xaddr_setup(S, True); sel_setup(S)
    S(f"v_lshrrev_b32 {v(t)}, 5, {v(vL)}", f"v_bfe_u32 {v(t+1)}, {v(vL)}, 2, 2", f"v_lshl_add_u32 {v(t+2)}, {v(t)}, 3, {v(t+1)}", f"v_lshl_add_u32 {v(t+3)}, {v(t)}, 2, {v(t+1)}",
      f"v_mul_u32_u24 {v(t+2)}, 320, {v(t+2)}", f"v_mul_u32_u24 {v(t+3)}, 320, {v(t+3)}",
      f"v_and_b32 {v(t+4)}, 1, {v(vL)}", f"v_mul_u32_u24 {v(t+4)}, 160, {v(t+4)}", f"v_bfe_u32 {v(t+5)}, {v(vL)}, 4, 1", f"v_bfe_u32 {v(t+6)}, {v(vL)}, 1, 1",
      f"v_lshl_add_u32 {v(t+5)}, {v(t+5)}, 1, {v(t+6)}", f"v_lshl_add_u32 {v(t+4)}, {v(t+5)}, 3, {v(t+4)}", f"v_add_u32 {v(t+4)}, {L_WR}, {v(t+4)}",
      f"v_add_u32 {v(t+2)}, {v(t+2)}, {v(t+4)}", f"v_add_u32 {v(t+3)}, {v(t+3)}, {v(t+4)}")
    for p in range(4):
        S(f"s_xor_b32 s{sT0}, s{sW}, {p}", f"s_mul_i32 s{sT1}, s{sT0}, 5120", f"s_mul_i32 s{sT0}, s{sT0}, 2560",
          f"v_add_u32 {v(vWA+p)}, s{sT1}, {v(t+2)}", f"v_add_u32 {v(vQA+p)}, s{sT0}, {v(t+3)}",
          f"v_add_u32 {v(vWB_+p)}, {3*20480}, {v(vWA+p)}", f"v_add_u32 {v(vQB+p)}, {2*20480}, {v(vQA+p)}", f"v_subrev_u32 {v(vQA+p)}, 20480, {v(vQA+p)}")
    S += p2_setup()
    stages = []
    for g in range(10):
        mf = []
        for p in range(4):
            for T in range(5):
                ar, off = (vWA + p, (g % 4) * 20480) if g % 4 < 3 else (vWB_ + p, 0)
                off += 32 * T
                mf.append((AKV + 16 * T, f"{v(ar)} offset:{off}", f"{v(ar)} offset:{off+1280}", 16 * g + 4 * p, (vCS + 4 * T, g == 0) if (p == 0 and g < (1 if QROT else 2)) else None, g == 0 and p == 0, None))
        stages.append(dict(mf=mf, dma=w_dma(g), xs=g))
    PHF = Stream(); u = vT
    PHF(f"v_bfe_u32 {v(u)}, {v(vL)}, 4, 1", f"v_bfe_u32 {v(u+1)}, {v(vL)}, 1, 1", f"v_lshl_add_u32 {v(u)}, {v(u)}, 1, {v(u+1)}",
        f"v_lshrrev_b32 {v(u+1)}, 5, {v(vL)}", f"v_and_b32 {v(u+2)}, 1, {v(vL)}", f"v_cmp_eq_u32 s[{sPKS+4}:{sPKS+5}], {v(u+1)}, {v(u+2)}".replace(f"s[{sPKS+4}:{sPKS+5}]", "s[98:99]"),
        f"v_mul_u32_u24 {v(u+1)}, 1600, {v(u+1)}", f"v_bfe_u32 {v(u+2)}, {v(vL)}, 2, 2", f"v_mul_u32_u24 {v(u+2)}, 40, {v(u+2)}", f"v_add3_u32 {v(u+1)}, {v(u+1)}, {v(u+2)}, {L_PHI & 63}".replace(f", {L_PHI & 63}", ", 0"),
        f"v_add_u32 {v(u+1)}, {L_PHI}, {v(u+1)}", f"v_lshl_add_u32 {v(u+1)}, {v(u)}, 3, {v(u+1)}", f"v_mov_b32 {v(u+3)}, {L_ZERO}")
    amap = {}
    k = 4
    for (T, s) in [(0, 0), (1, 0), (1, 1), (2, 1)]:
        lo, hi = 5 * s - 4 * T, 5 * s + 5 - 4 * T
        PHF(f"v_add_u32 {v(u+k)}, {s*800+(4*T-5*s)*8}, {v(u+1)}", f"v_cndmask_b32 {v(u+k)}, {v(u+3)}, {v(u+k)}, s[98:99]")
        if lo > 0: PHF(f"v_cmp_le_u32 vcc, {lo}, {v(u)}", f"v_cndmask_b32 {v(u+k)}, {v(u+3)}, {v(u+k)}, vcc")
        if hi < 4: PHF(f"v_cmp_gt_u32 vcc, {hi}, {v(u)}", f"v_cndmask_b32 {v(u+k)}, {v(u+3)}, {v(u+k)}, vcc")
        amap[(T, s)] = u + k; k += 1
    for n, (T, sl) in enumerate(PROJ):
        for r2 in range(2):
            rho = 2 * sl + r2; s = rho // 5
            if (T, s) in amap: PHF(f"ds_read_b64_tr_b16 {a_(aPH+4*n+2*r2,2)}, {v(amap[(T,s)])} offset:{(rho%5)*160}")
            else: PHF(f"ds_read_b64_tr_b16 {a_(aPH+4*n+2*r2,2)}, {v(u+3)}")
    core = Core(stages, 4, "w")
    QR = 68
    def pb_regs(r):
        P = Stream()
        P(f"v_and_b32 {v(r+3)}, 31, {v(vL)}", f"v_lshlrev_b32 {v(r+3)}, 2, {v(r+3)}")
        ck_, lim_ = (sMT, 10) if QROT else (sMT, 5)
        cond_voff(P, r, r + 3, ck_, lim_, True); cond_voff(P, r + 1, vFL, ck_, lim_, False)
        poll_setup(P, r + 2, 40, 41, r + 4)
        return P
    S(f"s_lshl_b32 s40, s{sSL}, 8", f"s_add_u32 s40, s40, {WS_SF + 40*128}", f"s_lshl_b32 s41, s{sMT}, 7", f"s_add_u32 s41, s41, {WS_SF + 24*128}", f"s_lshl_b32 s{sT0}, s{sMT}, 2", f"s_add_u32 s43, s40, s{sT0}",
      f"s_add_u32 s38, s{sT0}, s{sW}", "s_lshl_b32 s38, s38, 7", f"s_add_u32 s38, s38, {WS_RS}", f"s_lshl_b32 s39, s{sSL}, 10", f"s_add_u32 s39, s39, {WS_CSQ}")
    S += pb_regs(116)
    def q_pub(r, n, o, tok, vCS=vCS):
        E = Stream()
        for T in range(n):
            E(f"v_cndmask_b32 {v(vCS+4*T)}, {v(vCS+4*T+1)}, {v(vCS+4*T)}, s[96:97]")
            E.I(f"buffer_atomic_add_f32 {v(vCS+4*T)}, {v(r)}, {SWS}, s39 offen offset:{128*(o+T)}", tok=tok if T == n - 1 else None)
        return E
    def q_flag(r, k): return Stream([Ins(f"buffer_store_dword a255, {v(r+1)}, {SWS}, s43 offen offset:{128*k} sc1")])
    def q_ptxt(r, k): return f"buffer_load_dword {v(r+4)}, {v(r+2)}, {SWS}, 0 offen offset:{128*k} sc1"
    def q_fetch(r, k, n, o, d):
        E = Stream()
        poll_check(E, f"cs{k}q", r + 4, 1, q_ptxt(r, k), (0x3FF if QROT else 0x1F) | ((0x1F << 16) if k == 0 else 0))
        for T in range(n): E(f"buffer_load_dword {v(d+T)}, {v(r+3)}, {SWS}, s39 offen offset:{128*(o+T)} sc1")
        if k == 0: E(f"buffer_load_dword {v(d+5)}, {v(r+3)}, {SWS}, s38 offen sc1", "s_add_u32 s38, s38, 8192", f"buffer_load_dword {v(d+6)}, {v(r+3)}, {SWS}, s38 offen sc1")
        return E
    def q_corr(n, d, acc, tt_):
        E = Stream()
        for T in range(n): split3(E, vCS + 4 * T, d + T, tt_, "A")
        for T in range(n): E(f"v_mfma_f32_32x32x16_bf16 {v(acc+16*T,16)}, {v(vCS+4*T,4)}, {v(vMB,4)}, {v(acc+16*T,16)}")
        return E
    hb = {3: ["phid", "ldsz"]}
    S(f"v_or_b32 {v(114)}, s{sST+3}, {v(vFL)}", f"s_lshl_b32 s{sST+3}, s{sMT}, 2")
    S.wait("zst"); S("s_barrier", f"buffer_store_dword a255, {v(114)}, {SDBG}, s{sST+3} offen sc1")
    if not QS1: S += x_dma(1); S += w_dma(1)
    ha = {0: Stream(x_dma(2) + w_dma(2) + LATE + x_dma(3)), 4: PHF, 9: Stream()}
    def addq(j, st_): ha[j] = Stream(ha.get(j, Stream()) + st_)
    addq(QP1AT - 1, poll1_issue()); addq(QP1AT, poll1_check("q")); addq(QPB[0], q_pub(116, 5, 0, "qa0"))
    hb[QPB[1]] = hb.get(QPB[1], []) + ["qa0"]; addq(QPB[1], q_flag(116, 0)); addq(QPB[2] - 1, Stream([Ins(q_ptxt(116, 0))]))
    FE = q_fetch(116, 0, 5, 0, 88)
    if QTAT:
        TCH = Stream(); q = vT + 8
        TCH(f"v_lshrrev_b32 {v(q)}, 1, {v(vL)}", f"v_min_u32 {v(q)}, 19, {v(q)}", f"v_mul_u32_u24 {v(q)}, 3840, {v(q)}", f"v_and_b32 {v(q+1)}, 1, {v(vL)}", f"v_mul_u32_u24 {v(q+1)}, 156, {v(q+1)}",
            f"v_add_u32 {v(q)}, {v(q)}, {v(q+1)}", f"s_and_b32 s48, s{sMT}, 7", "s_lshl_b32 s48, s48, 2", f"s_add_u32 s48, s48, s{sW}", f"s_mul_i32 s48, s48, {20*3840}", f"s_mul_i32 s49, s{sSL}, 160",
            "s_add_u32 s48, s48, s49", f"buffer_load_dword {v(115)}, {v(q)}, {SW}, s48 offen")
        ha[QTAT] = Stream(ha.get(QTAT, Stream()) + TCH)
    ha[8] = Stream(ha.get(8, Stream()) + w_dma(10))
    if QPRE:
        VA[3] = 8; pp_ = p2_pre(); VA[3] = 20
        ha[QPRE] = Stream(ha.get(QPRE, Stream()) + pp_ + xre_load())
    ha[QPB[2]] = Stream(FE + ha.get(QPB[2], Stream()))
    ha[9] = Stream(w_dma(11) + ha[9])
    head, slots, first = core.build(3, hb, ha)
    left = interleave(slots, Stream(stats_from_sums("0x3fb8aa3b", 93, 94) + q_corr(5, 88, AKV, 96)), 4, start=first[9] + QC0)
    KL_ = Stream(left)
    stamp(S, 1)
    S += head
    stamp(S, 1)
    for n, sl in enumerate(slots):
        S += sl; S += core.tails[n]
        if n + 1 in [first[i] for i in range(1, 10)] + [len(slots)]: stamp(S, 1)
        if n + 1 in [first[i] for i in range(1, 10)]: stamp(S, 2)
    stamp(S)
    stamp(S, 2)
    PK = vCS; TT = vT; ta = 120; kr = 21
    A1 = Stream()
    A1(f"v_and_b32 {v(ta)}, 31, {v(vL)}", f"s_lshl_b32 s{sT0}, s{sW}, 5", f"v_add_u32 {v(ta)}, s{sT0}, {v(ta)}", f"v_mul_u32_u24 {v(ta)}, {RS}, {v(ta)}",
      f"v_lshrrev_b32 {v(ta+1)}, 5, {v(vL)}", f"v_mul_u32_u24 {v(ta+2)}, 96, {v(ta+1)}", f"v_add_u32 {v(ta+2)}, {v(ta+2)}, {v(ta)}",
      f"v_mul_u32_u24 {v(ta+1)}, 160, {v(ta+1)}", f"v_add_u32 {v(ta+1)}, {v(ta+1)}, {v(ta)}")
    A1(f"v_lshrrev_b32 {v(kr+2)}, 4, {v(vL)}", f"v_bfe_u32 {v(kr+1)}, {v(vL)}, 2, 2", f"v_lshl_add_u32 {v(kr+1)}, {v(kr+2)}, 3, {v(kr+1)}", f"v_mul_u32_u24 {v(kr+1)}, {RS}, {v(kr+1)}",
      f"v_and_b32 {v(kr)}, 3, {v(vL)}", f"v_lshl_add_u32 {v(kr+1)}, {v(kr)}, 3, {v(kr+1)}",
      f"s_mul_i32 s{sT0}, s{sW}, 80", f"s_mul_i32 s{sT1}, s{sW}, 48", f"s_add_u32 s{sT1}, s{sT1}, 320", f"v_add_u32 {v(kr)}, s{sT0}, {v(kr+1)}", f"v_add_u32 {v(kr+1)}, s{sT1}, {v(kr+1)}")
    A2 = Stream()
    A2(f"v_lshrrev_b32 {v(ta)}, 4, {v(vL)}", f"v_mul_u32_u24 {v(ta+4)}, 768, {v(ta)}", f"v_and_b32 {v(ta+5)}, 15, {v(vL)}", f"v_lshl_add_u32 {v(ta+4)}, {v(ta+5)}, 2, {v(ta+4)}", f"v_lshlrev_b32 {v(ta+6)}, 2, {v(ta+5)}",
      f"s_lshl_b32 s42, s{sSL}, 14", f"s_mul_i32 s98, s{sW}, 4032", "s_add_u32 s42, s42, s98", f"s_add_u32 s42, s42, {WS_KV}")
    AV = [ta + 4, 116, 117, 118, 119, ta + 5]
    A2(f"v_mov_b32 {v(ta)}, {hex(HUGE)}")
    for n, m in enumerate([None, 0xFFFFFFFF, 0xFFFF, 0x00FF00FF00FF00FF, 0x00FF00FF, 0x00FF]):
        if m is None: continue
        A2(f"s_mov_b32 s98, {hex(m & 0xFFFFFFFF)}", f"s_mov_b32 s99, {hex(m >> 32)}", f"v_cndmask_b32 {v(AV[n])}, {v(ta)}, {v(ta+4)}, s[98:99]")
    st_ = Stream(); stamp(st_, 2)
    if QPRE: S("v_mov_b32 v20, v8")
    S += KL_; S += A1; S.wait("q0"); S("s_barrier"); S += st_
    for h_ in range(1 if QROT else 2):
        for T in range(3):
            f_ = aWF + 4 * (3 * h_ + T); o_ = 32 * T + h_ * 10240
            S(f"ds_read_b64_tr_b16 {a_(f_,2)}, {v(vQB)} offset:{o_}", f"ds_read_b64_tr_b16 {a_(f_+2,2)}, {v(vQB)} offset:{o_+80}")
    stamp(S, 2)
    stamp(S)
    S0 = S; S = Stream()
    PJ = Stream(); project(PJ, AKV, PK, AQ)
    VW_ = Stream()
    for i in range(40): VW_(f"v_mul_f32 {v(AKV+40+i)}, {v(AKV+40+i)}, {v(vST+1)}")
    for s in range(2):
        for i in range(10): VW_(f"v_cvt_pk_bf16_f32 {v(AKV+12*s+i)}, {v(AKV+40+20*s+2*i)}, {v(AKV+41+20*s+2*i)}")
        VW_(f"v_mov_b32 {v(AKV+12*s+10)}, 0x3f80", f"v_mov_b32 {v(AKV+12*s+11)}, 0")
    S += PJ[:20]
    for h_ in range(1 if QROT else 2):
        for T in range(3): S(f"v_mfma_f32_16x16x32_bf16 {v(96+4*T,4)}, {v(vSEL,4)}, {a_(aWF+4*(3*h_+T),4)}, {'0' if h_ == 0 else v(96+4*T,4)}")
    for n_, x in enumerate(PJ[20:]): S.append(x); S += VW_[6*n_:6*n_+6]
    S += q_pub(116, 3, 5, "qa1", 96)
    for i in range(6): S(f"ds_write_b128 {v(ta+2)}, {v(AKV+4*i,4)} offset:{L_TB+320+16*i}")
    for s in range(2):
        O = AKV + 40 + 20 * s
        softmax_pair(S, AQ + 20 * s, O, TT, False)
        for i in range(5): S(f"ds_write_b128 {v(ta+1)}, {v(O+4*i,4)} offset:{L_TB+80*s+16*i}")
    S0 += sprinkle(S, Stream(w_dma(12) + w_dma(13)), KP)
    S = S0
    S.drain(vm=False); S.wait("qa1"); S("s_barrier"); S += q_flag(116, 1)
    stamp(S)
    FR = AKV; KA = TT + 24
    for ks in range(4):
        for x in range(5):
            for r2 in range(2):
                ar, co = (kr + 1, 32 * x) if x < 2 else (kr, 32 * (x - 2))
                S(f"ds_read_b64_tr_b16 {v(FR+20*ks+4*x+2*r2,2)}, {v(ar)} offset:{L_TB+(32*ks+4*r2)*RS+co}")
    S += A2
    for ks in range(4):
        for a in range(2):
            for b in range(3):
                acc = v(KA + 12 * a + 4 * b, 4)
                S(f"v_mfma_f32_16x16x32_bf16 {acc}, {v(FR+20*ks+4*a,4)}, {v(FR+20*ks+8+4*b,4)}, {'0' if ks == 0 else acc}")
    AT = Stream()
    todo = [(a, r, b) for a in range(2) for r in range(4) for b in range(3)]
    for n, (a, r, b) in enumerate(todo):
        av = AV[(0 if a == 0 else (1 if r == 0 else 2)) + (3 if b == 2 else 0)]
        AT.I(f"buffer_atomic_add_f32 {v(KA+12*a+4*b+r)}, {v(av)}, {SWS}, s42 offen offset:{(16*a+r)*192+64*b}", tok="kvat" if n == len(todo) - 1 else None)
    if 'noat' in ABL: AT = Stream(AT[-1:])
    stamp(S)
    S += poll2_issue()
    stages = []
    for g in range(5):
        gg = 10 + g; mf = []
        for p8 in range(8):
            p = p8 & 3
            for T in range(3):
                sl_ = gg % 4 if gg < 14 else -1
                ar, off = (vQA + p, (sl_ + 1) * 20480) if sl_ < 2 else (vQB + p, (sl_ - 2) * 20480)
                off += 32 * T + (p8 >> 2) * 10240
                mf.append((AQ + 16 * T, f"{v(ar)} offset:{off}", f"{v(ar)} offset:{off+80}", 32 * g + 4 * p8, None, g == 0 and p8 == 0, None))
        stages.append(dict(mf=mf, dma=Stream(), xs=None))
    sKF = 79
    S(f"s_lshl_b32 s{sKF}, s{sSL}, 7", f"s_add_u32 s{sKF}, s{sKF}, {WS_KVFLAG}", f"s_lshl_b32 s{sT0}, s{sMT}, 2", f"s_add_u32 s{sQB+22}, s{sKF}, s{sT0}")
    hb = {}
    ha = {0: Stream(w_dma(14) + vw_setup() + (Stream() if QPRE else Stream(p2_pre() + xre_load())) + AT), 2: poll2_check("q")}
    for s_ in stages: s_["pace"] = QPACE
    S += pb_regs(QR)
    ha[2] += w2_stage("q", 0, 10)
    for k in range(4):
        j = max(3, (20 * k + 19) // 32 + 2)
        ha[j] = Stream(ha.get(j, Stream()) + w2_load(k))
    u = 88; oa = 21; A3 = Stream()
    A3(f"v_bfe_u32 {v(u)}, {v(vL)}, 3, 2", f"v_bfe_u32 {v(u+1)}, {v(vL)}, 2, 1", f"v_lshrrev_b32 {v(u+2)}, 5, {v(vL)}", f"v_cmp_eq_u32 s[98:99], {v(u+1)}, {v(u+2)}",
      f"v_and_b32 {v(u+2)}, 3, {v(vL)}", f"v_lshl_add_u32 {v(u+2)}, {v(u)}, 2, {v(u+2)}", f"v_mul_u32_u24 {v(u+1)}, 42, {v(u+1)}", f"v_add_u32 {v(u+2)}, {v(u+2)}, {v(u+1)}",
      f"v_mul_u32_u24 {v(u+2)}, 96, {v(u+2)}", f"v_mov_b32 {v(u+3)}, {L_ZERO}", f"v_cmp_gt_u32 s[50:51], 2, {v(u)}")
    A3(f"v_add_u32 {v(oa)}, {L_KB}, {v(u+2)}", f"v_add_u32 {v(oa+1)}, {L_KB+21*96}, {v(u+2)}", f"v_add_u32 {v(oa+2)}, {L_KB+16*96}, {v(u+2)}", f"v_add_u32 {v(oa+3)}, {L_KB+(21+16-8)*96}, {v(u+2)}",
      f"v_cndmask_b32 {v(oa+2)}, {v(u+3)}, {v(oa+2)}, s[50:51]", f"v_cndmask_b32 {v(oa+3)}, {v(oa+3)}, {v(u+3)}, s[50:51]")
    for k in range(4): A3(f"v_cndmask_b32 {v(oa+k)}, {v(u+3)}, {v(oa+k)}, s[98:99]")
    A3(f"s_lshl_b32 s48, s{sW}, 9", f"s_add_u32 s48, s48, {L_KB}", f"v_lshl_add_u32 {v(oa+4)}, {v(vL)}, 3, s48")
    core = Core(stages, 4, "q")
    head, slots, first = core.build(4, hb, ha)
    left = interleave(slots, A3, 1, start=first[2]); assert not left
    slots[QF[0]](q_ptxt(QR, 1)); slots[QF[1]] += q_fetch(QR, 1, 3, 5, 80)
    left = interleave(slots, q_corr(3, 80, AQ, 73), 3, start=first[4] + 12); assert not left
    S += head
    for n, sl in enumerate(slots):
        S += sl; S += core.tails[n]
        if n + 1 in [first[i] for i in range(1, 5)]: stamp(S, 2)
    stamp(S)
    W2rest = Stream(w2_load(4) + w2_load(14) + w2_load(15) + w2_load(16))
    S.wait("kvat"); S("s_barrier"); S += flag_store(sQB + 22, 0)
    E = Stream()
    project(E, AQ, PK, AKV)
    PQ = AQ
    softmax_pair(E, AKV, PQ, TT, True)
    E(f"v_mul_f32 {v(ta)}, {hex(0x358637bd)}, {v(TT+44)}")
    bgA = W2rest; bgA += p2_poll(0)
    bgA(f"buffer_load_dword {v(ta+7)}, {v(ta+6)}, {SWS}, s{sKF} offen sc1")
    S += sprinkle(E, bgA, QP1)
    W2rest = p2_L(0, SWS)
    W2r2 = w2_stage("q", 10, 23)
    W2r3 = [Stream(w2_load(5) + w2_load(6)), w2_stage("q", 23, 35)]
    poll_check(S, "p0q", vPV, 1, p2_poll_txt(0), 0xFF)
    poll_check(S, "kv", ta + 7, 1, f"buffer_load_dword {v(ta+7)}, {v(ta+6)}, {SWS}, s{sKF} offen sc1", 0xFFFF)
    stamp(S)
    KL = AKV + 48
    S(f"s_lshl_b32 s{sT2}, s{sSL}, 14", f"s_add_u32 s{sT2}, s{sT2}, {WS_KV}", f"s_lshl_b32 s{sT0}, s{sW}, 10", f"s_add_u32 s{sT2}, s{sT2}, s{sT0}")
    for i in range(4):
        S(f"buffer_load_dwordx4 {v(KL+4*i,4)}, {v(vL16)}, {SWS}, s{sT2} offen sc1")
        if i < 3: S(f"s_add_u32 s{sT2}, s{sT2}, 4096")
    E = Stream(); softmax_pair(E, AKV + 20, PQ + 20, TT, True)
    S += sprinkle(E, W2rest, QP2)
    S(f"v_mul_f32 {v(ta+1)}, {hex(0x358637bd)}, {v(TT+44)}")
    for i in range(4):
        S(f"v_cvt_pk_bf16_f32 {v(KL+4*i)}, {v(KL+4*i)}, {v(KL+4*i+1)}", f"v_cvt_pk_bf16_f32 {v(KL+4*i+1)}, {v(KL+4*i+2)}, {v(KL+4*i+3)}",
          f"ds_write_b64 {v(oa+4)}, {v(KL+4*i,2)} offset:{2048*i}")
    S.drain(vm=False); S("s_barrier")
    W2r2 += p2_poll(1)
    S0 = S; S = Stream()
    FRO = AKV
    ON = TT + 8
    ON = vCS
    for k in range(4):
        for s in range(5): S(f"ds_read_b128 {v(FRO+20*k+4*s,4)}, {v(oa+k)} offset:{16*s}")
    for k in range(4):
        T = min(k, 2); slot = k & 1
        for s in range(5):
            acc = v(ON + 16 * T, 16)
            S(f"v_mfma_f32_32x32x16_bf16 {acc}, {v(FRO+20*k+4*s,4)}, {v(PQ+20*slot+4*s,4)}, {'0' if (s == 0 and k < 3) else acc}")
    S(f"v_add_f32 {v(ta)}, {v(ON+36)}, {v(ta)}", f"v_add_f32 {v(ta+1)}, {v(ON+44)}, {v(ta+1)}", f"v_rcp_f32 {v(ta+2)}, {v(ta)}", f"v_rcp_f32 {v(ta+3)}, {v(ta+1)}")
    OP = AKV
    for s in range(2):
        src = [ON + 16 * s + i for i in range(16)] + [ON + 32 + 8 * s + i for i in range(4)]
        sel = "op_sel_hi:[1,0]" if s == 0 else "op_sel:[0,1] op_sel_hi:[1,1]"
        for i in range(0, 20, 2): S(f"v_pk_mul_f32 {v(src[i],2)}, {v(src[i],2)}, {v(ta+2,2)} {sel}")
        for i in range(10): S(f"v_cvt_pk_bf16_f32 {v(OP+10*s+i)}, {v(src[2*i])}, {v(src[2*i+1])}")
    S0 += sprinkle(S, W2r2, QP3); S = S0
    S(f"s_mul_i32 s{sT0}, s{sSL}, 5120", f"s_add_u32 s{sT0}, s{sT0}, s{sAPB}", f"s_add_u32 s{sT0}, s{sT0}, {96*1024}", f"s_add_u32 s{sT1}, s{sT0}, 4096")
    for i in range(4): S(f"buffer_store_dwordx4 {v(OP+4*i,4)}, {v(vL16)}, {SWS}, s{sT0} offen offset:{1024*i} sc1")
    S.I(f"buffer_store_dwordx4 {v(OP+16,4)}, {v(vL16)}, {SWS}, s{sT1} offen sc1", tok="ost")
    S(f"s_lshl_b32 s{sKF}, s{sMT}, 9", f"s_lshl_b32 s{sT0}, s{sSL}, 2", f"s_add_u32 s{sKF}, s{sKF}, s{sT0}")
    S += phase2("q", W2r3, "ost", flag_store(sKF, 384), False)
    return S

def main(outpath):
    hdr = open("parallel_sum__linear_kernel_hedgehog__glu_gated_glu__prompt.s.ref").read().split("; Override launch")[0]
    out = []
    st = State()
    finalize(prologue(), st, out)
    n0 = 0
    finalize(glu_path(), st.copy(), out)
    nstamp[0] = n0
    st2 = st.copy(); st2.hist = []
    out.append(".p2align 6")
    finalize(qkv_path(), st2, out)
    for L in slow_paths: out += L
    out.append("L_end:")
    txt = hdr + "; @launch grid=(256,1,1) block=(256,1,1) lds=163840\n" + f""".amdgcn_target "amdgcn-amd-amdhsa--gfx950"
.text
.globl {KN}
.p2align 8
.type {KN},@function
; Generated by the author's own script. One persistent launch, 256 workgroups (one per CU), 4 waves x 512 registers.
; Phase 1: 128 GLU workgroups (128 rows x 3 chunks of 64 gate + 64 up columns) and 128 QKV workgroups (128 rows x 4 heads),
;   x tile stationary in AGPRs, weights streamed by LDS-DMA + transposing LDS reads, LayerNorm folded in as a rank-1 MFMA
;   correction plus a per-row scale; hedgehog softmax lane-local; kv/z reduced with f32 atomics; h and o published in
;   MFMA-fragment order through d_ws (write-through stores + flags; flags zeroed in-launch, announced through d_debug).
; Phase 2: every workgroup computes a 64x80 output tile over K = 2176 (split over the 4 waves), adds x, stores bf16.
{KN}:
""" + "\n".join(out) + f"""
    s_endpgm
.section .rodata,"a"
.p2align 6
.amdhsa_kernel {KN}
  .amdhsa_next_free_vgpr 512
  .amdhsa_next_free_sgpr 102
  .amdhsa_accum_offset 256
  .amdhsa_group_segment_fixed_size 0
  .amdhsa_kernarg_size 88
  .amdhsa_user_sgpr_count 2
  .amdhsa_user_sgpr_kernarg_segment_ptr 1
  .amdhsa_system_sgpr_workgroup_id_x 1
.end_amdhsa_kernel
"""
    open(outpath, "w").write(txt)
    print("lines", len(out))

if __name__ == "__main__":
    for a in sys.argv:
        if a.startswith("--abl="): ABL.update(a[6:].split(","))
    if "--c1" in sys.argv: STGRP = 1
    if "--c2" in sys.argv: STGRP = 2
    if "--c3" in sys.argv: STGRP = 3
    for a in sys.argv:
        if a.startswith("--set="):
            k_, v_ = a[6:].split("="); globals()[k_] = eval(v_)
    if "--stamps" in sys.argv: STAMPS = True
    if "--cyc" in sys.argv: STAMPS = True; STAMPOP = "s_memtime"
    main([a for a in sys.argv[1:] if not a.startswith("--")][0])
```

```python
import sys
from emit import Stream, State, Ins, finalize, interleave, sprinkle, vm_groups

KN = "parallel_sum__linear_kernel_hedgehog__glu_gated_glu__prompt_kernel"
WS_HFLAG = 0
WS_KVFLAG = 8192
WS_PFLAG = 9216
WS_KV = 12288
WS_CSG = 143360; WS_CSQ = 155648; WS_RS = 163840; WS_SF = 180224
WS_STAT = 262144
WS_STAMP = 524288
WS_AP = 1 << 20
WS_WP = 12 << 20
WS_SIZE = 16 << 20
HUGE = 0x7F000000
L_XS = 0
L_TB = 0; RS = 528
L_WR = 67584
L_MISC = 149504
L_PACK = 0
LG_WR = 65536
LG_MISC = 147456
L_CSF = LG_MISC + 12288
L_PHI = L_MISC + 4096
L_ZERO = L_MISC
L_CS = L_MISC + 10240
L_KB = L_MISC + 2048
SX, SW, SWS, SDBG, SOUT, SAUX = "s[4:7]", "s[8:11]", "s[12:15]", "s[16:19]", "s[20:23]", "s[24:27]"
sW, sMT, sSL, sRT, sNT, sROT = 28, 29, 30, 31, 52, 53
sXB, sWB, sKX, sKW, sT0, sT1, sT2, sT3 = 54, 55, 56, 57, 58, 59, 60, 61
sXM0, sWM0, sAPB, sONE, sWPB, sACB, sWP4, sWP5 = 62, 63, 64, 65, 66, 67, 68, 69
sST = 70
sSPIN = 74
sPKS, sPKD = 75, 76
sPKF = 101
sSTAMP = 80
vL, vL16, vXO, vWO, vQO = 1, 2, 3, 5, 10
vXA, vWA, vWB_, vQA, vQB = 16, 20, 24, 28, 32
vSEL, vMB, vC, vSD, vST = 36, 40, 44, 45, 46
vCS = 48
vT = 68
vONE = 115
vFL = 15
NF, DPF = 10, 7
aWF = 160

STAMPS = False
GROT = 1
PREF = 0
CODEPF = 1
PKD = (3, 6, 8)
QPRE = 8
NX = 4
VCAP = 10
WCAP = 2
W2G0 = 0
W2ORD = list(range(10))
MAP2 = 0
T2AT = 0
T3AT = 0
XRAT = 16
H0AT = 22
P1AT = 3
PBS = [(3, 5, 10), (12, 15, 19), (22, 24, 28)]
B0AT = 13
QP1AT = 3
QPB = (3, 5, 8)
QF = (0, 16)
QC0 = 1
QS1 = 0
WPT = 0
WPD = 0
QTAT = 0
QWPT = 0
XRE = 1
PACE = 1.33
QPACE = 2
QP1 = 80
QP2 = 55
QP3 = 80
E3P = 40
E3CUT = 4
KP = 250
CAPA = 5
CAPB = 8
ROLE = ['g']
STGRP = 0
ABL = set()
STAMPOP = 's_memrealtime'
nstamp = [0]
def stamp(S, grp=0):
    if STAMPS and (grp == STGRP or grp < 0 or (grp == 0 and STGRP == 2 and ROLE[0] == "q")):
        i = nstamp[0]; nstamp[0] += 1
        S(f"{STAMPOP} s[94:95]")
        S.drain(vm=False)
        S(f"v_writelane_b32 v0, s94, {i}")

def v(a, n=1): return f"v{a}" if n == 1 else f"v[{a}:{a+n-1}]"
def a_(a, n=1): return f"a{a}" if n == 1 else f"a[{a}:{a+n-1}]"

slow_paths = []
def cmp_mask(vreg, n, mask):
    lo, hi = mask & 0xFFFFFFFF, mask >> 32
    L = []
    if n == 2: L.append(f"v_and_b32 {v(vreg)}, {v(vreg)}, {v(vreg+1)}")
    L.append(f"v_cmp_ne_u32 vcc, 1, {v(vreg)}")
    if hi:
        L += [f"s_and_b32 s{sT0}, vcc_lo, {hex(lo)}", f"s_and_b32 s{sT1}, vcc_hi, {hex(hi)}", f"s_or_b32 s{sT0}, s{sT0}, s{sT1}"]
    else:
        L += [f"s_and_b32 s{sT0}, vcc_lo, {hex(lo)}"]
    return L
def spin_lines(name, vreg, n, load, mask, sleep=6):
    C = cmp_mask(vreg, n, mask)
    k = 2 if n == 2 else 1
    return [f"    s_mov_b32 s{sSPIN}, 0x8000", f"L_spin_{name}:", f"    s_sleep {sleep}", "    " + load, "    s_waitcnt vmcnt(0)",
            f"    s_sub_u32 s{sSPIN}, s{sSPIN}, 1", f"    s_cbranch_scc1 L_out_{name}"] + ["    " + c for c in C[:k]] + ["    s_nop 1"] + ["    " + c for c in C[k:]] + \
           [f"    s_cbranch_scc1 L_spin_{name}", f"L_out_{name}:"]
def poll_check(S, name, vreg, n, load, mask):
    S(*cmp_mask(vreg, n, mask))
    S(f"s_cbranch_scc1 L_slow_{name}", f"L_back_{name}:")
    slow_paths.append([f"L_slow_{name}:"] + spin_lines(name, vreg, n, load, mask) + [f"    s_branch L_back_{name}"])

def divmod_v(S, q, r, x, d, tmp_s=sT0):
    m = (1 << 16) // d + 1
    S(f"v_mul_u32_u24 {v(q)}, {m}, {v(x)}", f"v_lshrrev_b32 {v(q)}, 16, {v(q)}",
      f"v_mul_u32_u24 {v(r)}, {d}, {v(q)}", f"v_sub_u32 {v(r)}, {v(x)}, {v(r)}")

def prologue():
    S = Stream()
    S("s_cmp_ge_u32 s2, 256", "s_cbranch_scc1 L_end")
    S("s_load_dwordx16 s[32:47], s[0:1], 0", "s_load_dwordx4 s[48:51], s[0:1], 64", "s_load_dwordx2 s[12:13], s[0:1], 80")
    S("s_bitcmp1_b32 s2, 7", "s_cbranch_scc1 L_qkv")
    return S
def common_a(role):
    S = Stream(); t = vT
    S(f"v_lshrrev_b32 {v(vT)}, 6, v0", f"v_and_b32 {v(vL)}, 63, v0", f"v_readfirstlane_b32 s{sW}, {v(vT)}")
    S(f"v_lshlrev_b32 {v(vL16)}, 4, {v(vL)}")
    S("s_and_b32 s3, s2, 7", f"s_lshr_b32 s{sT0}, s2, 3")
    S(f"s_and_b32 s{sMT}, s3, 1", f"s_lshl_b32 s{sMT}, s{sMT}, 3", f"s_and_b32 s{sT1}, s{sT0}, 7", f"s_add_u32 s{sMT}, s{sMT}, s{sT1}")
    S(f"s_and_b32 s{sSL}, s3, 6", f"s_bfe_u32 s{sT2}, s2, 0x10006", f"s_add_u32 s{sSL}, s{sSL}, s{sT2}")
    if MAP2 == 0:
        S(f"s_lshl_b32 s{sRT}, s3, 2", f"s_and_b32 s{sT2}, s{sT0}, 3", f"s_add_u32 s{sRT}, s{sRT}, s{sT2}", f"s_lshr_b32 s{sNT}, s{sT0}, 2")
    elif MAP2 == 1:
        S(f"s_lshl_b32 s{sRT}, s3, 2", f"s_and_b32 s{sT2}, s{sT0}, 1", f"s_add_u32 s{sRT}, s{sRT}, s{sT2}", f"s_add_u32 s{sRT}, s{sRT}, {2 if role == 'q' else 0}", f"s_bfe_u32 s{sNT}, s{sT0}, 0x30001")
    else:
        S(f"s_lshr_b32 s{sRT}, s3, 1", f"s_lshl_b32 s{sRT}, s{sRT}, 3", f"s_and_b32 s{sT2}, s{sT0}, 3", f"s_add_u32 s{sRT}, s{sRT}, s{sT2}", f"s_add_u32 s{sRT}, s{sRT}, {4 if role == 'q' else 0}",
          f"s_and_b32 s{sNT}, s3, 1", f"s_lshl_b32 s{sNT}, s{sNT}, 2", f"s_bfe_u32 s{sT2}, s{sT0}, 0x20002", f"s_add_u32 s{sNT}, s{sNT}, s{sT2}")
    if role == "q":
        S(f"s_add_u32 s{sROT}, s{sMT}, s{sSL}", f"s_mul_i32 s{sT2}, s{sROT}, 52", f"s_lshr_b32 s{sT2}, s{sT2}, 8", f"s_mul_i32 s{sT2}, s{sT2}, 5",
          f"s_sub_u32 s{sROT}, s{sROT}, s{sT2}", f"s_lshl_b32 s{sROT}, s{sROT}, 1")
    else:
        S(f"s_lshl_b32 s{sT2}, s{sSL}, 1", f"s_add_u32 s{sT2}, s{sT2}, s{sMT}", f"s_mul_i32 s{sT1}, s{sT2}, 26", f"s_lshr_b32 s{sT1}, s{sT1}, 8", f"s_mul_i32 s{sT1}, s{sT1}, 10", f"s_sub_u32 s{sROT}, s{sT2}, s{sT1}")
    S(f"v_mov_b32 {v(vFL)}, {hex(HUGE)}", "v_cmp_eq_u32 vcc, 0, v0", "v_accvgpr_write_b32 a255, 1")
    S(f"v_lshrrev_b32 {v(t)}, 3, {v(vL)}", f"v_cndmask_b32 {v(vFL)}, {v(vFL)}, 0, vcc", f"v_mul_u32_u24 {v(t)}, 1280, {v(t)}",
      f"v_lshrrev_b32 {v(t+1)}, 4, {v(vL)}", f"v_and_b32 {v(t+2)}, 7, {v(vL)}", f"v_xor_b32 {v(t+1)}, {v(t+1)}, {v(t+2)}",
      f"v_lshl_add_u32 {v(vXO)}, {v(t+1)}, 4, {v(t)}", f"v_xor_b32 {v(t+1)}, 4, {v(t+1)}", f"v_lshl_add_u32 {v(vXO+1)}, {v(t+1)}, 4, {v(t)}",
      f"v_add_u32 {v(XO[1])}, 9216, {v(XO[1])}", f"v_add_u32 {v(XO[2])}, {2*9216}, {v(XO[0])}", f"v_add_u32 {v(XO[3])}, {2*9216}, {v(XO[1])}")
    S("s_mov_b32 s6, 2621440", "s_mov_b32 s7, 0x20000", f"s_mov_b32 s14, {WS_SIZE}", "s_mov_b32 s15, 0x20000", "s_mov_b32 s18, 256", "s_mov_b32 s19, 0x20000",
      "s_mov_b32 s22, 2621440", "s_mov_b32 s23, 0x20000", "s_mov_b32 s11, 0x20000", "s_mov_b32 s27, 0x20000")
    S(f"s_lshl_b32 s{sXB}, s{sMT}, 2", f"s_add_u32 s{sXB}, s{sXB}, s{sW}", f"s_mul_i32 s{sAPB}, s{sXB}, {136*1024}", f"s_add_u32 s{sAPB}, s{sAPB}, {WS_AP}")
    if role == "q":
        S(f"s_mul_i32 s{sST+2}, s{sXB}, 3072", f"s_cmp_eq_u32 s{sSL}, 7", f"s_cselect_b32 s26, {WS_SIZE}, 0", f"s_cselect_b32 s{sST+3}, 0, {hex(HUGE)}")
        for i in range(4): S(f"v_mov_b32 {v(100+i)}, 0")
    S(f"s_mul_i32 s{sXB}, s{sXB}, {32*1280}", f"s_lshl_b32 s{sXM0}, s{sW}, 14")
    S(f"s_lshl_b32 s{sKX}, s{sROT}, 7", f"s_add_u32 s{sKX}, s{sKX}, s{sXB}", f"s_add_u32 s90, s{sXB}, 1280")
    return S
def common_b(role):
    S = Stream()
    S("s_mov_b32 s4, s32", "s_mov_b32 s5, s33")
    stamp(S, -1)
    if role == "q":
        S("s_mov_b32 s24, s12", "s_mov_b32 s25, s13")
        for i in range(3): S.I(f"buffer_store_dwordx4 {v(100,4)}, {v(vL16)}, {SAUX}, s{sST+2} offen offset:{1024*i} sc1", tok="zst" if i == 2 else None)
    S += x_dma(0)
    return S
def common_c():
    return Stream()("s_mov_b32 s16, s50", "s_mov_b32 s17, s51", "s_mov_b32 s20, s48", "s_mov_b32 s21, s49")

XO = [3, 4, 112, 113]
def x_dma(i):
    S = Stream()
    S(f"s_add_u32 m0, s{sXM0}, {L_XS + (i % 4) * 4096}")
    for j in range(4):
        S.I(f"buffer_load_dwordx4 {v(XO[j])}, {SX}, s{sKX} offen offset:{j*1024} lds", tok=f"x{i}" if j == 3 else None)
    if i < 9: S(f"s_add_u32 s{sKX}, s{sKX}, 128", f"s_cmp_eq_u32 s{sKX}, s90", f"s_cselect_b32 s{sKX}, s{sXB}, s{sKX}")
    return S
sKT = 80
def ktable(S, mult, base_s):
    S(f"s_mul_i32 s{sKT}, s{sROT}, {mult}", f"s_add_u32 s{sKT}, s{sKT}, s{base_s}", f"s_add_u32 s91, s{base_s}, {10*mult}")
def ktable_rest(S, mult, base_s):
    for i in range(1, 10):
        S(f"s_add_u32 s{sKT+i}, s{sKT+i-1}, {mult}")
        if i % 2 == 0 or ROLE[0] == 'g': S(f"s_cmp_eq_u32 s{sKT+i}, s91", f"s_cselect_b32 s{sKT+i}, s{base_s}, s{sKT+i}")

def x_reads(i):
    S = Stream()
    for p in range(4):
        S.I(f"ds_read_b128 {a_(16*i+4*p,4)}, {v(vXA+p)} offset:{(i % 4)*4096}", tok=f"xr{i}" if p == 3 else None)
    return S

def code_pf(tag):
    S = Stream(); t = vT
    if CODEPF:
        S("s_getpc_b64 s[48:49]", f"L_pc{tag}:", f"s_sub_u32 s48, s48, (L_pc{tag}-{KN})", "s_subb_u32 s49, s49, 0")
        S("s_lshr_b32 s50, s2, 3", "s_lshl_b32 s50, s50, 2", f"s_add_u32 s50, s50, s{sW}", "s_lshl_b32 s50, s50, 10",
          f"v_and_b32 {v(t)}, 7, {v(vL)}", f"v_lshl_add_u32 {v(t)}, {v(t)}, 7, s50", f"v_min_u32 {v(t)}, (L_end-{KN}), {v(t)}", f"global_load_dword a254, {v(t)}, s[48:49]")
    return S
def xaddr_setup(S, wave_xor):
    t = vT
    S(f"v_and_b32 {v(t)}, 31, {v(vL)}", f"v_bfe_u32 {v(t+1)}, {v(vL)}, 1, 3", f"v_lshrrev_b32 {v(t+2)}, 5, {v(vL)}", f"v_xor_b32 {v(t+1)}, {v(t+1)}, {v(t+2)}")
    if wave_xor:
        S(f"s_lshl_b32 s{sT0}, s{sW}, 1", f"v_xor_b32 {v(t+1)}, s{sT0}, {v(t+1)}")
    S(f"v_lshlrev_b32 {v(t)}, 7, {v(t)}", f"v_add_u32 {v(t)}, s{sXM0}, {v(t)}")
    for p in range(4):
        S(f"v_xor_b32 {v(t+2)}, {2*p}, {v(t+1)}", f"v_lshl_add_u32 {v(vXA+p)}, {v(t+2)}, 4, {v(t)}")

def sel_setup(S):
    t = vT
    S(f"v_lshrrev_b32 {v(t)}, 4, {v(vL)}", f"v_xor_b32 {v(t)}, {v(t)}, {v(vL)}", f"v_and_b32 {v(t)}, 1, {v(t)}", f"v_cmp_eq_u32 vcc, 0, {v(t)}",
      f"v_mov_b32 {v(t+1)}, 0x3f803f80")
    for i in range(4): S(f"v_cndmask_b32 {v(vSEL+i)}, 0, {v(t+1)}, vcc")
    S("s_mov_b32 s96, 0x0000ffff", "s_mov_b32 s97, 0x0000ffff")

vPK = vT + 40
def pack_vec(S):
    t = vT
    S(f"v_lshrrev_b32 {v(t)}, 3, {v(vL)}", f"v_mul_u32_u24 {v(t)}, 1280, {v(t)}", f"v_and_b32 {v(t+1)}, 7, {v(vL)}", f"v_lshl_add_u32 {v(vPK)}, {v(t+1)}, 4, {v(t)}")
    S(f"v_lshrrev_b32 {v(t)}, 4, {v(vL)}", f"v_bfe_u32 {v(t+1)}, {v(vL)}, 2, 2", f"v_lshl_add_u32 {v(t)}, {v(t)}, 3, {v(t+1)}", f"v_lshlrev_b32 {v(t)}, 7, {v(t)}",
      f"v_and_b32 {v(t+1)}, 3, {v(vL)}", f"v_lshl_add_u32 {v(t)}, {v(t+1)}, 3, {v(t)}", f"s_lshl_b32 s{sT0}, s{sW}, 12", f"s_add_u32 s{sT0}, s{sT0}, {LG_MISC}", f"v_add_u32 {v(vPK+1)}, s{sT0}, {v(t)}")
PKV = 88
def pack_pre(u, unit_s):
    S = Stream(); A, B, C = 48, 49, 50; R = PKV + 8 * u
    S(f"s_mul_i32 s51, s{unit_s}, 6554", "s_lshr_b32 s51, s51, 16", "s_mul_i32 s43, s51, 10", f"s_sub_u32 s43, s{unit_s}, s43")
    if u == 0: S("s_cmp_lt_u32 s51, 48", "s_cselect_b32 s40, s46, s38", "s_cselect_b32 s41, s47, s39", "s_mov_b32 s42, 819200", "s_cselect_b32 s42, 1966080, s42")
    for j in range(4):
        if j % 2 == 0:
            S(f"s_lshl_b32 s{C}, s51, 1")
            if j: S(f"s_add_u32 s{C}, s{C}, 1")
            S(f"s_bfe_u32 s{A}, s{C}, 0x30002", f"s_mul_i32 s{A}, s{A}, 3", f"s_lshr_b32 s3, s{C}, 5", f"s_add_u32 s{A}, s{A}, s3", f"s_lshl_b32 s{A}, s{A}, 2", f"s_and_b32 s3, s{C}, 3", f"s_add_u32 s{A}, s{A}, s3",
              f"s_lshl_b32 s{A}, s{A}, 4", f"s_sub_u32 s{C}, s{C}, 96", f"s_max_i32 s{C}, s{C}, 0", f"s_mul_i32 s3, s{C}, 52", "s_lshr_b32 s3, s3, 8", "s_mul_i32 s3, s3, 40",
              f"s_lshl_b32 s{C}, s{C}, 3", f"s_add_u32 s{C}, s{C}, s3", "s_cmp_lt_u32 s51, 48", f"s_cselect_b32 s{A}, s{A}, s{C}", f"s_cselect_b32 s{B}, {8*1280}, s{B}",
              f"s_mov_b32 s3, {40*1280}", f"s_cselect_b32 s{B}, s{B}, s3", f"s_mul_i32 s{A}, s{A}, 1280", "s_lshl_b32 s3, s43, 7", f"s_add_u32 s{A}, s{A}, s3")
        else: S(f"s_add_u32 s{A}, s{A}, s{B}")
        S(f"s_sub_u32 s3, s{A}, {1024*j}")
        if u: S(f"s_cmp_lt_u32 s{unit_s}, 680", f"s_cselect_b32 s3, s3, {hex(HUGE)}")
        S(f"v_add_u32 {v(R+j)}, s3, {v(vPK)}")
    for t in range(4):
        S(f"s_lshl_b32 s{A}, s43, 2")
        if t: S(f"s_add_u32 s{A}, s{A}, {t}")
        S(f"s_mul_i32 s{B}, s{A}, 52", f"s_lshr_b32 s{B}, s{B}, 8", f"s_mul_i32 s{B}, s{B}, 335", f"s_add_u32 s{A}, s{A}, s{B}", f"s_mul_i32 s{B}, s51, 5", f"s_add_u32 s{A}, s{A}, s{B}",
          f"s_lshl_b32 s{A}, s{A}, 10", f"s_add_u32 s{A}, s{A}, {WS_WP}")
        if u: S(f"s_cmp_lt_u32 s{unit_s}, 680", f"s_cselect_b32 s{A}, s{A}, {hex(HUGE)}")
        S(f"v_add_u32 {v(R+4+t)}, s{A}, {v(vL16)}")
    return S
def pack_dma(u, unit_s=None):
    S = Stream(); R = PKV + 8 * u
    if u == 0: S("s_mov_b32 s24, s40", "s_mov_b32 s25, s41", "s_mov_b32 s26, s42")
    else: S("s_mov_b32 s24, s38", "s_mov_b32 s25, s39", "s_mov_b32 s26, 819200")
    S(f"s_add_u32 m0, s{sWM0}, {LG_MISC}")
    for j in range(4): S.I(f"buffer_load_dwordx4 {v(R+j)}, {SAUX}, 0 offen offset:{1024*j} lds", tok=f"packdma{u}" if j == 3 else None)
    if u: S("s_mov_b32 s24, s12", "s_mov_b32 s25, s13")
    return S
def pack_finish(u):
    S = Stream(); d = vT + 20; R = PKV + 8 * u
    S.wait(f"packdma{u}")
    for t in range(4):
        for r2 in range(2): S(f"ds_read_b64_tr_b16 {a_(200+4*t+2*r2,2)}, {v(vPK+1)} offset:{r2*512+32*t}")
    for t in range(4): S.I(f"buffer_store_dwordx4 {a_(200+4*t,4)}, {v(R+4+t)}, {SWS}, 0 offen sc1", tok=f"chores{u}" if t == 3 else None)
    return S

def poll1_issue():
    S = Stream()
    S(f"v_and_b32 {v(vT+18)}, 15, {v(vL)}", f"v_lshlrev_b32 {v(vT+18)}, 2, {v(vT+18)}", f"buffer_load_dword {v(vT+16)}, {v(vT+18)}, {SDBG}, 0 offen sc1")
    return S
def poll1_check(tag):
    S = Stream()
    poll_check(S, "i" + tag, vT+16, 1, f"buffer_load_dword {v(vT+16)}, {v(vT+18)}, {SDBG}, 0 offen sc1", 0xFFFF)
    return S
def poll2_issue():
    S = Stream()
    S(f"v_lshrrev_b32 {v(vT+18)}, 2, {v(vL)}", f"v_lshlrev_b32 {v(vT+18)}, 7, {v(vT+18)}", f"v_and_b32 {v(vT+16)}, 3, {v(vL)}", f"v_lshl_add_u32 {v(vT+18)}, {v(vT+16)}, 3, {v(vT+18)}",
      f"s_mov_b32 s{sPKF}, {WS_PFLAG}",
      f"buffer_load_dwordx2 {v(vT+16,2)}, {v(vT+18)}, {SWS}, s{sPKF} offen sc1")
    return S
def poll2_check(tag):
    S = Stream()
    poll_check(S, "k" + tag, vT+16, 2, f"buffer_load_dwordx2 {v(vT+16,2)}, {v(vT+18)}, {SWS}, s{sPKF} offen sc1", (1 << 64) - 1)
    return S

vRS, vSQ = 116, 120
def stat_mfma(which, xr, zero):
    if which == 0: return f"v_mfma_f32_16x16x32_bf16 {v(vRS,4)}, {v(vSEL,4)}, {a_(xr,4)}, {'0' if zero else v(vRS,4)}"
    h = which - 1
    return f"v_mfma_f32_4x4x4_16b_bf16 {v(vSQ+4*h,4)}, {a_(xr+2*h,2)}, {a_(xr+2*h,2)}, {'0' if zero else v(vSQ+4*h,4)}"

def split3(S, d, x, t, side):
    S(f"v_cvt_pk_bf16_f32 {v(t)}, {v(x)}, {v(x)}", f"v_lshlrev_b32 {v(t+2)}, 16, {v(t)}", f"v_sub_f32 {v(t+1)}, {v(x)}, {v(t+2)}")
    if side == "A":
        S(f"v_mov_b32 {v(d)}, {v(t)}", f"v_cvt_pk_bf16_f32 {v(d+1)}, {v(x)}, {v(t+1)}", f"v_and_b32 {v(t+2)}, 0xffff0000, {v(d+1)}",
          f"v_sub_f32 {v(t+2)}, {v(t+1)}, {v(t+2)}", f"v_cvt_pk_bf16_f32 {v(d+2)}, {v(t+1)}, {v(t+2)}", f"v_mov_b32 {v(d+3)}, 0")
    else:
        S(f"v_cvt_pk_bf16_f32 {v(d)}, {v(x)}, {v(t+1)}", f"v_and_b32 {v(t+2)}, 0xffff0000, {v(d)}", f"v_sub_f32 {v(t+2)}, {v(t+1)}, {v(t+2)}",
          f"v_cvt_pk_bf16_f32 {v(d+1)}, {v(t+2)}, {v(x)}", f"v_cvt_pk_bf16_f32 {v(d+2)}, {v(t+1)}, {v(x)}", f"v_mov_b32 {v(d+3)}, 0")

def stats_consume(cmul):
    S = Stream(); t = vT + 12
    S(f"v_cndmask_b32 {v(vST)}, {v(vRS+1)}, {v(vRS)}, s[96:97]")
    for i in range(4): S(f"v_add_f32 {v(vSQ+i)}, {v(vSQ+i)}, {v(vSQ+4+i)}")
    S("s_mov_b32 s98, 0xaaaaaaaa", "s_mov_b32 s99, 0xaaaaaaaa")
    S(f"v_cndmask_b32 {v(vSQ)}, {v(vSQ)}, {v(vSQ+1)}, s[98:99]", f"v_cndmask_b32 {v(vSQ+2)}, {v(vSQ+2)}, {v(vSQ+3)}, s[98:99]")
    S("s_mov_b32 s98, 0xcccccccc", "s_mov_b32 s99, 0xcccccccc")
    S(f"v_cndmask_b32 {v(vSQ)}, {v(vSQ)}, {v(vSQ+2)}, s[98:99]", f"v_mul_f32 {v(vST)}, {hex(0x3acccccd)}, {v(vST)}", f"v_mov_b32 {v(vSQ+1)}, {v(vSQ)}")
    S(f"v_permlane32_swap_b32 {v(vSQ)}, {v(vSQ+1)}", f"v_add_f32 {v(vSQ)}, {v(vSQ)}, {v(vSQ+1)}", f"v_mul_f32 {v(vSQ)}, {hex(0x3acccccd)}, {v(vSQ)}")
    S(f"v_fma_f32 {v(vSQ)}, -{v(vST)}, {v(vST)}, {v(vSQ)}", f"v_max_f32 {v(vSQ)}, 0, {v(vSQ)}", f"v_add_f32 {v(vSQ)}, {hex(0x3727c5ac)}, {v(vSQ)}")
    S(f"v_rsq_f32 {v(vST+1)}, {v(vSQ)}", f"v_sqrt_f32 {v(vSD)}, {v(vSQ)}")
    S("s_mov_b32 s98, -1", "s_mov_b32 s99, 0", f"v_sub_f32 {v(t)}, 0, {v(vST)}", f"v_cndmask_b32 {v(t)}, 0, {v(t)}, s[98:99]")
    split3(S, vMB, t, t+1, "B")
    S(f"v_mul_f32 {v(vC)}, {cmul}, {v(vST+1)}")
    return S

def cond_voff(S, dst, base_v, cond_s, lim, lanes_lo_only, tmp_s=sT0):
    S(f"s_cmp_lt_u32 s{cond_s}, {lim}", f"s_cselect_b32 s98, -1, 0", "s_mov_b32 s99, 0" if lanes_lo_only else "s_mov_b32 s99, s98",
      f"v_mov_b32 {v(dst)}, {hex(HUGE)}", f"v_cndmask_b32 {v(dst)}, {v(dst)}, {v(base_v)}, s[98:99]")
def poll_setup(S, dst, line_a_s, line_b_s, t):
    S(f"v_and_b32 {v(t)}, 15, {v(vL)}", f"v_lshlrev_b32 {v(t)}, 2, {v(t)}", f"v_add_u32 {v(dst)}, s{line_a_s}, {v(t)}", f"v_add_u32 {v(t)}, s{line_b_s}, {v(t)}",
      f"v_cndmask_b32 {v(dst)}, {v(t)}, {v(dst)}, s[96:97]")
def stats_from_sums(cmul, su, sq):
    S = Stream(); t = vT + 12
    def rb(r): S(f"v_cvt_pk_bf16_f32 {v(r)}, {v(r)}, {v(r)}", f"v_lshlrev_b32 {v(r)}, 16, {v(r)}")
    S(f"v_mul_f32 {v(vST)}, {hex(0x3acccccd)}, {v(su)}", f"v_mul_f32 {v(sq)}, {hex(0x3acccccd)}, {v(sq)}")
    S(f"v_fma_f32 {v(sq)}, -{v(vST)}, {v(vST)}, {v(sq)}", f"v_max_f32 {v(sq)}, 0, {v(sq)}")
    rb(sq)
    S(f"v_add_f32 {v(sq)}, {hex(0x3727c5ac)}, {v(sq)}")
    rb(sq)
    S(f"v_sqrt_f32 {v(vSD)}, {v(sq)}")
    S("s_mov_b32 s98, -1", "s_mov_b32 s99, 0", f"v_sub_f32 {v(t)}, 0, {v(vST)}", f"v_cndmask_b32 {v(t)}, 0, {v(t)}, s[98:99]")
    rb(vSD)
    S(f"v_rcp_f32 {v(vST+1)}, {v(vSD)}")
    S(f"v_cvt_pk_bf16_f32 {v(vMB)}, {v(t)}, 0", f"v_cvt_pk_bf16_f32 {v(vMB+1)}, 0, {v(t)}", f"v_mov_b32 {v(vMB+2)}, {v(vMB+1)}", f"v_mov_b32 {v(vMB+3)}, 0")
    S(f"v_mul_f32 {v(vC)}, {cmul}, {v(vST+1)}")
    return S

class Core:
    def __init__(self, stages, R, tokbase):
        self.stages = stages; self.R = R; self.tb = tokbase
    def build(self, pre_issued, hooks_bar=None, hooks_after=None, first_wait=()):
        hooks_bar = hooks_bar or {}; hooks_after = hooks_after or {}
        st = self.stages
        seq = [(i, m) for i, s in enumerate(st) for m in s["mf"]]
        first = {}
        for n, (i, m) in enumerate(seq): first.setdefault(i, n)
        N = len(seq)
        def reads(n):
            (acc, r0, r1, xr, cs, zero, ex) = seq[n][1]
            f = aWF + 4 * (n % NF)
            return [Ins(f"ds_read_b64_tr_b16 {a_(f,2)}, {r0}"), Ins(f"ds_read_b64_tr_b16 {a_(f+2,2)}, {r1}", tok=f"fr{self.tb}{n}")]
        def open_stage(S, i):
            toks = [f"{self.tb}{i}"] + list(hooks_bar.get(i, []))
            if st[i]["xs"] is not None: toks.append(f"x{st[i]['xs']}")
            if 'nowait' not in ABL: S.wait(*toks)
            if 'nobar' not in ABL: S("s_barrier")
        head = Stream()
        open_stage(head, 0)
        if st[0]["xs"] is not None: head += x_reads(st[0]["xs"])
        for n in range(DPF): head += reads(n)
        slots = [Stream() for _ in range(N)]
        tails = [Stream() for _ in range(N)]
        extras = [[] for _ in range(N)]
        def spread(n0, stream, dscost=0.5, pace=1):
            grp = Stream(); cnt = 0; n = n0; last = n0
            for ins in stream:
                grp.append(ins)
                vm = ins.kind in ("vm_dma", "vm_ld", "vm_st")
                if vm or ins.kind == "mfma": cnt += 1
                elif ins.kind in ("ds_rd", "ds_wr"): cnt += dscost
                if cnt >= 1:
                    extras[min(int(n), N-1)].append(grp); grp = Stream(); cnt = 0; last = n; n += (pace if vm else 1)
            if grp: extras[min(int(last), N-1)].append(grp)
            return n
        qptr = [0]
        if 0 in hooks_after: qptr[0] = spread(0, hooks_after[0], pace=st[0].get("pace", 1))
        for n in range(N):
            i, (acc, r0, r1, xr, cs, zero, ex) = seq[n]
            S = slots[n]; f = aWF + 4 * (n % NF)
            if PAIRWAIT and n % 2 == 0 and n + 1 < N: S.wait(f"fr{self.tb}{n+1}")
            S(f"v_mfma_f32_32x32x16_bf16 {v(acc,16)}, {a_(f,4)}, {a_(xr,4)}, {'0' if zero else v(acc,16)}")
            if cs is not None and 'nocs' not in ABL:
                tails[n](f"v_mfma_f32_16x16x32_bf16 {v(cs[0],4)}, {v(vSEL,4)}, {a_(f,4)}, {'0' if cs[1] else v(cs[0],4)}")
            if ex and 'nostat' not in ABL: tails[n](ex)
            m = n + DPF
            if m < N:
                j = seq[m][0]
                if first[j] == m:
                    open_stage(S, j)
                    k = n
                    if st[j]["xs"] is not None: k = spread(k, x_reads(st[j]["xs"]), dscost=1) - 3
                    k = max(k, qptr[0])
                    d = Stream()
                    if st[j]["xs"] is not None and st[j]["xs"] + 3 < 10 and st[j]["xs"] >= 1:
                        d.wait(f"xr{st[j]['xs']-1}"); d += x_dma(st[j]["xs"] + 3)
                    w = j - 2 + self.R
                    if w >= pre_issued and w < len(st): d += st[w]["dma"]
                    if j in hooks_after: d += hooks_after[j]
                    qptr[0] = spread(k, d, pace=st[j].get("pace", 1))
                S += reads(m)
            for g in extras[n]: S += g
        self.tails = tails
        return head, slots, first

ST0 = 7
def w2_slot(k):
    if ST0 <= k < ST0 + 7: k -= 7
    if k < 5: return ("a", 20 * k)
    if k >= 14: return ("a", 20 * (k - 9))
    return ("a", 200 + 20 * (k - 5)) if ROLE[0] == "g" else ("v", 208 + 20 * (k - 5))
def acc2(m4, tt):
    if ROLE[0] == "q": return v(128 + 20 * m4 + 4 * tt, 4)
    return a_(160 + 20 * (m4 - 2) + 4 * tt, 4) if m4 >= 2 else v(128 + 20 * m4 + 4 * tt, 4)
def act_base(i):
    if i & 1: return ("v", 64 if i == 1 else 48)
    return ("v", 192) if ROLE[0] == "g" else ("a", 160)
def glu_sched():
    avail = {s: 0 for s in range(4, 9)}
    extra = {9: PK_AT + PKD[2], 3: 10, 2: 10, 1: 10, 0: 10}
    for s in list(extra)[:NX]: avail[s] = extra[s]
    slot = {}; iss = {}; cnt = {}
    for g in range(30):
        s = min(avail, key=lambda x: (avail[x], x))
        j = max(avail[s], iss.get(g - 1, 0), [0, 0, 0, 0, 1][g] if g < 5 else 0)
        while g >= 4 and cnt.get(j, 0) >= WCAP: j += 1
        assert g < 2 or j <= g - 1
        cnt[j] = cnt.get(j, 0) + (1 if g >= 4 else 0)
        slot[g] = s; iss[g] = j; avail[s] = g + 2
    for s in extra:
        if s not in avail: avail[s] = extra[s]
    order = sorted(avail, key=lambda x: avail[x])
    return slot, iss, [(s, avail[s]) for s in order]
def w2_lds_addr(role, f):
    if role == "g":
        grp = (f + 3) // 4; grp = 9 if grp == 0 else grp - 1
        if f == 0: return (4096, glu_sched()[2][0][0] * 16384 + 3 * 1024) if False else (4096, glu_sched()[2][W2G0][0] * 16384 + 3 * 1024)
        return (4096, glu_sched()[2][W2ORD[(f + 3) // 4]][0] * 16384 + ((f + 3) % 4) * 1024)
    return (10240, 3072 + f * 1024) if f < 10 else (25600, 45056 + (f - 10) * 1024)
def w2_off(k, t):
    part = min(k // 4, 3); return sW2P + part, ((k - 4 * part) * 5 + t) * 1024
def w2_stage(role, f0, f1):
    S = Stream(); run = None
    for f in range(f0, f1):
        ws_, base = w2_lds_addr(role, f); sp, off = w2_off(ST0 + f // 5, f % 5)
        imm = off & 4095
        if run != (ws_, base - imm, sp, off >> 12) :
            run = (ws_, base - imm, sp, off >> 12)
            assert base >= imm
            S(f"s_add_u32 m0, s{sWS[ws_]}, {base - imm}")
        S.I(f"buffer_load_dwordx4 {v(VW[off >> 12])}, {SWS}, s{sp} offen offset:{imm} sc1 lds", tok=f"w2s{f}")
    return S
vLA = 43
def w2_lds_regs(role):
    keys = []
    for f in range(35):
        ws_, base = w2_lds_addr(role, f); k = (ws_, base >> 16)
        if k not in keys: keys.append(k)
    return keys
def w2_lds_setup(role):
    S = Stream()
    for n, (ws_, hi) in enumerate(w2_lds_regs(role)):
        S(f"s_add_u32 s47, s{sWS[ws_]}, {hi << 16}", f"v_add_u32 {v(vLA+n)}, s47, {v(vL16)}")
    return S
def w2_copy(role, k):
    S = Stream(); b = w2_slot(k)
    for t in range(5):
        f = (k - ST0) * 5 + t; ws_, base = w2_lds_addr(role, f)
        r = vLA + w2_lds_regs(role).index((ws_, base >> 16))
        S.I(f"ds_read_b128 {rg(b,4*t,4)}, {v(r)} offset:{base & 0xFFFF}", waits=[f"w2s{f}"])
    return S
def rg(b, off, n): return (a_ if b[0] == "a" else v)(b[1] + off, n)

P2_STEPS = [("h", 0, i) for i in range(4)] + [("h", 1, i) for i in range(4)] + [("h", 2, i) for i in range(4)] + [("o", 0, i) for i in range(5)]
PARTS = [(0, 4, 0, 192), (4, 4, 1, 64), (8, 4, 2, 192), (12, 5, 3, 48)]
sW2P, sACP = 66, 36
sWS = {16384: sXM0, 4096: sWM0, 1024: 92, 10240: 92, 25600: 93}
VW = [2, 16, 17, 18, 19, 13, 14]
def p2_setup():
    S = Stream()
    S(f"s_add_u32 s{sT2}, s{sW}, s{sNT}", f"s_and_b32 s{sR2}, s{sT2}, 3")
    S(f"s_mul_i32 s{sT2}, s{sNT}, {68*5120}", f"s_add_u32 s{sT2}, s{sT2}, {WS_WP}", f"s_mul_i32 s{sW2P}, s{sR2}, {4*5120}", f"s_add_u32 s{sW2P}, s{sW2P}, s{sT2}",
      f"s_add_u32 s{sW2P+1}, s{sW2P}, {16*5120}", f"s_add_u32 s{sW2P+2}, s{sW2P}, {32*5120}", f"s_mul_i32 s{sW2P+3}, s{sR2}, {5*5120}", f"s_add_u32 s{sW2P+3}, s{sW2P+3}, s{sT2}",
      f"s_add_u32 s{sW2P+3}, s{sW2P+3}, {48*5120}")
    if ROLE[0] == "g": S(f"s_lshl_b32 s92, s{sW}, 10")
    else: S(f"s_mul_i32 s92, s{sW}, 10240", f"s_mul_i32 s93, s{sW}, 25600")
    return S
def vw_setup():
    S = Stream()
    for j in range(1, 7): S(f"v_add_u32 {v(VW[j])}, {4096*j}, {v(vL16)}")
    return S
sR2 = 65
def w2_load(k):
    S = Stream(); b = w2_slot(k)
    for t in range(5):
        sp, off = w2_off(k, t)
        S(f"buffer_load_dwordx4 {rg(b,4*t,4)}, {v(VW[off >> 12])}, {SWS}, s{sp} offen offset:{off & 4095} sc1")
    return S
vPF, vPV, vOO, vXR, vRA = 6, 7, 9, 24, 36
VA = [29, 30, 31, 32]
sPF, sOB = 57, 76
def XRA(): return 240 if ROLE[0] == 'g' else 244
def p2_pre():
    S = Stream(); t = vT + 8
    S(f"v_lshrrev_b32 {v(t)}, 4, {v(vL)}", f"v_and_b32 {v(t+1)}, 15, {v(vL)}", f"v_lshlrev_b32 {v(t+3)}, 9, {v(t)}", f"v_lshl_add_u32 {v(t+3)}, {v(t+1)}, 4, {v(t+3)}")
    for j in range(4):
        S(f"s_add_u32 s{sT2}, s{sW}, {j}", f"s_and_b32 s3, s{sT2}, 1", "s_lshl_b32 s3, s3, 8", f"s_bfe_u32 s{sT2}, s{sT2}, 0x10001", f"s_mul_i32 s{sT2}, s{sT2}, {136*1024}", f"s_add_u32 s{sT2}, s{sT2}, s3",
          f"v_add_u32 {v(VA[j])}, s{sT2}, {v(t+3)}")
    S(f"v_and_b32 {v(vPF)}, 7, {v(vL)}", f"v_lshlrev_b32 {v(vPF)}, 2, {v(vPF)}", f"s_lshr_b32 s{sPF}, s{sRT}, 1", f"s_lshl_b32 s{sPF}, s{sPF}, 9")
    S(f"v_mul_u32_u24 {v(vOO)}, 1280, {v(t+1)}", f"v_lshl_add_u32 {v(vOO)}, {v(t)}, 3, {v(vOO)}",
      f"s_lshl_b32 s{sOB}, s{sRT}, 2", f"s_add_u32 s{sOB}, s{sOB}, s{sW}", f"s_mul_i32 s{sOB}, s{sOB}, {16*1280}", f"s_mul_i32 s{sT2}, s{sNT}, 160", f"s_add_u32 s{sOB}, s{sOB}, s{sT2}")
    S(f"s_mul_i32 s{sT2}, s{sRT}, {2*136*1024}", f"s_add_u32 s{sT2}, s{sT2}, {WS_AP}", f"s_lshl_b32 s44, s{sR2}, 13", f"s_add_u32 s44, s44, s{sT2}",
      f"s_mul_i32 s45, s{sR2}, {5*2048}", f"s_add_u32 s45, s45, s{sT2}", f"s_add_u32 s45, s45, {48*2048}")
    return S
def xre_load():
    S = Stream()
    for tt in range(5): S(f"buffer_load_dwordx2 {a_(XRA()+2*tt,2)}, {v(vOO)}, {SX}, s{sOB} offen offset:{32*tt}")
    return S
def wp_touch(r):
    S = Stream()
    S(f"s_and_b32 s48, s{sRT}, 3", "s_lshl_b32 s48, s48, 2", f"s_add_u32 s48, s48, s{sW}", f"s_mul_i32 s48, s48, {170*128}", f"s_mul_i32 s49, s{sNT}, {68*5120}", "s_add_u32 s48, s48, s49", f"s_add_u32 s48, s48, {WS_WP}",
      f"v_lshlrev_b32 {v(r)}, 7, {v(vL)}", f"buffer_load_dword a250, {v(r)}, {SWS}, s48 offen sc1", "s_add_u32 s48, s48, 8192", f"buffer_load_dword a251, {v(r)}, {SWS}, s48 offen sc1",
      f"s_add_u32 s48, s48, {42*128}", f"buffer_load_dword a253, {v(r)}, {SWS}, s48 offen sc1")
    return S
def p2_poll_txt(i): return f"buffer_load_dword {v(vPV+(i&1))}, {v(vPF)}, {SWS}, s{sPF} offen offset:{PARTS[i][2]*128} sc1"
def p2_poll(i): return Stream([Ins(p2_poll_txt(i), tok=f"pp{i}")])
def p2_L(i, srd):
    S = Stream(); k0, n, _, _ = PARTS[i]; r0 = act_base(i)
    if i < 3: S(f"s_add_u32 s46, s44, {i*16*2048}")
    else: S("s_mov_b32 s46, s45")
    if i == 3 and LASTM:
        S("s_add_u32 s47, s45, 4096", "s_add_u32 s48, s45, 8192")
        for m4 in (1, 2, 3, 0):
            for s in range(n): S(f"buffer_load_dwordx4 {rg(r0,16*s+4*m4,4)}, {v(VA[m4])}, {srd}, s{46+(s>>1)} offen offset:{(s&1)*2048} sc1")
        return S
    for s in range(n):
        for m4 in range(4):
            S(f"buffer_load_dwordx4 {rg(r0,16*s+4*m4,4)}, {v(VA[m4])}, {srd}, s46 offen offset:{(s&1)*2048} sc1")
        if s & 1 and s + 1 < n: S(f"s_add_u32 s46, s46, 4096")
    return S
def p2_try(i):
    S = Stream()
    S(*cmp_mask(vPV + (i & 1), 1, 0xFF)); S(f"s_cselect_b32 s26, 0, {WS_SIZE}")
    return S
def phase2(tag, rest, store_tok, flag, l1_done):
    S = Stream(); t = vRA
    vXR = 168 if tag == "g" else 24
    XU = 148 if LASTM else 208
    stamp(S)
    stamp(S, 3)
    S += w2_lds_setup(tag)
    for i in range(4):
        k0, n, _, _ = PARTS[i]; r0 = act_base(i)
        bg = Stream()
        if i < 3 and not (i == 0 and l1_done):
            S += p2_try(i + 1)
            bg += p2_L(i + 1, SAUX)
        if i < len(rest): bg += rest[i]
        if i == 2 and not XRE:
            for tt in range(5): bg(f"buffer_load_dwordx2 {v(vXR+2*tt,2)}, {v(vOO)}, {SX}, s{sOB} offen offset:{32*tt}")
        M = Stream()
        if i == 3 and LASTM:
            S.drain(vm=False); S("s_barrier")
            QD = [48 + 16 * s + 4 * m4 for m4 in (1, 2, 3) for s in range(5)]
            side = Stream()
            for j in range(1, 4):
                side(f"s_add_u32 s{sT0}, s{sW}, {j}", f"s_and_b32 s{sT0}, s{sT0}, 3", f"s_mul_i32 s{sT0}, s{sT0}, 15360", f"s_add_u32 s{sT0}, s{sT0}, {(j-1)*5120}", f"v_add_u32 {v(t+j)}, s{sT0}, {v(vL16)}")
            side(f"s_mul_i32 s{sT0}, s{sW}, 15360", f"v_add_u32 {v(t)}, s{sT0}, {v(vL16)}")
            for q_ in range(10): side(f"v_accvgpr_read_b32 {v(vXR+q_)}, {a_(XRA()+q_)}")
            side2 = Stream()
            for q_ in range(10): side2(f"v_lshlrev_b32 {v(XU+2*q_)}, 16, {v(vXR+q_)}", f"v_and_b32 {v(XU+2*q_+1)}, 0xffff0000, {v(vXR+q_)}")
            sl_ = []
            for pos, m4 in enumerate((1, 2, 3, 0)):
                for s in range(n):
                    b = w2_slot(k0 + s)
                    for tt in range(5):
                        X = Stream(); acc = acc2(m4, tt); e = 5 * s + tt
                        if tt == 0: X(f"s_waitcnt vmcnt({19 - 5*pos - s})")
                        X(f"v_mfma_f32_16x16x32_bf16 {acc}, {rg(b,4*tt,4)}, {rg(r0,16*s+4*m4,4)}, {acc}")
                        pm = (m4 - 1) & 3
                        if pos in (1, 2) and e % 5 == 3: X(f"ds_write_b128 {v(t+pm)}, {acc2(pm,e//5)} offset:{(e//5)*1024}")
                        if pos == 3:
                            if e in (2, 4, 6, 8, 10): X(f"ds_write_b128 {v(t+pm)}, {acc2(pm,e//2-1)} offset:{(e//2-1)*1024}")
                            if e == RBAR: X.drain(vm=False); X("s_barrier")
                            if e >= RBAR:
                                per = -(-15 // (25 - RBAR))
                                for q_ in range((e - RBAR) * per, min(15, (e - RBAR + 1) * per)): X(f"ds_read_b128 {v(QD[q_],4)}, {v(t)} offset:{q_*1024}")
                        sl_.append(X)
            left = interleave(sl_, side, 0.7); assert not left
            left = interleave(sl_, side2, 0.9, start=52); assert not left
            for X in sl_: S += X
            stamp(S); stamp(S, 3)
            for s in range(3):
                for q_ in range(10): S(f"v_pk_add_f32 {v(XU+2*q_,2)}, {v(XU+2*q_,2)}, {v(QD[5*s+q_//2]+2*(q_&1),2)}")
            for q_ in range(10): S(f"v_pk_add_f32 {v(XU+2*q_,2)}, {v(XU+2*q_,2)}, {v(128+2*q_,2)}")
            break
        for s in range(n):
            k = k0 + s; b = w2_slot(k)
            if i > 0: M(f"s_nop {s} ; WAITX")
            if i == 0 and s == FLAG_AFTER:
                M.wait(store_tok); M("s_barrier"); M += flag
            if s == POLL_STEP and i + 2 < 4: M += p2_poll(i + 2)
            if k == 12:
                M.drain(vm=False); M("s_barrier")
                for j in range(1, 4):
                    M(f"s_add_u32 s{sT0}, s{sW}, {j}", f"s_and_b32 s{sT0}, s{sT0}, 3", f"s_mul_i32 s{sT0}, s{sT0}, 15360", f"s_add_u32 s{sT0}, s{sT0}, {(j-1)*5120}", f"v_add_u32 {v(t+j)}, s{sT0}, {v(vL16)}")
                M(f"s_mul_i32 s{sT0}, s{sW}, 15360", f"v_add_u32 {v(t)}, s{sT0}, {v(vL16)}")
            for m4 in ([0, 1, 2, 3] if k < 16 else [1, 2, 3, 0]):
                for tt in range(5):
                    acc = acc2(m4, tt)
                    M(f"v_mfma_f32_16x16x32_bf16 {acc}, {rg(b,4*tt,4)}, {rg(r0,16*s+4*m4,4)}, {'0' if k == 0 else acc}")
                    if 5 <= k < 12 and m4 == 1: M.append(w2_copy(tag, k + 2)[tt])
                    if k == 12 and m4 < 2 and XRE: M(f"v_accvgpr_read_b32 {v(vXR+5*m4+tt)}, {a_(XRA()+5*m4+tt)}")
                    if k == 13 and m4 < 2: M(f"v_lshlrev_b32 {v(XU+10*m4+2*tt)}, 16, {v(vXR+5*m4+tt)}")
                    if k == 14 and m4 < 2: M(f"v_and_b32 {v(XU+10*m4+2*tt+1)}, 0xffff0000, {v(vXR+5*m4+tt)}")
                    if k == 16 and m4 != 1:
                        pm = (m4 - 1) & 3
                        M(f"ds_write_b128 {v(t+pm)}, {acc2(pm,tt)} offset:{tt*1024}")
            if s == 0 or s == n - 1: stamp(M, 3)
        M = sprinkle(M, bg, P2_PERIOD)
        cnt = 0
        for x in M:
            if x.kind in ("vm_ld", "vm_st", "vm_dma"): cnt += 1
            if "WAITX" in x.text:
                s = int(x.text.split()[1]); S(f"s_waitcnt vmcnt({min(63, 4*(n-1-s)+cnt)})")
            else: S.append(x)
        if i < 3:
            nm = f"p{i+1}{tag}"
            if i + 2 < 4: S.wait(f"pp{i+2}")
            S("s_cmp_eq_u32 s26, 0", f"s_cbranch_scc1 L_slow_{nm}", f"L_back_{nm}:")
            ld = p2_poll_txt(i + 1) + (("\n    " + p2_poll_txt(i + 2)) if i + 2 < 4 else "")
            L = [f"L_slow_{nm}:"] + spin_lines(nm, vPV + ((i + 1) & 1), 1, ld, 0xFF, sleep=3)
            L += ["    " + x.text for x in p2_L(i + 1, SWS)]
            L.append(f"    s_branch L_back_{nm}")
            slow_paths.append(L)
        stamp(S)
        stamp(S, 3)
    if not LASTM:
      S.drain(vm=False); S("s_barrier")
      R0 = 48
      for s in range(3):
        for tt in range(5): S(f"ds_read_b128 {v(R0+20*s+4*tt,4)}, {v(t)} offset:{s*5120+tt*1024}")
      for i in range(10): S(f"v_pk_add_f32 {v(XU+2*i,2)}, {v(XU+2*i,2)}, {v(128+2*i,2)}")
      for s in range(3):
        for i in range(10): S(f"v_pk_add_f32 {v(XU+2*i,2)}, {v(XU+2*i,2)}, {v(R0+20*s+2*i,2)}")
    for tt in range(5):
        S(f"v_cvt_pk_bf16_f32 {v(vXR+2*tt)}, {v(XU+4*tt)}, {v(XU+4*tt+1)}", f"v_cvt_pk_bf16_f32 {v(vXR+2*tt+1)}, {v(XU+4*tt+2)}, {v(XU+4*tt+3)}")
        S(f"buffer_store_dwordx2 {v(vXR+2*tt,2)}, {v(vOO)}, {SOUT}, s{sOB} offen offset:{32*tt} {OUTFLAGS}")
    stamp(S)
    if STAMPS:
        S(f"s_lshl_b32 s{sT0}, s2, 8", f"s_add_u32 s{sT0}, s{sT0}, {WS_STAMP}", f"s_cmp_eq_u32 s{sW}, 0", f"s_cselect_b32 s{sT1}, 0, {hex(HUGE)}",
          f"v_lshlrev_b32 {v(48)}, 2, {v(vL)}", f"v_or_b32 {v(48)}, s{sT1}, {v(48)}", f"buffer_store_dword v0, {v(48)}, {SWS}, s{sT0} offen")
    S("s_endpgm")
    return S
FLAG_AFTER = 0
LASTM = 1
RBAR = 15
P2_PERIOD = 64
H1FLAG_AT = 27
XU = 208
OUTFLAGS = ''
POLL_STEP = 3
POLL2_AT = 18
PK_AT = 3
ROT2MASK = 3
EPI_RATE = 2.75
EPI_RATE2 = 3.3
W2CAP17 = 0
EPI_LAG = 1
PAIRWAIT = 1

def flag_store(off_s, imm):
    S = Stream()
    S(f"buffer_store_dword a255, {v(vFL)}, {SWS}, s{off_s} offen offset:{imm} sc1")
    return S

def glu_path():
    S = Stream(); t = vT
    ACC = [128, 192, 128]
    S += common_a("g")
    S(f"v_lshrrev_b32 {v(t)}, 3, {v(vL)}", f"v_mul_u32_u24 {v(t)}, 3072, {v(t)}", f"v_bfe_u32 {v(t+1)}, {v(vL)}, 4, 1", f"s_and_b32 s{sT0}, s{sW}, 2", f"v_or_b32 {v(t+1)}, s{sT0}, {v(t+1)}",
      f"v_lshlrev_b32 {v(t+1)}, 1, {v(t+1)}", f"v_and_b32 {v(t+2)}, 7, {v(vL)}", f"v_xor_b32 {v(t+1)}, {v(t+1)}, {v(t+2)}", f"v_lshl_add_u32 {v(vWO)}, {v(t+1)}, 4, {v(t)}")
    S(f"s_and_b32 s{sWB}, s{sW}, 1", f"s_mul_i32 s{sWB}, s{sWB}, {32*3072}", f"s_mul_i32 s{sT0}, s{sSL}, 384", f"s_add_u32 s{sWB}, s{sWB}, s{sT0}",
      f"s_lshl_b32 s{sWM0}, s{sW}, 12")
    WO = [5, 10, 11, 12]
    for j in range(1, 4): S(f"v_add_u32 {v(WO[j])}, {j*(8*3072-1024)}, {v(vWO)}")
    ktable(S, 64 * 3072, sWB)
    def w_dma(g):
        c, i = divmod(g, 10); D = Stream()
        if c and i == 0: D("s_add_u32 s8, s8, 128", "s_addc_u32 s9, s9, 0", "s_sub_u32 s10, s10, 128")
        D(f"s_add_u32 m0, s{sWM0}, {glu_sched()[0][g] * 16384}")
        for j in range(4):
            D.I(f"buffer_load_dwordx4 {v(WO[j])}, {SW}, s{sKT+i} offen offset:{j*1024} lds", tok=f"w{g}" if j == 3 else None)
        return D
    ktable_rest(S, 64 * 3072, sWB)
    S("s_mov_b32 s10, 1966080")
    S += common_b("g")
    S(f"s_cmp_lt_u32 s{sW}, 2", "s_cselect_b32 s8, s42, s44", "s_cselect_b32 s9, s43, s45")
    S += w_dma(0)
    S += common_c()
    S(f"s_lshl_b32 s32, s{sMT}, 3", f"s_add_u32 s32, s32, s{sSL}", "s_lshl_b32 s32, s32, 2", f"s_add_u32 s32, s32, s{sW}", "s_add_u32 s33, s32, 512",
      f"s_lshl_b32 s34, s{sMT}, 7", f"s_lshl_b32 s35, s{sSL}, 2", "s_add_u32 s34, s34, s35", f"s_add_u32 s34, s34, {WS_PFLAG}")
    S += x_dma(1); S += w_dma(1)
    S += code_pf('g')
    pack_vec(S); S += pack_pre(0, 32); S += pack_pre(1, 33)
    xaddr_setup(S, False); sel_setup(S)
    S(f"v_bfe_u32 {v(t)}, {v(vL)}, 4, 1", f"v_lshrrev_b32 {v(t+1)}, 5, {v(vL)}", f"v_bfe_u32 {v(t+2)}, {v(vL)}, 2, 2",
      f"v_lshl_add_u32 {v(t+1)}, {v(t+1)}, 3, {v(t+2)}", f"v_lshlrev_b32 {v(t+1)}, 7, {v(t+1)}", f"v_lshl_add_u32 {v(t+1)}, {v(t)}, 13, {v(t+1)}",
      f"v_and_b32 {v(t+3)}, 1, {v(vL)}", f"v_bfe_u32 {v(t+4)}, {v(vL)}, 1, 1", f"v_lshl_add_u32 {v(t+3)}, {v(t+3)}, 1, {v(t+4)}", f"v_lshl_add_u32 {v(t+1)}, {v(t+3)}, 3, {v(t+1)}",
      f"v_add_u32 {v(t+1)}, {LG_WR}, {v(t+1)}",
      f"v_lshrrev_b32 {v(t+2)}, 1, {v(t+2)}", f"v_lshl_add_u32 {v(t+2)}, {v(t)}, 1, {v(t+2)}", f"v_xor_b32 {v(t+2)}, s{sW}, {v(t+2)}")
    for p in range(4):
        S(f"v_xor_b32 {v(t+3)}, {p}, {v(t+2)}", f"v_lshl_add_u32 {v(vWA+p)}, {v(t+3)}, 5, {v(t+1)}", f"v_add_u32 {v(vWB_+p)}, 0x10000, {v(vWA+p)}", f"v_subrev_u32 {v(104+p)}, 0x10000, {v(vWA+p)}")
    S(f"s_lshl_b32 s{sT0}, s{sSL}, 12", f"s_add_u32 s{sAPB}, s{sAPB}, s{sT0}")
    for p in range(4):
        S(f"s_xor_b32 s{sST+p}, s{sW}, {p}", f"s_lshl_b32 s{sST+p}, s{sST+p}, 10", f"s_add_u32 s{sST+p}, s{sST+p}, s{sAPB}")
    S(f"s_lshl_b32 s{sPKS+2}, s{sMT}, 9", f"s_lshl_b32 s{sT0}, s{sSL}, 2", f"s_add_u32 s{sPKS+2}, s{sPKS+2}, s{sT0}")
    sFLG = sPKS + 2
    S += p2_setup(); S += p2_pre()
    stages = []
    for g in range(30):
        c, i = divmod(g, 10); mf = []
        order = [(s, p) for s in range(4) for p in range(4)] if g < 29 else [(s, p) for p in range(4) for s in range(4)]
        for (s, p) in order:
            if True:
                sl_ = glu_sched()[0][g]
                off = (sl_ % 4) * 16384 + s * 2048
                ar = [104, vWA, vWB_][sl_ // 4] + p
                mf.append((ACC[c] + 16 * p, f"{v(ar)} offset:{off}", f"{v(ar)} offset:{off+512}", 16 * i + 4 * s,
                           (vCS, s == 0) if (p == 0 and i == 0) else None, i == 0 and s == 0,
                           stat_mfma(p - 1, 16 * i + 4 * s, i == 0 and s == 0) if (c == 0 and p > 0 and i < 2) else None))
        stages.append(dict(mf=mf, dma=Stream(), xs=i if c == 0 else None))
    vPA, vFLc, vPL0, vN4, vPS, vPQ, vFLs = 28, 33, 34, 35, 13, 14, 7
    PB = Stream()
    PB(f"v_and_b32 {v(vN4)}, 31, {v(vL)}", f"v_lshlrev_b32 {v(vN4)}, 2, {v(vN4)}", f"v_add_u32 {v(t)}, 8192, {v(vN4)}")
    cond_voff(PB, vPA, vN4, sMT, 10, True); cond_voff(PB, vPS, vN4, sSL, 5, True); cond_voff(PB, vPQ, t, sSL, 5, False)
    cond_voff(PB, vFLc, vFL, sMT, 10, False); cond_voff(PB, vFLs, vFL, sSL, 5, False)
    PB(f"s_mul_i32 s43, s{sSL}, 384", f"s_add_u32 s43, s43, {WS_SF}", f"s_lshl_b32 s78, s{sMT}, 7", f"s_add_u32 s78, s78, {WS_SF + 24*128}")
    poll_setup(PB, vPL0, 43, 78, t)
    PB(f"s_lshl_b32 s{sT0}, s{sMT}, 2", f"s_add_u32 s43, s43, s{sT0}", f"s_lshl_b32 s{sT1}, s{sSL}, 2", f"s_add_u32 s78, s78, s{sT1}",
       f"s_add_u32 s37, s{sT0}, s{sW}", "s_lshl_b32 s37, s37, 7", f"s_add_u32 s37, s37, {WS_RS}", f"s_mul_i32 s{sT0}, s{sSL}, 1536", f"s_add_u32 s{sT0}, s{sT0}, {WS_CSG}")
    for p in range(4): PB(f"s_xor_b32 s{48+p}, s{sW}, {p}", f"s_lshl_b32 s{48+p}, s{48+p}, 7", f"s_add_u32 s{48+p}, s{48+p}, s{sT0}")
    def cs_publish(c):
        E = Stream()
        E(f"v_cndmask_b32 {v(vCS)}, {v(vCS+1)}, {v(vCS)}, s[96:97]")
        E.I(f"buffer_atomic_add_f32 {v(vCS)}, {v(vPA)}, {SWS}, s48 offen offset:{512*c}", tok=f"csa{c}")
        if c == 0:
            E(f"v_cndmask_b32 {v(vRS)}, {v(vRS+1)}, {v(vRS)}, s[96:97]", f"buffer_atomic_add_f32 {v(vRS)}, {v(vPS)}, {SWS}, s37 offen")
            for i in range(4): E(f"v_add_f32 {v(vSQ+i)}, {v(vSQ+i)}, {v(vSQ+4+i)}")
            E("s_mov_b32 s98, 0xaaaaaaaa", "s_mov_b32 s99, 0xaaaaaaaa", f"v_cndmask_b32 {v(vSQ)}, {v(vSQ)}, {v(vSQ+1)}, s[98:99]", f"v_cndmask_b32 {v(vSQ+2)}, {v(vSQ+2)}, {v(vSQ+3)}, s[98:99]")
            E("s_mov_b32 s98, 0xcccccccc", "s_mov_b32 s99, 0xcccccccc", f"v_cndmask_b32 {v(vSQ)}, {v(vSQ)}, {v(vSQ+2)}, s[98:99]")
            E.I(f"buffer_atomic_add_f32 {v(vSQ)}, {v(vPQ)}, {SWS}, s37 offen", tok="csa0")
        return E
    def cs_flag(c):
        E = Stream(); E(f"buffer_store_dword a255, {v(vFLc)}, {SWS}, s43 offen offset:{128*c} sc1")
        if c == 0: E(f"buffer_store_dword a255, {v(vFLs)}, {SWS}, s78 offen sc1")
        return E
    def cs_ptxt(c): return f"buffer_load_dword {v(vT+7)}, {v(vPL0)}, {SWS}, 0 offen offset:{128*c} sc1"
    def cs_fetch(c):
        E = Stream()
        poll_check(E, f"cs{c}g", vT + 7, 1, cs_ptxt(c), 0x3FF | ((0x1F << 16) if c == 0 else 0))
        for p in range(4): E(f"buffer_load_dword {v(vT+p)}, {v(vN4)}, {SWS}, s{48+p} offen offset:{512*c} sc1")
        if c == 0: E(f"buffer_load_dword {v(vRS)}, {v(vN4)}, {SWS}, s37 offen sc1", f"s_add_u32 s37, s37, 8192", f"buffer_load_dword {v(vRS+1)}, {v(vN4)}, {SWS}, s37 offen sc1")
        return E
    def build(c):
        E = Stream()
        for p in range(4): split3(E, vCS + 4 + 4 * p, vT + p, vT + 4, "A")
        return E
    def corr(c):
        E = Stream()
        for p in range(4): E(f"v_mfma_f32_32x32x16_bf16 {v(ACC[c]+16*p,16)}, {v(vCS+4+4*p,4)}, {v(vMB,4)}, {v(ACC[c]+16*p,16)}")
        return E
    def epi(c, packed):
        E = epi_(c, packed)
        if 'noepi' in ABL and not packed: E = Stream([x for x in E if x.kind in ("vm_st", "salu")])
        return E
    def epi_(c, packed):
        E = Stream()
        def store(p):
            A = ACC[c] + 16 * p
            E(f"s_add_u32 s36, s{sST+p}, {c*32*1024}")
            E.I(f"buffer_store_dwordx4 {v(A,4)}, {v(vL16)}, {SWS}, s36 offen sc1", tok=f"h{c}" if p == 3 else None)
        if packed:
            for p in range(4):
                A = ACC[c] + 16 * p
                for i in range(0, 8, 2): E(f"v_pk_mul_f32 {v(A+i,2)}, {v(A+i,2)}, {v(vC,2)} op_sel_hi:[1,0]")
                for i in range(8): E(f"v_exp_f32 {v(A+i)}, {v(A+i)}")
                for i in range(0, 8, 2): E(f"v_pk_fma_f32 {v(A+i,2)}, {v(A+i,2)}, {v(vC,2)}, {v(vC,2)} op_sel:[0,1,1] op_sel_hi:[1,1,1]")
                for i in range(8): E(f"v_rcp_f32 {v(A+i)}, {v(A+i)}")
                for i in range(0, 8, 2): E(f"v_pk_mul_f32 {v(A+8+i,2)}, {v(A+8+i,2)}, {v(A+i,2)}")
                for i in range(4): E(f"v_cvt_pk_bf16_f32 {v(A+i)}, {v(A+8+2*i)}, {v(A+9+2*i)}")
                store(p)
            return E
        LAG = EPI_LAG
        ev = []
        for e in range(32):
            p, i = divmod(e, 8); A = ACC[c] + 16 * p
            ops = [f"v_mul_f32 {v(A+i)}, {v(A+i)}, {v(vC)}", f"v_exp_f32 {v(A+i)}, {v(A+i)}", f"v_fma_f32 {v(A+i)}, {v(A+i)}, {v(vSD)}, {v(vSD)}",
                   f"v_rcp_f32 {v(A+i)}, {v(A+i)}", f"v_mul_f32 {v(A+8+i)}, {v(A+8+i)}, {v(A+i)}"]
            for s, o in enumerate(ops): ev.append((e + LAG * s, s, o, None))
            if i & 1: ev.append((p * 8 + 7 + LAG * 5, 5 + i, f"v_cvt_pk_bf16_f32 {v(A+i//2)}, {v(A+8+i-1)}, {v(A+8+i)}", None))
            if i == 7: ev.append((p * 8 + 7 + LAG * 6, 20, None, p))
        for (_, _, o, p) in sorted(ev, key=lambda x: (x[0], x[1])):
            if o: E(o)
            else: store(p)
        return E
    hb = {PK_AT + PKD[2]: ["chores1"]}
    def addb(j, tk): hb[j] = hb.get(j, []) + [tk]
    addb(H0AT, "h0")
    ha = {0: Stream(x_dma(2) + w_dma(2) + x_dma(3) + w_dma(3))}
    for j_, st_ in ((PK_AT, pack_dma(0, 32)), (PK_AT + PKD[0], Stream(pack_finish(0) + pack_dma(1, 33))), (PK_AT + PKD[1], pack_finish(1)), (PK_AT + PKD[2], flag_store(34, 0)),
                    (POLL2_AT - 2, Stream(vw_setup() + poll2_issue())), (POLL2_AT, poll2_check("g"))):
        ha[j_] = Stream(ha.get(j_, Stream()) + st_)
    core = Core(stages, 5, "w")
    for i in range(10, 30): stages[i]["pace"] = PACE
    def add(j, st_): ha[j] = Stream(ha.get(j, Stream()) + st_)
    S(f"v_min_u32 {v(110)}, 39, {v(vL)}", f"v_mul_u32_u24 {v(110)}, 3072, {v(110)}", f"s_and_b32 s48, s{sMT}, 7", "s_lshl_b32 s48, s48, 1", f"s_and_b32 s49, s{sW}, 1", "s_add_u32 s48, s48, s49",
      f"s_mul_i32 s48, s48, {40*3072}", f"s_mul_i32 s49, s{sSL}, 384", "s_add_u32 s48, s48, s49", f"v_add_u32 {v(110)}, s48, {v(110)}")
    S += PB
    add(P1AT - 2, poll1_issue()); add(P1AT, poll1_check("g"))
    for c in range(3):
        pub, fl, ck = PBS[c]
        add(pub, cs_publish(c)); addb(fl, f"csa{c}"); add(fl, cs_flag(c)); add(ck - 2, Stream([Ins(cs_ptxt(c))])); add(ck, cs_fetch(c))
    add(XRAT, xre_load())
    if WPT: add(POLL2_AT, wp_touch(111))
    if T2AT: add(T2AT, Stream([Ins(f"buffer_load_dword a253, {v(110)}, {SW}, 0 offen offset:128")]))
    if T3AT: add(T3AT, Stream([Ins(f"buffer_load_dword a252, {v(110)}, {SW}, 0 offen offset:{128 if T3AT >= 7 else 256}")]))
    add(H0AT, flag_store(sFLG, 0))
    slot_, iss_, fin_ = glu_sched()
    nW = {}
    for g_ in range(29, 3, -1):
        ha[iss_[g_]] = Stream(w_dma(g_) + ha.get(iss_[g_], Stream())); nW[iss_[g_]] = nW.get(iss_[g_], 0) + 4
    items = []; late = Stream()
    for k in (5, 6): items.append((POLL2_AT, w2_load(k), 5))
    for k in range(5): items.append((20 + (20 * k + 19) // 16 + 2, w2_load(k), 5))
    for grp in range(10):
        f0, f1 = max(0, 4 * grp - 3), min(35, 4 * grp + 1)
        items.append((max(POLL2_AT, fin_[grp][1]) + 0.25, w2_stage("g", f0, f1), f1 - f0))
    add(H1FLAG_AT - 2, p2_poll(0))
    chk = Stream(); poll_check(chk, "p0g", vPV, 1, p2_poll_txt(0), 0xFF)
    addb(H1FLAG_AT, "h1"); add(H1FLAG_AT, flag_store(sFLG, 128)); add(H1FLAG_AT, chk)
    G0 = vm_groups(p2_L(0, SWS))
    for q_ in range(0, 16, 4): items.insert(q_ // 4, (H1FLAG_AT, Stream([x for gg_ in G0[q_:q_+4] for x in gg_]), 4))
    for j in range(POLL2_AT, 30):
        cap = VCAP - nW.get(j, 0)
        for it in list(items):
            if it[0] <= j + 0.5 and it[2] <= cap:
                add(j, it[1]); cap -= it[2]; items.remove(it)
    for it in items:
        assert "lds" in it[1][-1].text, it[1][-1].text
        late += it[1]
    print("sched", [iss_[g_] for g_ in range(30)], fin_, "late", sum(it[2] for it in items))
    rest = [Stream(late + w2_load(14)), w2_load(15), w2_load(16)]
    head, slots, first = core.build(4, hb, ha)
    side = Stream(stats_from_sums("0xbfb8aa3b", vRS, vRS + 1) + build(0) + corr(0) + epi(0, False))
    left = interleave(slots[:first[20]], side, EPI_RATE, start=first[B0AT] - 4); assert not left, len(left)
    left = interleave(slots[:first[H1FLAG_AT - 1]], Stream(build(1) + corr(1) + epi(1, False)), EPI_RATE2, start=first[20] + 4); assert not left, len(left)
    c2 = corr(2); fin = Stream(build(2) + p2_poll(1) + c2[:-1])
    left = interleave(slots, fin, 3, start=first[29]); assert not left, len(left)
    slots[-1].append(c2[-1])
    stamp(S, 1)
    S += head
    stamp(S, 1)
    for n, sl in enumerate(slots):
        S += sl; S += core.tails[n]
        if n + 1 in (first[10], first[20]): stamp(S)
        if n + 1 in [first[i] for i in range(1, 11)]: stamp(S, 1)
        if n + 1 in [first[i] for i in range(1, 30)] + [len(slots)]: stamp(S, 2)
    stamp(S)
    e2 = epi(2, True); cut = len(e2) // E3CUT
    S += e2[:cut]; S += p2_try(1)
    S += sprinkle(Stream(e2[cut:]), p2_L(1, SAUX), E3P)
    S += phase2("g", rest, "h2", flag_store(sFLG, 256), True)
    return S

def softmax_pair(E, P, O, T, qmode):
    mx, mn = T + 40, T + 41
    E(f"v_max3_f32 {v(mx)}, {v(P)}, {v(P+1)}, {v(P+2)}", f"v_min3_f32 {v(mn)}, {v(P)}, {v(P+1)}, {v(P+2)}")
    for i in range(3, 19, 2):
        E(f"v_max3_f32 {v(mx)}, {v(mx)}, {v(P+i)}, {v(P+i+1)}", f"v_min3_f32 {v(mn)}, {v(mn)}, {v(P+i)}, {v(P+i+1)}")
    E(f"v_max_f32 {v(mx)}, {v(mx)}, {v(P+19)}", f"v_min_f32 {v(mn)}, {v(mn)}, {v(P+19)}")
    E(f"v_mul_f32 {v(mx)}, {v(mx)}, {v(vC)}", f"v_mul_f32 {v(mn)}, {v(mn)}, {v(vC)}")
    for i in range(0, 20, 2):
        E(f"v_pk_fma_f32 {v(T+i,2)}, {v(P+i,2)}, {v(vC,2)}, {v(mx,2)} op_sel:[0,0,0] op_sel_hi:[1,0,0] neg_lo:[0,0,1] neg_hi:[0,0,1]")
    for i in range(0, 20, 2):
        E(f"v_pk_fma_f32 {v(T+20+i,2)}, {v(P+i,2)}, {v(vC,2)}, {v(mx,2)} op_sel:[0,0,1] op_sel_hi:[1,0,1] neg_lo:[1,0,0] neg_hi:[1,0,0]")
    for i in range(40): E(f"v_exp_f32 {v(T+i)}, {v(T+i)}")
    for h in range(2):
        B = T + 20 * h; A = P + 10 * h
        for i in range(5): E(f"v_pk_add_f32 {v(A+2*i,2)}, {v(B+4*i,2)}, {v(B+4*i+2,2)}")
    for h in range(2):
        A = P + 10 * h
        E(f"v_pk_add_f32 {v(A,2)}, {v(A,2)}, {v(A+2,2)}", f"v_pk_add_f32 {v(A+4,2)}, {v(A+4,2)}, {v(A+6,2)}")
    for h in range(2):
        A = P + 10 * h
        E(f"v_pk_add_f32 {v(A,2)}, {v(A,2)}, {v(A+4,2)}")
    for h in range(2):
        A = P + 10 * h
        E(f"v_pk_add_f32 {v(A,2)}, {v(A,2)}, {v(A+8,2)}")
    E(f"v_add_f32 {v(T+44)}, {v(P)}, {v(P+1)}", f"v_add_f32 {v(T+45)}, {v(P+10)}, {v(P+11)}")
    if qmode:
        E(f"v_rcp_f32 {v(T+42)}, {v(T+45)}", f"v_mul_f32 {v(T+42)}, {v(T+42)}, {v(T+44)}")
        for i in range(0, 20, 2): E(f"v_pk_mul_f32 {v(T+20+i,2)}, {v(T+20+i,2)}, {v(T+42,2)} op_sel_hi:[1,0]")
    else:
        E(f"v_rcp_f32 {v(T+42)}, {v(T+44)}", f"v_rcp_f32 {v(T+43)}, {v(T+45)}")
        for i in range(0, 20, 2): E(f"v_pk_mul_f32 {v(T+i,2)}, {v(T+i,2)}, {v(T+42,2)} op_sel_hi:[1,0]")
        for i in range(0, 20, 2): E(f"v_pk_mul_f32 {v(T+20+i,2)}, {v(T+20+i,2)}, {v(T+42,2)} op_sel:[0,1] op_sel_hi:[1,1]")
    for i in range(20): E(f"v_cvt_pk_bf16_f32 {v(O+i)}, {v(T+2*i)}, {v(T+2*i+1)}")

PROJ = [(0, 0), (0, 1), (0, 2), (1, 0), (1, 1), (1, 2), (1, 3), (1, 4), (2, 2), (2, 3), (2, 4)]
aPH = 200
def project(E, SRC, PK, OUT):
    for i in range(20): E(f"v_cvt_pk_bf16_f32 {v(PK+i)}, {v(SRC+2*i)}, {v(SRC+2*i+1)}")
    seen = set()
    for n, (T, sl) in enumerate(PROJ):
        E(f"v_mfma_f32_32x32x16_bf16 {v(OUT+16*T,16)}, {a_(aPH+4*n,4)}, {v(PK+4*sl,4)}, {v(OUT+16*T,16) if T in seen else '0'}")
        seen.add(T)

def qkv_path():
    ROLE[0] = "q"; VA[:] = [3, 4, 5, 20]
    S = Stream(); t = vT
    S("L_qkv:")
    AKV, AQ = 128, 208
    S += common_a("q")
    S("s_mov_b32 s10, 2457600")
    ZI = Stream(); QV = Stream()
    sQB = 78
    S(f"s_mul_i32 s{sWB}, s{sSL}, 160", f"s_mul_i32 s{sWM0}, s{sW}, 5120")
    ktable(S, 64 * 3840, sWB)
    S(f"s_mul_i32 s{sT1}, s{sW}, {16*3840}", f"s_add_u32 s{sT2}, s{sT1}, 1280", f"s_sub_u32 s{sT3}, s{sT1}, 1280")
    for j in range(5):
        S(f"v_add_u32 {v(t)}, {64*j}, {v(vL)}")
        divmod_v(S, t+1, t+2, t, 20)
        divmod_v(S, t+3, t+4, t+2, 5)
        S(f"v_and_b32 {v(t+5)}, 1, {v(t+3)}", f"v_lshrrev_b32 {v(t+3)}, 1, {v(t+3)}", f"v_mul_u32_u24 {v(t+3)}, 80, {v(t+3)}", f"v_lshl_add_u32 {v(t+3)}, {v(t+4)}, 4, {v(t+3)}")
        if 0 < j < 4: S(f"v_subrev_u32 {v(t+3)}, {1024*j}, {v(t+3)}")
        S(f"v_mul_u32_u24 {v(t+6)}, 3840, {v(t+1)}", f"v_mul_u32_u24 {v(t+7)}, 1280, {v(t+5)}", f"v_add3_u32 {v(vWO+j)}, {v(t+6)}, {v(t+7)}, {v(t+3)}", f"v_add_u32 {v(vWO+j)}, s{sT2}, {v(vWO+j)}")
        S(f"v_lshrrev_b32 {v(t+6)}, 2, {v(t+1)}", f"v_lshl_add_u32 {v(vQO+j)}, {v(t+6)}, 1, {v(t+5)}")
        QV(f"v_lshrrev_b32 {v(t+6)}, 1, {v(vQO+j)}", f"v_and_b32 {v(t+5)}, 1, {v(vQO+j)}", f"v_mul_u32_u24 {v(t+6)}, {4*3840}, {v(t+6)}", f"v_mul_u32_u24 {v(t+5)}, {4*3840-1280}, {v(t+5)}",
           f"v_add3_u32 {v(vQO+j)}, {v(t+6)}, {v(t+5)}, {v(vWO+j)}", f"v_add_u32 {v(vQO+j)}, s{sT3}, {v(vQO+j)}")
    def w_dma(g):
        D = Stream(); q = g >= 10
        lb = L_WR + (g % 4) * 20480 if g < 14 else L_WR - 20480
        D(f"s_add_u32 m0, s{sWM0}, {lb}")
        vo = vQO if q else vWO; so = sKT + (2 * (g - 10) if q else g)
        for j in range(4): D(f"buffer_load_dwordx4 {v(vo+j)}, {SW}, s{so} offen offset:{j*1024} lds")
        D(f"s_add_u32 m0, s{sWM0}, {lb + 4096}")
        D.I(f"buffer_load_dwordx4 {v(vo+4)}, {SW}, s{so} offen lds", tok=(f"q{g-10}" if q else f"w{g}"))
        return D
    S += common_b("q")
    S("s_mov_b32 s8, s34", "s_mov_b32 s9, s35")
    S += w_dma(0); S += common_c()
    ktable_rest(S, 64 * 3840, sWB); S += QV
    if QS1: S += x_dma(1); S += w_dma(1)
    S += code_pf('q')
    LATE = Stream(); S0 = S; S = LATE
    S("s_mov_b32 s24, s36", "s_mov_b32 s25, s37", "s_mov_b32 s26, 25600", f"s_mul_i32 s{sT0}, s{sSL}, 3200", f"s_lshl_b32 s{sT1}, s{sW}, 10", f"s_add_u32 s{sT0}, s{sT0}, s{sT1}",
      f"s_add_u32 m0, s{sT1}, {L_PHI}")
    S.I(f"buffer_load_dwordx4 {v(vL16)}, {SAUX}, s{sT0} offen lds", tok="phid")
    S("s_mov_b32 s24, s12", "s_mov_b32 s25, s13")
    S = S0
    S(f"v_mov_b32 {v(t+2)}, 0", f"v_mov_b32 {v(t+3)}, 0", f"s_lshl_b32 s{sT0}, s{sW}, 9", f"s_add_u32 s{sT0}, s{sT0}, {L_ZERO}", f"v_lshl_add_u32 {v(t+4)}, {v(vL)}, 3, s{sT0}")
    S.I(f"ds_write_b64 {v(t+4)}, {v(t+2,2)}", tok="ldsz")
    xaddr_setup(S, True); sel_setup(S)
    S(f"v_lshrrev_b32 {v(t)}, 5, {v(vL)}", f"v_bfe_u32 {v(t+1)}, {v(vL)}, 2, 2", f"v_lshl_add_u32 {v(t+2)}, {v(t)}, 3, {v(t+1)}", f"v_lshl_add_u32 {v(t+3)}, {v(t)}, 2, {v(t+1)}",
      f"v_mul_u32_u24 {v(t+2)}, 320, {v(t+2)}", f"v_mul_u32_u24 {v(t+3)}, 320, {v(t+3)}",
      f"v_and_b32 {v(t+4)}, 1, {v(vL)}", f"v_mul_u32_u24 {v(t+4)}, 160, {v(t+4)}", f"v_bfe_u32 {v(t+5)}, {v(vL)}, 4, 1", f"v_bfe_u32 {v(t+6)}, {v(vL)}, 1, 1",
      f"v_lshl_add_u32 {v(t+5)}, {v(t+5)}, 1, {v(t+6)}", f"v_lshl_add_u32 {v(t+4)}, {v(t+5)}, 3, {v(t+4)}", f"v_add_u32 {v(t+4)}, {L_WR}, {v(t+4)}",
      f"v_add_u32 {v(t+2)}, {v(t+2)}, {v(t+4)}", f"v_add_u32 {v(t+3)}, {v(t+3)}, {v(t+4)}")
    for p in range(4):
        S(f"s_xor_b32 s{sT0}, s{sW}, {p}", f"s_mul_i32 s{sT1}, s{sT0}, 5120", f"s_mul_i32 s{sT0}, s{sT0}, 2560",
          f"v_add_u32 {v(vWA+p)}, s{sT1}, {v(t+2)}", f"v_add_u32 {v(vQA+p)}, s{sT0}, {v(t+3)}",
          f"v_add_u32 {v(vWB_+p)}, {3*20480}, {v(vWA+p)}", f"v_add_u32 {v(vQB+p)}, {2*20480}, {v(vQA+p)}", f"v_subrev_u32 {v(vQA+p)}, 20480, {v(vQA+p)}")
    S += p2_setup()
    stages = []
    for g in range(10):
        mf = []
        for p in range(4):
            for T in range(5):
                ar, off = (vWA + p, (g % 4) * 20480) if g % 4 < 3 else (vWB_ + p, 0)
                off += 32 * T
                mf.append((AKV + 16 * T, f"{v(ar)} offset:{off}", f"{v(ar)} offset:{off+1280}", 16 * g + 4 * p, (vCS + 4 * T, g == 0) if (p == 0 and g < 2) else None, g == 0 and p == 0, None))
        stages.append(dict(mf=mf, dma=w_dma(g), xs=g))
    PHF = Stream(); u = vT
    PHF(f"v_bfe_u32 {v(u)}, {v(vL)}, 4, 1", f"v_bfe_u32 {v(u+1)}, {v(vL)}, 1, 1", f"v_lshl_add_u32 {v(u)}, {v(u)}, 1, {v(u+1)}",
        f"v_lshrrev_b32 {v(u+1)}, 5, {v(vL)}", f"v_and_b32 {v(u+2)}, 1, {v(vL)}", f"v_cmp_eq_u32 s[{sPKS+4}:{sPKS+5}], {v(u+1)}, {v(u+2)}".replace(f"s[{sPKS+4}:{sPKS+5}]", "s[98:99]"),
        f"v_mul_u32_u24 {v(u+1)}, 1600, {v(u+1)}", f"v_bfe_u32 {v(u+2)}, {v(vL)}, 2, 2", f"v_mul_u32_u24 {v(u+2)}, 40, {v(u+2)}", f"v_add3_u32 {v(u+1)}, {v(u+1)}, {v(u+2)}, {L_PHI & 63}".replace(f", {L_PHI & 63}", ", 0"),
        f"v_add_u32 {v(u+1)}, {L_PHI}, {v(u+1)}", f"v_lshl_add_u32 {v(u+1)}, {v(u)}, 3, {v(u+1)}", f"v_mov_b32 {v(u+3)}, {L_ZERO}")
    amap = {}
    k = 4
    for (T, s) in [(0, 0), (1, 0), (1, 1), (2, 1)]:
        lo, hi = 5 * s - 4 * T, 5 * s + 5 - 4 * T
        PHF(f"v_add_u32 {v(u+k)}, {s*800+(4*T-5*s)*8}, {v(u+1)}", f"v_cndmask_b32 {v(u+k)}, {v(u+3)}, {v(u+k)}, s[98:99]")
        if lo > 0: PHF(f"v_cmp_le_u32 vcc, {lo}, {v(u)}", f"v_cndmask_b32 {v(u+k)}, {v(u+3)}, {v(u+k)}, vcc")
        if hi < 4: PHF(f"v_cmp_gt_u32 vcc, {hi}, {v(u)}", f"v_cndmask_b32 {v(u+k)}, {v(u+3)}, {v(u+k)}, vcc")
        amap[(T, s)] = u + k; k += 1
    for n, (T, sl) in enumerate(PROJ):
        for r2 in range(2):
            rho = 2 * sl + r2; s = rho // 5
            if (T, s) in amap: PHF(f"ds_read_b64_tr_b16 {a_(aPH+4*n+2*r2,2)}, {v(amap[(T,s)])} offset:{(rho%5)*160}")
            else: PHF(f"ds_read_b64_tr_b16 {a_(aPH+4*n+2*r2,2)}, {v(u+3)}")
    core = Core(stages, 4, "w")
    QR = 68
    def pb_regs(r):
        P = Stream()
        P(f"v_and_b32 {v(r+3)}, 31, {v(vL)}", f"v_lshlrev_b32 {v(r+3)}, 2, {v(r+3)}")
        cond_voff(P, r, r + 3, sMT, 5, True); cond_voff(P, r + 1, vFL, sMT, 5, False)
        poll_setup(P, r + 2, 40, 41, r + 4)
        return P
    S(f"s_lshl_b32 s40, s{sSL}, 8", f"s_add_u32 s40, s40, {WS_SF + 40*128}", f"s_lshl_b32 s41, s{sMT}, 7", f"s_add_u32 s41, s41, {WS_SF + 24*128}", f"s_lshl_b32 s{sT0}, s{sMT}, 2", f"s_add_u32 s43, s40, s{sT0}",
      f"s_add_u32 s38, s{sT0}, s{sW}", "s_lshl_b32 s38, s38, 7", f"s_add_u32 s38, s38, {WS_RS}", f"s_lshl_b32 s39, s{sSL}, 10", f"s_add_u32 s39, s39, {WS_CSQ}")
    S += pb_regs(116)
    def q_pub(r, n, o, tok, vCS=vCS):
        E = Stream()
        for T in range(n):
            E(f"v_cndmask_b32 {v(vCS+4*T)}, {v(vCS+4*T+1)}, {v(vCS+4*T)}, s[96:97]")
            E.I(f"buffer_atomic_add_f32 {v(vCS+4*T)}, {v(r)}, {SWS}, s39 offen offset:{128*(o+T)}", tok=tok if T == n - 1 else None)
        return E
    def q_flag(r, k): return Stream([Ins(f"buffer_store_dword a255, {v(r+1)}, {SWS}, s43 offen offset:{128*k} sc1")])
    def q_ptxt(r, k): return f"buffer_load_dword {v(r+4)}, {v(r+2)}, {SWS}, 0 offen offset:{128*k} sc1"
    def q_fetch(r, k, n, o, d):
        E = Stream()
        poll_check(E, f"cs{k}q", r + 4, 1, q_ptxt(r, k), 0x1F | ((0x1F << 16) if k == 0 else 0))
        for T in range(n): E(f"buffer_load_dword {v(d+T)}, {v(r+3)}, {SWS}, s39 offen offset:{128*(o+T)} sc1")
        if k == 0: E(f"buffer_load_dword {v(d+5)}, {v(r+3)}, {SWS}, s38 offen sc1", "s_add_u32 s38, s38, 8192", f"buffer_load_dword {v(d+6)}, {v(r+3)}, {SWS}, s38 offen sc1")
        return E
    def q_corr(n, d, acc, tt_):
        E = Stream()
        for T in range(n): split3(E, vCS + 4 * T, d + T, tt_, "A")
        for T in range(n): E(f"v_mfma_f32_32x32x16_bf16 {v(acc+16*T,16)}, {v(vCS+4*T,4)}, {v(vMB,4)}, {v(acc+16*T,16)}")
        return E
    hb = {3: ["phid", "ldsz"]}
    S(f"v_or_b32 {v(114)}, s{sST+3}, {v(vFL)}", f"s_lshl_b32 s{sST+3}, s{sMT}, 2")
    S.wait("zst"); S("s_barrier", f"buffer_store_dword a255, {v(114)}, {SDBG}, s{sST+3} offen sc1")
    if not QS1: S += x_dma(1); S += w_dma(1)
    ha = {0: Stream(x_dma(2) + w_dma(2) + LATE + x_dma(3)), 4: PHF, 9: Stream()}
    def addq(j, st_): ha[j] = Stream(ha.get(j, Stream()) + st_)
    addq(QP1AT - 1, poll1_issue()); addq(QP1AT, poll1_check("q")); addq(QPB[0], q_pub(116, 5, 0, "qa0"))
    hb[QPB[1]] = hb.get(QPB[1], []) + ["qa0"]; addq(QPB[1], q_flag(116, 0)); addq(QPB[2] - 1, Stream([Ins(q_ptxt(116, 0))]))
    FE = q_fetch(116, 0, 5, 0, 88)
    if QTAT:
        TCH = Stream(); q = vT + 8
        TCH(f"v_lshrrev_b32 {v(q)}, 1, {v(vL)}", f"v_min_u32 {v(q)}, 19, {v(q)}", f"v_mul_u32_u24 {v(q)}, 3840, {v(q)}", f"v_and_b32 {v(q+1)}, 1, {v(vL)}", f"v_mul_u32_u24 {v(q+1)}, 156, {v(q+1)}",
            f"v_add_u32 {v(q)}, {v(q)}, {v(q+1)}", f"s_and_b32 s48, s{sMT}, 7", "s_lshl_b32 s48, s48, 2", f"s_add_u32 s48, s48, s{sW}", f"s_mul_i32 s48, s48, {20*3840}", f"s_mul_i32 s49, s{sSL}, 160",
            "s_add_u32 s48, s48, s49", f"buffer_load_dword {v(115)}, {v(q)}, {SW}, s48 offen")
        ha[QTAT] = Stream(ha.get(QTAT, Stream()) + TCH)
    ha[8] = Stream(ha.get(8, Stream()) + w_dma(10))
    if QPRE:
        VA[3] = 8; pp_ = p2_pre(); VA[3] = 20
        ha[QPRE] = Stream(ha.get(QPRE, Stream()) + pp_ + xre_load())
    ha[QPB[2]] = Stream(FE + ha.get(QPB[2], Stream()))
    ha[9] = Stream(w_dma(11) + ha[9])
    head, slots, first = core.build(3, hb, ha)
    left = interleave(slots, Stream(stats_from_sums("0x3fb8aa3b", 93, 94) + q_corr(5, 88, AKV, 96)), 4, start=first[9] + QC0)
    KL_ = Stream(left)
    stamp(S, 1)
    S += head
    stamp(S, 1)
    for n, sl in enumerate(slots):
        S += sl; S += core.tails[n]
        if n + 1 in [first[i] for i in range(1, 10)] + [len(slots)]: stamp(S, 1)
        if n + 1 in [first[i] for i in range(1, 10)]: stamp(S, 2)
    stamp(S)
    stamp(S, 2)
    PK = vCS; TT = vT; ta = 120; kr = 21
    A1 = Stream()
    A1(f"v_and_b32 {v(ta)}, 31, {v(vL)}", f"s_lshl_b32 s{sT0}, s{sW}, 5", f"v_add_u32 {v(ta)}, s{sT0}, {v(ta)}", f"v_mul_u32_u24 {v(ta)}, {RS}, {v(ta)}",
      f"v_lshrrev_b32 {v(ta+1)}, 5, {v(vL)}", f"v_mul_u32_u24 {v(ta+2)}, 96, {v(ta+1)}", f"v_add_u32 {v(ta+2)}, {v(ta+2)}, {v(ta)}",
      f"v_mul_u32_u24 {v(ta+1)}, 160, {v(ta+1)}", f"v_add_u32 {v(ta+1)}, {v(ta+1)}, {v(ta)}")
    A1(f"v_lshrrev_b32 {v(kr+2)}, 4, {v(vL)}", f"v_bfe_u32 {v(kr+1)}, {v(vL)}, 2, 2", f"v_lshl_add_u32 {v(kr+1)}, {v(kr+2)}, 3, {v(kr+1)}", f"v_mul_u32_u24 {v(kr+1)}, {RS}, {v(kr+1)}",
      f"v_and_b32 {v(kr)}, 3, {v(vL)}", f"v_lshl_add_u32 {v(kr+1)}, {v(kr)}, 3, {v(kr+1)}",
      f"s_mul_i32 s{sT0}, s{sW}, 80", f"s_mul_i32 s{sT1}, s{sW}, 48", f"s_add_u32 s{sT1}, s{sT1}, 320", f"v_add_u32 {v(kr)}, s{sT0}, {v(kr+1)}", f"v_add_u32 {v(kr+1)}, s{sT1}, {v(kr+1)}")
    A2 = Stream()
    A2(f"v_lshrrev_b32 {v(ta)}, 4, {v(vL)}", f"v_mul_u32_u24 {v(ta+4)}, 768, {v(ta)}", f"v_and_b32 {v(ta+5)}, 15, {v(vL)}", f"v_lshl_add_u32 {v(ta+4)}, {v(ta+5)}, 2, {v(ta+4)}", f"v_lshlrev_b32 {v(ta+6)}, 2, {v(ta+5)}",
      f"s_lshl_b32 s42, s{sSL}, 14", f"s_mul_i32 s98, s{sW}, 4032", "s_add_u32 s42, s42, s98", f"s_add_u32 s42, s42, {WS_KV}")
    AV = [ta + 4, 116, 117, 118, 119, ta + 5]
    A2(f"v_mov_b32 {v(ta)}, {hex(HUGE)}")
    for n, m in enumerate([None, 0xFFFFFFFF, 0xFFFF, 0x00FF00FF00FF00FF, 0x00FF00FF, 0x00FF]):
        if m is None: continue
        A2(f"s_mov_b32 s98, {hex(m & 0xFFFFFFFF)}", f"s_mov_b32 s99, {hex(m >> 32)}", f"v_cndmask_b32 {v(AV[n])}, {v(ta)}, {v(ta+4)}, s[98:99]")
    st_ = Stream(); stamp(st_, 2)
    if QPRE: S("v_mov_b32 v20, v8")
    S += KL_; S += A1; S.wait("q0"); S("s_barrier"); S += st_
    for h_ in range(2):
        for T in range(3):
            f_ = aWF + 4 * (3 * h_ + T); o_ = 32 * T + h_ * 10240
            S(f"ds_read_b64_tr_b16 {a_(f_,2)}, {v(vQB)} offset:{o_}", f"ds_read_b64_tr_b16 {a_(f_+2,2)}, {v(vQB)} offset:{o_+80}")
    stamp(S, 2)
    stamp(S)
    S0 = S; S = Stream()
    PJ = Stream(); project(PJ, AKV, PK, AQ)
    VW_ = Stream()
    for i in range(40): VW_(f"v_mul_f32 {v(AKV+40+i)}, {v(AKV+40+i)}, {v(vST+1)}")
    for s in range(2):
        for i in range(10): VW_(f"v_cvt_pk_bf16_f32 {v(AKV+12*s+i)}, {v(AKV+40+20*s+2*i)}, {v(AKV+41+20*s+2*i)}")
        VW_(f"v_mov_b32 {v(AKV+12*s+10)}, 0x3f80", f"v_mov_b32 {v(AKV+12*s+11)}, 0")
    S += PJ[:20]
    for h_ in range(2):
        for T in range(3): S(f"v_mfma_f32_16x16x32_bf16 {v(96+4*T,4)}, {v(vSEL,4)}, {a_(aWF+4*(3*h_+T),4)}, {'0' if h_ == 0 else v(96+4*T,4)}")
    for n_, x in enumerate(PJ[20:]): S.append(x); S += VW_[6*n_:6*n_+6]
    S += q_pub(116, 3, 5, "qa1", 96)
    for i in range(6): S(f"ds_write_b128 {v(ta+2)}, {v(AKV+4*i,4)} offset:{L_TB+320+16*i}")
    for s in range(2):
        O = AKV + 40 + 20 * s
        softmax_pair(S, AQ + 20 * s, O, TT, False)
        for i in range(5): S(f"ds_write_b128 {v(ta+1)}, {v(O+4*i,4)} offset:{L_TB+80*s+16*i}")
    S0 += sprinkle(S, Stream(w_dma(12) + w_dma(13)), KP)
    S = S0
    S.drain(vm=False); S.wait("qa1"); S("s_barrier"); S += q_flag(116, 1)
    stamp(S)
    FR = AKV; KA = TT + 24
    for ks in range(4):
        for x in range(5):
            for r2 in range(2):
                ar, co = (kr + 1, 32 * x) if x < 2 else (kr, 32 * (x - 2))
                S(f"ds_read_b64_tr_b16 {v(FR+20*ks+4*x+2*r2,2)}, {v(ar)} offset:{L_TB+(32*ks+4*r2)*RS+co}")
    S += A2
    for ks in range(4):
        for a in range(2):
            for b in range(3):
                acc = v(KA + 12 * a + 4 * b, 4)
                S(f"v_mfma_f32_16x16x32_bf16 {acc}, {v(FR+20*ks+4*a,4)}, {v(FR+20*ks+8+4*b,4)}, {'0' if ks == 0 else acc}")
    AT = Stream()
    todo = [(a, r, b) for a in range(2) for r in range(4) for b in range(3)]
    for n, (a, r, b) in enumerate(todo):
        av = AV[(0 if a == 0 else (1 if r == 0 else 2)) + (3 if b == 2 else 0)]
        AT.I(f"buffer_atomic_add_f32 {v(KA+12*a+4*b+r)}, {v(av)}, {SWS}, s42 offen offset:{(16*a+r)*192+64*b}", tok="kvat" if n == len(todo) - 1 else None)
    if 'noat' in ABL: AT = Stream(AT[-1:])
    stamp(S)
    S += poll2_issue()
    stages = []
    for g in range(5):
        gg = 10 + g; mf = []
        for p8 in range(8):
            p = p8 & 3
            for T in range(3):
                sl_ = gg % 4 if gg < 14 else -1
                ar, off = (vQA + p, (sl_ + 1) * 20480) if sl_ < 2 else (vQB + p, (sl_ - 2) * 20480)
                off += 32 * T + (p8 >> 2) * 10240
                mf.append((AQ + 16 * T, f"{v(ar)} offset:{off}", f"{v(ar)} offset:{off+80}", 32 * g + 4 * p8, None, g == 0 and p8 == 0, None))
        stages.append(dict(mf=mf, dma=Stream(), xs=None))
    sKF = 79
    S(f"s_lshl_b32 s{sKF}, s{sSL}, 7", f"s_add_u32 s{sKF}, s{sKF}, {WS_KVFLAG}", f"s_lshl_b32 s{sT0}, s{sMT}, 2", f"s_add_u32 s{sQB+22}, s{sKF}, s{sT0}")
    hb = {}
    ha = {0: Stream(w_dma(14) + vw_setup() + (Stream() if QPRE else Stream(p2_pre() + xre_load())) + AT), 2: poll2_check("q")}
    for s_ in stages: s_["pace"] = QPACE
    S += pb_regs(QR)
    ha[2] += w2_stage("q", 0, 10)
    for k in range(4):
        j = max(3, (20 * k + 19) // 32 + 2)
        ha[j] = Stream(ha.get(j, Stream()) + w2_load(k))
    u = 88; oa = 21; A3 = Stream()
    A3(f"v_bfe_u32 {v(u)}, {v(vL)}, 3, 2", f"v_bfe_u32 {v(u+1)}, {v(vL)}, 2, 1", f"v_lshrrev_b32 {v(u+2)}, 5, {v(vL)}", f"v_cmp_eq_u32 s[98:99], {v(u+1)}, {v(u+2)}",
      f"v_and_b32 {v(u+2)}, 3, {v(vL)}", f"v_lshl_add_u32 {v(u+2)}, {v(u)}, 2, {v(u+2)}", f"v_mul_u32_u24 {v(u+1)}, 42, {v(u+1)}", f"v_add_u32 {v(u+2)}, {v(u+2)}, {v(u+1)}",
      f"v_mul_u32_u24 {v(u+2)}, 96, {v(u+2)}", f"v_mov_b32 {v(u+3)}, {L_ZERO}", f"v_cmp_gt_u32 s[50:51], 2, {v(u)}")
    A3(f"v_add_u32 {v(oa)}, {L_KB}, {v(u+2)}", f"v_add_u32 {v(oa+1)}, {L_KB+21*96}, {v(u+2)}", f"v_add_u32 {v(oa+2)}, {L_KB+16*96}, {v(u+2)}", f"v_add_u32 {v(oa+3)}, {L_KB+(21+16-8)*96}, {v(u+2)}",
      f"v_cndmask_b32 {v(oa+2)}, {v(u+3)}, {v(oa+2)}, s[50:51]", f"v_cndmask_b32 {v(oa+3)}, {v(oa+3)}, {v(u+3)}, s[50:51]")
    for k in range(4): A3(f"v_cndmask_b32 {v(oa+k)}, {v(u+3)}, {v(oa+k)}, s[98:99]")
    A3(f"s_lshl_b32 s48, s{sW}, 9", f"s_add_u32 s48, s48, {L_KB}", f"v_lshl_add_u32 {v(oa+4)}, {v(vL)}, 3, s48")
    core = Core(stages, 4, "q")
    head, slots, first = core.build(4, hb, ha)
    left = interleave(slots, A3, 1, start=first[2]); assert not left
    slots[QF[0]](q_ptxt(QR, 1)); slots[QF[1]] += q_fetch(QR, 1, 3, 5, 80)
    left = interleave(slots, q_corr(3, 80, AQ, 73), 3, start=first[4] + 12); assert not left
    S += head
    for n, sl in enumerate(slots):
        S += sl; S += core.tails[n]
        if n + 1 in [first[i] for i in range(1, 5)]: stamp(S, 2)
    stamp(S)
    W2rest = Stream(w2_load(4) + w2_load(14) + w2_load(15) + w2_load(16))
    S.wait("kvat"); S("s_barrier"); S += flag_store(sQB + 22, 0)
    E = Stream()
    project(E, AQ, PK, AKV)
    PQ = AQ
    softmax_pair(E, AKV, PQ, TT, True)
    E(f"v_mul_f32 {v(ta)}, {hex(0x358637bd)}, {v(TT+44)}")
    bgA = W2rest; bgA += p2_poll(0)
    bgA(f"buffer_load_dword {v(ta+7)}, {v(ta+6)}, {SWS}, s{sKF} offen sc1")
    S += sprinkle(E, bgA, QP1)
    W2rest = p2_L(0, SWS)
    W2r2 = w2_stage("q", 10, 23)
    W2r3 = [Stream(w2_load(5) + w2_load(6)), w2_stage("q", 23, 35)]
    poll_check(S, "p0q", vPV, 1, p2_poll_txt(0), 0xFF)
    poll_check(S, "kv", ta + 7, 1, f"buffer_load_dword {v(ta+7)}, {v(ta+6)}, {SWS}, s{sKF} offen sc1", 0xFFFF)
    stamp(S)
    KL = AKV + 48
    S(f"s_lshl_b32 s{sT2}, s{sSL}, 14", f"s_add_u32 s{sT2}, s{sT2}, {WS_KV}", f"s_lshl_b32 s{sT0}, s{sW}, 10", f"s_add_u32 s{sT2}, s{sT2}, s{sT0}")
    for i in range(4):
        S(f"buffer_load_dwordx4 {v(KL+4*i,4)}, {v(vL16)}, {SWS}, s{sT2} offen sc1")
        if i < 3: S(f"s_add_u32 s{sT2}, s{sT2}, 4096")
    E = Stream(); softmax_pair(E, AKV + 20, PQ + 20, TT, True)
    S += sprinkle(E, W2rest, QP2)
    S(f"v_mul_f32 {v(ta+1)}, {hex(0x358637bd)}, {v(TT+44)}")
    for i in range(4):
        S(f"v_cvt_pk_bf16_f32 {v(KL+4*i)}, {v(KL+4*i)}, {v(KL+4*i+1)}", f"v_cvt_pk_bf16_f32 {v(KL+4*i+1)}, {v(KL+4*i+2)}, {v(KL+4*i+3)}",
          f"ds_write_b64 {v(oa+4)}, {v(KL+4*i,2)} offset:{2048*i}")
    S.drain(vm=False); S("s_barrier")
    W2r2 += p2_poll(1)
    S0 = S; S = Stream()
    FRO = AKV
    ON = TT + 8
    ON = vCS
    for k in range(4):
        for s in range(5): S(f"ds_read_b128 {v(FRO+20*k+4*s,4)}, {v(oa+k)} offset:{16*s}")
    for k in range(4):
        T = min(k, 2); slot = k & 1
        for s in range(5):
            acc = v(ON + 16 * T, 16)
            S(f"v_mfma_f32_32x32x16_bf16 {acc}, {v(FRO+20*k+4*s,4)}, {v(PQ+20*slot+4*s,4)}, {'0' if (s == 0 and k < 3) else acc}")
    S(f"v_add_f32 {v(ta)}, {v(ON+36)}, {v(ta)}", f"v_add_f32 {v(ta+1)}, {v(ON+44)}, {v(ta+1)}", f"v_rcp_f32 {v(ta+2)}, {v(ta)}", f"v_rcp_f32 {v(ta+3)}, {v(ta+1)}")
    OP = AKV
    for s in range(2):
        src = [ON + 16 * s + i for i in range(16)] + [ON + 32 + 8 * s + i for i in range(4)]
        sel = "op_sel_hi:[1,0]" if s == 0 else "op_sel:[0,1] op_sel_hi:[1,1]"
        for i in range(0, 20, 2): S(f"v_pk_mul_f32 {v(src[i],2)}, {v(src[i],2)}, {v(ta+2,2)} {sel}")
        for i in range(10): S(f"v_cvt_pk_bf16_f32 {v(OP+10*s+i)}, {v(src[2*i])}, {v(src[2*i+1])}")
    S0 += sprinkle(S, W2r2, QP3); S = S0
    S(f"s_mul_i32 s{sT0}, s{sSL}, 5120", f"s_add_u32 s{sT0}, s{sT0}, s{sAPB}", f"s_add_u32 s{sT0}, s{sT0}, {96*1024}", f"s_add_u32 s{sT1}, s{sT0}, 4096")
    for i in range(4): S(f"buffer_store_dwordx4 {v(OP+4*i,4)}, {v(vL16)}, {SWS}, s{sT0} offen offset:{1024*i} sc1")
    S.I(f"buffer_store_dwordx4 {v(OP+16,4)}, {v(vL16)}, {SWS}, s{sT1} offen sc1", tok="ost")
    S(f"s_lshl_b32 s{sKF}, s{sMT}, 9", f"s_lshl_b32 s{sT0}, s{sSL}, 2", f"s_add_u32 s{sKF}, s{sKF}, s{sT0}")
    S += phase2("q", W2r3, "ost", flag_store(sKF, 384), False)
    return S

def main(outpath):
    hdr = open("parallel_sum__linear_kernel_hedgehog__glu_gated_glu__prompt.s.ref").read().split("; Override launch")[0]
    out = []
    st = State()
    finalize(prologue(), st, out)
    n0 = 0
    finalize(glu_path(), st.copy(), out)
    nstamp[0] = n0
    st2 = st.copy(); st2.hist = []
    out.append(".p2align 6")
    finalize(qkv_path(), st2, out)
    for L in slow_paths: out += L
    out.append("L_end:")
    txt = hdr + "; @launch grid=(256,1,1) block=(256,1,1) lds=163840\n" + f""".amdgcn_target "amdgcn-amd-amdhsa--gfx950"
.text
.globl {KN}
.p2align 8
.type {KN},@function
{KN}:
""" + "\n".join(out) + f"""
    s_endpgm
.section .rodata,"a"
.p2align 6
.amdhsa_kernel {KN}
  .amdhsa_next_free_vgpr 512
  .amdhsa_next_free_sgpr 102
  .amdhsa_accum_offset 256
  .amdhsa_group_segment_fixed_size 0
  .amdhsa_kernarg_size 88
  .amdhsa_user_sgpr_count 2
  .amdhsa_user_sgpr_kernarg_segment_ptr 1
  .amdhsa_system_sgpr_workgroup_id_x 1
.end_amdhsa_kernel
"""
    open(outpath, "w").write(txt)
    print("lines", len(out))

if __name__ == "__main__":
    for a in sys.argv:
        if a.startswith("--abl="): ABL.update(a[6:].split(","))
    if "--c1" in sys.argv: STGRP = 1
    if "--c2" in sys.argv: STGRP = 2
    if "--c3" in sys.argv: STGRP = 3
    for a in sys.argv:
        if a.startswith("--set="):
            k_, v_ = a[6:].split("="); globals()[k_] = eval(v_)
    if "--stamps" in sys.argv: STAMPS = True
    if "--cyc" in sys.argv: STAMPS = True; STAMPOP = "s_memtime"
    main([a for a in sys.argv[1:] if not a.startswith("--")][0])
```

```python
import sys
from emit import Stream, State, Ins, finalize, interleave, sprinkle, vm_groups

KN = "parallel_sum__linear_kernel_hedgehog__glu_gated_glu__prompt_kernel"
WS_HFLAG = 0
WS_KVFLAG = 8192
WS_PFLAG = 9216
WS_KV = 12288
WS_CSG = 143360; WS_CSQ = 155648; WS_RS = 163840; WS_SF = 180224
WS_STAT = 262144
WS_STAMP = 524288
WS_AP = 1 << 20
WS_WP = 12 << 20
WS_SIZE = 16 << 20
HUGE = 0x7F000000
L_XS = 0
L_TB = 0; RS = 528
L_WR = 67584
L_MISC = 149504
L_PACK = 0
LG_WR = 65536
LG_MISC = 147456
L_CSF = LG_MISC + 12288
L_PHI = L_MISC + 4096
L_ZERO = L_MISC
L_CS = L_MISC + 10240
L_KB = L_MISC + 2048
SX, SW, SWS, SDBG, SOUT, SAUX = "s[4:7]", "s[8:11]", "s[12:15]", "s[16:19]", "s[20:23]", "s[24:27]"
sW, sMT, sSL, sRT, sNT, sROT = 28, 29, 30, 31, 52, 53
sXB, sWB, sKX, sKW, sT0, sT1, sT2, sT3 = 54, 55, 56, 57, 58, 59, 60, 61
sXM0, sWM0, sAPB, sONE, sWPB, sACB, sWP4, sWP5 = 62, 63, 64, 65, 66, 67, 68, 69
sST = 70
sSPIN = 74
sPKS, sPKD = 75, 76
sPKF = 101
sSTAMP = 80
vL, vL16, vXO, vWO, vQO = 1, 2, 3, 5, 10
vXA, vWA, vWB_, vQA, vQB = 16, 20, 24, 28, 32
vSEL, vMB, vC, vSD, vST = 36, 40, 44, 45, 46
vCS = 48
vT = 68
vONE = 115
vFL = 15
NF, DPF = 10, 7
aWF = 160

STAMPS = False
GROT = 1
PREF = 0
CODEPF = 1
MAP1 = 0
QROT = 0
PKD = (3, 6, 8)
QPRE = 8
NX = 4
VCAP = 10
WCAP = 2
W2G0 = 0
W2ORD = list(range(10))
MAP2 = 0
T2AT = 0
T3AT = 0
XRAT = 16
H0AT = 22
P1AT = 3
PBS = [(3, 5, 10), (12, 15, 19), (22, 24, 28)]
B0AT = 13
QP1AT = 3
QPB = (3, 5, 8)
QF = (0, 16)
QC0 = 1
QS1 = 0
WPT = 0
WPD = 0
QTAT = 0
QWPT = 0
XRE = 1
PACE = 1.33
QPACE = 2
QP1 = 80
QP2 = 55
QP3 = 80
E3P = 40
E3CUT = 4
KP = 250
CAPA = 5
CAPB = 8
ROLE = ['g']
STGRP = 0
ABL = set()
STAMPOP = 's_memrealtime'
nstamp = [0]
def stamp(S, grp=0):
    if STAMPS and (grp == STGRP or grp < 0 or (grp == 0 and STGRP == 2 and ROLE[0] == "q")):
        i = nstamp[0]; nstamp[0] += 1
        S(f"{STAMPOP} s[94:95]")
        S.drain(vm=False)
        S(f"v_writelane_b32 v0, s94, {i}")

def v(a, n=1): return f"v{a}" if n == 1 else f"v[{a}:{a+n-1}]"
def a_(a, n=1): return f"a{a}" if n == 1 else f"a[{a}:{a+n-1}]"

slow_paths = []
def cmp_mask(vreg, n, mask):
    lo, hi = mask & 0xFFFFFFFF, mask >> 32
    L = []
    if n == 2: L.append(f"v_and_b32 {v(vreg)}, {v(vreg)}, {v(vreg+1)}")
    L.append(f"v_cmp_ne_u32 vcc, 1, {v(vreg)}")
    if hi:
        L += [f"s_and_b32 s{sT0}, vcc_lo, {hex(lo)}", f"s_and_b32 s{sT1}, vcc_hi, {hex(hi)}", f"s_or_b32 s{sT0}, s{sT0}, s{sT1}"]
    else:
        L += [f"s_and_b32 s{sT0}, vcc_lo, {hex(lo)}"]
    return L
def spin_lines(name, vreg, n, load, mask, sleep=6):
    C = cmp_mask(vreg, n, mask)
    k = 2 if n == 2 else 1
    return [f"    s_mov_b32 s{sSPIN}, 0x8000", f"L_spin_{name}:", f"    s_sleep {sleep}", "    " + load, "    s_waitcnt vmcnt(0)",
            f"    s_sub_u32 s{sSPIN}, s{sSPIN}, 1", f"    s_cbranch_scc1 L_out_{name}"] + ["    " + c for c in C[:k]] + ["    s_nop 1"] + ["    " + c for c in C[k:]] + \
           [f"    s_cbranch_scc1 L_spin_{name}", f"L_out_{name}:"]
def poll_check(S, name, vreg, n, load, mask):
    S(*cmp_mask(vreg, n, mask))
    S(f"s_cbranch_scc1 L_slow_{name}", f"L_back_{name}:")
    slow_paths.append([f"L_slow_{name}:"] + spin_lines(name, vreg, n, load, mask) + [f"    s_branch L_back_{name}"])

def divmod_v(S, q, r, x, d, tmp_s=sT0):
    m = (1 << 16) // d + 1
    S(f"v_mul_u32_u24 {v(q)}, {m}, {v(x)}", f"v_lshrrev_b32 {v(q)}, 16, {v(q)}",
      f"v_mul_u32_u24 {v(r)}, {d}, {v(q)}", f"v_sub_u32 {v(r)}, {v(x)}, {v(r)}")

def prologue():
    S = Stream()
    S("s_cmp_ge_u32 s2, 256", "s_cbranch_scc1 L_end")
    S("s_load_dwordx16 s[32:47], s[0:1], 0", "s_load_dwordx4 s[48:51], s[0:1], 64", "s_load_dwordx2 s[12:13], s[0:1], 80")
    S("s_bitcmp1_b32 s2, 7", "s_cbranch_scc1 L_qkv")
    return S
def common_a(role):
    S = Stream(); t = vT
    S(f"v_lshrrev_b32 {v(vT)}, 6, v0", f"v_and_b32 {v(vL)}, 63, v0", f"v_readfirstlane_b32 s{sW}, {v(vT)}")
    S(f"v_lshlrev_b32 {v(vL16)}, 4, {v(vL)}")
    S("s_and_b32 s3, s2, 7", f"s_lshr_b32 s{sT0}, s2, 3")
    if MAP1 == 0:
        S(f"s_and_b32 s{sMT}, s3, 1", f"s_lshl_b32 s{sMT}, s{sMT}, 3", f"s_and_b32 s{sT1}, s{sT0}, 7", f"s_add_u32 s{sMT}, s{sMT}, s{sT1}")
        S(f"s_and_b32 s{sSL}, s3, 6", f"s_bfe_u32 s{sT2}, s2, 0x10006", f"s_add_u32 s{sSL}, s{sSL}, s{sT2}")
    elif MAP1 == 1:
        S(f"s_lshr_b32 s{sMT}, s3, 1", f"s_lshl_b32 s{sMT}, s{sMT}, 2", f"s_and_b32 s{sT1}, s{sT0}, 3", f"s_add_u32 s{sMT}, s{sMT}, s{sT1}")
        S(f"s_and_b32 s{sSL}, s3, 1", f"s_lshl_b32 s{sSL}, s{sSL}, 2", f"s_bfe_u32 s{sT2}, s2, 0x20005", f"s_add_u32 s{sSL}, s{sSL}, s{sT2}")
    elif MAP1 == 2:
        S(f"s_and_b32 s{sMT}, s{sT0}, 15", f"s_mov_b32 s{sSL}, s3")
    else:
        S(f"s_lshr_b32 s{sMT}, s3, 2", f"s_lshl_b32 s{sMT}, s{sMT}, 3", f"s_and_b32 s{sT1}, s{sT0}, 7", f"s_add_u32 s{sMT}, s{sMT}, s{sT1}")
        S(f"s_and_b32 s{sSL}, s3, 3", f"s_lshl_b32 s{sSL}, s{sSL}, 1", f"s_bfe_u32 s{sT2}, s2, 0x10006", f"s_add_u32 s{sSL}, s{sSL}, s{sT2}")
    if MAP2 == 0:
        S(f"s_lshl_b32 s{sRT}, s3, 2", f"s_and_b32 s{sT2}, s{sT0}, 3", f"s_add_u32 s{sRT}, s{sRT}, s{sT2}", f"s_lshr_b32 s{sNT}, s{sT0}, 2")
    elif MAP2 == 1:
        S(f"s_lshl_b32 s{sRT}, s3, 2", f"s_and_b32 s{sT2}, s{sT0}, 1", f"s_add_u32 s{sRT}, s{sRT}, s{sT2}", f"s_add_u32 s{sRT}, s{sRT}, {2 if role == 'q' else 0}", f"s_bfe_u32 s{sNT}, s{sT0}, 0x30001")
    else:
        S(f"s_lshr_b32 s{sRT}, s3, 1", f"s_lshl_b32 s{sRT}, s{sRT}, 3", f"s_and_b32 s{sT2}, s{sT0}, 3", f"s_add_u32 s{sRT}, s{sRT}, s{sT2}", f"s_add_u32 s{sRT}, s{sRT}, {4 if role == 'q' else 0}",
          f"s_and_b32 s{sNT}, s3, 1", f"s_lshl_b32 s{sNT}, s{sNT}, 2", f"s_bfe_u32 s{sT2}, s{sT0}, 0x20002", f"s_add_u32 s{sNT}, s{sNT}, s{sT2}")
    if role == "q" and QROT:
        S(f"s_lshl_b32 s{sT2}, s{sSL}, 1", f"s_add_u32 s{sT2}, s{sT2}, s{sMT}", f"s_add_u32 s{sT2}, s{sT2}, {QROT}", f"s_mul_i32 s{sT1}, s{sT2}, 26", f"s_lshr_b32 s{sT1}, s{sT1}, 8", f"s_mul_i32 s{sT1}, s{sT1}, 10",
          f"s_sub_u32 s{sROT}, s{sT2}, s{sT1}")
    elif role == "q":
        S(f"s_add_u32 s{sROT}, s{sMT}, s{sSL}", f"s_mul_i32 s{sT2}, s{sROT}, 52", f"s_lshr_b32 s{sT2}, s{sT2}, 8", f"s_mul_i32 s{sT2}, s{sT2}, 5",
          f"s_sub_u32 s{sROT}, s{sROT}, s{sT2}", f"s_lshl_b32 s{sROT}, s{sROT}, 1")
    else:
        S(f"s_lshl_b32 s{sT2}, s{sSL}, 1", f"s_add_u32 s{sT2}, s{sT2}, s{sMT}", f"s_mul_i32 s{sT1}, s{sT2}, 26", f"s_lshr_b32 s{sT1}, s{sT1}, 8", f"s_mul_i32 s{sT1}, s{sT1}, 10", f"s_sub_u32 s{sROT}, s{sT2}, s{sT1}")
    S(f"v_mov_b32 {v(vFL)}, {hex(HUGE)}", "v_cmp_eq_u32 vcc, 0, v0", "v_accvgpr_write_b32 a255, 1")
    S(f"v_lshrrev_b32 {v(t)}, 3, {v(vL)}", f"v_cndmask_b32 {v(vFL)}, {v(vFL)}, 0, vcc", f"v_mul_u32_u24 {v(t)}, 1280, {v(t)}",
      f"v_lshrrev_b32 {v(t+1)}, 4, {v(vL)}", f"v_and_b32 {v(t+2)}, 7, {v(vL)}", f"v_xor_b32 {v(t+1)}, {v(t+1)}, {v(t+2)}",
      f"v_lshl_add_u32 {v(vXO)}, {v(t+1)}, 4, {v(t)}", f"v_xor_b32 {v(t+1)}, 4, {v(t+1)}", f"v_lshl_add_u32 {v(vXO+1)}, {v(t+1)}, 4, {v(t)}",
      f"v_add_u32 {v(XO[1])}, 9216, {v(XO[1])}", f"v_add_u32 {v(XO[2])}, {2*9216}, {v(XO[0])}", f"v_add_u32 {v(XO[3])}, {2*9216}, {v(XO[1])}")
    S("s_mov_b32 s6, 2621440", "s_mov_b32 s7, 0x20000", f"s_mov_b32 s14, {WS_SIZE}", "s_mov_b32 s15, 0x20000", "s_mov_b32 s18, 256", "s_mov_b32 s19, 0x20000",
      "s_mov_b32 s22, 2621440", "s_mov_b32 s23, 0x20000", "s_mov_b32 s11, 0x20000", "s_mov_b32 s27, 0x20000")
    S(f"s_lshl_b32 s{sXB}, s{sMT}, 2", f"s_add_u32 s{sXB}, s{sXB}, s{sW}", f"s_mul_i32 s{sAPB}, s{sXB}, {136*1024}", f"s_add_u32 s{sAPB}, s{sAPB}, {WS_AP}")
    if role == "q":
        S(f"s_mul_i32 s{sST+2}, s{sXB}, 3072", f"s_cmp_eq_u32 s{sSL}, 7", f"s_cselect_b32 s26, {WS_SIZE}, 0", f"s_cselect_b32 s{sST+3}, 0, {hex(HUGE)}")
        for i in range(4): S(f"v_mov_b32 {v(100+i)}, 0")
    S(f"s_mul_i32 s{sXB}, s{sXB}, {32*1280}", f"s_lshl_b32 s{sXM0}, s{sW}, 14")
    S(f"s_lshl_b32 s{sKX}, s{sROT}, 7", f"s_add_u32 s{sKX}, s{sKX}, s{sXB}", f"s_add_u32 s90, s{sXB}, 1280")
    return S
def common_b(role):
    S = Stream()
    S("s_mov_b32 s4, s32", "s_mov_b32 s5, s33")
    stamp(S, -1)
    if role == "q":
        S("s_mov_b32 s24, s12", "s_mov_b32 s25, s13")
        for i in range(3): S.I(f"buffer_store_dwordx4 {v(100,4)}, {v(vL16)}, {SAUX}, s{sST+2} offen offset:{1024*i} sc1", tok="zst" if i == 2 else None)
    S += x_dma(0)
    return S
def common_c():
    return Stream()("s_mov_b32 s16, s50", "s_mov_b32 s17, s51", "s_mov_b32 s20, s48", "s_mov_b32 s21, s49")

XO = [3, 4, 112, 113]
def x_dma(i):
    S = Stream()
    S(f"s_add_u32 m0, s{sXM0}, {L_XS + (i % 4) * 4096}")
    for j in range(4):
        S.I(f"buffer_load_dwordx4 {v(XO[j])}, {SX}, s{sKX} offen offset:{j*1024} lds", tok=f"x{i}" if j == 3 else None)
    if i < 9: S(f"s_add_u32 s{sKX}, s{sKX}, 128", f"s_cmp_eq_u32 s{sKX}, s90", f"s_cselect_b32 s{sKX}, s{sXB}, s{sKX}")
    return S
sKT = 80
def ktable(S, mult, base_s):
    S(f"s_mul_i32 s{sKT}, s{sROT}, {mult}", f"s_add_u32 s{sKT}, s{sKT}, s{base_s}", f"s_add_u32 s91, s{base_s}, {10*mult}")
def ktable_rest(S, mult, base_s):
    for i in range(1, 10):
        S(f"s_add_u32 s{sKT+i}, s{sKT+i-1}, {mult}")
        if i % 2 == 0 or ROLE[0] == 'g' or QROT: S(f"s_cmp_eq_u32 s{sKT+i}, s91", f"s_cselect_b32 s{sKT+i}, s{base_s}, s{sKT+i}")

def x_reads(i):
    S = Stream()
    for p in range(4):
        S.I(f"ds_read_b128 {a_(16*i+4*p,4)}, {v(vXA+p)} offset:{(i % 4)*4096}", tok=f"xr{i}" if p == 3 else None)
    return S

def code_pf(tag):
    S = Stream(); t = vT
    if CODEPF:
        S("s_getpc_b64 s[48:49]", f"L_pc{tag}:", f"s_sub_u32 s48, s48, (L_pc{tag}-{KN})", "s_subb_u32 s49, s49, 0")
        S("s_lshr_b32 s50, s2, 3", "s_lshl_b32 s50, s50, 2", f"s_add_u32 s50, s50, s{sW}", "s_lshl_b32 s50, s50, 10",
          f"v_and_b32 {v(t)}, 7, {v(vL)}", f"v_lshl_add_u32 {v(t)}, {v(t)}, 7, s50", f"v_min_u32 {v(t)}, (L_end-{KN}), {v(t)}", f"global_load_dword a254, {v(t)}, s[48:49]")
    return S
def xaddr_setup(S, wave_xor):
    t = vT
    S(f"v_and_b32 {v(t)}, 31, {v(vL)}", f"v_bfe_u32 {v(t+1)}, {v(vL)}, 1, 3", f"v_lshrrev_b32 {v(t+2)}, 5, {v(vL)}", f"v_xor_b32 {v(t+1)}, {v(t+1)}, {v(t+2)}")
    if wave_xor:
        S(f"s_lshl_b32 s{sT0}, s{sW}, 1", f"v_xor_b32 {v(t+1)}, s{sT0}, {v(t+1)}")
    S(f"v_lshlrev_b32 {v(t)}, 7, {v(t)}", f"v_add_u32 {v(t)}, s{sXM0}, {v(t)}")
    for p in range(4):
        S(f"v_xor_b32 {v(t+2)}, {2*p}, {v(t+1)}", f"v_lshl_add_u32 {v(vXA+p)}, {v(t+2)}, 4, {v(t)}")

def sel_setup(S):
    t = vT
    S(f"v_lshrrev_b32 {v(t)}, 4, {v(vL)}", f"v_xor_b32 {v(t)}, {v(t)}, {v(vL)}", f"v_and_b32 {v(t)}, 1, {v(t)}", f"v_cmp_eq_u32 vcc, 0, {v(t)}",
      f"v_mov_b32 {v(t+1)}, 0x3f803f80")
    for i in range(4): S(f"v_cndmask_b32 {v(vSEL+i)}, 0, {v(t+1)}, vcc")
    S("s_mov_b32 s96, 0x0000ffff", "s_mov_b32 s97, 0x0000ffff")

vPK = vT + 40
def pack_vec(S):
    t = vT
    S(f"v_lshrrev_b32 {v(t)}, 3, {v(vL)}", f"v_mul_u32_u24 {v(t)}, 1280, {v(t)}", f"v_and_b32 {v(t+1)}, 7, {v(vL)}", f"v_lshl_add_u32 {v(vPK)}, {v(t+1)}, 4, {v(t)}")
    S(f"v_lshrrev_b32 {v(t)}, 4, {v(vL)}", f"v_bfe_u32 {v(t+1)}, {v(vL)}, 2, 2", f"v_lshl_add_u32 {v(t)}, {v(t)}, 3, {v(t+1)}", f"v_lshlrev_b32 {v(t)}, 7, {v(t)}",
      f"v_and_b32 {v(t+1)}, 3, {v(vL)}", f"v_lshl_add_u32 {v(t)}, {v(t+1)}, 3, {v(t)}", f"s_lshl_b32 s{sT0}, s{sW}, 12", f"s_add_u32 s{sT0}, s{sT0}, {LG_MISC}", f"v_add_u32 {v(vPK+1)}, s{sT0}, {v(t)}")
PKV = 88
def pack_pre(u, unit_s):
    S = Stream(); A, B, C = 48, 49, 50; R = PKV + 8 * u
    S(f"s_mul_i32 s51, s{unit_s}, 6554", "s_lshr_b32 s51, s51, 16", "s_mul_i32 s43, s51, 10", f"s_sub_u32 s43, s{unit_s}, s43")
    if u == 0: S("s_cmp_lt_u32 s51, 48", "s_cselect_b32 s40, s46, s38", "s_cselect_b32 s41, s47, s39", "s_mov_b32 s42, 819200", "s_cselect_b32 s42, 1966080, s42")
    for j in range(4):
        if j % 2 == 0:
            S(f"s_lshl_b32 s{C}, s51, 1")
            if j: S(f"s_add_u32 s{C}, s{C}, 1")
            S(f"s_bfe_u32 s{A}, s{C}, 0x30002", f"s_mul_i32 s{A}, s{A}, 3", f"s_lshr_b32 s3, s{C}, 5", f"s_add_u32 s{A}, s{A}, s3", f"s_lshl_b32 s{A}, s{A}, 2", f"s_and_b32 s3, s{C}, 3", f"s_add_u32 s{A}, s{A}, s3",
              f"s_lshl_b32 s{A}, s{A}, 4", f"s_sub_u32 s{C}, s{C}, 96", f"s_max_i32 s{C}, s{C}, 0", f"s_mul_i32 s3, s{C}, 52", "s_lshr_b32 s3, s3, 8", "s_mul_i32 s3, s3, 40",
              f"s_lshl_b32 s{C}, s{C}, 3", f"s_add_u32 s{C}, s{C}, s3", "s_cmp_lt_u32 s51, 48", f"s_cselect_b32 s{A}, s{A}, s{C}", f"s_cselect_b32 s{B}, {8*1280}, s{B}",
              f"s_mov_b32 s3, {40*1280}", f"s_cselect_b32 s{B}, s{B}, s3", f"s_mul_i32 s{A}, s{A}, 1280", "s_lshl_b32 s3, s43, 7", f"s_add_u32 s{A}, s{A}, s3")
        else: S(f"s_add_u32 s{A}, s{A}, s{B}")
        S(f"s_sub_u32 s3, s{A}, {1024*j}")
        if u: S(f"s_cmp_lt_u32 s{unit_s}, 680", f"s_cselect_b32 s3, s3, {hex(HUGE)}")
        S(f"v_add_u32 {v(R+j)}, s3, {v(vPK)}")
    for t in range(4):
        S(f"s_lshl_b32 s{A}, s43, 2")
        if t: S(f"s_add_u32 s{A}, s{A}, {t}")
        S(f"s_mul_i32 s{B}, s{A}, 52", f"s_lshr_b32 s{B}, s{B}, 8", f"s_mul_i32 s{B}, s{B}, 335", f"s_add_u32 s{A}, s{A}, s{B}", f"s_mul_i32 s{B}, s51, 5", f"s_add_u32 s{A}, s{A}, s{B}",
          f"s_lshl_b32 s{A}, s{A}, 10", f"s_add_u32 s{A}, s{A}, {WS_WP}")
        if u: S(f"s_cmp_lt_u32 s{unit_s}, 680", f"s_cselect_b32 s{A}, s{A}, {hex(HUGE)}")
        S(f"v_add_u32 {v(R+4+t)}, s{A}, {v(vL16)}")
    return S
def pack_dma(u, unit_s=None):
    S = Stream(); R = PKV + 8 * u
    if u == 0: S("s_mov_b32 s24, s40", "s_mov_b32 s25, s41", "s_mov_b32 s26, s42")
    else: S("s_mov_b32 s24, s38", "s_mov_b32 s25, s39", "s_mov_b32 s26, 819200")
    S(f"s_add_u32 m0, s{sWM0}, {LG_MISC}")
    for j in range(4): S.I(f"buffer_load_dwordx4 {v(R+j)}, {SAUX}, 0 offen offset:{1024*j} lds", tok=f"packdma{u}" if j == 3 else None)
    if u: S("s_mov_b32 s24, s12", "s_mov_b32 s25, s13")
    return S
def pack_finish(u):
    S = Stream(); d = vT + 20; R = PKV + 8 * u
    S.wait(f"packdma{u}")
    for t in range(4):
        for r2 in range(2): S(f"ds_read_b64_tr_b16 {a_(200+4*t+2*r2,2)}, {v(vPK+1)} offset:{r2*512+32*t}")
    for t in range(4): S.I(f"buffer_store_dwordx4 {a_(200+4*t,4)}, {v(R+4+t)}, {SWS}, 0 offen sc1", tok=f"chores{u}" if t == 3 else None)
    return S

def poll1_issue():
    S = Stream()
    S(f"v_and_b32 {v(vT+18)}, 15, {v(vL)}", f"v_lshlrev_b32 {v(vT+18)}, 2, {v(vT+18)}", f"buffer_load_dword {v(vT+16)}, {v(vT+18)}, {SDBG}, 0 offen sc1")
    return S
def poll1_check(tag):
    S = Stream()
    poll_check(S, "i" + tag, vT+16, 1, f"buffer_load_dword {v(vT+16)}, {v(vT+18)}, {SDBG}, 0 offen sc1", 0xFFFF)
    return S
def poll2_issue():
    S = Stream()
    S(f"v_lshrrev_b32 {v(vT+18)}, 2, {v(vL)}", f"v_lshlrev_b32 {v(vT+18)}, 7, {v(vT+18)}", f"v_and_b32 {v(vT+16)}, 3, {v(vL)}", f"v_lshl_add_u32 {v(vT+18)}, {v(vT+16)}, 3, {v(vT+18)}",
      f"s_mov_b32 s{sPKF}, {WS_PFLAG}",
      f"buffer_load_dwordx2 {v(vT+16,2)}, {v(vT+18)}, {SWS}, s{sPKF} offen sc1")
    return S
def poll2_check(tag):
    S = Stream()
    poll_check(S, "k" + tag, vT+16, 2, f"buffer_load_dwordx2 {v(vT+16,2)}, {v(vT+18)}, {SWS}, s{sPKF} offen sc1", (1 << 64) - 1)
    return S

vRS, vSQ = 116, 120
def stat_mfma(which, xr, zero):
    if which == 0: return f"v_mfma_f32_16x16x32_bf16 {v(vRS,4)}, {v(vSEL,4)}, {a_(xr,4)}, {'0' if zero else v(vRS,4)}"
    h = which - 1
    return f"v_mfma_f32_4x4x4_16b_bf16 {v(vSQ+4*h,4)}, {a_(xr+2*h,2)}, {a_(xr+2*h,2)}, {'0' if zero else v(vSQ+4*h,4)}"

def split3(S, d, x, t, side):
    S(f"v_cvt_pk_bf16_f32 {v(t)}, {v(x)}, {v(x)}", f"v_lshlrev_b32 {v(t+2)}, 16, {v(t)}", f"v_sub_f32 {v(t+1)}, {v(x)}, {v(t+2)}")
    if side == "A":
        S(f"v_mov_b32 {v(d)}, {v(t)}", f"v_cvt_pk_bf16_f32 {v(d+1)}, {v(x)}, {v(t+1)}", f"v_and_b32 {v(t+2)}, 0xffff0000, {v(d+1)}",
          f"v_sub_f32 {v(t+2)}, {v(t+1)}, {v(t+2)}", f"v_cvt_pk_bf16_f32 {v(d+2)}, {v(t+1)}, {v(t+2)}", f"v_mov_b32 {v(d+3)}, 0")
    else:
        S(f"v_cvt_pk_bf16_f32 {v(d)}, {v(x)}, {v(t+1)}", f"v_and_b32 {v(t+2)}, 0xffff0000, {v(d)}", f"v_sub_f32 {v(t+2)}, {v(t+1)}, {v(t+2)}",
          f"v_cvt_pk_bf16_f32 {v(d+1)}, {v(t+2)}, {v(x)}", f"v_cvt_pk_bf16_f32 {v(d+2)}, {v(t+1)}, {v(x)}", f"v_mov_b32 {v(d+3)}, 0")

def stats_consume(cmul):
    S = Stream(); t = vT + 12
    S(f"v_cndmask_b32 {v(vST)}, {v(vRS+1)}, {v(vRS)}, s[96:97]")
    for i in range(4): S(f"v_add_f32 {v(vSQ+i)}, {v(vSQ+i)}, {v(vSQ+4+i)}")
    S("s_mov_b32 s98, 0xaaaaaaaa", "s_mov_b32 s99, 0xaaaaaaaa")
    S(f"v_cndmask_b32 {v(vSQ)}, {v(vSQ)}, {v(vSQ+1)}, s[98:99]", f"v_cndmask_b32 {v(vSQ+2)}, {v(vSQ+2)}, {v(vSQ+3)}, s[98:99]")
    S("s_mov_b32 s98, 0xcccccccc", "s_mov_b32 s99, 0xcccccccc")
    S(f"v_cndmask_b32 {v(vSQ)}, {v(vSQ)}, {v(vSQ+2)}, s[98:99]", f"v_mul_f32 {v(vST)}, {hex(0x3acccccd)}, {v(vST)}", f"v_mov_b32 {v(vSQ+1)}, {v(vSQ)}")
    S(f"v_permlane32_swap_b32 {v(vSQ)}, {v(vSQ+1)}", f"v_add_f32 {v(vSQ)}, {v(vSQ)}, {v(vSQ+1)}", f"v_mul_f32 {v(vSQ)}, {hex(0x3acccccd)}, {v(vSQ)}")
    S(f"v_fma_f32 {v(vSQ)}, -{v(vST)}, {v(vST)}, {v(vSQ)}", f"v_max_f32 {v(vSQ)}, 0, {v(vSQ)}", f"v_add_f32 {v(vSQ)}, {hex(0x3727c5ac)}, {v(vSQ)}")
    S(f"v_rsq_f32 {v(vST+1)}, {v(vSQ)}", f"v_sqrt_f32 {v(vSD)}, {v(vSQ)}")
    S("s_mov_b32 s98, -1", "s_mov_b32 s99, 0", f"v_sub_f32 {v(t)}, 0, {v(vST)}", f"v_cndmask_b32 {v(t)}, 0, {v(t)}, s[98:99]")
    split3(S, vMB, t, t+1, "B")
    S(f"v_mul_f32 {v(vC)}, {cmul}, {v(vST+1)}")
    return S

def cond_voff(S, dst, base_v, cond_s, lim, lanes_lo_only, tmp_s=sT0):
    S(f"s_cmp_lt_u32 s{cond_s}, {lim}", f"s_cselect_b32 s98, -1, 0", "s_mov_b32 s99, 0" if lanes_lo_only else "s_mov_b32 s99, s98",
      f"v_mov_b32 {v(dst)}, {hex(HUGE)}", f"v_cndmask_b32 {v(dst)}, {v(dst)}, {v(base_v)}, s[98:99]")
def poll_setup(S, dst, line_a_s, line_b_s, t):
    S(f"v_and_b32 {v(t)}, 15, {v(vL)}", f"v_lshlrev_b32 {v(t)}, 2, {v(t)}", f"v_add_u32 {v(dst)}, s{line_a_s}, {v(t)}", f"v_add_u32 {v(t)}, s{line_b_s}, {v(t)}",
      f"v_cndmask_b32 {v(dst)}, {v(t)}, {v(dst)}, s[96:97]")
def stats_from_sums(cmul, su, sq):
    S = Stream(); t = vT + 12
    def rb(r): S(f"v_cvt_pk_bf16_f32 {v(r)}, {v(r)}, {v(r)}", f"v_lshlrev_b32 {v(r)}, 16, {v(r)}")
    S(f"v_mul_f32 {v(vST)}, {hex(0x3acccccd)}, {v(su)}", f"v_mul_f32 {v(sq)}, {hex(0x3acccccd)}, {v(sq)}")
    S(f"v_fma_f32 {v(sq)}, -{v(vST)}, {v(vST)}, {v(sq)}", f"v_max_f32 {v(sq)}, 0, {v(sq)}")
    rb(sq)
    S(f"v_add_f32 {v(sq)}, {hex(0x3727c5ac)}, {v(sq)}")
    rb(sq)
    S(f"v_sqrt_f32 {v(vSD)}, {v(sq)}")
    S("s_mov_b32 s98, -1", "s_mov_b32 s99, 0", f"v_sub_f32 {v(t)}, 0, {v(vST)}", f"v_cndmask_b32 {v(t)}, 0, {v(t)}, s[98:99]")
    rb(vSD)
    S(f"v_rcp_f32 {v(vST+1)}, {v(vSD)}")
    S(f"v_cvt_pk_bf16_f32 {v(vMB)}, {v(t)}, 0", f"v_cvt_pk_bf16_f32 {v(vMB+1)}, 0, {v(t)}", f"v_mov_b32 {v(vMB+2)}, {v(vMB+1)}", f"v_mov_b32 {v(vMB+3)}, 0")
    S(f"v_mul_f32 {v(vC)}, {cmul}, {v(vST+1)}")
    return S

class Core:
    def __init__(self, stages, R, tokbase):
        self.stages = stages; self.R = R; self.tb = tokbase
    def build(self, pre_issued, hooks_bar=None, hooks_after=None, first_wait=()):
        hooks_bar = hooks_bar or {}; hooks_after = hooks_after or {}
        st = self.stages
        seq = [(i, m) for i, s in enumerate(st) for m in s["mf"]]
        first = {}
        for n, (i, m) in enumerate(seq): first.setdefault(i, n)
        N = len(seq)
        def reads(n):
            (acc, r0, r1, xr, cs, zero, ex) = seq[n][1]
            f = aWF + 4 * (n % NF)
            return [Ins(f"ds_read_b64_tr_b16 {a_(f,2)}, {r0}"), Ins(f"ds_read_b64_tr_b16 {a_(f+2,2)}, {r1}", tok=f"fr{self.tb}{n}")]
        def open_stage(S, i):
            toks = [f"{self.tb}{i}"] + list(hooks_bar.get(i, []))
            if st[i]["xs"] is not None: toks.append(f"x{st[i]['xs']}")
            if 'nowait' not in ABL: S.wait(*toks)
            if 'nobar' not in ABL: S("s_barrier")
        head = Stream()
        open_stage(head, 0)
        if st[0]["xs"] is not None: head += x_reads(st[0]["xs"])
        for n in range(DPF): head += reads(n)
        slots = [Stream() for _ in range(N)]
        tails = [Stream() for _ in range(N)]
        extras = [[] for _ in range(N)]
        def spread(n0, stream, dscost=0.5, pace=1):
            grp = Stream(); cnt = 0; n = n0; last = n0
            for ins in stream:
                grp.append(ins)
                vm = ins.kind in ("vm_dma", "vm_ld", "vm_st")
                if vm or ins.kind == "mfma": cnt += 1
                elif ins.kind in ("ds_rd", "ds_wr"): cnt += dscost
                if cnt >= 1:
                    extras[min(int(n), N-1)].append(grp); grp = Stream(); cnt = 0; last = n; n += (pace if vm else 1)
            if grp: extras[min(int(last), N-1)].append(grp)
            return n
        qptr = [0]
        if 0 in hooks_after: qptr[0] = spread(0, hooks_after[0], pace=st[0].get("pace", 1))
        for n in range(N):
            i, (acc, r0, r1, xr, cs, zero, ex) = seq[n]
            S = slots[n]; f = aWF + 4 * (n % NF)
            if PAIRWAIT and n % 2 == 0 and n + 1 < N: S.wait(f"fr{self.tb}{n+1}")
            S(f"v_mfma_f32_32x32x16_bf16 {v(acc,16)}, {a_(f,4)}, {a_(xr,4)}, {'0' if zero else v(acc,16)}")
            if cs is not None and 'nocs' not in ABL:
                tails[n](f"v_mfma_f32_16x16x32_bf16 {v(cs[0],4)}, {v(vSEL,4)}, {a_(f,4)}, {'0' if cs[1] else v(cs[0],4)}")
            if ex and 'nostat' not in ABL: tails[n](ex)
            m = n + DPF
            if m < N:
                j = seq[m][0]
                if first[j] == m:
                    open_stage(S, j)
                    k = n
                    if st[j]["xs"] is not None: k = spread(k, x_reads(st[j]["xs"]), dscost=1) - 3
                    k = max(k, qptr[0])
                    d = Stream()
                    if st[j]["xs"] is not None and st[j]["xs"] + 3 < 10 and st[j]["xs"] >= 1:
                        d.wait(f"xr{st[j]['xs']-1}"); d += x_dma(st[j]["xs"] + 3)
                    w = j - 2 + self.R
                    if w >= pre_issued and w < len(st): d += st[w]["dma"]
                    if j in hooks_after: d += hooks_after[j]
                    qptr[0] = spread(k, d, pace=st[j].get("pace", 1))
                S += reads(m)
            for g in extras[n]: S += g
        self.tails = tails
        return head, slots, first

ST0 = 7
def w2_slot(k):
    if ST0 <= k < ST0 + 7: k -= 7
    if k < 5: return ("a", 20 * k)
    if k >= 14: return ("a", 20 * (k - 9))
    return ("a", 200 + 20 * (k - 5)) if ROLE[0] == "g" else ("v", 208 + 20 * (k - 5))
def acc2(m4, tt):
    if ROLE[0] == "q": return v(128 + 20 * m4 + 4 * tt, 4)
    return a_(160 + 20 * (m4 - 2) + 4 * tt, 4) if m4 >= 2 else v(128 + 20 * m4 + 4 * tt, 4)
def act_base(i):
    if i & 1: return ("v", 64 if i == 1 else 48)
    return ("v", 192) if ROLE[0] == "g" else ("a", 160)
def glu_sched():
    avail = {s: 0 for s in range(4, 9)}
    extra = {9: PK_AT + PKD[2], 3: 10, 2: 10, 1: 10, 0: 10}
    for s in list(extra)[:NX]: avail[s] = extra[s]
    slot = {}; iss = {}; cnt = {}
    for g in range(30):
        s = min(avail, key=lambda x: (avail[x], x))
        j = max(avail[s], iss.get(g - 1, 0), [0, 0, 0, 0, 1][g] if g < 5 else 0)
        while g >= 4 and cnt.get(j, 0) >= WCAP: j += 1
        assert g < 2 or j <= g - 1
        cnt[j] = cnt.get(j, 0) + (1 if g >= 4 else 0)
        slot[g] = s; iss[g] = j; avail[s] = g + 2
    for s in extra:
        if s not in avail: avail[s] = extra[s]
    order = sorted(avail, key=lambda x: avail[x])
    return slot, iss, [(s, avail[s]) for s in order]
def w2_lds_addr(role, f):
    if role == "g":
        grp = (f + 3) // 4; grp = 9 if grp == 0 else grp - 1
        if f == 0: return (4096, glu_sched()[2][0][0] * 16384 + 3 * 1024) if False else (4096, glu_sched()[2][W2G0][0] * 16384 + 3 * 1024)
        return (4096, glu_sched()[2][W2ORD[(f + 3) // 4]][0] * 16384 + ((f + 3) % 4) * 1024)
    return (10240, 3072 + f * 1024) if f < 10 else (25600, 45056 + (f - 10) * 1024)
def w2_off(k, t):
    part = min(k // 4, 3); return sW2P + part, ((k - 4 * part) * 5 + t) * 1024
def w2_stage(role, f0, f1):
    S = Stream(); run = None
    for f in range(f0, f1):
        ws_, base = w2_lds_addr(role, f); sp, off = w2_off(ST0 + f // 5, f % 5)
        imm = off & 4095
        if run != (ws_, base - imm, sp, off >> 12) :
            run = (ws_, base - imm, sp, off >> 12)
            assert base >= imm
            S(f"s_add_u32 m0, s{sWS[ws_]}, {base - imm}")
        S.I(f"buffer_load_dwordx4 {v(VW[off >> 12])}, {SWS}, s{sp} offen offset:{imm} sc1 lds", tok=f"w2s{f}")
    return S
vLA = 43
def w2_lds_regs(role):
    keys = []
    for f in range(35):
        ws_, base = w2_lds_addr(role, f); k = (ws_, base >> 16)
        if k not in keys: keys.append(k)
    return keys
def w2_lds_setup(role):
    S = Stream()
    for n, (ws_, hi) in enumerate(w2_lds_regs(role)):
        S(f"s_add_u32 s47, s{sWS[ws_]}, {hi << 16}", f"v_add_u32 {v(vLA+n)}, s47, {v(vL16)}")
    return S
def w2_copy(role, k):
    S = Stream(); b = w2_slot(k)
    for t in range(5):
        f = (k - ST0) * 5 + t; ws_, base = w2_lds_addr(role, f)
        r = vLA + w2_lds_regs(role).index((ws_, base >> 16))
        S.I(f"ds_read_b128 {rg(b,4*t,4)}, {v(r)} offset:{base & 0xFFFF}", waits=[f"w2s{f}"])
    return S
def rg(b, off, n): return (a_ if b[0] == "a" else v)(b[1] + off, n)

P2_STEPS = [("h", 0, i) for i in range(4)] + [("h", 1, i) for i in range(4)] + [("h", 2, i) for i in range(4)] + [("o", 0, i) for i in range(5)]
PARTS = [(0, 4, 0, 192), (4, 4, 1, 64), (8, 4, 2, 192), (12, 5, 3, 48)]
sW2P, sACP = 66, 36
sWS = {16384: sXM0, 4096: sWM0, 1024: 92, 10240: 92, 25600: 93}
VW = [2, 16, 17, 18, 19, 13, 14]
def p2_setup():
    S = Stream()
    S(f"s_add_u32 s{sT2}, s{sW}, s{sNT}", f"s_and_b32 s{sR2}, s{sT2}, 3")
    S(f"s_mul_i32 s{sT2}, s{sNT}, {68*5120}", f"s_add_u32 s{sT2}, s{sT2}, {WS_WP}", f"s_mul_i32 s{sW2P}, s{sR2}, {4*5120}", f"s_add_u32 s{sW2P}, s{sW2P}, s{sT2}",
      f"s_add_u32 s{sW2P+1}, s{sW2P}, {16*5120}", f"s_add_u32 s{sW2P+2}, s{sW2P}, {32*5120}", f"s_mul_i32 s{sW2P+3}, s{sR2}, {5*5120}", f"s_add_u32 s{sW2P+3}, s{sW2P+3}, s{sT2}",
      f"s_add_u32 s{sW2P+3}, s{sW2P+3}, {48*5120}")
    if ROLE[0] == "g": S(f"s_lshl_b32 s92, s{sW}, 10")
    else: S(f"s_mul_i32 s92, s{sW}, 10240", f"s_mul_i32 s93, s{sW}, 25600")
    return S
def vw_setup():
    S = Stream()
    for j in range(1, 7): S(f"v_add_u32 {v(VW[j])}, {4096*j}, {v(vL16)}")
    return S
sR2 = 65
def w2_load(k):
    S = Stream(); b = w2_slot(k)
    for t in range(5):
        sp, off = w2_off(k, t)
        S(f"buffer_load_dwordx4 {rg(b,4*t,4)}, {v(VW[off >> 12])}, {SWS}, s{sp} offen offset:{off & 4095} sc1")
    return S
vPF, vPV, vOO, vXR, vRA = 6, 7, 9, 24, 36
VA = [29, 30, 31, 32]
sPF, sOB = 57, 76
def XRA(): return 240 if ROLE[0] == 'g' else 244
def p2_pre():
    S = Stream(); t = vT + 8
    S(f"v_lshrrev_b32 {v(t)}, 4, {v(vL)}", f"v_and_b32 {v(t+1)}, 15, {v(vL)}", f"v_lshlrev_b32 {v(t+3)}, 9, {v(t)}", f"v_lshl_add_u32 {v(t+3)}, {v(t+1)}, 4, {v(t+3)}")
    for j in range(4):
        S(f"s_add_u32 s{sT2}, s{sW}, {j}", f"s_and_b32 s3, s{sT2}, 1", "s_lshl_b32 s3, s3, 8", f"s_bfe_u32 s{sT2}, s{sT2}, 0x10001", f"s_mul_i32 s{sT2}, s{sT2}, {136*1024}", f"s_add_u32 s{sT2}, s{sT2}, s3",
          f"v_add_u32 {v(VA[j])}, s{sT2}, {v(t+3)}")
    S(f"v_and_b32 {v(vPF)}, 7, {v(vL)}", f"v_lshlrev_b32 {v(vPF)}, 2, {v(vPF)}", f"s_lshr_b32 s{sPF}, s{sRT}, 1", f"s_lshl_b32 s{sPF}, s{sPF}, 9")
    S(f"v_mul_u32_u24 {v(vOO)}, 1280, {v(t+1)}", f"v_lshl_add_u32 {v(vOO)}, {v(t)}, 3, {v(vOO)}",
      f"s_lshl_b32 s{sOB}, s{sRT}, 2", f"s_add_u32 s{sOB}, s{sOB}, s{sW}", f"s_mul_i32 s{sOB}, s{sOB}, {16*1280}", f"s_mul_i32 s{sT2}, s{sNT}, 160", f"s_add_u32 s{sOB}, s{sOB}, s{sT2}")
    S(f"s_mul_i32 s{sT2}, s{sRT}, {2*136*1024}", f"s_add_u32 s{sT2}, s{sT2}, {WS_AP}", f"s_lshl_b32 s44, s{sR2}, 13", f"s_add_u32 s44, s44, s{sT2}",
      f"s_mul_i32 s45, s{sR2}, {5*2048}", f"s_add_u32 s45, s45, s{sT2}", f"s_add_u32 s45, s45, {48*2048}")
    return S
def xre_load():
    S = Stream()
    for tt in range(5): S(f"buffer_load_dwordx2 {a_(XRA()+2*tt,2)}, {v(vOO)}, {SX}, s{sOB} offen offset:{32*tt}")
    return S
def wp_touch(r):
    S = Stream()
    S(f"s_and_b32 s48, s{sRT}, 3", "s_lshl_b32 s48, s48, 2", f"s_add_u32 s48, s48, s{sW}", f"s_mul_i32 s48, s48, {170*128}", f"s_mul_i32 s49, s{sNT}, {68*5120}", "s_add_u32 s48, s48, s49", f"s_add_u32 s48, s48, {WS_WP}",
      f"v_lshlrev_b32 {v(r)}, 7, {v(vL)}", f"buffer_load_dword a250, {v(r)}, {SWS}, s48 offen sc1", "s_add_u32 s48, s48, 8192", f"buffer_load_dword a251, {v(r)}, {SWS}, s48 offen sc1",
      f"s_add_u32 s48, s48, {42*128}", f"buffer_load_dword a253, {v(r)}, {SWS}, s48 offen sc1")
    return S
def p2_poll_txt(i): return f"buffer_load_dword {v(vPV+(i&1))}, {v(vPF)}, {SWS}, s{sPF} offen offset:{PARTS[i][2]*128} sc1"
def p2_poll(i): return Stream([Ins(p2_poll_txt(i), tok=f"pp{i}")])
def p2_L(i, srd):
    S = Stream(); k0, n, _, _ = PARTS[i]; r0 = act_base(i)
    if i < 3: S(f"s_add_u32 s46, s44, {i*16*2048}")
    else: S("s_mov_b32 s46, s45")
    if i == 3 and LASTM:
        S("s_add_u32 s47, s45, 4096", "s_add_u32 s48, s45, 8192")
        for m4 in (1, 2, 3, 0):
            for s in range(n): S(f"buffer_load_dwordx4 {rg(r0,16*s+4*m4,4)}, {v(VA[m4])}, {srd}, s{46+(s>>1)} offen offset:{(s&1)*2048} sc1")
        return S
    for s in range(n):
        for m4 in range(4):
            S(f"buffer_load_dwordx4 {rg(r0,16*s+4*m4,4)}, {v(VA[m4])}, {srd}, s46 offen offset:{(s&1)*2048} sc1")
        if s & 1 and s + 1 < n: S(f"s_add_u32 s46, s46, 4096")
    return S
def p2_try(i):
    S = Stream()
    S(*cmp_mask(vPV + (i & 1), 1, 0xFF)); S(f"s_cselect_b32 s26, 0, {WS_SIZE}")
    return S
def phase2(tag, rest, store_tok, flag, l1_done):
    S = Stream(); t = vRA
    vXR = 168 if tag == "g" else 24
    XU = 148 if LASTM else 208
    stamp(S)
    stamp(S, 3)
    S += w2_lds_setup(tag)
    for i in range(4):
        k0, n, _, _ = PARTS[i]; r0 = act_base(i)
        bg = Stream()
        if i < 3 and not (i == 0 and l1_done):
            S += p2_try(i + 1)
            bg += p2_L(i + 1, SAUX)
        if i < len(rest): bg += rest[i]
        if i == 2 and not XRE:
            for tt in range(5): bg(f"buffer_load_dwordx2 {v(vXR+2*tt,2)}, {v(vOO)}, {SX}, s{sOB} offen offset:{32*tt}")
        M = Stream()
        if i == 3 and LASTM:
            S.drain(vm=False); S("s_barrier")
            QD = [48 + 16 * s + 4 * m4 for m4 in (1, 2, 3) for s in range(5)]
            side = Stream()
            for j in range(1, 4):
                side(f"s_add_u32 s{sT0}, s{sW}, {j}", f"s_and_b32 s{sT0}, s{sT0}, 3", f"s_mul_i32 s{sT0}, s{sT0}, 15360", f"s_add_u32 s{sT0}, s{sT0}, {(j-1)*5120}", f"v_add_u32 {v(t+j)}, s{sT0}, {v(vL16)}")
            side(f"s_mul_i32 s{sT0}, s{sW}, 15360", f"v_add_u32 {v(t)}, s{sT0}, {v(vL16)}")
            for q_ in range(10): side(f"v_accvgpr_read_b32 {v(vXR+q_)}, {a_(XRA()+q_)}")
            side2 = Stream()
            for q_ in range(10): side2(f"v_lshlrev_b32 {v(XU+2*q_)}, 16, {v(vXR+q_)}", f"v_and_b32 {v(XU+2*q_+1)}, 0xffff0000, {v(vXR+q_)}")
            sl_ = []
            for pos, m4 in enumerate((1, 2, 3, 0)):
                for s in range(n):
                    b = w2_slot(k0 + s)
                    for tt in range(5):
                        X = Stream(); acc = acc2(m4, tt); e = 5 * s + tt
                        if tt == 0: X(f"s_waitcnt vmcnt({19 - 5*pos - s})")
                        X(f"v_mfma_f32_16x16x32_bf16 {acc}, {rg(b,4*tt,4)}, {rg(r0,16*s+4*m4,4)}, {acc}")
                        pm = (m4 - 1) & 3
                        if pos in (1, 2) and e % 5 == 3: X(f"ds_write_b128 {v(t+pm)}, {acc2(pm,e//5)} offset:{(e//5)*1024}")
                        if pos == 3:
                            if e in (2, 4, 6, 8, 10): X(f"ds_write_b128 {v(t+pm)}, {acc2(pm,e//2-1)} offset:{(e//2-1)*1024}")
                            if e == RBAR: X.drain(vm=False); X("s_barrier")
                            if e >= RBAR:
                                per = -(-15 // (25 - RBAR))
                                for q_ in range((e - RBAR) * per, min(15, (e - RBAR + 1) * per)): X(f"ds_read_b128 {v(QD[q_],4)}, {v(t)} offset:{q_*1024}")
                        sl_.append(X)
            left = interleave(sl_, side, 0.7); assert not left
            left = interleave(sl_, side2, 0.9, start=52); assert not left
            for X in sl_: S += X
            stamp(S); stamp(S, 3)
            for s in range(3):
                for q_ in range(10): S(f"v_pk_add_f32 {v(XU+2*q_,2)}, {v(XU+2*q_,2)}, {v(QD[5*s+q_//2]+2*(q_&1),2)}")
            for q_ in range(10): S(f"v_pk_add_f32 {v(XU+2*q_,2)}, {v(XU+2*q_,2)}, {v(128+2*q_,2)}")
            break
        for s in range(n):
            k = k0 + s; b = w2_slot(k)
            if i > 0: M(f"s_nop {s} ; WAITX")
            if i == 0 and s == FLAG_AFTER:
                M.wait(store_tok); M("s_barrier"); M += flag
            if s == POLL_STEP and i + 2 < 4: M += p2_poll(i + 2)
            if k == 12:
                M.drain(vm=False); M("s_barrier")
                for j in range(1, 4):
                    M(f"s_add_u32 s{sT0}, s{sW}, {j}", f"s_and_b32 s{sT0}, s{sT0}, 3", f"s_mul_i32 s{sT0}, s{sT0}, 15360", f"s_add_u32 s{sT0}, s{sT0}, {(j-1)*5120}", f"v_add_u32 {v(t+j)}, s{sT0}, {v(vL16)}")
                M(f"s_mul_i32 s{sT0}, s{sW}, 15360", f"v_add_u32 {v(t)}, s{sT0}, {v(vL16)}")
            for m4 in ([0, 1, 2, 3] if k < 16 else [1, 2, 3, 0]):
                for tt in range(5):
                    acc = acc2(m4, tt)
                    M(f"v_mfma_f32_16x16x32_bf16 {acc}, {rg(b,4*tt,4)}, {rg(r0,16*s+4*m4,4)}, {'0' if k == 0 else acc}")
                    if 5 <= k < 12 and m4 == 1: M.append(w2_copy(tag, k + 2)[tt])
                    if k == 12 and m4 < 2 and XRE: M(f"v_accvgpr_read_b32 {v(vXR+5*m4+tt)}, {a_(XRA()+5*m4+tt)}")
                    if k == 13 and m4 < 2: M(f"v_lshlrev_b32 {v(XU+10*m4+2*tt)}, 16, {v(vXR+5*m4+tt)}")
                    if k == 14 and m4 < 2: M(f"v_and_b32 {v(XU+10*m4+2*tt+1)}, 0xffff0000, {v(vXR+5*m4+tt)}")
                    if k == 16 and m4 != 1:
                        pm = (m4 - 1) & 3
                        M(f"ds_write_b128 {v(t+pm)}, {acc2(pm,tt)} offset:{tt*1024}")
            if s == 0 or s == n - 1: stamp(M, 3)
        M = sprinkle(M, bg, P2_PERIOD)
        cnt = 0
        for x in M:
            if x.kind in ("vm_ld", "vm_st", "vm_dma"): cnt += 1
            if "WAITX" in x.text:
                s = int(x.text.split()[1]); S(f"s_waitcnt vmcnt({min(63, 4*(n-1-s)+cnt)})")
            else: S.append(x)
        if i < 3:
            nm = f"p{i+1}{tag}"
            if i + 2 < 4: S.wait(f"pp{i+2}")
            S("s_cmp_eq_u32 s26, 0", f"s_cbranch_scc1 L_slow_{nm}", f"L_back_{nm}:")
            ld = p2_poll_txt(i + 1) + (("\n    " + p2_poll_txt(i + 2)) if i + 2 < 4 else "")
            L = [f"L_slow_{nm}:"] + spin_lines(nm, vPV + ((i + 1) & 1), 1, ld, 0xFF, sleep=3)
            L += ["    " + x.text for x in p2_L(i + 1, SWS)]
            L.append(f"    s_branch L_back_{nm}")
            slow_paths.append(L)
        stamp(S)
        stamp(S, 3)
    if not LASTM:
      S.drain(vm=False); S("s_barrier")
      R0 = 48
      for s in range(3):
        for tt in range(5): S(f"ds_read_b128 {v(R0+20*s+4*tt,4)}, {v(t)} offset:{s*5120+tt*1024}")
      for i in range(10): S(f"v_pk_add_f32 {v(XU+2*i,2)}, {v(XU+2*i,2)}, {v(128+2*i,2)}")
      for s in range(3):
        for i in range(10): S(f"v_pk_add_f32 {v(XU+2*i,2)}, {v(XU+2*i,2)}, {v(R0+20*s+2*i,2)}")
    for tt in range(5):
        S(f"v_cvt_pk_bf16_f32 {v(vXR+2*tt)}, {v(XU+4*tt)}, {v(XU+4*tt+1)}", f"v_cvt_pk_bf16_f32 {v(vXR+2*tt+1)}, {v(XU+4*tt+2)}, {v(XU+4*tt+3)}")
        S(f"buffer_store_dwordx2 {v(vXR+2*tt,2)}, {v(vOO)}, {SOUT}, s{sOB} offen offset:{32*tt} {OUTFLAGS}")
    stamp(S); stamp(S, 9)
    if STAMPS:
        S(f"s_lshl_b32 s{sT0}, s2, 8", f"s_add_u32 s{sT0}, s{sT0}, {WS_STAMP}", f"s_cmp_eq_u32 s{sW}, 0", f"s_cselect_b32 s{sT1}, 0, {hex(HUGE)}",
          f"v_lshlrev_b32 {v(48)}, 2, {v(vL)}", f"v_or_b32 {v(48)}, s{sT1}, {v(48)}", f"buffer_store_dword v0, {v(48)}, {SWS}, s{sT0} offen")
    S("s_endpgm")
    return S
FLAG_AFTER = 0
LASTM = 1
RBAR = 15
P2_PERIOD = 64
H1FLAG_AT = 27
XU = 208
OUTFLAGS = ''
POLL_STEP = 3
POLL2_AT = 18
PK_AT = 3
ROT2MASK = 3
EPI_RATE = 2.75
EPI_RATE2 = 3.3
W2CAP17 = 0
EPI_LAG = 1
PAIRWAIT = 1

def flag_store(off_s, imm):
    S = Stream()
    S(f"buffer_store_dword a255, {v(vFL)}, {SWS}, s{off_s} offen offset:{imm} sc1")
    return S

def glu_path():
    S = Stream(); t = vT
    ACC = [128, 192, 128]
    S += common_a("g")
    S(f"v_lshrrev_b32 {v(t)}, 3, {v(vL)}", f"v_mul_u32_u24 {v(t)}, 3072, {v(t)}", f"v_bfe_u32 {v(t+1)}, {v(vL)}, 4, 1", f"s_and_b32 s{sT0}, s{sW}, 2", f"v_or_b32 {v(t+1)}, s{sT0}, {v(t+1)}",
      f"v_lshlrev_b32 {v(t+1)}, 1, {v(t+1)}", f"v_and_b32 {v(t+2)}, 7, {v(vL)}", f"v_xor_b32 {v(t+1)}, {v(t+1)}, {v(t+2)}", f"v_lshl_add_u32 {v(vWO)}, {v(t+1)}, 4, {v(t)}")
    S(f"s_and_b32 s{sWB}, s{sW}, 1", f"s_mul_i32 s{sWB}, s{sWB}, {32*3072}", f"s_mul_i32 s{sT0}, s{sSL}, 384", f"s_add_u32 s{sWB}, s{sWB}, s{sT0}",
      f"s_lshl_b32 s{sWM0}, s{sW}, 12")
    WO = [5, 10, 11, 12]
    for j in range(1, 4): S(f"v_add_u32 {v(WO[j])}, {j*(8*3072-1024)}, {v(vWO)}")
    ktable(S, 64 * 3072, sWB)
    def w_dma(g):
        c, i = divmod(g, 10); D = Stream()
        if c and i == 0: D("s_add_u32 s8, s8, 128", "s_addc_u32 s9, s9, 0", "s_sub_u32 s10, s10, 128")
        D(f"s_add_u32 m0, s{sWM0}, {glu_sched()[0][g] * 16384}")
        for j in range(4):
            D.I(f"buffer_load_dwordx4 {v(WO[j])}, {SW}, s{sKT+i} offen offset:{j*1024} lds", tok=f"w{g}" if j == 3 else None)
        return D
    ktable_rest(S, 64 * 3072, sWB)
    S("s_mov_b32 s10, 1966080")
    S += common_b("g")
    S(f"s_cmp_lt_u32 s{sW}, 2", "s_cselect_b32 s8, s42, s44", "s_cselect_b32 s9, s43, s45")
    S += w_dma(0)
    S += common_c()
    S(f"s_lshl_b32 s32, s{sMT}, 3", f"s_add_u32 s32, s32, s{sSL}", "s_lshl_b32 s32, s32, 2", f"s_add_u32 s32, s32, s{sW}", "s_add_u32 s33, s32, 512",
      f"s_lshl_b32 s34, s{sMT}, 7", f"s_lshl_b32 s35, s{sSL}, 2", "s_add_u32 s34, s34, s35", f"s_add_u32 s34, s34, {WS_PFLAG}")
    S += x_dma(1); S += w_dma(1)
    S += code_pf('g')
    pack_vec(S); S += pack_pre(0, 32); S += pack_pre(1, 33)
    xaddr_setup(S, False); sel_setup(S)
    S(f"v_bfe_u32 {v(t)}, {v(vL)}, 4, 1", f"v_lshrrev_b32 {v(t+1)}, 5, {v(vL)}", f"v_bfe_u32 {v(t+2)}, {v(vL)}, 2, 2",
      f"v_lshl_add_u32 {v(t+1)}, {v(t+1)}, 3, {v(t+2)}", f"v_lshlrev_b32 {v(t+1)}, 7, {v(t+1)}", f"v_lshl_add_u32 {v(t+1)}, {v(t)}, 13, {v(t+1)}",
      f"v_and_b32 {v(t+3)}, 1, {v(vL)}", f"v_bfe_u32 {v(t+4)}, {v(vL)}, 1, 1", f"v_lshl_add_u32 {v(t+3)}, {v(t+3)}, 1, {v(t+4)}", f"v_lshl_add_u32 {v(t+1)}, {v(t+3)}, 3, {v(t+1)}",
      f"v_add_u32 {v(t+1)}, {LG_WR}, {v(t+1)}",
      f"v_lshrrev_b32 {v(t+2)}, 1, {v(t+2)}", f"v_lshl_add_u32 {v(t+2)}, {v(t)}, 1, {v(t+2)}", f"v_xor_b32 {v(t+2)}, s{sW}, {v(t+2)}")
    for p in range(4):
        S(f"v_xor_b32 {v(t+3)}, {p}, {v(t+2)}", f"v_lshl_add_u32 {v(vWA+p)}, {v(t+3)}, 5, {v(t+1)}", f"v_add_u32 {v(vWB_+p)}, 0x10000, {v(vWA+p)}", f"v_subrev_u32 {v(104+p)}, 0x10000, {v(vWA+p)}")
    S(f"s_lshl_b32 s{sT0}, s{sSL}, 12", f"s_add_u32 s{sAPB}, s{sAPB}, s{sT0}")
    for p in range(4):
        S(f"s_xor_b32 s{sST+p}, s{sW}, {p}", f"s_lshl_b32 s{sST+p}, s{sST+p}, 10", f"s_add_u32 s{sST+p}, s{sST+p}, s{sAPB}")
    S(f"s_lshl_b32 s{sPKS+2}, s{sMT}, 9", f"s_lshl_b32 s{sT0}, s{sSL}, 2", f"s_add_u32 s{sPKS+2}, s{sPKS+2}, s{sT0}")
    sFLG = sPKS + 2
    S += p2_setup(); S += p2_pre()
    stages = []
    for g in range(30):
        c, i = divmod(g, 10); mf = []
        order = [(s, p) for s in range(4) for p in range(4)] if g < 29 else [(s, p) for p in range(4) for s in range(4)]
        for (s, p) in order:
            if True:
                sl_ = glu_sched()[0][g]
                off = (sl_ % 4) * 16384 + s * 2048
                ar = [104, vWA, vWB_][sl_ // 4] + p
                mf.append((ACC[c] + 16 * p, f"{v(ar)} offset:{off}", f"{v(ar)} offset:{off+512}", 16 * i + 4 * s,
                           (vCS, s == 0) if (p == 0 and i == 0) else None, i == 0 and s == 0,
                           stat_mfma(p - 1, 16 * i + 4 * s, i == 0 and s == 0) if (c == 0 and p > 0 and i < 2) else None))
        stages.append(dict(mf=mf, dma=Stream(), xs=i if c == 0 else None))
    vPA, vFLc, vPL0, vN4, vPS, vPQ, vFLs = 28, 33, 34, 35, 13, 14, 7
    PB = Stream()
    PB(f"v_and_b32 {v(vN4)}, 31, {v(vL)}", f"v_lshlrev_b32 {v(vN4)}, 2, {v(vN4)}", f"v_add_u32 {v(t)}, 8192, {v(vN4)}")
    cond_voff(PB, vPA, vN4, sMT, 10, True); cond_voff(PB, vPS, vN4, sSL, 5, True); cond_voff(PB, vPQ, t, sSL, 5, False)
    cond_voff(PB, vFLc, vFL, sMT, 10, False); cond_voff(PB, vFLs, vFL, sSL, 5, False)
    PB(f"s_mul_i32 s43, s{sSL}, 384", f"s_add_u32 s43, s43, {WS_SF}", f"s_lshl_b32 s78, s{sMT}, 7", f"s_add_u32 s78, s78, {WS_SF + 24*128}")
    poll_setup(PB, vPL0, 43, 78, t)
    PB(f"s_lshl_b32 s{sT0}, s{sMT}, 2", f"s_add_u32 s43, s43, s{sT0}", f"s_lshl_b32 s{sT1}, s{sSL}, 2", f"s_add_u32 s78, s78, s{sT1}",
       f"s_add_u32 s37, s{sT0}, s{sW}", "s_lshl_b32 s37, s37, 7", f"s_add_u32 s37, s37, {WS_RS}", f"s_mul_i32 s{sT0}, s{sSL}, 1536", f"s_add_u32 s{sT0}, s{sT0}, {WS_CSG}")
    for p in range(4): PB(f"s_xor_b32 s{48+p}, s{sW}, {p}", f"s_lshl_b32 s{48+p}, s{48+p}, 7", f"s_add_u32 s{48+p}, s{48+p}, s{sT0}")
    def cs_publish(c):
        E = Stream()
        E(f"v_cndmask_b32 {v(vCS)}, {v(vCS+1)}, {v(vCS)}, s[96:97]")
        E.I(f"buffer_atomic_add_f32 {v(vCS)}, {v(vPA)}, {SWS}, s48 offen offset:{512*c}", tok=f"csa{c}")
        if c == 0:
            E(f"v_cndmask_b32 {v(vRS)}, {v(vRS+1)}, {v(vRS)}, s[96:97]", f"buffer_atomic_add_f32 {v(vRS)}, {v(vPS)}, {SWS}, s37 offen")
            for i in range(4): E(f"v_add_f32 {v(vSQ+i)}, {v(vSQ+i)}, {v(vSQ+4+i)}")
            E("s_mov_b32 s98, 0xaaaaaaaa", "s_mov_b32 s99, 0xaaaaaaaa", f"v_cndmask_b32 {v(vSQ)}, {v(vSQ)}, {v(vSQ+1)}, s[98:99]", f"v_cndmask_b32 {v(vSQ+2)}, {v(vSQ+2)}, {v(vSQ+3)}, s[98:99]")
            E("s_mov_b32 s98, 0xcccccccc", "s_mov_b32 s99, 0xcccccccc", f"v_cndmask_b32 {v(vSQ)}, {v(vSQ)}, {v(vSQ+2)}, s[98:99]")
            E.I(f"buffer_atomic_add_f32 {v(vSQ)}, {v(vPQ)}, {SWS}, s37 offen", tok="csa0")
        return E
    def cs_flag(c):
        E = Stream(); E(f"buffer_store_dword a255, {v(vFLc)}, {SWS}, s43 offen offset:{128*c} sc1")
        if c == 0: E(f"buffer_store_dword a255, {v(vFLs)}, {SWS}, s78 offen sc1")
        return E
    def cs_ptxt(c): return f"buffer_load_dword {v(vT+7)}, {v(vPL0)}, {SWS}, 0 offen offset:{128*c} sc1"
    def cs_fetch(c):
        E = Stream()
        poll_check(E, f"cs{c}g", vT + 7, 1, cs_ptxt(c), 0x3FF | ((0x1F << 16) if c == 0 else 0))
        for p in range(4): E(f"buffer_load_dword {v(vT+p)}, {v(vN4)}, {SWS}, s{48+p} offen offset:{512*c} sc1")
        if c == 0: E(f"buffer_load_dword {v(vRS)}, {v(vN4)}, {SWS}, s37 offen sc1", f"s_add_u32 s37, s37, 8192", f"buffer_load_dword {v(vRS+1)}, {v(vN4)}, {SWS}, s37 offen sc1")
        return E
    def build(c):
        E = Stream()
        for p in range(4): split3(E, vCS + 4 + 4 * p, vT + p, vT + 4, "A")
        return E
    def corr(c):
        E = Stream()
        for p in range(4): E(f"v_mfma_f32_32x32x16_bf16 {v(ACC[c]+16*p,16)}, {v(vCS+4+4*p,4)}, {v(vMB,4)}, {v(ACC[c]+16*p,16)}")
        return E
    def epi(c, packed):
        E = epi_(c, packed)
        if 'noepi' in ABL and not packed: E = Stream([x for x in E if x.kind in ("vm_st", "salu")])
        return E
    def epi_(c, packed):
        E = Stream()
        def store(p):
            A = ACC[c] + 16 * p
            E(f"s_add_u32 s36, s{sST+p}, {c*32*1024}")
            E.I(f"buffer_store_dwordx4 {v(A,4)}, {v(vL16)}, {SWS}, s36 offen sc1", tok=f"h{c}" if p == 3 else None)
        if packed:
            for p in range(4):
                A = ACC[c] + 16 * p
                for i in range(0, 8, 2): E(f"v_pk_mul_f32 {v(A+i,2)}, {v(A+i,2)}, {v(vC,2)} op_sel_hi:[1,0]")
                for i in range(8): E(f"v_exp_f32 {v(A+i)}, {v(A+i)}")
                for i in range(0, 8, 2): E(f"v_pk_fma_f32 {v(A+i,2)}, {v(A+i,2)}, {v(vC,2)}, {v(vC,2)} op_sel:[0,1,1] op_sel_hi:[1,1,1]")
                for i in range(8): E(f"v_rcp_f32 {v(A+i)}, {v(A+i)}")
                for i in range(0, 8, 2): E(f"v_pk_mul_f32 {v(A+8+i,2)}, {v(A+8+i,2)}, {v(A+i,2)}")
                for i in range(4): E(f"v_cvt_pk_bf16_f32 {v(A+i)}, {v(A+8+2*i)}, {v(A+9+2*i)}")
                store(p)
            return E
        LAG = EPI_LAG
        ev = []
        for e in range(32):
            p, i = divmod(e, 8); A = ACC[c] + 16 * p
            ops = [f"v_mul_f32 {v(A+i)}, {v(A+i)}, {v(vC)}", f"v_exp_f32 {v(A+i)}, {v(A+i)}", f"v_fma_f32 {v(A+i)}, {v(A+i)}, {v(vSD)}, {v(vSD)}",
                   f"v_rcp_f32 {v(A+i)}, {v(A+i)}", f"v_mul_f32 {v(A+8+i)}, {v(A+8+i)}, {v(A+i)}"]
            for s, o in enumerate(ops): ev.append((e + LAG * s, s, o, None))
            if i & 1: ev.append((p * 8 + 7 + LAG * 5, 5 + i, f"v_cvt_pk_bf16_f32 {v(A+i//2)}, {v(A+8+i-1)}, {v(A+8+i)}", None))
            if i == 7: ev.append((p * 8 + 7 + LAG * 6, 20, None, p))
        for (_, _, o, p) in sorted(ev, key=lambda x: (x[0], x[1])):
            if o: E(o)
            else: store(p)
        return E
    hb = {PK_AT + PKD[2]: ["chores1"]}
    def addb(j, tk): hb[j] = hb.get(j, []) + [tk]
    addb(H0AT, "h0")
    ha = {0: Stream(x_dma(2) + w_dma(2) + x_dma(3) + w_dma(3))}
    for j_, st_ in ((PK_AT, pack_dma(0, 32)), (PK_AT + PKD[0], Stream(pack_finish(0) + pack_dma(1, 33))), (PK_AT + PKD[1], pack_finish(1)), (PK_AT + PKD[2], flag_store(34, 0)),
                    (POLL2_AT - 2, Stream(vw_setup() + poll2_issue())), (POLL2_AT, poll2_check("g"))):
        ha[j_] = Stream(ha.get(j_, Stream()) + st_)
    core = Core(stages, 5, "w")
    for i in range(10, 30): stages[i]["pace"] = PACE
    def add(j, st_): ha[j] = Stream(ha.get(j, Stream()) + st_)
    S(f"v_min_u32 {v(110)}, 39, {v(vL)}", f"v_mul_u32_u24 {v(110)}, 3072, {v(110)}", f"s_and_b32 s48, s{sMT}, 7", "s_lshl_b32 s48, s48, 1", f"s_and_b32 s49, s{sW}, 1", "s_add_u32 s48, s48, s49",
      f"s_mul_i32 s48, s48, {40*3072}", f"s_mul_i32 s49, s{sSL}, 384", "s_add_u32 s48, s48, s49", f"v_add_u32 {v(110)}, s48, {v(110)}")
    S += PB
    add(P1AT - 2, poll1_issue()); add(P1AT, poll1_check("g"))
    for c in range(3):
        pub, fl, ck = PBS[c]
        add(pub, cs_publish(c)); addb(fl, f"csa{c}"); add(fl, cs_flag(c)); add(ck - 2, Stream([Ins(cs_ptxt(c))])); add(ck, cs_fetch(c))
    add(XRAT, xre_load())
    if WPT: add(POLL2_AT, wp_touch(111))
    if T2AT: add(T2AT, Stream([Ins(f"buffer_load_dword a253, {v(110)}, {SW}, 0 offen offset:128")]))
    if T3AT: add(T3AT, Stream([Ins(f"buffer_load_dword a252, {v(110)}, {SW}, 0 offen offset:{128 if T3AT >= 7 else 256}")]))
    add(H0AT, flag_store(sFLG, 0))
    slot_, iss_, fin_ = glu_sched()
    nW = {}
    for g_ in range(29, 3, -1):
        ha[iss_[g_]] = Stream(w_dma(g_) + ha.get(iss_[g_], Stream())); nW[iss_[g_]] = nW.get(iss_[g_], 0) + 4
    items = []; late = Stream()
    for k in (5, 6): items.append((POLL2_AT, w2_load(k), 5))
    for k in range(5): items.append((20 + (20 * k + 19) // 16 + 2, w2_load(k), 5))
    for grp in range(10):
        f0, f1 = max(0, 4 * grp - 3), min(35, 4 * grp + 1)
        items.append((max(POLL2_AT, fin_[grp][1]) + 0.25, w2_stage("g", f0, f1), f1 - f0))
    add(H1FLAG_AT - 2, p2_poll(0))
    chk = Stream(); poll_check(chk, "p0g", vPV, 1, p2_poll_txt(0), 0xFF)
    addb(H1FLAG_AT, "h1"); add(H1FLAG_AT, flag_store(sFLG, 128)); add(H1FLAG_AT, chk)
    G0 = vm_groups(p2_L(0, SWS))
    for q_ in range(0, 16, 4): items.insert(q_ // 4, (H1FLAG_AT, Stream([x for gg_ in G0[q_:q_+4] for x in gg_]), 4))
    for j in range(POLL2_AT, 30):
        cap = VCAP - nW.get(j, 0)
        for it in list(items):
            if it[0] <= j + 0.5 and it[2] <= cap:
                add(j, it[1]); cap -= it[2]; items.remove(it)
    for it in items:
        assert "lds" in it[1][-1].text, it[1][-1].text
        late += it[1]
    print("sched", [iss_[g_] for g_ in range(30)], fin_, "late", sum(it[2] for it in items))
    rest = [Stream(late + w2_load(14)), w2_load(15), w2_load(16)]
    head, slots, first = core.build(4, hb, ha)
    side = Stream(stats_from_sums("0xbfb8aa3b", vRS, vRS + 1) + build(0) + corr(0) + epi(0, False))
    left = interleave(slots[:first[20]], side, EPI_RATE, start=first[B0AT] - 4); assert not left, len(left)
    left = interleave(slots[:first[H1FLAG_AT - 1]], Stream(build(1) + corr(1) + epi(1, False)), EPI_RATE2, start=first[20] + 4); assert not left, len(left)
    c2 = corr(2); fin = Stream(build(2) + p2_poll(1) + c2[:-1])
    left = interleave(slots, fin, 3, start=first[29]); assert not left, len(left)
    slots[-1].append(c2[-1])
    stamp(S, 1)
    S += head
    stamp(S, 1)
    for n, sl in enumerate(slots):
        S += sl; S += core.tails[n]
        if n + 1 in (first[10], first[20]): stamp(S)
        if n + 1 in [first[i] for i in range(1, 11)]: stamp(S, 1)
        if n + 1 in [first[i] for i in range(1, 30)] + [len(slots)]: stamp(S, 2)
    stamp(S)
    e2 = epi(2, True); cut = len(e2) // E3CUT
    S += e2[:cut]; S += p2_try(1)
    S += sprinkle(Stream(e2[cut:]), p2_L(1, SAUX), E3P)
    S += phase2("g", rest, "h2", flag_store(sFLG, 256), True)
    return S

def softmax_pair(E, P, O, T, qmode):
    mx, mn = T + 40, T + 41
    E(f"v_max3_f32 {v(mx)}, {v(P)}, {v(P+1)}, {v(P+2)}", f"v_min3_f32 {v(mn)}, {v(P)}, {v(P+1)}, {v(P+2)}")
    for i in range(3, 19, 2):
        E(f"v_max3_f32 {v(mx)}, {v(mx)}, {v(P+i)}, {v(P+i+1)}", f"v_min3_f32 {v(mn)}, {v(mn)}, {v(P+i)}, {v(P+i+1)}")
    E(f"v_max_f32 {v(mx)}, {v(mx)}, {v(P+19)}", f"v_min_f32 {v(mn)}, {v(mn)}, {v(P+19)}")
    E(f"v_mul_f32 {v(mx)}, {v(mx)}, {v(vC)}", f"v_mul_f32 {v(mn)}, {v(mn)}, {v(vC)}")
    for i in range(0, 20, 2):
        E(f"v_pk_fma_f32 {v(T+i,2)}, {v(P+i,2)}, {v(vC,2)}, {v(mx,2)} op_sel:[0,0,0] op_sel_hi:[1,0,0] neg_lo:[0,0,1] neg_hi:[0,0,1]")
    for i in range(0, 20, 2):
        E(f"v_pk_fma_f32 {v(T+20+i,2)}, {v(P+i,2)}, {v(vC,2)}, {v(mx,2)} op_sel:[0,0,1] op_sel_hi:[1,0,1] neg_lo:[1,0,0] neg_hi:[1,0,0]")
    for i in range(40): E(f"v_exp_f32 {v(T+i)}, {v(T+i)}")
    for h in range(2):
        B = T + 20 * h; A = P + 10 * h
        for i in range(5): E(f"v_pk_add_f32 {v(A+2*i,2)}, {v(B+4*i,2)}, {v(B+4*i+2,2)}")
    for h in range(2):
        A = P + 10 * h
        E(f"v_pk_add_f32 {v(A,2)}, {v(A,2)}, {v(A+2,2)}", f"v_pk_add_f32 {v(A+4,2)}, {v(A+4,2)}, {v(A+6,2)}")
    for h in range(2):
        A = P + 10 * h
        E(f"v_pk_add_f32 {v(A,2)}, {v(A,2)}, {v(A+4,2)}")
    for h in range(2):
        A = P + 10 * h
        E(f"v_pk_add_f32 {v(A,2)}, {v(A,2)}, {v(A+8,2)}")
    E(f"v_add_f32 {v(T+44)}, {v(P)}, {v(P+1)}", f"v_add_f32 {v(T+45)}, {v(P+10)}, {v(P+11)}")
    if qmode:
        E(f"v_rcp_f32 {v(T+42)}, {v(T+45)}", f"v_mul_f32 {v(T+42)}, {v(T+42)}, {v(T+44)}")
        for i in range(0, 20, 2): E(f"v_pk_mul_f32 {v(T+20+i,2)}, {v(T+20+i,2)}, {v(T+42,2)} op_sel_hi:[1,0]")
    else:
        E(f"v_rcp_f32 {v(T+42)}, {v(T+44)}", f"v_rcp_f32 {v(T+43)}, {v(T+45)}")
        for i in range(0, 20, 2): E(f"v_pk_mul_f32 {v(T+i,2)}, {v(T+i,2)}, {v(T+42,2)} op_sel_hi:[1,0]")
        for i in range(0, 20, 2): E(f"v_pk_mul_f32 {v(T+20+i,2)}, {v(T+20+i,2)}, {v(T+42,2)} op_sel:[0,1] op_sel_hi:[1,1]")
    for i in range(20): E(f"v_cvt_pk_bf16_f32 {v(O+i)}, {v(T+2*i)}, {v(T+2*i+1)}")

PROJ = [(0, 0), (0, 1), (0, 2), (1, 0), (1, 1), (1, 2), (1, 3), (1, 4), (2, 2), (2, 3), (2, 4)]
aPH = 200
def project(E, SRC, PK, OUT):
    for i in range(20): E(f"v_cvt_pk_bf16_f32 {v(PK+i)}, {v(SRC+2*i)}, {v(SRC+2*i+1)}")
    seen = set()
    for n, (T, sl) in enumerate(PROJ):
        E(f"v_mfma_f32_32x32x16_bf16 {v(OUT+16*T,16)}, {a_(aPH+4*n,4)}, {v(PK+4*sl,4)}, {v(OUT+16*T,16) if T in seen else '0'}")
        seen.add(T)

def qkv_path():
    ROLE[0] = "q"; VA[:] = [3, 4, 5, 20]
    S = Stream(); t = vT
    S("L_qkv:")
    AKV, AQ = 128, 208
    S += common_a("q")
    S("s_mov_b32 s10, 2457600")
    ZI = Stream(); QV = Stream()
    sQB = 78
    S(f"s_mul_i32 s{sWB}, s{sSL}, 160", f"s_mul_i32 s{sWM0}, s{sW}, 5120")
    ktable(S, 64 * 3840, sWB)
    S(f"s_mul_i32 s{sT1}, s{sW}, {16*3840}", f"s_add_u32 s{sT2}, s{sT1}, 1280", f"s_sub_u32 s{sT3}, s{sT1}, 1280")
    if QROT: S(f"s_lshr_b32 s{sT0}, s{sW}, 1", f"s_mul_i32 s{sT0}, s{sT0}, {64*3840}", f"s_sub_u32 s{sT3}, s{sT3}, s{sT0}")
    for j in range(5):
        S(f"v_add_u32 {v(t)}, {64*j}, {v(vL)}")
        divmod_v(S, t+1, t+2, t, 20)
        divmod_v(S, t+3, t+4, t+2, 5)
        if 'natural' in ABL: S(f"v_lshrrev_b32 {v(t+5)}, 1, {v(t+3)}", f"v_and_b32 {v(t+3)}, 1, {v(t+3)}", f"v_mul_u32_u24 {v(t+3)}, 80, {v(t+3)}", f"v_lshl_add_u32 {v(t+3)}, {v(t+4)}, 4, {v(t+3)}")
        else: S(f"v_and_b32 {v(t+5)}, 1, {v(t+3)}", f"v_lshrrev_b32 {v(t+3)}, 1, {v(t+3)}", f"v_mul_u32_u24 {v(t+3)}, 80, {v(t+3)}", f"v_lshl_add_u32 {v(t+3)}, {v(t+4)}, 4, {v(t+3)}")
        if 0 < j < 4: S(f"v_subrev_u32 {v(t+3)}, {1024*j}, {v(t+3)}")
        S(f"v_mul_u32_u24 {v(t+6)}, 3840, {v(t+1)}", f"v_mul_u32_u24 {v(t+7)}, 1280, {v(t+5)}", f"v_add3_u32 {v(vWO+j)}, {v(t+6)}, {v(t+7)}, {v(t+3)}", f"v_add_u32 {v(vWO+j)}, s{sT2}, {v(vWO+j)}")
        S(f"v_lshrrev_b32 {v(t+6)}, 2, {v(t+1)}", f"v_lshl_add_u32 {v(vQO+j)}, {v(t+6)}, 1, {v(t+5)}")
        QV(f"v_lshrrev_b32 {v(t+6)}, 1, {v(vQO+j)}", f"v_and_b32 {v(t+5)}, 1, {v(vQO+j)}", f"v_mul_u32_u24 {v(t+6)}, {4*3840}, {v(t+6)}", f"v_mul_u32_u24 {v(t+5)}, {4*3840-1280}, {v(t+5)}",
           f"v_add3_u32 {v(vQO+j)}, {v(t+6)}, {v(t+5)}, {v(vWO+j)}", f"v_add_u32 {v(vQO+j)}, s{sT3}, {v(vQO+j)}")
    def w_dma(g):
        D = Stream(); q = g >= 10
        lb = L_WR + (g % 4) * 20480 if g < 14 else L_WR - 20480
        D(f"s_add_u32 m0, s{sWM0}, {lb}")
        vo = vQO if q else vWO; so = sKT + (2 * (g - 10) if q else g)
        if q and QROT:
            D(f"s_cmp_lt_u32 s{sW}, 2", f"s_cselect_b32 s{sST}, s{so}, s{so+1}"); so = sST
        for j in range(4): D(f"buffer_load_dwordx4 {v(vo+j)}, {SW}, s{so} offen offset:{j*1024} lds")
        D(f"s_add_u32 m0, s{sWM0}, {lb + 4096}")
        D.I(f"buffer_load_dwordx4 {v(vo+4)}, {SW}, s{so} offen lds", tok=(f"q{g-10}" if q else f"w{g}"))
        return D
    S += common_b("q")
    S("s_mov_b32 s8, s34", "s_mov_b32 s9, s35")
    S += w_dma(0); S += common_c()
    ktable_rest(S, 64 * 3840, sWB); S += QV
    if QS1: S += x_dma(1); S += w_dma(1)
    S += code_pf('q')
    LATE = Stream(); S0 = S; S = LATE
    S("s_mov_b32 s24, s36", "s_mov_b32 s25, s37", "s_mov_b32 s26, 25600", f"s_mul_i32 s{sT0}, s{sSL}, 3200", f"s_lshl_b32 s{sT1}, s{sW}, 10", f"s_add_u32 s{sT0}, s{sT0}, s{sT1}",
      f"s_add_u32 m0, s{sT1}, {L_PHI}")
    S.I(f"buffer_load_dwordx4 {v(vL16)}, {SAUX}, s{sT0} offen lds", tok="phid")
    S("s_mov_b32 s24, s12", "s_mov_b32 s25, s13")
    S = S0
    S(f"v_mov_b32 {v(t+2)}, 0", f"v_mov_b32 {v(t+3)}, 0", f"s_lshl_b32 s{sT0}, s{sW}, 9", f"s_add_u32 s{sT0}, s{sT0}, {L_ZERO}", f"v_lshl_add_u32 {v(t+4)}, {v(vL)}, 3, s{sT0}")
    S.I(f"ds_write_b64 {v(t+4)}, {v(t+2,2)}", tok="ldsz")
    xaddr_setup(S, True); sel_setup(S)
    S(f"v_lshrrev_b32 {v(t)}, 5, {v(vL)}", f"v_bfe_u32 {v(t+1)}, {v(vL)}, 2, 2", f"v_lshl_add_u32 {v(t+2)}, {v(t)}, 3, {v(t+1)}", f"v_lshl_add_u32 {v(t+3)}, {v(t)}, 2, {v(t+1)}",
      f"v_mul_u32_u24 {v(t+2)}, 320, {v(t+2)}", f"v_mul_u32_u24 {v(t+3)}, 320, {v(t+3)}",
      f"v_and_b32 {v(t+4)}, 1, {v(vL)}", f"v_mul_u32_u24 {v(t+4)}, 160, {v(t+4)}", f"v_bfe_u32 {v(t+5)}, {v(vL)}, 4, 1", f"v_bfe_u32 {v(t+6)}, {v(vL)}, 1, 1",
      f"v_lshl_add_u32 {v(t+5)}, {v(t+5)}, 1, {v(t+6)}", f"v_lshl_add_u32 {v(t+4)}, {v(t+5)}, 3, {v(t+4)}", f"v_add_u32 {v(t+4)}, {L_WR}, {v(t+4)}",
      f"v_add_u32 {v(t+2)}, {v(t+2)}, {v(t+4)}", f"v_add_u32 {v(t+3)}, {v(t+3)}, {v(t+4)}")
    for p in range(4):
        S(f"s_xor_b32 s{sT0}, s{sW}, {p}", f"s_mul_i32 s{sT1}, s{sT0}, 5120", f"s_mul_i32 s{sT0}, s{sT0}, 2560",
          f"v_add_u32 {v(vWA+p)}, s{sT1}, {v(t+2)}", f"v_add_u32 {v(vQA+p)}, s{sT0}, {v(t+3)}",
          f"v_add_u32 {v(vWB_+p)}, {3*20480}, {v(vWA+p)}", f"v_add_u32 {v(vQB+p)}, {2*20480}, {v(vQA+p)}", f"v_subrev_u32 {v(vQA+p)}, 20480, {v(vQA+p)}")
    S += p2_setup()
    stages = []
    for g in range(10):
        mf = []
        for p in range(4):
            for T in range(5):
                ar, off = (vWA + p, (g % 4) * 20480) if g % 4 < 3 else (vWB_ + p, 0)
                off += 32 * T
                mf.append((AKV + 16 * T, f"{v(ar)} offset:{off}", f"{v(ar)} offset:{off+1280}", 16 * g + 4 * p, (vCS + 4 * T, g == 0) if (p == 0 and g < (1 if QROT else 2)) else None, g == 0 and p == 0, None))
        stages.append(dict(mf=mf, dma=w_dma(g), xs=g))
    PHF = Stream(); u = vT
    PHF(f"v_bfe_u32 {v(u)}, {v(vL)}, 4, 1", f"v_bfe_u32 {v(u+1)}, {v(vL)}, 1, 1", f"v_lshl_add_u32 {v(u)}, {v(u)}, 1, {v(u+1)}",
        f"v_lshrrev_b32 {v(u+1)}, 5, {v(vL)}", f"v_and_b32 {v(u+2)}, 1, {v(vL)}", f"v_cmp_eq_u32 s[{sPKS+4}:{sPKS+5}], {v(u+1)}, {v(u+2)}".replace(f"s[{sPKS+4}:{sPKS+5}]", "s[98:99]"),
        f"v_mul_u32_u24 {v(u+1)}, 1600, {v(u+1)}", f"v_bfe_u32 {v(u+2)}, {v(vL)}, 2, 2", f"v_mul_u32_u24 {v(u+2)}, 40, {v(u+2)}", f"v_add3_u32 {v(u+1)}, {v(u+1)}, {v(u+2)}, {L_PHI & 63}".replace(f", {L_PHI & 63}", ", 0"),
        f"v_add_u32 {v(u+1)}, {L_PHI}, {v(u+1)}", f"v_lshl_add_u32 {v(u+1)}, {v(u)}, 3, {v(u+1)}", f"v_mov_b32 {v(u+3)}, {L_ZERO}")
    amap = {}
    k = 4
    for (T, s) in [(0, 0), (1, 0), (1, 1), (2, 1)]:
        lo, hi = 5 * s - 4 * T, 5 * s + 5 - 4 * T
        PHF(f"v_add_u32 {v(u+k)}, {s*800+(4*T-5*s)*8}, {v(u+1)}", f"v_cndmask_b32 {v(u+k)}, {v(u+3)}, {v(u+k)}, s[98:99]")
        if lo > 0: PHF(f"v_cmp_le_u32 vcc, {lo}, {v(u)}", f"v_cndmask_b32 {v(u+k)}, {v(u+3)}, {v(u+k)}, vcc")
        if hi < 4: PHF(f"v_cmp_gt_u32 vcc, {hi}, {v(u)}", f"v_cndmask_b32 {v(u+k)}, {v(u+3)}, {v(u+k)}, vcc")
        amap[(T, s)] = u + k; k += 1
    for n, (T, sl) in enumerate(PROJ):
        for r2 in range(2):
            rho = 2 * sl + r2; s = rho // 5
            if (T, s) in amap: PHF(f"ds_read_b64_tr_b16 {a_(aPH+4*n+2*r2,2)}, {v(amap[(T,s)])} offset:{(rho%5)*160}")
            else: PHF(f"ds_read_b64_tr_b16 {a_(aPH+4*n+2*r2,2)}, {v(u+3)}")
    core = Core(stages, 4, "w")
    QR = 68
    def pb_regs(r):
        P = Stream()
        P(f"v_and_b32 {v(r+3)}, 31, {v(vL)}", f"v_lshlrev_b32 {v(r+3)}, 2, {v(r+3)}")
        ck_, lim_ = (sMT, 10) if QROT else (sMT, 5)
        cond_voff(P, r, r + 3, ck_, lim_, True); cond_voff(P, r + 1, vFL, ck_, lim_, False)
        poll_setup(P, r + 2, 40, 41, r + 4)
        return P
    S(f"s_lshl_b32 s40, s{sSL}, 8", f"s_add_u32 s40, s40, {WS_SF + 40*128}", f"s_lshl_b32 s41, s{sMT}, 7", f"s_add_u32 s41, s41, {WS_SF + 24*128}", f"s_lshl_b32 s{sT0}, s{sMT}, 2", f"s_add_u32 s43, s40, s{sT0}",
      f"s_add_u32 s38, s{sT0}, s{sW}", "s_lshl_b32 s38, s38, 7", f"s_add_u32 s38, s38, {WS_RS}", f"s_lshl_b32 s39, s{sSL}, 10", f"s_add_u32 s39, s39, {WS_CSQ}")
    S += pb_regs(116)
    def q_pub(r, n, o, tok, vCS=vCS):
        E = Stream()
        for T in range(n):
            E(f"v_cndmask_b32 {v(vCS+4*T)}, {v(vCS+4*T+1)}, {v(vCS+4*T)}, s[96:97]")
            E.I(f"buffer_atomic_add_f32 {v(vCS+4*T)}, {v(r)}, {SWS}, s39 offen offset:{128*(o+T)}", tok=tok if T == n - 1 else None)
        return E
    def q_flag(r, k): return Stream([Ins(f"buffer_store_dword a255, {v(r+1)}, {SWS}, s43 offen offset:{128*k} sc1")])
    def q_ptxt(r, k): return f"buffer_load_dword {v(r+4)}, {v(r+2)}, {SWS}, 0 offen offset:{128*k} sc1"
    def q_fetch(r, k, n, o, d):
        E = Stream()
        poll_check(E, f"cs{k}q", r + 4, 1, q_ptxt(r, k), (0x3FF if QROT else 0x1F) | ((0x1F << 16) if k == 0 else 0))
        for T in range(n): E(f"buffer_load_dword {v(d+T)}, {v(r+3)}, {SWS}, s39 offen offset:{128*(o+T)} sc1")
        if k == 0: E(f"buffer_load_dword {v(d+5)}, {v(r+3)}, {SWS}, s38 offen sc1", "s_add_u32 s38, s38, 8192", f"buffer_load_dword {v(d+6)}, {v(r+3)}, {SWS}, s38 offen sc1")
        return E
    def q_corr(n, d, acc, tt_):
        E = Stream()
        for T in range(n): split3(E, vCS + 4 * T, d + T, tt_, "A")
        for T in range(n): E(f"v_mfma_f32_32x32x16_bf16 {v(acc+16*T,16)}, {v(vCS+4*T,4)}, {v(vMB,4)}, {v(acc+16*T,16)}")
        return E
    hb = {3: ["phid", "ldsz"]}
    S(f"v_or_b32 {v(114)}, s{sST+3}, {v(vFL)}", f"s_lshl_b32 s{sST+3}, s{sMT}, 2")
    S.wait("zst"); S("s_barrier", f"buffer_store_dword a255, {v(114)}, {SDBG}, s{sST+3} offen sc1")
    if not QS1: S += x_dma(1); S += w_dma(1)
    ha = {0: Stream(x_dma(2) + w_dma(2) + LATE + x_dma(3)), 4: PHF, 9: Stream()}
    def addq(j, st_): ha[j] = Stream(ha.get(j, Stream()) + st_)
    addq(QP1AT - 1, poll1_issue()); addq(QP1AT, poll1_check("q")); addq(QPB[0], q_pub(116, 5, 0, "qa0"))
    hb[QPB[1]] = hb.get(QPB[1], []) + ["qa0"]; addq(QPB[1], q_flag(116, 0)); addq(QPB[2] - 1, Stream([Ins(q_ptxt(116, 0))]))
    FE = q_fetch(116, 0, 5, 0, 88)
    if QTAT:
        TCH = Stream(); q = vT + 8
        TCH(f"v_lshrrev_b32 {v(q)}, 1, {v(vL)}", f"v_min_u32 {v(q)}, 19, {v(q)}", f"v_mul_u32_u24 {v(q)}, 3840, {v(q)}", f"v_and_b32 {v(q+1)}, 1, {v(vL)}", f"v_mul_u32_u24 {v(q+1)}, 156, {v(q+1)}",
            f"v_add_u32 {v(q)}, {v(q)}, {v(q+1)}", f"s_and_b32 s48, s{sMT}, 7", "s_lshl_b32 s48, s48, 2", f"s_add_u32 s48, s48, s{sW}", f"s_mul_i32 s48, s48, {20*3840}", f"s_mul_i32 s49, s{sSL}, 160",
            "s_add_u32 s48, s48, s49", f"buffer_load_dword {v(115)}, {v(q)}, {SW}, s48 offen")
        ha[QTAT] = Stream(ha.get(QTAT, Stream()) + TCH)
    ha[8] = Stream(ha.get(8, Stream()) + w_dma(10))
    if QPRE:
        VA[3] = 8; pp_ = p2_pre(); VA[3] = 20
        ha[QPRE] = Stream(ha.get(QPRE, Stream()) + pp_ + xre_load())
    ha[QPB[2]] = Stream(FE + ha.get(QPB[2], Stream()))
    ha[9] = Stream(w_dma(11) + ha[9])
    head, slots, first = core.build(3, hb, ha)
    left = interleave(slots, Stream(stats_from_sums("0x3fb8aa3b", 93, 94) + q_corr(5, 88, AKV, 96)), 4, start=first[9] + QC0)
    KL_ = Stream(left)
    stamp(S, 1)
    S += head
    stamp(S, 1)
    for n, sl in enumerate(slots):
        S += sl; S += core.tails[n]
        if n + 1 in [first[i] for i in range(1, 10)] + [len(slots)]: stamp(S, 1)
        if n + 1 in [first[i] for i in range(1, 10)]: stamp(S, 2)
    stamp(S)
    stamp(S, 2)
    PK = vCS; TT = vT; ta = 120; kr = 21
    A1 = Stream()
    A1(f"v_and_b32 {v(ta)}, 31, {v(vL)}", f"s_lshl_b32 s{sT0}, s{sW}, 5", f"v_add_u32 {v(ta)}, s{sT0}, {v(ta)}", f"v_mul_u32_u24 {v(ta)}, {RS}, {v(ta)}",
      f"v_lshrrev_b32 {v(ta+1)}, 5, {v(vL)}", f"v_mul_u32_u24 {v(ta+2)}, 96, {v(ta+1)}", f"v_add_u32 {v(ta+2)}, {v(ta+2)}, {v(ta)}",
      f"v_mul_u32_u24 {v(ta+1)}, 160, {v(ta+1)}", f"v_add_u32 {v(ta+1)}, {v(ta+1)}, {v(ta)}")
    A1(f"v_lshrrev_b32 {v(kr+2)}, 4, {v(vL)}", f"v_bfe_u32 {v(kr+1)}, {v(vL)}, 2, 2", f"v_lshl_add_u32 {v(kr+1)}, {v(kr+2)}, 3, {v(kr+1)}", f"v_mul_u32_u24 {v(kr+1)}, {RS}, {v(kr+1)}",
      f"v_and_b32 {v(kr)}, 3, {v(vL)}", f"v_lshl_add_u32 {v(kr+1)}, {v(kr)}, 3, {v(kr+1)}",
      f"s_mul_i32 s{sT0}, s{sW}, 80", f"s_mul_i32 s{sT1}, s{sW}, 48", f"s_add_u32 s{sT1}, s{sT1}, 320", f"v_add_u32 {v(kr)}, s{sT0}, {v(kr+1)}", f"v_add_u32 {v(kr+1)}, s{sT1}, {v(kr+1)}")
    A2 = Stream()
    A2(f"v_lshrrev_b32 {v(ta)}, 4, {v(vL)}", f"v_mul_u32_u24 {v(ta+4)}, 768, {v(ta)}", f"v_and_b32 {v(ta+5)}, 15, {v(vL)}", f"v_lshl_add_u32 {v(ta+4)}, {v(ta+5)}, 2, {v(ta+4)}", f"v_lshlrev_b32 {v(ta+6)}, 2, {v(ta+5)}",
      f"s_lshl_b32 s42, s{sSL}, 14", f"s_mul_i32 s98, s{sW}, 4032", "s_add_u32 s42, s42, s98", f"s_add_u32 s42, s42, {WS_KV}")
    AV = [ta + 4, 116, 117, 118, 119, ta + 5]
    A2(f"v_mov_b32 {v(ta)}, {hex(HUGE)}")
    for n, m in enumerate([None, 0xFFFFFFFF, 0xFFFF, 0x00FF00FF00FF00FF, 0x00FF00FF, 0x00FF]):
        if m is None: continue
        A2(f"s_mov_b32 s98, {hex(m & 0xFFFFFFFF)}", f"s_mov_b32 s99, {hex(m >> 32)}", f"v_cndmask_b32 {v(AV[n])}, {v(ta)}, {v(ta+4)}, s[98:99]")
    st_ = Stream(); stamp(st_, 2)
    if QPRE: S("v_mov_b32 v20, v8")
    S += KL_; S += A1; S.wait("q0"); S("s_barrier"); S += st_
    for h_ in range(1 if QROT else 2):
        for T in range(3):
            f_ = aWF + 4 * (3 * h_ + T); o_ = 32 * T + h_ * 10240
            S(f"ds_read_b64_tr_b16 {a_(f_,2)}, {v(vQB)} offset:{o_}", f"ds_read_b64_tr_b16 {a_(f_+2,2)}, {v(vQB)} offset:{o_+80}")
    stamp(S, 2)
    stamp(S)
    S0 = S; S = Stream()
    PJ = Stream(); project(PJ, AKV, PK, AQ)
    VW_ = Stream()
    for i in range(40): VW_(f"v_mul_f32 {v(AKV+40+i)}, {v(AKV+40+i)}, {v(vST+1)}")
    for s in range(2):
        for i in range(10): VW_(f"v_cvt_pk_bf16_f32 {v(AKV+12*s+i)}, {v(AKV+40+20*s+2*i)}, {v(AKV+41+20*s+2*i)}")
        VW_(f"v_mov_b32 {v(AKV+12*s+10)}, 0x3f80", f"v_mov_b32 {v(AKV+12*s+11)}, 0")
    S += PJ[:20]
    for h_ in range(1 if QROT else 2):
        for T in range(3): S(f"v_mfma_f32_16x16x32_bf16 {v(96+4*T,4)}, {v(vSEL,4)}, {a_(aWF+4*(3*h_+T),4)}, {'0' if h_ == 0 else v(96+4*T,4)}")
    for n_, x in enumerate(PJ[20:]): S.append(x); S += VW_[6*n_:6*n_+6]
    S += q_pub(116, 3, 5, "qa1", 96)
    for i in range(6): S(f"ds_write_b128 {v(ta+2)}, {v(AKV+4*i,4)} offset:{L_TB+320+16*i}")
    for s in range(2):
        O = AKV + 40 + 20 * s
        softmax_pair(S, AQ + 20 * s, O, TT, False)
        for i in range(5): S(f"ds_write_b128 {v(ta+1)}, {v(O+4*i,4)} offset:{L_TB+80*s+16*i}")
    S0 += sprinkle(S, Stream(w_dma(12) + w_dma(13)), KP)
    S = S0
    S.drain(vm=False); S.wait("qa1"); S("s_barrier"); S += q_flag(116, 1)
    stamp(S)
    FR = AKV; KA = TT + 24
    for ks in range(4):
        for x in range(5):
            for r2 in range(2):
                ar, co = (kr + 1, 32 * x) if x < 2 else (kr, 32 * (x - 2))
                S(f"ds_read_b64_tr_b16 {v(FR+20*ks+4*x+2*r2,2)}, {v(ar)} offset:{L_TB+(32*ks+4*r2)*RS+co}")
    S += A2
    for ks in range(4):
        for a in range(2):
            for b in range(3):
                acc = v(KA + 12 * a + 4 * b, 4)
                S(f"v_mfma_f32_16x16x32_bf16 {acc}, {v(FR+20*ks+4*a,4)}, {v(FR+20*ks+8+4*b,4)}, {'0' if ks == 0 else acc}")
    AT = Stream()
    todo = [(a, r, b) for a in range(2) for r in range(4) for b in range(3)]
    for n, (a, r, b) in enumerate(todo):
        av = AV[(0 if a == 0 else (1 if r == 0 else 2)) + (3 if b == 2 else 0)]
        AT.I(f"buffer_atomic_add_f32 {v(KA+12*a+4*b+r)}, {v(av)}, {SWS}, s42 offen offset:{(16*a+r)*192+64*b}", tok="kvat" if n == len(todo) - 1 else None)
    if 'noat' in ABL: AT = Stream(AT[-1:])
    stamp(S)
    S += poll2_issue()
    stages = []
    for g in range(5):
        gg = 10 + g; mf = []
        for p8 in range(8):
            p = p8 & 3
            for T in range(3):
                sl_ = gg % 4 if gg < 14 else -1
                ar, off = (vQA + p, (sl_ + 1) * 20480) if sl_ < 2 else (vQB + p, (sl_ - 2) * 20480)
                off += 32 * T + (p8 >> 2) * 10240
                mf.append((AQ + 16 * T, f"{v(ar)} offset:{off}", f"{v(ar)} offset:{off+80}", 32 * g + 4 * p8, None, g == 0 and p8 == 0, None))
        stages.append(dict(mf=mf, dma=Stream(), xs=None))
    sKF = 79
    S(f"s_lshl_b32 s{sKF}, s{sSL}, 7", f"s_add_u32 s{sKF}, s{sKF}, {WS_KVFLAG}", f"s_lshl_b32 s{sT0}, s{sMT}, 2", f"s_add_u32 s{sQB+22}, s{sKF}, s{sT0}")
    hb = {}
    ha = {0: Stream(w_dma(14) + vw_setup() + (Stream() if QPRE else Stream(p2_pre() + xre_load())) + AT), 2: poll2_check("q")}
    for s_ in stages: s_["pace"] = QPACE
    S += pb_regs(QR)
    ha[2] += w2_stage("q", 0, 10)
    for k in range(4):
        j = max(3, (20 * k + 19) // 32 + 2)
        ha[j] = Stream(ha.get(j, Stream()) + w2_load(k))
    u = 88; oa = 21; A3 = Stream()
    A3(f"v_bfe_u32 {v(u)}, {v(vL)}, 3, 2", f"v_bfe_u32 {v(u+1)}, {v(vL)}, 2, 1", f"v_lshrrev_b32 {v(u+2)}, 5, {v(vL)}", f"v_cmp_eq_u32 s[98:99], {v(u+1)}, {v(u+2)}",
      f"v_and_b32 {v(u+2)}, 3, {v(vL)}", f"v_lshl_add_u32 {v(u+2)}, {v(u)}, 2, {v(u+2)}", f"v_mul_u32_u24 {v(u+1)}, 42, {v(u+1)}", f"v_add_u32 {v(u+2)}, {v(u+2)}, {v(u+1)}",
      f"v_mul_u32_u24 {v(u+2)}, 96, {v(u+2)}", f"v_mov_b32 {v(u+3)}, {L_ZERO}", f"v_cmp_gt_u32 s[50:51], 2, {v(u)}")
    A3(f"v_add_u32 {v(oa)}, {L_KB}, {v(u+2)}", f"v_add_u32 {v(oa+1)}, {L_KB+21*96}, {v(u+2)}", f"v_add_u32 {v(oa+2)}, {L_KB+16*96}, {v(u+2)}", f"v_add_u32 {v(oa+3)}, {L_KB+(21+16-8)*96}, {v(u+2)}",
      f"v_cndmask_b32 {v(oa+2)}, {v(u+3)}, {v(oa+2)}, s[50:51]", f"v_cndmask_b32 {v(oa+3)}, {v(oa+3)}, {v(u+3)}, s[50:51]")
    for k in range(4): A3(f"v_cndmask_b32 {v(oa+k)}, {v(u+3)}, {v(oa+k)}, s[98:99]")
    A3(f"s_lshl_b32 s48, s{sW}, 9", f"s_add_u32 s48, s48, {L_KB}", f"v_lshl_add_u32 {v(oa+4)}, {v(vL)}, 3, s48")
    core = Core(stages, 4, "q")
    head, slots, first = core.build(4, hb, ha)
    left = interleave(slots, A3, 1, start=first[2]); assert not left
    slots[QF[0]](q_ptxt(QR, 1)); slots[QF[1]] += q_fetch(QR, 1, 3, 5, 80)
    left = interleave(slots, q_corr(3, 80, AQ, 73), 3, start=first[4] + 12); assert not left
    S += head
    for n, sl in enumerate(slots):
        S += sl; S += core.tails[n]
        if n + 1 in [first[i] for i in range(1, 5)]: stamp(S, 2)
    stamp(S)
    W2rest = Stream(w2_load(4) + w2_load(14) + w2_load(15) + w2_load(16))
    S.wait("kvat"); S("s_barrier"); S += flag_store(sQB + 22, 0)
    E = Stream()
    project(E, AQ, PK, AKV)
    PQ = AQ
    softmax_pair(E, AKV, PQ, TT, True)
    E(f"v_mul_f32 {v(ta)}, {hex(0x358637bd)}, {v(TT+44)}")
    bgA = W2rest; bgA += p2_poll(0)
    bgA(f"buffer_load_dword {v(ta+7)}, {v(ta+6)}, {SWS}, s{sKF} offen sc1")
    S += sprinkle(E, bgA, QP1)
    W2rest = p2_L(0, SWS)
    W2r2 = w2_stage("q", 10, 23)
    W2r3 = [Stream(w2_load(5) + w2_load(6)), w2_stage("q", 23, 35)]
    poll_check(S, "p0q", vPV, 1, p2_poll_txt(0), 0xFF)
    poll_check(S, "kv", ta + 7, 1, f"buffer_load_dword {v(ta+7)}, {v(ta+6)}, {SWS}, s{sKF} offen sc1", 0xFFFF)
    stamp(S)
    KL = AKV + 48
    S(f"s_lshl_b32 s{sT2}, s{sSL}, 14", f"s_add_u32 s{sT2}, s{sT2}, {WS_KV}", f"s_lshl_b32 s{sT0}, s{sW}, 10", f"s_add_u32 s{sT2}, s{sT2}, s{sT0}")
    for i in range(4):
        S(f"buffer_load_dwordx4 {v(KL+4*i,4)}, {v(vL16)}, {SWS}, s{sT2} offen sc1")
        if i < 3: S(f"s_add_u32 s{sT2}, s{sT2}, 4096")
    E = Stream(); softmax_pair(E, AKV + 20, PQ + 20, TT, True)
    S += sprinkle(E, W2rest, QP2)
    S(f"v_mul_f32 {v(ta+1)}, {hex(0x358637bd)}, {v(TT+44)}")
    for i in range(4):
        S(f"v_cvt_pk_bf16_f32 {v(KL+4*i)}, {v(KL+4*i)}, {v(KL+4*i+1)}", f"v_cvt_pk_bf16_f32 {v(KL+4*i+1)}, {v(KL+4*i+2)}, {v(KL+4*i+3)}",
          f"ds_write_b64 {v(oa+4)}, {v(KL+4*i,2)} offset:{2048*i}")
    S.drain(vm=False); S("s_barrier")
    W2r2 += p2_poll(1)
    S0 = S; S = Stream()
    FRO = AKV
    ON = TT + 8
    ON = vCS
    for k in range(4):
        for s in range(5): S(f"ds_read_b128 {v(FRO+20*k+4*s,4)}, {v(oa+k)} offset:{16*s}")
    for k in range(4):
        T = min(k, 2); slot = k & 1
        for s in range(5):
            acc = v(ON + 16 * T, 16)
            S(f"v_mfma_f32_32x32x16_bf16 {acc}, {v(FRO+20*k+4*s,4)}, {v(PQ+20*slot+4*s,4)}, {'0' if (s == 0 and k < 3) else acc}")
    S(f"v_add_f32 {v(ta)}, {v(ON+36)}, {v(ta)}", f"v_add_f32 {v(ta+1)}, {v(ON+44)}, {v(ta+1)}", f"v_rcp_f32 {v(ta+2)}, {v(ta)}", f"v_rcp_f32 {v(ta+3)}, {v(ta+1)}")
    OP = AKV
    for s in range(2):
        src = [ON + 16 * s + i for i in range(16)] + [ON + 32 + 8 * s + i for i in range(4)]
        sel = "op_sel_hi:[1,0]" if s == 0 else "op_sel:[0,1] op_sel_hi:[1,1]"
        for i in range(0, 20, 2): S(f"v_pk_mul_f32 {v(src[i],2)}, {v(src[i],2)}, {v(ta+2,2)} {sel}")
        for i in range(10): S(f"v_cvt_pk_bf16_f32 {v(OP+10*s+i)}, {v(src[2*i])}, {v(src[2*i+1])}")
    S0 += sprinkle(S, W2r2, QP3); S = S0
    S(f"s_mul_i32 s{sT0}, s{sSL}, 5120", f"s_add_u32 s{sT0}, s{sT0}, s{sAPB}", f"s_add_u32 s{sT0}, s{sT0}, {96*1024}", f"s_add_u32 s{sT1}, s{sT0}, 4096")
    for i in range(4): S(f"buffer_store_dwordx4 {v(OP+4*i,4)}, {v(vL16)}, {SWS}, s{sT0} offen offset:{1024*i} sc1")
    S.I(f"buffer_store_dwordx4 {v(OP+16,4)}, {v(vL16)}, {SWS}, s{sT1} offen sc1", tok="ost")
    S(f"s_lshl_b32 s{sKF}, s{sMT}, 9", f"s_lshl_b32 s{sT0}, s{sSL}, 2", f"s_add_u32 s{sKF}, s{sKF}, s{sT0}")
    S += phase2("q", W2r3, "ost", flag_store(sKF, 384), False)
    return S

def main(outpath):
    hdr = open("parallel_sum__linear_kernel_hedgehog__glu_gated_glu__prompt.s.ref").read().split("; Override launch")[0]
    out = []
    st = State()
    finalize(prologue(), st, out)
    n0 = 0
    finalize(glu_path(), st.copy(), out)
    nstamp[0] = n0
    st2 = st.copy(); st2.hist = []
    out.append(".p2align 6")
    finalize(qkv_path(), st2, out)
    for L in slow_paths: out += L
    out.append("L_end:")
    txt = hdr + "; @launch grid=(256,1,1) block=(256,1,1) lds=163840\n" + f""".amdgcn_target "amdgcn-amd-amdhsa--gfx950"
.text
.globl {KN}
.p2align 8
.type {KN},@function
; Generated by the author's own script. One persistent launch, 256 workgroups (one per CU), 4 waves x 512 registers.
; Phase 1: 128 GLU workgroups (128 rows x 3 chunks of 64 gate + 64 up columns) and 128 QKV workgroups (128 rows x 4 heads),
;   x tile stationary in AGPRs, weights streamed by LDS-DMA + transposing LDS reads, LayerNorm folded in as a rank-1 MFMA
;   correction plus a per-row scale; hedgehog softmax lane-local; kv/z reduced with f32 atomics; h and o published in
;   MFMA-fragment order through d_ws (write-through stores + flags; flags zeroed in-launch, announced through d_debug).
; Phase 2: every workgroup computes a 64x80 output tile over K = 2176 (split over the 4 waves), adds x, stores bf16.
{KN}:
""" + "\n".join(out) + f"""
    s_endpgm
.section .rodata,"a"
.p2align 6
.amdhsa_kernel {KN}
  .amdhsa_next_free_vgpr 512
  .amdhsa_next_free_sgpr 102
  .amdhsa_accum_offset 256
  .amdhsa_group_segment_fixed_size 0
  .amdhsa_kernarg_size 88
  .amdhsa_user_sgpr_count 2
  .amdhsa_user_sgpr_kernarg_segment_ptr 1
  .amdhsa_system_sgpr_workgroup_id_x 1
.end_amdhsa_kernel
"""
    open(outpath, "w").write(txt)
    print("lines", len(out))

if __name__ == "__main__":
    for a in sys.argv:
        if a.startswith("--abl="): ABL.update(a[6:].split(","))
    if "--c1" in sys.argv: STGRP = 1
    if "--c2" in sys.argv: STGRP = 2
    if "--c3" in sys.argv: STGRP = 3
    for a in sys.argv:
        if a.startswith("--set="):
            k_, v_ = a[6:].split("="); globals()[k_] = eval(v_)
    if "--stamps" in sys.argv: STAMPS = True
    if "--cyc" in sys.argv: STAMPS = True; STAMPOP = "s_memtime"
    main([a for a in sys.argv[1:] if not a.startswith("--")][0])
```
